```python
import torch

def _softmax(x, axis=-1):
    return torch.softmax(x, dim=axis)

def _gelu(x):
    return torch.nn.functional.gelu(x, approximate='tanh')

def _silu(x):
    return torch.nn.functional.silu(x)

def _sigmoid(x):
    return torch.sigmoid(x)

def _layernorm(x, axis=-1, eps=1e-05):
    m = x.mean(dim=axis, keepdim=True)
    v = x.var(dim=axis, keepdim=True, unbiased=False)
    return (x - m) / torch.sqrt(v + eps)

def _scatter_add(tgt, idx, src, axis=0):
    return tgt.clone().index_add_(axis, idx, src)

def _segment_sum(src, seg, n):
    out = torch.zeros((n,) + src.shape[1:], dtype=src.dtype)
    return out.index_add_(0, seg, src)

def _pad(x, pw):
    flat = tuple((v for pair in reversed(pw) for v in pair))
    return torch.nn.functional.pad(x, flat)
kernel_name = 'adaLN_cond__gqa_block_cached__dense_activation_silu__decode'

def setup_inputs():

    _w = lambda a: (lambda t: t.to(torch.bfloat16) if t.is_floating_point() else t)(torch.as_tensor(a))

    def _A_setup():
        B, Sq, D = (2, 1, 512)
        Hq, Hkv, Sk, Dh = (32, 32, 4096, 128)
        assert Hq % Hkv == 0, (Hq, Hkv)
        return {'x': _w((lambda *s: torch.randn(*s, dtype=torch.bfloat16) * 0.1)(B, Sq, D)), 'k_cache': _w((lambda *s: torch.randn(*s, dtype=torch.bfloat16) * 0.8)(B, Hkv, Sk, Dh)), 'v_cache': _w((lambda *s: torch.randn(*s, dtype=torch.bfloat16) * 3.2)(B, Hkv, Sk, Dh)), 'wq': _w((lambda *s: torch.randn(*s, dtype=torch.bfloat16) * 0.8)(D, Hq * Dh) * D ** (-0.5)), 'wo': _w((lambda *s: torch.randn(*s, dtype=torch.bfloat16) * 3.2)(Hq * Dh, D) * (Hq * Dh) ** (-0.5))}
    _A_in = _A_setup()

    def _B_setup():
        B, S, D, F = (2, 1, 512, 1376)
        return {'x': _w((lambda *s: torch.randn(*s, dtype=torch.bfloat16) * 0.1)(B, S, D)), 'w1': _w((lambda *s: torch.randn(*s, dtype=torch.bfloat16) * 3.2)(D, F) * D ** (-0.5)), 'w2': _w((lambda *s: torch.randn(*s, dtype=torch.bfloat16) * 3.2)(F, D) * F ** (-0.5))}
    _B_in = _B_setup()
    return {'A_x': _A_in['x'], 'A_k_cache': _A_in['k_cache'], 'A_v_cache': _A_in['v_cache'], 'A_wq': _A_in['wq'], 'A_wo': _A_in['wo'], 'B_x': _B_in['x'], 'B_w1': _B_in['w1'], 'B_w2': _B_in['w2'], 'c': _w((lambda *s: torch.randn(*s, dtype=torch.bfloat16) * 0.2)(2, 512) * 8.0), 'w_mod': _w((lambda *s: torch.randn(*s, dtype=torch.bfloat16) * 0.2)(512, 6 * 512) * 512 ** (-0.5) * 8.0)}

def reference(A_x, A_k_cache, A_v_cache, A_wq, A_wo, B_x, B_w1, B_w2, c, w_mod):

    def _A_ref(x, k_cache, v_cache, wq, wo):
        B, Sq, D = x.shape
        Hq, Dh = (32, 128)
        Hkv = k_cache.shape[1]
        rep = Hq // Hkv
        q = (lambda x, *d: x.permute(*d))((x @ wq).reshape(B, Sq, Hq, Dh), 0, 2, 1, 3)
        k = (lambda x, n, axis: torch.repeat_interleave(x, n, dim=axis))(k_cache, rep, axis=1)
        v = (lambda x, n, axis: torch.repeat_interleave(x, n, dim=axis))(v_cache, rep, axis=1)
        scores = torch.einsum('bhqd,bhkd->bhqk', q, k) * Dh ** (-0.5)
        p = _softmax(scores, axis=-1)
        o = torch.einsum('bhqk,bhkd->bhqd', p, v)
        return (lambda x, *d: x.permute(*d))(o, 0, 2, 1, 3).reshape(B, Sq, Hq * Dh) @ wo

    def _B_ref(x, w1, w2):
        h = torch.einsum('bsd,df->bsf', x, w1)
        h = _silu(h)
        out = torch.einsum('bsf,fd->bsd', h, w2)
        return out
    x = A_x
    mod = (_silu(c) @ w_mod).reshape(c.shape[0], 6, 1, -1)
    sa, ca, ga, sb, cb, gb = (mod[:, 0].clone(), mod[:, 1].clone(), mod[:, 2].clone(), mod[:, 3].clone(), mod[:, 4].clone(), mod[:, 5].clone())
    h = _layernorm(x, axis=-1) * (1 + ca) + sa
    x = x + ga * _A_ref(h, A_k_cache, A_v_cache, A_wq, A_wo)
    h = _layernorm(x, axis=-1) * (1 + cb) + sb
    x = x + gb * _B_ref(h, B_w1, B_w2)
    return x
```

```python
import sys

NAME = "adaLN_cond__gqa_block_cached__dense_activation_silu__decode"

WS_EPOCH = 0x0
WS_MODP = 0x1000
WS_ML = 0x8000
WS_QP = 0x10000
WS_OS = 0x90000
WS_YS = 0xA0000
WS_GS = 0xA8000
WS_SIZE = 0x100000

L_Q = 0x0000
L_MLW = 0x0100
L_RED = 0x0200
L_RED2 = 0x0A00
L_STAT = 0x0C00
L_RED4 = 0x0D00
L_ACT1 = 0x1000
L_ACT2 = 0x1800
L_ACT3 = 0x2000
L_RED3 = 0x3800
L_WMOD = 0x8000
L_WQ = 0xC000
L_WO = 0x10000
L_W12 = 0x14000
LDS_SIZE = 0x1F000

sX, sR, sH, sJ, sB, sS = "s48", "s49", "s50", "s51", "s52", "s53"
sT0, sT1, sT2, sT3 = "s54", "s55", "s56", "s57"
sA = "s58"
sPHI = "s59"
sM1, sM0 = "s[60:61]", "s[62:63]"
sCNT = "s70"
sTAG = "s31"
SRD_A, SRD_B, SRD_WS, SRD_D = 32, 36, 40, 44
POLL_LIMIT = 400000

LOG2E = 1.4426950408889634
CS = (128 ** -0.5) * LOG2E


def f2u(x):
    import struct
    return struct.unpack("<I", struct.pack("<f", x))[0]


class G:
    def __init__(self):
        self.L = []
        self.n = 0

    def __call__(self, *txt):
        for t in txt:
            self.L.extend(t.split("\n"))

    def lab(self, base):
        self.n += 1
        return f"L_{base}_{self.n}"

    def text(self):
        return "\n".join(self.L) + "\n"


def v(a, n=1):
    return f"v{a}" if n == 1 else f"v[{a}:{a+n-1}]"


def srd(n):
    return f"s[{n}:{n+3}]"


def make_srd(g, d, plo, off, total):
    if isinstance(off, int):
        if off:
            g(f"s_add_u32 s{d}, s{plo}, {off}", f"s_addc_u32 s{d+1}, s{plo+1}, 0")
        else:
            g(f"s_mov_b32 s{d}, s{plo}", f"s_mov_b32 s{d+1}, s{plo+1}")
        g(f"s_mov_b32 s{d+2}, {total - off}")
    else:
        g(f"s_add_u32 s{d}, s{plo}, {off}", f"s_addc_u32 s{d+1}, s{plo+1}, 0",
          f"s_sub_u32 s{d+2}, {total}, {off}")
    g(f"s_mov_b32 s{d+3}, 0x20000")


def allreduce(g, regs, op, tmps):
    pad = max(0, 2 - (len(regs) - 1))
    for ctl in ("row_ror:8", "row_ror:4", "row_ror:2", "row_ror:1"):
        g("s_nop 1")
        for r in regs:
            g(f"{op}_dpp v{r}, v{r}, v{r} {ctl} row_mask:0xf bank_mask:0xf")
    for sw in ("v_permlane16_swap_b32", "v_permlane32_swap_b32"):
        g("s_nop 0")
        for r, t in zip(regs, tmps):
            g(f"v_mov_b32 v{t}, v{r}")
        g("s_nop 1")
        for r, t in zip(regs, tmps):
            g(f"{sw} v{r}, v{t}")
        g("s_nop 1")
        for r, t in zip(regs, tmps):
            g(f"{op} v{r}, v{r}, v{t}")


def poll(g, name, issue, check):
    lp, dn = g.lab(name), g.lab(name + "_done")
    g(f"s_mov_b32 {sCNT}, 0", f"{lp}:")
    issue()
    g("s_waitcnt vmcnt(0)")
    check()
    g(f"s_add_u32 {sCNT}, {sCNT}, 1", f"s_cmp_gt_u32 {sCNT}, {POLL_LIMIT}",
      f"s_cbranch_scc1 {dn}", f"s_cbranch_vccnz {lp}", f"{dn}:")


def check_tags(g, tagregs, vtag, tmp):
    first = True
    for t in tagregs:
        if first:
            g(f"v_xor_b32 v{tmp}, v{t}, v{vtag}")
            first = False
        else:
            g(f"v_xor_b32 v{tmp+1}, v{t}, v{vtag}", f"v_or_b32 v{tmp}, v{tmp}, v{tmp+1}")
    g(f"v_cmp_ne_u32 vcc, 0, v{tmp}")


def check_sentinel(g, regs, tmp):
    regs = list(regs)
    g(f"v_max_u32 v{tmp}, v{regs[0]}, v{regs[1]}")
    rest = regs[2:]
    while len(rest) >= 2:
        g(f"v_max3_u32 v{tmp}, v{tmp}, v{rest[0]}, v{rest[1]}")
        rest = rest[2:]
    if rest:
        g(f"v_max_u32 v{tmp}, v{tmp}, v{rest[0]}")
    g(f"v_cmp_eq_u32 vcc, -1, v{tmp}")


def silu(g, x, t):
    g(f"v_mul_f32 v{t}, {hex(f2u(-LOG2E))}, v{x}", f"v_exp_f32 v{t}, v{t}", "s_nop 0",
      f"v_add_f32 v{t}, 1.0, v{t}", f"v_rcp_f32 v{t}, v{t}", "s_nop 0", f"v_mul_f32 v{x}, v{x}, v{t}")


def dma(g, voff, srdn, soff, lds_addr, nt=True):
    g(f"s_mov_b32 m0, {lds_addr}" if isinstance(lds_addr, int) else f"s_mov_b32 m0, {lds_addr}")
    g("s_nop 0")
    g(f"buffer_load_dwordx4 v{voff}, {srd(srdn)}, {soff} offen{' nt' if nt else ''} lds")


def gen_stream(g, NS, W, opt):
    vOFF = 1
    vQ = 2
    vM = 6
    vD = 10
    vB = [14, 18]
    vS = 22
    vT = 26
    vX = 42
    vSL = 48
    assert vSL + 4 * NS <= 256

    def slot(I):
        return vSL + 4 * (I % NS)

    g(f"s_lshl_b32 {sT0}, {sB}, 5", f"s_add_u32 {sT0}, {sT0}, {sH}", f"s_lshl_b32 {sT0}, {sT0}, 20",
      f"s_lshl_b32 {sT1}, {sS}, 18", f"s_add_u32 {sT0}, {sT0}, {sT1}")
    g(f"s_add_u32 s{SRD_A}, s6, {sT0}", f"s_addc_u32 s{SRD_A+1}, s7, 0", f"s_mov_b32 s{SRD_A+2}, 0x40000",
      f"s_mov_b32 s{SRD_A+3}, 0x20000")
    g(f"s_add_u32 s{SRD_B}, s8, {sT0}", f"s_addc_u32 s{SRD_B+1}, s9, 0", f"s_mov_b32 s{SRD_B+2}, 0x40000",
      f"s_mov_b32 s{SRD_B+3}, 0x20000")
    g(f"s_lshl_b32 {sT1}, s3, 12", f"v_lshlrev_b32 v{vOFF}, 4, v0", f"v_add_u32 v{vOFF}, {sT1}, v{vOFF}")

    state = {"K": None, "V": None}

    def issue(I):
        isK = I < 64
        n = I & 63
        rho, t = n >> 2, n & 3
        key, sreg, sr = ("K", sT2, SRD_A) if isK else ("V", sT3, SRD_B)
        if state[key] != rho:
            g(f"s_mov_b32 {sreg}, {rho * 16384}")
            state[key] = rho
        g(f"buffer_load_dwordx4 {v(slot(I), 4)}, v{vOFF}, {srd(sr)}, {sreg} offen offset:{t*1024} nt")

    def throttled(I):
        if I >= W:
            g(f"s_waitcnt vmcnt({W-1})")
        issue(I)

    for I in range(NS):
        throttled(I)
    g(f"v_and_b32 v{vX}, 15, v0", f"v_lshrrev_b32 v{vX+1}, 1, v{vX}", f"v_and_b32 v{vX+2}, 1, v{vX}",
      f"v_mov_b32 v{vX+3}, 0xffff", f"v_mov_b32 v{vX+4}, 0xffff0000",
      f"v_cmp_eq_u32 vcc, 1, v{vX+2}", "s_nop 1", f"v_cndmask_b32 v{vX+3}, v{vX+3}, v{vX+4}, vcc")
    for r in range(4):
        g(f"v_cmp_eq_u32 vcc, {r}, v{vX+1}", "s_nop 1", f"v_cndmask_b32 v{vM+r}, 0, v{vX+3}, vcc")
    g(f"s_mov_b32 s60, 0xcccccccc", "s_mov_b32 s61, 0xcccccccc", "s_mov_b32 s62, 0xaaaaaaaa", "s_mov_b32 s63, 0xaaaaaaaa")
    for r in range(4):
        g(f"v_mov_b32 v{vD+r}, 0")
    g(f"v_lshlrev_b32 v{vX}, 4, v{vX}")
    g("s_barrier")
    g(f"ds_read_b128 {v(vQ,4)}, v{vX} offset:{L_Q}", "s_waitcnt lgkmcnt(0)")

    def kgroup(gam):
        for q4 in range(4):
            ns = [16 * gam + 4 * q4 + i for i in range(4)]
            for r in range(4):
                for n in ns:
                    t = vT + (n & 15)
                    c = "0" if r == 0 else f"v{t}"
                    g(f"v_dot2_f32_bf16 v{t}, v{slot(n)+r}, v{vQ+r}, {c}")
        g("s_nop 2")
        for n in range(8):
            g(f"v_add_f32_dpp v{vT+n}, v{vT+n}, v{vT+n} row_ror:8 row_mask:0xf bank_mask:0x3")
            g(f"v_add_f32_dpp v{vT+n}, v{vT+n+8}, v{vT+n+8} row_ror:8 row_mask:0xf bank_mask:0xc")
        for n in range(4):
            g(f"v_add_f32_dpp v{vT+n}, v{vT+n}, v{vT+n} row_shl:4 row_mask:0xf bank_mask:0x5")
            g(f"v_add_f32_dpp v{vT+n}, v{vT+n+4}, v{vT+n+4} row_shr:4 row_mask:0xf bank_mask:0xa")
        g("s_nop 0")
        for n in range(4):
            g(f"v_add_f32_dpp v{vT+n}, v{vT+n}, v{vT+n} quad_perm:[2,3,0,1] row_mask:0xf bank_mask:0xf")
        g(f"v_cndmask_b32 v{vT}, v{vT}, v{vT+2}, {sM1}", f"v_cndmask_b32 v{vT+1}, v{vT+1}, v{vT+3}, {sM1}", "s_nop 1")
        for n in range(2):
            g(f"v_add_f32_dpp v{vT+n}, v{vT+n}, v{vT+n} quad_perm:[1,0,3,2] row_mask:0xf bank_mask:0xf")
        g(f"v_cndmask_b32 v{vS+gam}, v{vT}, v{vT+1}, {sM0}")

    issued = NS
    for gam in range(4):
        last = 16 * gam + 15
        if last >= NS - 1:
            while issued <= last + W - 1:
                assert issued - NS < 16 * gam
                throttled(issued); issued += 1
        g(f"s_waitcnt vmcnt({min(issued - 1 - last, 63)})")
        kgroup(gam)
        if gam < 3:
            for _ in range(opt.get("burst_issue", 2)):
                assert issued - NS < 16 * (gam + 1)
                throttled(issued); issued += 1
    g(f"v_max3_f32 v{vX}, v{vS}, v{vS+1}, v{vS+2}", f"v_max_f32 v{vX}, v{vX}, v{vS+3}")
    allreduce(g, [vX], "v_max_f32", [vX + 1])
    g(f"v_mul_f32 v{vX}, {hex(f2u(CS))}, v{vX}")
    g(f"s_mov_b32 {sT0}, {hex(f2u(CS))}")
    throttled(issued); issued += 1
    for r in range(4):
        g(f"v_fma_f32 v{vS+r}, v{vS+r}, {sT0}, -v{vX}")
    for r in range(4):
        g(f"v_exp_f32 v{vS+r}, v{vS+r}")
    g("s_nop 0")
    g(f"v_add_f32 v{vX+1}, v{vS}, v{vS+1}", f"v_add_f32 v{vX+2}, v{vS+2}, v{vS+3}", f"v_add_f32 v{vX+1}, v{vX+1}, v{vX+2}")
    for r in range(4):
        g(f"v_cvt_pk_bf16_f32 v{vS+r}, v{vS+r}, v{vS+r}")
    allreduce(g, [vX + 1], "v_add_f32", [vX + 2])
    g(f"s_lshl_b32 {sT0}, s3, 3", f"v_mov_b32 v{vX+2}, {sT0}", "s_mov_b64 exec, 1",
      f"ds_write_b64 v{vX+2}, {v(vX,2)} offset:{L_MLW}", "s_mov_b64 exec, -1", "s_waitcnt lgkmcnt(0)")
    throttled(issued); issued += 1
    g("s_barrier")
    g(f"v_mov_b32 v{vX+1}, 0", f"ds_read_b128 {v(vT,4)}, v{vX+1} offset:{L_MLW}",
      f"ds_read_b128 {v(vT+4,4)}, v{vX+1} offset:{L_MLW+16}", "s_waitcnt lgkmcnt(0)",
      f"v_max3_f32 v{vX+1}, v{vT}, v{vT+2}, v{vT+4}", f"v_max_f32 v{vX+1}, v{vX+1}, v{vT+6}",
      f"v_sub_f32 v{vX}, v{vX}, v{vX+1}", f"v_exp_f32 v{vX}, v{vX}")

    def pv(n):
        B = vB[n & 1]
        for r in range(4):
            g(f"v_and_b32_dpp v{B+r}, v{vS+(n>>4)}, v{vM+r} row_newbcast:{n&15} row_mask:0xf bank_mask:0xf")
        g("s_nop 1")
        g(f"v_mfma_f32_16x16x32_bf16 {v(vD,4)}, {v(slot(64+n),4)}, {v(B,4)}, {v(vD,4)}")

    b3_done = False
    for n in range(64):
        I = 64 + n
        while issued < 128 and issued <= I + W - 1:
            throttled(issued); issued += 1
        if issued == 128 and not b3_done:
            g("s_barrier")
            b3_done = True
        g(f"s_waitcnt vmcnt({issued - 1 - I})")
        pv(n)
    g("s_nop 7", "s_nop 1")
    for r in range(4):
        g(f"v_mul_f32 v{vD+r}, v{vD+r}, v{vX}")
    g(f"v_lshrrev_b32 v{vT}, 4, v0", f"v_lshlrev_b32 v{vT}, 7, v{vT}", f"v_and_b32 v{vT+1}, 15, v0",
      f"v_lshlrev_b32 v{vT+1}, 2, v{vT+1}", f"v_add_u32 v{vT}, v{vT}, v{vT+1}",
      f"s_lshl_b32 {sT0}, s3, 9", f"v_add_u32 v{vT}, {sT0}, v{vT}",
      "s_mov_b32 exec_lo, 0x00ff00ff", "s_mov_b32 exec_hi, 0x00ff00ff")
    for r in range(4):
        g(f"ds_write_b32 v{vT}, v{vD+r} offset:{L_RED + r*32}")
    g("s_mov_b64 exec, -1", "s_waitcnt lgkmcnt(0)", "s_barrier", "s_endpgm")


def gen_aux(g, opt):
    vL = 0
    vTAG = 1
    vI = 2
    vG = 3
    vWSO = 4
    g(f"s_load_dword s30, s[28:29], {WS_EPOCH}")
    g(f"s_sub_u32 {sA}, s3, 4")
    make_srd(g, SRD_WS, 28, 0, WS_SIZE)
    g(f"v_and_b32 v{vI}, 15, v0", f"v_lshrrev_b32 v{vG}, 4, v0")
    g(f"s_mul_i32 {sPHI}, {sX}, 6", f"s_add_u32 {sPHI}, {sPHI}, {sR}", f"s_sub_u32 {sPHI}, {sPHI}, 24",
      f"s_cmp_lt_u32 {sR}, 24", f"s_cselect_b32 {sPHI}, 0xff, {sPHI}",
      f"s_cmp_ge_u32 {sR}, 30", f"s_cselect_b32 {sPHI}, 0xff, {sPHI}",
      f"s_cmp_ge_u32 {sPHI}, 43", f"s_cselect_b32 {sPHI}, 0xff, {sPHI}")

    def tag_ready():
        g("s_waitcnt lgkmcnt(0)", f"s_mul_i32 {sTAG}, s30, 0x9e3779b1", f"s_add_u32 {sTAG}, {sTAG}, 0x3c6ef373",
          f"v_mov_b32 v{vTAG}, {sTAG}")

    LA1, LA2, LA3, LB1 = g.lab("a1"), g.lab("a2"), g.lab("a3"), g.lab("aux_b1")
    g(f"s_cmp_eq_u32 {sA}, 1", f"s_cbranch_scc1 {LA1}", f"s_cmp_eq_u32 {sA}, 2", f"s_cbranch_scc1 {LA2}",
      f"s_cmp_eq_u32 {sA}, 3", f"s_cbranch_scc1 {LA3}")

    g(f"s_cmp_ge_u32 {sR}, 24", f"s_cbranch_scc1 {LA3}")
    g(f"s_lshr_b32 {sT0}, {sR}, 2", f"s_lshl_b32 {sT0}, {sT0}, 9", f"s_lshl_b32 {sT1}, {sX}, 6", f"s_add_u32 {sT0}, {sT0}, {sT1}",
      f"s_and_b32 {sT1}, {sR}, 3", f"s_lshl_b32 {sT1}, {sT1}, 4", f"s_add_u32 {sT0}, {sT0}, {sT1}",
      f"s_lshl_b32 {sT1}, {sT0}, 1")
    make_srd(g, SRD_A, 22, sT1, 512 * 3072 * 2)
    make_srd(g, SRD_B, 20, 0, 2048)
    g(f"v_lshlrev_b32 v8, 4, v0")
    g(f"buffer_load_dwordx4 v[12:15], v8, {srd(SRD_B)}, 0 offen", f"buffer_load_dwordx4 v[16:19], v8, {srd(SRD_B)}, 0 offen offset:1024")
    g(f"v_lshrrev_b32 v9, 1, v0", f"s_mov_b32 {sT2}, 6144", f"v_mul_lo_u32 v9, v9, {sT2}", "v_and_b32 v10, 1, v0",
      "v_lshlrev_b32 v10, 4, v10", "v_add_u32 v9, v9, v10")
    for k in range(16):
        g(f"s_mov_b32 {sT2}, {k * 32 * 6144}")
        dma(g, 9, SRD_A, sT2, L_WMOD + k * 1024)
    g("s_waitcnt vmcnt(16)")
    for b in range(2):
        src = 12 + 4 * b
        for r in range(4):
            g(f"v_lshlrev_b32 v{20+2*r}, 16, v{src+r}", f"v_and_b32 v{21+2*r}, 0xffff0000, v{src+r}")
        for e in range(8):
            silu(g, 20 + e, 28)
        for r in range(4):
            g(f"v_cvt_pk_bf16_f32 v{32+r}, v{20+2*r}, v{21+2*r}")
        g(f"ds_write_b128 v8, v[32:35] offset:{L_ACT1 + b*1024}", "s_nop 1")
    g(f"v_and_b32 v10, 1, v{vI}", "v_lshlrev_b32 v10, 10, v10", f"v_lshlrev_b32 v11, 4, v{vG}", "v_add_u32 v10, v10, v11",
      f"v_lshlrev_b32 v11, 3, v{vG}", f"v_lshrrev_b32 v12, 2, v{vI}", "v_add_u32 v11, v11, v12", "v_lshlrev_b32 v11, 5, v11",
      f"v_and_b32 v12, 3, v{vI}", "v_lshlrev_b32 v12, 3, v12", "v_add_u32 v11, v11, v12")
    tag_ready()
    g("s_waitcnt vmcnt(0) lgkmcnt(0)")
    for k in range(16):
        g(f"ds_read_b128 {v(40+4*k,4)}, v10 offset:{L_ACT1 + k*64}")
        g(f"ds_read_b64_tr_b16 {v(104+4*k,2)}, v11 offset:{L_WMOD + k*1024}")
        g(f"ds_read_b64_tr_b16 {v(106+4*k,2)}, v11 offset:{L_WMOD + k*1024 + 128}")
        if k % 4 == 3:
            g("s_waitcnt lgkmcnt(0)")
            for kk in range(k - 3, k + 1):
                c = "0" if kk == 0 else "v[16:19]"
                g(f"v_mfma_f32_16x16x32_bf16 v[16:19], {v(40+4*kk,4)}, {v(104+4*kk,4)}, {c}")
    g("s_nop 7", "s_nop 1", "v_cvt_pk_bf16_f32 v20, v16, v17", f"v_mov_b32 v21, v{vTAG}",
      f"v_add_u32 v22, {sT0}, v{vI}", "v_lshlrev_b32 v22, 3, v22", "s_mov_b64 exec, 0xffff",
      f"s_mov_b32 {sT2}, {WS_MODP}",
      f"buffer_store_dwordx2 v[20:21], v22, {srd(SRD_WS)}, {sT2} offen sc1", "s_mov_b64 exec, -1")
    g(f"s_branch {LB1}")

    g(f"{LA1}:")
    g(f"s_lshl_b32 {sT0}, {sJ}, 19", f"s_lshl_b32 {sT1}, {sH}, 8", f"s_add_u32 {sT0}, {sT0}, {sT1}")
    make_srd(g, SRD_A, 10, sT0, 512 * 4096 * 2)
    make_srd(g, SRD_B, 4, 0, 2048)
    g("v_lshlrev_b32 v8, 4, v0")
    g(f"buffer_load_dwordx4 v[12:15], v8, {srd(SRD_B)}, 0 offen", f"buffer_load_dwordx4 v[16:19], v8, {srd(SRD_B)}, 0 offen offset:1024")
    g(f"s_lshl_b32 {sT1}, {sJ}, 7", "v_lshlrev_b32 v9, 1, v0",
      f"buffer_load_ushort v20, v9, {srd(SRD_B)}, {sT1} offen", f"buffer_load_ushort v21, v9, {srd(SRD_B)}, {sT1} offen offset:1024")
    g(f"v_lshlrev_b32 v9, 13, v{vG}", f"v_lshlrev_b32 v10, 4, v{vI}", "v_add_u32 v9, v9, v10")
    for t in range(16):
        g(f"s_mov_b32 {sT2}, {t * 4 * 8192}")
        dma(g, 9, SRD_A, sT2, L_WQ + t * 1024)
    g("s_waitcnt vmcnt(16)")
    for b in range(2):
        for r in range(4):
            g(f"v_lshlrev_b32 v{24+8*b+2*r}, 16, v{12+4*b+r}", f"v_and_b32 v{25+8*b+2*r}, 0xffff0000, v{12+4*b+r}")
    for b in range(2):
        base = 24 + 8 * b
        g(f"v_add_f32 v{40+b}, v{base}, v{base+1}")
        for e in range(2, 8):
            g(f"v_add_f32 v{40+b}, v{40+b}, v{base+e}")
    allreduce(g, [40, 41], "v_add_f32", [44, 45])
    g(f"v_mul_f32 v40, {hex(f2u(1/512))}, v40", f"v_mul_f32 v41, {hex(f2u(1/512))}, v41")
    for b in range(2):
        base = 24 + 8 * b
        for e in range(8):
            g(f"v_sub_f32 v{base+e}, v{base+e}, v{40+b}")
        g(f"v_mul_f32 v{42+b}, v{base}, v{base}")
        for e in range(1, 8):
            g(f"v_fmac_f32 v{42+b}, v{base+e}, v{base+e}")
    allreduce(g, [42, 43], "v_add_f32", [44, 45])
    for b in range(2):
        g(f"v_mov_b32 v44, {hex(f2u(1e-5))}", f"v_fmac_f32 v44, {hex(f2u(1/512))}, v{42+b}", f"v_rsq_f32 v{42+b}, v44", "s_nop 0")
    for b in range(2):
        g(f"v_lshlrev_b32 v{20+b}, 16, v{20+b}", f"v_sub_f32 v{20+b}, v{20+b}, v{40+b}", f"v_mul_f32 v{20+b}, v{20+b}, v{42+b}")
    g(f"v_lshlrev_b32 v11, 3, v{vG}", f"v_lshrrev_b32 v12, 2, v{vI}", "v_add_u32 v11, v11, v12", "v_lshlrev_b32 v11, 8, v11",
      f"v_and_b32 v12, 3, v{vI}", "v_lshlrev_b32 v12, 3, v12", "v_add_u32 v11, v11, v12")
    g("s_waitcnt vmcnt(0)")
    for t in range(8):
        for k in range(2):
            r = 64 + (t * 2 + k) * 4
            off = L_WQ + k * 8192 + t * 32
            g(f"ds_read_b64_tr_b16 {v(r,2)}, v11 offset:{off}", f"ds_read_b64_tr_b16 {v(r+2,2)}, v11 offset:{off+1024}")
        if t % 2 == 1:
            g("s_waitcnt lgkmcnt(0)")
    tag_ready()
    g(f"s_lshl_b32 {sT0}, {sJ}, 9", f"s_add_u32 {sT0}, {sT0}, {WS_MODP}", f"s_add_u32 {sT1}, {sT0}, 4096", "v_lshlrev_b32 v9, 3, v0")
    poll(g, "p_saca",
         lambda: g(f"buffer_load_dwordx2 v[24:25], v9, {srd(SRD_WS)}, {sT0} offen sc1",
                   f"buffer_load_dwordx2 v[26:27], v9, {srd(SRD_WS)}, {sT1} offen sc1"),
         lambda: check_tags(g, [25, 27], vTAG, 28))
    g("v_lshlrev_b32 v28, 16, v24", "v_and_b32 v29, 0xffff0000, v24",
      "v_lshlrev_b32 v30, 16, v26", "v_and_b32 v31, 0xffff0000, v26",
      "v_add_f32 v30, 1.0, v30", "v_add_f32 v31, 1.0, v31",
      "v_fma_f32 v20, v20, v30, v28", "v_fma_f32 v21, v21, v31, v29",
      "v_cvt_pk_bf16_f32 v22, v20, v21", "v_lshlrev_b32 v9, 1, v0",
      f"ds_write_b16 v9, v22 offset:{L_ACT2}", f"ds_write_b16_d16_hi v9, v22 offset:{L_ACT2+128}",
      f"v_and_b32 v10, 1, v{vI}", "v_lshlrev_b32 v10, 7, v10", f"v_lshlrev_b32 v12, 4, v{vG}", "v_add_u32 v10, v10, v12",
      "s_waitcnt lgkmcnt(0)",
      f"ds_read_b128 v[24:27], v10 offset:{L_ACT2}", f"ds_read_b128 v[28:31], v10 offset:{L_ACT2+64}", "s_waitcnt lgkmcnt(0)")
    for t in range(8):
        d = 128 + 4 * t
        g(f"v_mfma_f32_16x16x32_bf16 {v(d,4)}, v[24:27], {v(64+(t*2)*4,4)}, 0")
    for t in range(8):
        d = 128 + 4 * t
        g(f"v_mfma_f32_16x16x32_bf16 {v(d,4)}, v[28:31], {v(64+(t*2+1)*4,4)}, {v(d,4)}")
    g("s_nop 7", "s_nop 1")
    g(f"v_cmp_eq_u32 s[64:65], 1, v{vG}", f"v_cmp_eq_u32 s[66:67], 2, v{vG}", f"v_cmp_eq_u32 s[68:69], 3, v{vG}", "s_nop 1")
    g(f"s_lshl_b32 {sT0}, {sH}, 14", f"s_lshl_b32 {sT1}, {sJ}, 10", f"s_add_u32 {sT0}, {sT0}, {sT1}", f"s_add_u32 {sT0}, {sT0}, {WS_QP}",
      "v_lshlrev_b32 v9, 3, v0")
    for b in range(2):
        for tau in range(2):
            d = 128 + 16 * tau + b
            o = 32 + 2 * (b * 2 + tau)
            g(f"v_cndmask_b32 v{o}, v{d}, v{d+4}, s[64:65]", f"v_cndmask_b32 v{o}, v{o}, v{d+8}, s[66:67]",
              f"v_cndmask_b32 v{o}, v{o}, v{d+12}, s[68:69]", f"v_mov_b32 v{o+1}, v{vTAG}")
            g(f"s_add_u32 {sT1}, {sT0}, {b * 8192 + tau * 512}",
              f"buffer_store_dwordx2 {v(o,2)}, v9, {srd(SRD_WS)}, {sT1} offen sc1")
    g(f"s_branch {LB1}")

    g(f"{LA2}:")
    g("v_mov_b32 v8, -1", "v_lshlrev_b32 v9, 2, v0")
    g(f"s_lshl_b32 {sT0}, {sH}, 3", f"s_add_u32 {sT0}, {sT0}, {sJ}", f"s_lshl_b32 {sT0}, {sT0}, 8", f"s_add_u32 {sT0}, {sT0}, {WS_OS}")
    g(f"buffer_store_dword v8, v9, {srd(SRD_WS)}, {sT0} offen sc1")
    g(f"v_lshlrev_b32 v10, 11, v{vG}", f"v_lshlrev_b32 v11, 2, v{vI}", "v_add_u32 v10, v10, v11",
      f"s_lshl_b32 {sT0}, {sX}, 12", f"s_lshl_b32 {sT1}, {sR}, 6", f"s_add_u32 {sT0}, {sT0}, {sT1}", f"s_add_u32 {sT0}, {sT0}, {WS_YS}",
      "s_mov_b32 exec_hi, 0", f"buffer_store_dword v8, v10, {srd(SRD_WS)}, {sT0} offen sc1")
    Lng = g.lab("nog")
    g(f"s_cmp_eq_u32 {sPHI}, 0xff", f"s_cbranch_scc1 {Lng}", f"s_lshl_b32 {sT0}, {sPHI}, 7", f"s_add_u32 {sT0}, {sT0}, {WS_GS}",
      f"buffer_store_dword v8, v9, {srd(SRD_WS)}, {sT0} offen sc1", f"{Lng}:", "s_mov_b64 exec, -1")
    tag_ready()
    g(f"s_lshl_b32 {sT0}, {sH}, 14", f"s_lshl_b32 {sT1}, {sB}, 13", f"s_add_u32 {sT0}, {sT0}, {sT1}", f"s_add_u32 {sT0}, {sT0}, {WS_QP}",
      "v_lshlrev_b32 v9, 4, v0")

    def iss():
        for jj in range(8):
            g(f"s_add_u32 {sT1}, {sT0}, {jj*1024}", f"buffer_load_dwordx4 {v(16+4*jj,4)}, v9, {srd(SRD_WS)}, {sT1} offen sc1")
    poll(g, "p_q", iss, lambda: check_tags(g, [17 + 2 * i for i in range(16)], vTAG, 12))
    for jj in range(1, 8):
        g(f"v_add_f32 v16, v16, v{16+4*jj}", f"v_add_f32 v18, v18, v{18+4*jj}")
    g("v_cvt_pk_bf16_f32 v12, v16, v18", "v_lshlrev_b32 v9, 2, v0", f"ds_write_b32 v9, v12 offset:{L_Q}")
    g(f"s_branch {LB1}")

    g(f"{LA3}:")
    tag_ready()

    g(f"{LB1}:", "s_waitcnt lgkmcnt(0)", "s_barrier")
    g("s_barrier")
    LnoML = g.lab("noml")
    g(f"s_cmp_lg_u32 {sA}, 2", f"s_cbranch_scc1 {LnoML}")
    g("v_mov_b32 v8, 0", f"ds_read_b128 v[12:15], v8 offset:{L_MLW}", f"ds_read_b128 v[16:19], v8 offset:{L_MLW+16}", "s_waitcnt lgkmcnt(0)",
      "v_max3_f32 v20, v12, v14, v16", "v_max_f32 v20, v20, v18")
    for i, (m, l) in enumerate([(12, 13), (14, 15), (16, 17), (18, 19)]):
        g(f"v_sub_f32 v{m}, v{m}, v20", f"v_exp_f32 v{m}, v{m}")
    g("s_nop 0", "v_mul_f32 v21, v12, v13", "v_fmac_f32 v21, v14, v15", "v_fmac_f32 v21, v16, v17", "v_fmac_f32 v21, v18, v19",
      f"v_mov_b32 v22, v{vTAG}", f"v_mov_b32 v23, v{vTAG}",
      f"s_lshl_b32 {sT0}, {sH}, 3", f"s_add_u32 {sT0}, {sT0}, {sJ}", f"s_lshl_b32 {sT0}, {sT0}, 4", f"s_add_u32 {sT0}, {sT0}, {WS_ML}",
      "s_waitcnt vmcnt(0)", "s_mov_b64 exec, 1", f"buffer_store_dwordx4 v[20:23], v8, {srd(SRD_WS)}, {sT0} offen sc1", "s_mov_b64 exec, -1")
    g(f"{LnoML}:")

    vF = 240
    g(f"s_lshl_b32 {sT0}, {sX}, 2", f"s_add_u32 {sT0}, {sT0}, {sA}", f"s_lshl_b32 {sT0}, {sT0}, 7", f"s_add_u32 {sT0}, {sT0}, {WS_ML}",
      f"v_and_b32 v8, 1, v{vG}", "v_lshlrev_b32 v8, 6, v8", "v_and_b32 v9, 3, v0", "v_lshlrev_b32 v9, 4, v9", "v_add_u32 v8, v8, v9")
    poll(g, "p_ml", lambda: g(f"buffer_load_dwordx4 v[12:15], v8, {srd(SRD_WS)}, {sT0} offen sc1"),
         lambda: check_tags(g, [14, 15], vTAG, 16))
    g("v_mov_b32 v16, v12", "s_nop 1",
      "v_max_f32_dpp v16, v16, v16 quad_perm:[1,0,3,2] row_mask:0xf bank_mask:0xf", "s_nop 1",
      "v_max_f32_dpp v16, v16, v16 quad_perm:[2,3,0,1] row_mask:0xf bank_mask:0xf",
      "v_sub_f32 v12, v12, v16", "v_exp_f32 v12, v12", "s_nop 0", "v_mul_f32 v13, v13, v12", "s_nop 1",
      "v_add_f32_dpp v13, v13, v13 quad_perm:[1,0,3,2] row_mask:0xf bank_mask:0xf", "s_nop 1",
      "v_add_f32_dpp v13, v13, v13 quad_perm:[2,3,0,1] row_mask:0xf bank_mask:0xf",
      "v_rcp_f32 v13, v13", "s_nop 0", "v_mul_f32 v12, v12, v13", "s_nop 1")
    for r in range(4):
        g(f"v_mov_b32_dpp v{vF+r}, v12 quad_perm:[{r},{r},{r},{r}] row_mask:0xf bank_mask:0xf")

    LT3p, LT4p, Lprep_done = g.lab("t3prep"), g.lab("t4prep"), g.lab("prepdone")
    g(f"s_cmp_lg_u32 {sPHI}, 0xff", f"s_cbranch_scc1 {LT3p}", f"s_cmp_lt_u32 {sR}, 4", f"s_cbranch_scc1 {LT4p}", f"s_branch {Lprep_done}")

    def all_init_check():
        g("v_lshlrev_b32 v8, 4, v0", f"s_mov_b32 {sT0}, {WS_ML}")

        def iss():
            for k in range(4):
                g(f"buffer_load_dwordx4 {v(12+4*k,4)}, v8, {srd(SRD_WS)}, {sT0} offen offset:{k*1024} sc1")
        poll(g, "p_init", iss, lambda: check_tags(g, [14, 18, 22, 26], vTAG, 28))

    vX3, vGA3, vC3 = 224, 228, 232
    g(f"{LT3p}:")
    all_init_check()
    g(f"s_and_b32 {sT0}, {sA}, 1", f"s_lshl_b32 {sT0}, {sT0}, 6", f"v_add_u32 v8, {sT0}, v0",
      "v_lshlrev_b32 v9, 5, v8", f"s_lshr_b32 {sT3}, {sA}, 1")
    g(f"s_mov_b32 {sT0}, {WS_MODP + 2*4096}", f"s_mov_b32 {sT1}, {WS_MODP + 3*4096}", f"s_mov_b32 {sT2}, {WS_MODP + 4*4096}")

    def iss3():
        for k, s in enumerate((sT0, sT1, sT2)):
            g(f"buffer_load_dwordx4 {v(12+8*k,4)}, v9, {srd(SRD_WS)}, {s} offen sc1",
              f"buffer_load_dwordx4 {v(16+8*k,4)}, v9, {srd(SRD_WS)}, {s} offen offset:16 sc1")
    poll(g, "p_mod3", iss3, lambda: check_tags(g, [13 + 2 * i for i in range(12)], vTAG, 40))
    g(f"s_cmp_eq_u32 {sT3}, 0", f"s_cselect_b32 {sT0}, 16, 0", f"s_mov_b32 {sT1}, 0xffff0000")
    for k in range(3):
        for e in range(4):
            r = 12 + 8 * k + 2 * e
            g(f"v_lshlrev_b32 v{r}, {sT0}, v{r}", f"v_and_b32 v{r}, {sT1}, v{r}")
    make_srd(g, SRD_A, 4, 0, 2048)
    g("v_lshlrev_b32 v10, 3, v8", f"s_lshl_b32 {sT2}, {sT3}, 10", f"buffer_load_dwordx2 v[40:41], v10, {srd(SRD_A)}, {sT2} offen")
    for e in range(4):
        g(f"v_mov_b32 v{vGA3+e}, v{12+2*e}", f"v_add_f32 v{28+2*e}, 1.0, v{28+2*e}")
    g("v_cvt_pk_bf16_f32 v42, v28, v30", "v_cvt_pk_bf16_f32 v43, v32, v34",
      "v_cvt_pk_bf16_f32 v44, v20, v22", "v_cvt_pk_bf16_f32 v45, v24, v26",
      f"v_lshlrev_b32 v{vC3}, 16, v42", f"v_and_b32 v{vC3+1}, 0xffff0000, v42", f"v_lshlrev_b32 v{vC3+2}, 16, v43", f"v_and_b32 v{vC3+3}, 0xffff0000, v43",
      f"s_lshl_b32 {sT2}, {sT3}, 10", f"v_add_u32 v11, {sT2}, v10",
      f"ds_write_b64 v11, v[42:43] offset:{L_ACT3 + 2*1024}", f"ds_write_b64 v11, v[44:45] offset:{L_ACT3 + 4*1024}",
      "s_waitcnt vmcnt(0)",
      f"v_lshlrev_b32 v{vX3}, 16, v40", f"v_and_b32 v{vX3+1}, 0xffff0000, v40", f"v_lshlrev_b32 v{vX3+2}, 16, v41", f"v_and_b32 v{vX3+3}, 0xffff0000, v41")
    g(f"s_branch {Lprep_done}")

    vX4, vGA4, vGB4 = 224, 225, 226
    g(f"{LT4p}:")
    all_init_check()
    g(f"s_lshl_b32 {sT0}, {sX}, 2", f"s_add_u32 {sT0}, {sT0}, {sR}", f"s_lshl_b32 {sT3}, {sT0}, 4",
      f"v_add_u32 v8, {sT3}, v{vI}", "v_lshlrev_b32 v9, 3, v8",
      f"s_mov_b32 {sT0}, {WS_MODP + 2*4096}", f"s_mov_b32 {sT1}, {WS_MODP + 5*4096}")
    poll(g, "p_mod4", lambda: g(f"buffer_load_dwordx2 v[12:13], v9, {srd(SRD_WS)}, {sT0} offen sc1",
                                f"buffer_load_dwordx2 v[14:15], v9, {srd(SRD_WS)}, {sT1} offen sc1"),
         lambda: check_tags(g, [13, 15], vTAG, 16))
    make_srd(g, SRD_A, 4, 0, 2048)
    g(f"v_and_b32 v10, 1, v{vG}", "v_lshlrev_b32 v11, 10, v10", "v_lshlrev_b32 v16, 1, v8", "v_add_u32 v11, v11, v16",
      f"buffer_load_ushort v17, v11, {srd(SRD_A)}, 0 offen",
      "v_cmp_eq_u32 vcc, 1, v10", "v_lshlrev_b32 v18, 16, v12", "v_and_b32 v19, 0xffff0000, v12",
      f"v_cndmask_b32 v{vGA4}, v18, v19, vcc", "v_lshlrev_b32 v18, 16, v14", "v_and_b32 v19, 0xffff0000, v14",
      f"v_cndmask_b32 v{vGB4}, v18, v19, vcc", "s_waitcnt vmcnt(0)", f"v_lshlrev_b32 v{vX4}, 16, v17")
    g(f"{Lprep_done}:")

    def wo_load():
        g(f"s_lshl_b32 {sT0}, {sX}, 2", f"s_add_u32 {sT0}, {sT0}, {sA}", f"s_lshl_b32 {sT0}, {sT0}, 17", f"s_lshl_b32 {sT1}, {sR}, 5",
          f"s_add_u32 {sT0}, {sT0}, {sT1}")
        make_srd(g, SRD_A, 12, sT0, 4096 * 512 * 2)
        g("v_lshrrev_b32 v9, 1, v0", "v_lshlrev_b32 v9, 10, v9", "v_and_b32 v10, 1, v0", "v_lshlrev_b32 v10, 4, v10", "v_add_u32 v9, v9, v10",
          f"s_lshl_b32 {sT1}, {sA}, 12", f"s_add_u32 {sT1}, {sT1}, {L_WO}")
        for k in range(4):
            g(f"s_mov_b32 {sT2}, {k*32*1024}", f"s_add_u32 {sT3}, {sT1}, {k*1024}")
            dma(g, 9, SRD_A, sT2, sT3)
    vBW = 208
    def wo_frags():
        g(f"v_lshlrev_b32 v11, 3, v{vG}", f"v_lshrrev_b32 v12, 2, v{vI}", "v_add_u32 v11, v11, v12", "v_lshlrev_b32 v11, 5, v11",
          f"v_and_b32 v12, 3, v{vI}", "v_lshlrev_b32 v12, 3, v12", "v_add_u32 v11, v11, v12",
          f"s_lshl_b32 {sT1}, {sA}, 12", f"s_add_u32 {sT1}, {sT1}, {L_WO}", f"v_add_u32 v11, {sT1}, v11", "s_waitcnt vmcnt(0)")
        for k in range(4):
            g(f"ds_read_b64_tr_b16 {v(vBW+4*k,2)}, v11 offset:{k*1024}", f"ds_read_b64_tr_b16 {v(vBW+4*k+2,2)}, v11 offset:{k*1024 + 128}")
        g("s_waitcnt lgkmcnt(0)")
    if not opt.get("defer_wo", False):
        wo_load(); wo_frags()
    g("s_waitcnt lgkmcnt(0)", "s_barrier")
    if opt.get("defer_wo", False):
        wo_load(); wo_frags()
    g("s_barrier")
    LnoO = g.lab("noo")
    g(f"s_cmp_lg_u32 {sA}, 0", f"s_cbranch_scc1 {LnoO}", "v_lshlrev_b32 v8, 3, v0")
    for w in range(4):
        g(f"ds_read_b64 {v(12+2*w,2)}, v8 offset:{L_RED + w*512}")
    g(f"s_lshl_b32 {sT0}, {sH}, 3", f"s_add_u32 {sT0}, {sT0}, {sJ}", f"s_lshl_b32 {sT0}, {sT0}, 8", f"s_add_u32 {sT0}, {sT0}, {WS_OS}",
      "v_lshlrev_b32 v9, 2, v0", "s_waitcnt lgkmcnt(0)",
      "v_add_f32 v12, v12, v14", "v_add_f32 v13, v13, v15", "v_add_f32 v16, v16, v18", "v_add_f32 v17, v17, v19",
      "v_add_f32 v12, v12, v16", "v_add_f32 v13, v13, v17", "v_cvt_pk_bf16_f32 v12, v12, v13",
      f"buffer_store_dword v12, v9, {srd(SRD_WS)}, {sT0} offen sc1")
    g(f"{LnoO}:")
    g(f"s_lshl_b32 {sT0}, {sX}, 2", f"s_add_u32 {sT0}, {sT0}, {sA}", f"s_lshl_b32 {sT0}, {sT0}, 11", f"s_add_u32 {sT0}, {sT0}, {WS_OS}",
      f"v_and_b32 v8, 7, v{vI}", "v_lshlrev_b32 v8, 8, v8", f"v_lshlrev_b32 v9, 4, v{vG}", "v_add_u32 v8, v8, v9")

    def isso():
        for k in range(4):
            g(f"buffer_load_dwordx4 {v(16+4*k,4)}, v8, {srd(SRD_WS)}, {sT0} offen offset:{k*64} sc1")
    poll(g, "p_o", isso, lambda: check_sentinel(g, range(16, 32), 12))
    for k in range(4):
        c = "0" if k == 0 else "v[12:15]"
        g(f"v_mfma_f32_16x16x32_bf16 v[12:15], {v(16+4*k,4)}, {v(vBW+4*k,4)}, {c}")
    g(f"s_lshl_b32 {sT0}, {sA}, 7", "v_lshlrev_b32 v8, 2, v0", f"v_add_u32 v8, {sT0}, v8", "s_nop 7",
      f"v_mul_f32 v12, v12, v{vF}", f"v_fmac_f32 v12, v13, v{vF+1}", f"v_fmac_f32 v12, v14, v{vF+2}", f"v_fmac_f32 v12, v15, v{vF+3}",
      "s_mov_b32 exec_hi, 0", f"ds_write_b32 v8, v12 offset:{L_RED2}", "s_mov_b64 exec, -1", "s_waitcnt lgkmcnt(0)", "s_barrier")
    LnoY = g.lab("noy")
    g(f"s_cmp_lg_u32 {sA}, 0", f"s_cbranch_scc1 {LnoY}", "v_lshlrev_b32 v8, 2, v0", "s_mov_b32 exec_hi, 0")
    for w in range(4):
        g(f"ds_read_b32 v{12+w}, v8 offset:{L_RED2 + w*128}")
    g(f"v_lshlrev_b32 v10, 11, v{vG}", f"v_lshlrev_b32 v11, 2, v{vI}", "v_add_u32 v10, v10, v11",
      f"s_lshl_b32 {sT0}, {sX}, 12", f"s_lshl_b32 {sT1}, {sR}, 6", f"s_add_u32 {sT0}, {sT0}, {sT1}", f"s_add_u32 {sT0}, {sT0}, {WS_YS}",
      "s_waitcnt lgkmcnt(0)", "v_add_f32 v12, v12, v13", "v_add_f32 v14, v14, v15", "v_add_f32 v12, v12, v14",
      f"buffer_store_dword v12, v10, {srd(SRD_WS)}, {sT0} offen sc1", "s_mov_b64 exec, -1")
    g(f"{LnoY}:")
    LT3, LT4, LEND = g.lab("t3"), g.lab("t4"), "L_end"
    g(f"s_cmp_lg_u32 {sPHI}, 0xff", f"s_cbranch_scc1 {LT3}", f"s_cmp_lt_u32 {sR}, 4", f"s_cbranch_scc1 {LT4}", "s_endpgm")

    g(f"{LT3}:")
    g(f"s_mul_i32 {sT0}, {sA}, {128*2752}", f"s_lshl_b32 {sT1}, {sPHI}, 6", f"s_add_u32 {sT0}, {sT0}, {sT1}")
    make_srd(g, SRD_A, 16, sT0, 512 * 1376 * 2)
    g("v_lshrrev_b32 v9, 2, v0", f"s_mov_b32 {sT2}, 2752", f"v_mul_lo_u32 v9, v9, {sT2}", "v_and_b32 v10, 3, v0", "v_lshlrev_b32 v10, 4, v10",
      "v_add_u32 v9, v9, v10", f"s_lshl_b32 {sT1}, {sA}, 13", f"s_add_u32 {sT1}, {sT1}, {L_W12}")
    for t in range(8):
        g(f"s_mov_b32 {sT2}, {t*16*2752}", f"s_add_u32 {sT3}, {sT1}, {t*1024}")
        dma(g, 9, SRD_A, sT2, sT3)
    g(f"v_lshlrev_b32 v11, 3, v{vG}", f"v_lshrrev_b32 v12, 2, v{vI}", "v_add_u32 v11, v11, v12", "v_lshlrev_b32 v11, 6, v11",
      f"v_and_b32 v12, 3, v{vI}", "v_lshlrev_b32 v12, 3, v12", "v_add_u32 v11, v11, v12",
      f"s_lshl_b32 {sT1}, {sA}, 13", f"s_add_u32 {sT1}, {sT1}, {L_W12}", f"v_add_u32 v11, {sT1}, v11", "s_waitcnt vmcnt(0)")
    vB1 = 64
    for tau in range(2):
        for k in range(4):
            r = vB1 + (tau * 4 + k) * 4
            off = k * 2048 + tau * 32
            g(f"ds_read_b64_tr_b16 {v(r,2)}, v11 offset:{off}", f"ds_read_b64_tr_b16 {v(r+2,2)}, v11 offset:{off+256}")
        g("s_waitcnt lgkmcnt(0)")
    g(f"s_and_b32 {sT0}, {sA}, 1", f"s_lshl_b32 {sT0}, {sT0}, 6", f"v_add_u32 v8, {sT0}, v0",
      "v_lshlrev_b32 v9, 4, v8", f"s_lshr_b32 {sT3}, {sA}, 1", f"s_lshl_b32 {sT0}, {sT3}, 11", f"s_add_u32 {sT0}, {sT0}, {WS_YS}")

    def issy():
        for G_ in range(8):
            g(f"s_add_u32 {sT1}, {sT0}, {G_*4096}", f"buffer_load_dwordx4 {v(16+4*G_,4)}, v9, {srd(SRD_WS)}, {sT1} offen sc1")
    poll(g, "p_y", issy, lambda: check_sentinel(g, range(16, 48), 12))
    for G_ in range(1, 8):
        for e in range(4):
            g(f"v_add_f32 v{16+e}, v{16+e}, v{16+4*G_+e}")
    for e in range(4):
        g(f"v_fma_f32 v{16+e}, v{16+e}, v{vGA3+e}, v{vX3+e}")
    g("v_add_f32 v20, v16, v17", "v_add_f32 v21, v18, v19", "v_add_f32 v20, v20, v21",
      "v_mul_f32 v21, v16, v16", "v_fmac_f32 v21, v17, v17", "v_fmac_f32 v21, v18, v18", "v_fmac_f32 v21, v19, v19")
    for e in range(4):
        g(f"v_mul_f32 v{16+e}, v{16+e}, v{vC3+e}")
    g("v_cvt_pk_bf16_f32 v24, v16, v17", "v_cvt_pk_bf16_f32 v25, v18, v19",
      "v_lshlrev_b32 v10, 3, v8", f"s_lshl_b32 {sT2}, {sT3}, 10", f"v_add_u32 v10, {sT2}, v10",
      f"ds_write_b64 v10, v[24:25] offset:{L_ACT3}")
    allreduce(g, [20, 21], "v_add_f32", [22, 23])
    g(f"s_lshl_b32 {sT0}, {sA}, 3", f"v_mov_b32 v22, {sT0}", "s_mov_b64 exec, 1", f"ds_write_b64 v22, v[20:21] offset:{L_STAT}",
      "s_mov_b64 exec, -1", "s_waitcnt lgkmcnt(0)", "s_barrier")
    g(f"v_cmp_gt_u32 vcc, 6, v{vI}", "s_nop 1", f"v_cndmask_b32 v10, 0, v{vI}, vcc", "v_lshlrev_b32 v10, 10, v10",
      f"v_lshlrev_b32 v12, 4, v{vG}", "v_add_u32 v10, v10, v12", f"s_lshl_b32 {sT0}, {sA}, 8", f"v_add_u32 v10, {sT0}, v10")
    for k in range(4):
        g(f"ds_read_b128 {v(16+4*k,4)}, v10 offset:{L_ACT3 + k*64}")
    g("s_waitcnt lgkmcnt(0)")
    for tau in range(2):
        for k in range(4):
            d = 32 + 4 * tau
            c = "0" if k == 0 else v(d, 4)
            g(f"v_mfma_f32_16x16x32_bf16 {v(d,4)}, {v(16+4*k,4)}, {v(vB1+(tau*4+k)*4,4)}, {c}")
    g(f"s_lshl_b32 {sT0}, {sA}, 10", "v_lshlrev_b32 v8, 4, v0", f"v_add_u32 v8, {sT0}, v8", "s_nop 7", "s_mov_b32 exec_hi, 0",
      f"ds_write_b128 v8, v[32:35] offset:{L_RED3}", f"ds_write_b128 v8, v[36:39] offset:{L_RED3+512}",
      "s_mov_b64 exec, -1", "s_waitcnt lgkmcnt(0)", "s_barrier")
    g(f"s_cmp_lg_u32 {sA}, 0", f"s_cbranch_scc1 {LEND}")
    g("v_lshrrev_b32 v8, 5, v0", "v_and_b32 v9, 31, v0", "v_lshrrev_b32 v10, 4, v9", "v_lshlrev_b32 v10, 9, v10",
      f"v_lshlrev_b32 v11, 4, v{vI}", "v_add_u32 v10, v10, v11", "v_lshlrev_b32 v11, 2, v8", "v_add_u32 v10, v10, v11")
    for w in range(4):
        g(f"ds_read_b32 v{12+w}, v10 offset:{L_RED3 + w*1024}", f"ds_read_b32 v{16+w}, v10 offset:{L_RED3 + w*1024 + 8}",
          f"ds_read_b32 v{20+w}, v10 offset:{L_RED3 + w*1024 + 256}")
    g("v_lshlrev_b32 v11, 4, v8", f"ds_read_b128 v[24:27], v11 offset:{L_STAT}", "s_waitcnt lgkmcnt(0)")
    for base in (12, 16, 20):
        g(f"v_add_f32 v{base}, v{base}, v{base+1}", f"v_add_f32 v{base+2}, v{base+2}, v{base+3}", f"v_add_f32 v{base}, v{base}, v{base+2}")
    g("v_add_f32 v24, v24, v26", "v_add_f32 v25, v25, v27",
      f"v_mul_f32 v24, {hex(f2u(1/512))}, v24", f"v_mul_f32 v25, {hex(f2u(1/512))}, v25",
      "v_fma_f32 v25, -v24, v24, v25", f"v_add_f32 v25, {hex(f2u(1e-5))}, v25", "v_rsq_f32 v25, v25",
      "v_fma_f32 v12, -v24, v16, v12", "v_fma_f32 v12, v12, v25, v20")
    silu(g, 12, 13)
    g("s_nop 1", "v_mov_b32_dpp v13, v12 quad_perm:[1,0,3,2] row_mask:0xf bank_mask:0xf", "v_cvt_pk_bf16_f32 v12, v12, v13",
      "v_lshlrev_b32 v8, 6, v8", "v_lshlrev_b32 v9, 1, v9", "v_add_u32 v8, v8, v9",
      f"s_lshl_b32 {sT0}, {sPHI}, 7", f"s_add_u32 {sT0}, {sT0}, {WS_GS}",
      "s_mov_b32 exec_lo, 0x55555555", "s_mov_b32 exec_hi, 0x55555555",
      f"buffer_store_dword v12, v8, {srd(SRD_WS)}, {sT0} offen sc1", "s_endpgm")

    g(f"{LT4}:")
    g(f"s_lshl_b32 {sT0}, {sX}, 2", f"s_add_u32 {sT0}, {sT0}, {sR}", f"s_lshl_b32 s67, {sT0}, 4",
      f"s_lshl_b32 {sT0}, {sT0}, 5", f"s_lshl_b32 {sT1}, {sA}, 15", f"s_add_u32 {sT0}, {sT0}, {sT1}")
    make_srd(g, SRD_A, 18, sT0, 1376 * 512 * 2)
    g("v_lshrrev_b32 v9, 1, v0", "v_lshlrev_b32 v9, 10, v9", "v_and_b32 v10, 1, v0", "v_lshlrev_b32 v10, 4, v10", "v_add_u32 v9, v9, v10",
      f"s_lshl_b32 {sT1}, {sA}, 10", f"s_add_u32 {sT1}, {sT1}, {L_W12}")
    Lskip = g.lab("s10")
    for u in range(11):
        if u == 10:
            g(f"s_cmp_eq_u32 {sA}, 3", f"s_cbranch_scc1 {Lskip}")
        g(f"s_mov_b32 {sT2}, {u*4*32*1024}", f"s_add_u32 {sT3}, {sT1}, {u*4096}")
        dma(g, 9, SRD_A, sT2, sT3)
    g(f"{Lskip}:")
    g(f"v_and_b32 v10, 1, v{vG}", "v_lshlrev_b32 v10, 11, v10", f"v_add_u32 v12, s67, v{vI}", "v_lshlrev_b32 v12, 2, v12", "v_add_u32 v10, v10, v12",
      f"s_mov_b32 {sT0}, {WS_YS}")

    def issy4():
        for G_ in range(8):
            g(f"s_add_u32 {sT1}, {sT0}, {G_*4096}", f"buffer_load_dword v{16+G_}, v10, {srd(SRD_WS)}, {sT1} offen sc1")
    poll(g, "p_y4", issy4, lambda: check_sentinel(g, range(16, 24), 12))
    for G_ in range(1, 8):
        g(f"v_add_f32 v16, v16, v{16+G_}")
    g(f"v_fma_f32 v{vX4}, v16, v{vGA4}, v{vX4}")
    vB2 = 64
    g(f"v_lshlrev_b32 v11, 3, v{vG}", f"v_lshrrev_b32 v12, 2, v{vI}", "v_add_u32 v11, v11, v12", "v_lshlrev_b32 v11, 5, v11",
      f"v_and_b32 v12, 3, v{vI}", "v_lshlrev_b32 v12, 3, v12", "v_add_u32 v11, v11, v12",
      f"s_lshl_b32 {sT1}, {sA}, 10", f"s_add_u32 {sT1}, {sT1}, {L_W12}", f"v_add_u32 v11, {sT1}, v11")
    for u in range(11):
        r = vB2 + 4 * u
        g(f"ds_read_b64_tr_b16 {v(r,2)}, v11 offset:{u*4096}", f"ds_read_b64_tr_b16 {v(r+2,2)}, v11 offset:{u*4096 + 128}")
        if u % 4 == 3:
            g("s_waitcnt lgkmcnt(0)")
    g("s_waitcnt lgkmcnt(0)")
    Lz = g.lab("z")
    g(f"s_mov_b32 {sT3}, {10*512}", f"s_cmp_lg_u32 {sA}, 3", f"s_cbranch_scc1 {Lz}", f"s_mov_b32 {sT3}, {9*512}")
    for e in range(4):
        g(f"v_mov_b32 v{vB2+40+e}, 0")
    g(f"{Lz}:")
    g(f"v_and_b32 v8, 1, v{vI}", "v_lshlrev_b32 v8, 6, v8", f"v_lshlrev_b32 v9, 4, v{vG}", "v_add_u32 v8, v8, v9",
      f"s_lshl_b32 {sT0}, {sA}, 7", f"s_add_u32 {sT0}, {sT0}, {WS_GS}", f"s_add_u32 {sT3}, {sT3}, {sT0}")
    vA2 = 128

    def issg():
        for u in range(10):
            g(f"s_add_u32 {sT1}, {sT0}, {u*512}", f"buffer_load_dwordx4 {v(vA2+4*u,4)}, v8, {srd(SRD_WS)}, {sT1} offen sc1")
        g(f"buffer_load_dwordx4 {v(vA2+40,4)}, v8, {srd(SRD_WS)}, {sT3} offen sc1")
    poll(g, "p_g", issg, lambda: check_sentinel(g, range(vA2, vA2 + 44), 12))
    for u in range(11):
        c = "0" if u == 0 else "v[12:15]"
        g(f"v_mfma_f32_16x16x32_bf16 v[12:15], {v(vA2+4*u,4)}, {v(vB2+4*u,4)}, {c}")
    g(f"s_lshl_b32 {sT0}, {sA}, 7", f"v_lshlrev_b32 v8, 2, v{vI}", f"v_add_u32 v8, {sT0}, v8", "s_nop 7", "s_mov_b64 exec, 0xffff",
      f"ds_write_b32 v8, v12 offset:{L_RED4}", f"ds_write_b32 v8, v13 offset:{L_RED4+64}", "s_mov_b64 exec, -1",
      "s_waitcnt lgkmcnt(0)", "s_barrier")
    g(f"s_cmp_lg_u32 {sA}, 0", f"s_cbranch_scc1 {LEND}", "v_lshlrev_b32 v8, 2, v0", "s_mov_b32 exec_hi, 0")
    for w in range(4):
        g(f"ds_read_b32 v{12+w}, v8 offset:{L_RED4 + w*128}")
    make_srd(g, SRD_B, 24, 0, 2048)
    g(f"v_lshlrev_b32 v9, 10, v{vG}", f"v_add_u32 v10, s67, v{vI}", "v_lshlrev_b32 v10, 1, v10", "v_add_u32 v9, v9, v10",
      "s_waitcnt lgkmcnt(0)", "v_add_f32 v12, v12, v13", "v_add_f32 v14, v14, v15", "v_add_f32 v12, v12, v14",
      f"v_fma_f32 v12, v12, v{vGB4}, v{vX4}", "s_nop 1",
      "v_mov_b32_dpp v13, v12 quad_perm:[1,0,3,2] row_mask:0xf bank_mask:0xf", "v_cvt_pk_bf16_f32 v12, v12, v13",
      "s_mov_b32 exec_lo, 0x55555555", f"buffer_store_dword v12, v9, {srd(SRD_B)}, 0 offen")
    g("s_cmp_lg_u32 s67, 0", f"s_cbranch_scc1 {LEND}", "s_mov_b64 exec, 1", "v_mov_b32 v8, 0",
      f"buffer_store_dword v{vTAG}, v8, {srd(SRD_WS)}, 0 offen sc1", "s_endpgm")


def generate(opt=None):
    opt = dict(opt or {})
    NS, W = opt.get("NS", 48), opt.get("W", 8)
    g = G()
    hdr = open("cdna_kernels/" + NAME + ".s.ref").read().split("\n")
    for line in hdr:
        if line.startswith(";") and "@launch" not in line and "Override launch" not in line and "grid=ceil" not in line:
            g(line)
        elif not line.startswith(";"):
            break
    g(f"; @launch grid=(256,1,1) block=(512,1,1) lds={LDS_SIZE}")
    g('.amdgcn_target "amdgcn-amd-amdhsa--gfx950"', ".text", f".globl {NAME}_kernel", ".p2align 8",
      f".type {NAME}_kernel,@function", f"{NAME}_kernel:")
    g("s_cmp_ge_u32 s2, 0x100", "s_cbranch_scc1 L_end",
      "s_load_dwordx16 s[4:19], s[0:1], 0", "s_load_dwordx8 s[20:27], s[0:1], 64", "s_load_dwordx2 s[28:29], s[0:1], 96",
      "v_lshrrev_b32 v1, 6, v0", "v_and_b32 v0, 63, v0", "s_nop 0", "v_readfirstlane_b32 s3, v1",
      f"s_and_b32 {sX}, s2, 7", f"s_lshr_b32 {sR}, s2, 3", f"s_and_b32 {sT0}, {sR}, 3", f"s_lshl_b32 {sH}, {sX}, 2",
      f"s_add_u32 {sH}, {sH}, {sT0}", f"s_lshr_b32 {sJ}, {sR}, 2", f"s_lshr_b32 {sB}, {sJ}, 2", f"s_and_b32 {sS}, {sJ}, 3",
      "s_waitcnt lgkmcnt(0)", "s_cmp_ge_u32 s3, 4", "s_cbranch_scc1 L_aux")
    gen_stream(g, NS, W, opt)
    g("L_aux:")
    gen_aux(g, opt)
    g("L_end:", "s_endpgm")
    g('.section .rodata,"a"', ".p2align 6", f".amdhsa_kernel {NAME}_kernel",
      "  .amdhsa_next_free_vgpr 256", "  .amdhsa_next_free_sgpr 102", "  .amdhsa_accum_offset 256",
      "  .amdhsa_group_segment_fixed_size 0", "  .amdhsa_kernarg_size 104", "  .amdhsa_user_sgpr_count 2",
      "  .amdhsa_user_sgpr_kernarg_segment_ptr 1", "  .amdhsa_system_sgpr_workgroup_id_x 1",
      "  .amdhsa_float_denorm_mode_32 3", ".end_amdhsa_kernel")
    return g.text()


if __name__ == "__main__":
    out = sys.argv[1] if len(sys.argv) > 1 else "cdna_kernels/" + NAME + ".s"
    opt = eval(sys.argv[2]) if len(sys.argv) > 2 else {}
    open(out, "w").write(generate(opt))
    print("wrote", out)
```

```python
import struct
import sys

NAME = "adaLN_cond__gqa_block_cached__dense_activation_silu__decode"

WS_EPOCH = 0x0
WS_MODP = 0x1000
WS_MODF = 0x19000
WS_ML = 0x20000
WS_QP = 0x30000
WS_OS = 0x70000
WS_YS = 0x80000
WS_PS = 0x90000
WS_STAMP = 0xC0000
WS_SIZE = 0x100000

L_Q = 0x0000
L_MLW = 0x0100
L_RED = 0x0200
L_RED2 = 0x0A00
L_STAT = 0x1200
L_ACT1 = 0x1300
L_ACT2 = 0x1500
L_ACTG = 0x1600
L_ACT3 = 0x1800
L_RED3 = 0x3000
L_X1 = 0x4000
L_WMOD = 0x5000
L_WQ = 0x9000
L_KB = 0xD000
NL = 24
LDS_SIZE = L_KB + 4 * NL * 1024

sX, sR, sH, sJ, sB, sS = "s48", "s49", "s50", "s51", "s52", "s53"
sT0, sT1, sT2, sT3 = "s54", "s55", "s56", "s57"
sA = "s58"
sPHI = "s59"
sM1, sM0 = "s[60:61]", "s[62:63]"
sCNT = "s70"
sTAU = "s31"
SRD_A, SRD_B, SRD_WS = 32, 36, 40
POLL_LIMIT = 400000
TAGMASK = 0x3FF

LOG2E = 1.4426950408889634
CS = (128 ** -0.5) * LOG2E
STAMPS = False
NSTAMP = 11
SKIP = set()


def f2u(x):
    return struct.unpack("<I", struct.pack("<f", x))[0]


class G:
    def __init__(self):
        self.L = []
        self.n = 0

    def __call__(self, *txt):
        for t in txt:
            self.L.extend(t.split("\n"))

    def lab(self, base):
        self.n += 1
        return f"L_{base}_{self.n}"

    def text(self):
        return "\n".join(self.L) + "\n"


def v(a, n=1):
    return f"v{a}" if n == 1 else f"v[{a}:{a+n-1}]"


def srd(n):
    return f"s[{n}:{n+3}]"


def make_srd(g, d, plo, off, total):
    if isinstance(off, int):
        assert off == 0
        g(f"s_mov_b32 s{d}, s{plo}", f"s_mov_b32 s{d+1}, s{plo+1}", f"s_mov_b32 s{d+2}, {total}")
    else:
        g(f"s_add_u32 s{d}, s{plo}, {off}", f"s_addc_u32 s{d+1}, s{plo+1}, 0",
          f"s_sub_u32 s{d+2}, {total}, {off}")
    g(f"s_mov_b32 s{d+3}, 0x20000")


DPPF = "row_mask:0xf bank_mask:0xf"


def rowreduce(g, regs, op):
    for ctl in ("row_ror:8", "row_ror:4", "row_ror:2", "row_ror:1"):
        g("s_nop 1" if len(regs) < 3 else "s_nop 0")
        for r in regs:
            g(f"{op}_dpp v{r}, v{r}, v{r} {ctl} {DPPF}")


def swapreduce(g, regs, op, tmps, which):
    sw = f"v_permlane{which}_swap_b32"
    g("s_nop 0")
    for r, t in zip(regs, tmps):
        g(f"v_mov_b32 v{t}, v{r}")
    g("s_nop 1")
    for r, t in zip(regs, tmps):
        g(f"{sw} v{r}, v{t}")
    g("s_nop 1")
    for r, t in zip(regs, tmps):
        g(f"{op} v{r}, v{r}, v{t}")


def allreduce(g, regs, op, tmps):
    rowreduce(g, regs, op)
    swapreduce(g, regs, op, tmps, "16")
    swapreduce(g, regs, op, tmps, "32")


def poll(g, name, issue, check, pre=None):
    g(f"s_mov_b32 {sCNT}, 0")
    stages = ([pre] if pre else []) + [(issue, check)]
    dn = g.lab(name + "_done")
    for iss, chk in stages:
        lp = g.lab(name)
        g(f"{lp}:")
        i0 = len(g.L)
        iss()
        for i in range(i0, len(g.L)):
            if g.L[i].startswith("buffer_load"):
                g.L[i] += f" ;@ld_{name}"
        g("s_waitcnt vmcnt(0)")
        chk()
        g(f"s_add_u32 {sCNT}, {sCNT}, 1", f"s_cmp_gt_u32 {sCNT}, {POLL_LIMIT}",
          f"s_cbranch_scc1 {dn}", f"s_cbranch_vccnz {lp}")
    g(f"{dn}:")


def check_intag(g, regs, vtau, tmp):
    regs = list(regs)
    g(f"v_xor_b32 v{tmp}, v{regs[0]}, v{vtau}")
    rest = regs[1:]
    while len(rest) >= 2:
        g(f"v_xor_b32 v{tmp+1}, v{rest[0]}, v{vtau}", f"v_xor_b32 v{tmp+2}, v{rest[1]}, v{vtau}",
          f"v_or3_b32 v{tmp}, v{tmp}, v{tmp+1}, v{tmp+2}")
        rest = rest[2:]
    if rest:
        g(f"v_xor_b32 v{tmp+1}, v{rest[0]}, v{vtau}", f"v_or_b32 v{tmp}, v{tmp}, v{tmp+1}")
    g(f"v_and_b32 v{tmp}, {TAGMASK}, v{tmp}", f"v_cmp_ne_u32 vcc, 0, v{tmp}")


def check_sentinel(g, regs, tmp):
    regs = list(regs)
    g(f"v_max_u32 v{tmp}, v{regs[0]}, v{regs[1]}")
    rest = regs[2:]
    while len(rest) >= 2:
        g(f"v_max3_u32 v{tmp}, v{tmp}, v{rest[0]}, v{rest[1]}")
        rest = rest[2:]
    if rest:
        g(f"v_max_u32 v{tmp}, v{tmp}, v{rest[0]}")
    g(f"v_cmp_eq_u32 vcc, -1, v{tmp}")


def silu(g, xs, ts):
    for x, t in zip(xs, ts):
        g(f"v_mul_f32 v{t}, {hex(f2u(-LOG2E))}, v{x}")
    for t in ts:
        g(f"v_exp_f32 v{t}, v{t}")
    g("s_nop 0")
    for t in ts:
        g(f"v_add_f32 v{t}, 1.0, v{t}")
    for t in ts:
        g(f"v_rcp_f32 v{t}, v{t}")
    g("s_nop 0")
    for x, t in zip(xs, ts):
        g(f"v_mul_f32 v{x}, v{x}, v{t}")


def dma(g, voff, srdn, soff, lds_addr, what="", imm=0):
    if what in SKIP:
        return
    g(f"s_mov_b32 m0, {lds_addr}", "s_nop 0")
    g(f"buffer_load_dwordx4 v{voff}, {srd(srdn)}, {soff} offen nt lds")


def stamp(g, k):
    if STAMPS:
        g(f"s_memrealtime s[{80+2*k}:{81+2*k}]")


def end(g):
    if STAMPS:
        g("s_mov_b64 exec, -1", "s_waitcnt lgkmcnt(0)")
        for k in range(NSTAMP):
            g(f"v_writelane_b32 v250, s{80+2*k}, {k}")
        g("s_lshl_b32 s72, s2, 3", "s_add_u32 s72, s72, s3", "s_lshl_b32 s72, s72, 6", f"s_add_u32 s72, s72, {WS_STAMP}",
          "s_mov_b32 s76, s28", "s_mov_b32 s77, s29", f"s_mov_b32 s78, {WS_SIZE}", "s_mov_b32 s79, 0x20000",
          "v_lshlrev_b32 v251, 2, v0", f"s_mov_b64 exec, {hex((1 << NSTAMP) - 1)}",
          "buffer_store_dword v250, v251, s[76:79], s72 offen")
    g("s_endpgm")


def tr_addr(g, dst, tmp, vI, vG, rowshift, base=None):
    g(f"v_lshlrev_b32 v{dst}, 3, v{vG}", f"v_lshrrev_b32 v{tmp}, 2, v{vI}", f"v_add_u32 v{dst}, v{dst}, v{tmp}",
      f"v_lshlrev_b32 v{dst}, {rowshift}, v{dst}", f"v_and_b32 v{tmp}, 3, v{vI}", f"v_lshlrev_b32 v{tmp}, 3, v{tmp}",
      f"v_add_u32 v{dst}, v{dst}, v{tmp}")
    if base is not None:
        g(f"v_add_u32 v{dst}, {base}, v{dst}")


def tr_read(g, reg, vaddr, off, rowbytes):
    g(f"ds_read_b64_tr_b16 {v(reg,2)}, v{vaddr} offset:{off}", f"ds_read_b64_tr_b16 {v(reg+2,2)}, v{vaddr} offset:{off + 4*rowbytes}")


def mfma(g, d, a, b, first):
    g(f"v_mfma_f32_16x16x32_bf16 {v(d,4)}, {v(a,4)}, {v(b,4)}, {'0' if first else v(d,4)}")


def gen_stream(g, opt):
    W = opt.get("W", 6)
    NS = 48
    vOFF = 1
    vQ = 2
    vM = 6
    vD = 10
    vB = [14, 18]
    vS = 22
    vT = 26
    vX = 42
    vSL = 48
    vLDS = 46

    order = [("K", n) for n in range(64 - NL, 64)] + [("K", n) for n in range(64 - NL)] + [("V", n) for n in range(64)]
    NREG_K = 64 - NL

    def slot_of(kind, n):
        return vSL + 4 * ((n if kind == "K" else NREG_K + n) % NS)

    g(f"s_lshl_b32 {sT0}, {sB}, 5", f"s_add_u32 {sT0}, {sT0}, {sH}", f"s_lshl_b32 {sT0}, {sT0}, 20",
      f"s_lshl_b32 {sT1}, {sS}, 18", f"s_add_u32 {sT0}, {sT0}, {sT1}")
    g(f"s_add_u32 s{SRD_A}, s6, {sT0}", f"s_addc_u32 s{SRD_A+1}, s7, 0", f"s_mov_b32 s{SRD_A+2}, 0x40000",
      f"s_mov_b32 s{SRD_A+3}, 0x20000")
    g(f"s_add_u32 s{SRD_B}, s8, {sT0}", f"s_addc_u32 s{SRD_B+1}, s9, 0", f"s_mov_b32 s{SRD_B+2}, 0x40000",
      f"s_mov_b32 s{SRD_B+3}, 0x20000")
    g(f"s_lshl_b32 {sT1}, s3, 12", f"v_lshlrev_b32 v{vOFF}, 4, v0", f"s_mul_i32 s64, s3, {NL*1024}", f"s_add_u32 s64, s64, {L_KB}",
      f"v_add_u32 v{vLDS}, s64, v{vOFF}", f"v_add_u32 v{vOFF}, {sT1}, v{vOFF}")

    state = {"K": None, "V": None, "i": 0}

    def issue_next():
        i = state["i"]
        kind, n = order[i]
        rho, t = n >> 2, n & 3
        sreg, sr = (sT2, SRD_A) if kind == "K" else (sT3, SRD_B)
        if i >= W:
            g(f"s_waitcnt vmcnt({W-1})")
        if kind == "K" and n >= NREG_K:
            g(f"s_mov_b32 {sreg}, {rho * 16384 + t * 1024}", f"s_add_u32 m0, s64, {(n - NREG_K) * 1024}")
            state[kind] = None
            g("s_nop 0", f"buffer_load_dwordx4 v{vOFF}, {srd(sr)}, {sreg} offen nt lds")
        else:
            if state[kind] != rho:
                g(f"s_mov_b32 {sreg}, {rho * 16384}")
                state[kind] = rho
            g(f"buffer_load_dwordx4 {v(slot_of(kind, n), 4)}, v{vOFF}, {srd(sr)}, {sreg} offen offset:{t*1024} nt")
        state["i"] = i + 1

    def issued_after(kind, n):
        return state["i"] - 1 - order.index((kind, n))

    NBACK = NL + NS
    for _ in range(NBACK):
        issue_next()
    g(f"v_and_b32 v{vX}, 15, v0", f"v_lshrrev_b32 v{vX+1}, 1, v{vX}", f"v_and_b32 v{vX+2}, 1, v{vX}",
      f"v_mov_b32 v{vX+3}, 0xffff", f"v_mov_b32 v{vT}, 0xffff0000",
      f"v_cmp_eq_u32 vcc, 1, v{vX+2}", "s_nop 1", f"v_cndmask_b32 v{vX+3}, v{vX+3}, v{vT}, vcc")
    for r in range(4):
        g(f"v_cmp_eq_u32 vcc, {r}, v{vX+1}", "s_nop 1", f"v_cndmask_b32 v{vM+r}, 0, v{vX+3}, vcc")
    g("s_mov_b32 s60, 0xcccccccc", "s_mov_b32 s61, 0xcccccccc", "s_mov_b32 s62, 0xaaaaaaaa", "s_mov_b32 s63, 0xaaaaaaaa")
    for r in range(4):
        g(f"v_mov_b32 v{vD+r}, 0")
    g(f"v_lshlrev_b32 v{vX}, 4, v{vX}")
    stamp(g, 1)
    if 'b12' not in SKIP:
        g("s_barrier")
    stamp(g, 2)
    g(f"ds_read_b128 {v(vQ,4)}, v{vX} offset:{L_Q}")
    g(f"s_waitcnt vmcnt({min(63, issued_after('K', 7))}) lgkmcnt(0)")

    def kreg(n):
        if n < NREG_K:
            return slot_of("K", n)
        return vSL + 4 * (16 + (n & 15))

    def dots(ns):
        for r in range(4):
            for n in ns:
                t = vT + (n & 15)
                c = "0" if r == 0 else f"v{t}"
                g(f"v_dot2_f32_bf16 v{t}, v{kreg(n)+r}, v{vQ+r}, {c}")

    def tree(gam):
        g("s_nop 2")
        for n in range(8):
            g(f"v_add_f32_dpp v{vT+n}, v{vT+n}, v{vT+n} row_ror:8 row_mask:0xf bank_mask:0x3")
            g(f"v_add_f32_dpp v{vT+n}, v{vT+n+8}, v{vT+n+8} row_ror:8 row_mask:0xf bank_mask:0xc")
        for n in range(4):
            g(f"v_add_f32_dpp v{vT+n}, v{vT+n}, v{vT+n} row_shl:4 row_mask:0xf bank_mask:0x5")
            g(f"v_add_f32_dpp v{vT+n}, v{vT+n+4}, v{vT+n+4} row_shr:4 row_mask:0xf bank_mask:0xa")
        g("s_nop 0")
        for n in range(4):
            g(f"v_add_f32_dpp v{vT+n}, v{vT+n}, v{vT+n} quad_perm:[2,3,0,1] {DPPF}")
        g(f"v_cndmask_b32 v{vT}, v{vT}, v{vT+2}, {sM1}", f"v_cndmask_b32 v{vT+1}, v{vT+1}, v{vT+3}, {sM1}", "s_nop 1")
        for n in range(2):
            g(f"v_add_f32_dpp v{vT+n}, v{vT+n}, v{vT+n} quad_perm:[1,0,3,2] {DPPF}")
        g(f"v_cndmask_b32 v{vS+gam}, v{vT}, v{vT+1}, {sM0}")

    def lds_reads(ns):
        for n in ns:
            g(f"ds_read_b128 {v(kreg(n),4)}, v{vLDS} offset:{(n - NREG_K) * 1024}")

    freed = 0

    def can_issue():
        i = state["i"]
        if i >= len(order):
            return False
        kind, n = order[i]
        assert kind == "V"
        s = (NREG_K + n) % NS
        return n < NS - NREG_K or s < freed

    every = opt.get("burst_every", 2)
    qi = 0
    for gam in range(4):
        ns_all = list(range(16 * gam, 16 * gam + 16))
        ldsn = [n for n in ns_all if n >= NREG_K]
        if ldsn:
            lds_reads(ldsn)
        for q4 in range(4):
            ns = ns_all[4 * q4: 4 * q4 + 4]
            regn = [n for n in ns if n < NREG_K]
            if regn:
                g(f"s_waitcnt vmcnt({min(63, issued_after('K', regn[-1]))})")
            if any(n >= NREG_K for n in ns):
                g("s_waitcnt lgkmcnt(0)")
            if 'qk' not in SKIP:
                dots(ns)
            if regn:
                freed = min(regn[-1] + 1, 16)
            qi += 1
            if qi % every == 0 and can_issue():
                issue_next()
        if 'qk' not in SKIP:
            tree(gam)
    freed = NS
    stamp(g, 3)
    g(f"v_max3_f32 v{vX}, v{vS}, v{vS+1}, v{vS+2}", f"v_max_f32 v{vX}, v{vX}, v{vS+3}")
    allreduce(g, [vX], "v_max_f32", [vX + 1])
    g(f"v_mul_f32 v{vX}, {hex(f2u(CS))}, v{vX}")
    g(f"s_mov_b32 {sT0}, {hex(f2u(CS))}")
    issue_next()
    for r in range(4):
        g(f"v_fma_f32 v{vS+r}, v{vS+r}, {sT0}, -v{vX}")
    for r in range(4):
        g(f"v_exp_f32 v{vS+r}, v{vS+r}")
    g("s_nop 0")
    g(f"v_add_f32 v{vX+1}, v{vS}, v{vS+1}", f"v_add_f32 v{vX+2}, v{vS+2}, v{vS+3}", f"v_add_f32 v{vX+1}, v{vX+1}, v{vX+2}")
    for r in range(4):
        g(f"v_cvt_pk_bf16_f32 v{vS+r}, v{vS+r}, v{vS+r}")
    allreduce(g, [vX + 1], "v_add_f32", [vX + 2])
    g(f"s_lshl_b32 {sT0}, s3, 3", f"v_mov_b32 v{vX+2}, {sT0}", "s_mov_b64 exec, 1",
      f"ds_write_b64 v{vX+2}, {v(vX,2)} offset:{L_MLW}", "s_mov_b64 exec, -1", "s_waitcnt lgkmcnt(0)")
    issue_next()
    if 'b12' not in SKIP:
        g("s_barrier")
    stamp(g, 4)
    g(f"v_mov_b32 v{vX+1}, 0", f"ds_read_b128 {v(vT,4)}, v{vX+1} offset:{L_MLW}",
      f"ds_read_b128 {v(vT+4,4)}, v{vX+1} offset:{L_MLW+16}", "s_waitcnt lgkmcnt(0)",
      f"v_max3_f32 v{vX+1}, v{vT}, v{vT+2}, v{vT+4}", f"v_max_f32 v{vX+1}, v{vX+1}, v{vT+6}",
      f"v_sub_f32 v{vX}, v{vX}, v{vX+1}", f"v_exp_f32 v{vX}, v{vX}")

    def pv(n):
        if 'pv' in SKIP:
            return
        B = vB[n & 1]
        for r in range(4):
            g(f"v_and_b32_dpp v{B+r}, v{vS+(n>>4)}, v{vM+r} row_newbcast:{n&15} {DPPF}")
        g("s_nop 1")
        mfma(g, vD, slot_of("V", n), B, False)

    nb2b = opt.get("b2b_at", 24)
    for n in range(64):
        pos = order.index(("V", n))
        while state["i"] < len(order) and state["i"] <= pos + W - 1:
            kind, m = order[state["i"]]
            assert m - NS < n or m < NS
            issue_next()
        if n == nb2b:
            stamp(g, 8)
            g("s_barrier")
        g(f"s_waitcnt vmcnt({min(63, issued_after('V', n))})")
        pv(n)
        if n % 5 == 4 and n < 14 and state["i"] < len(order):
            issue_next()
    stamp(g, 6)
    g("s_nop 7", "s_nop 1")
    for r in range(4):
        g(f"v_mul_f32 v{vD+r}, v{vD+r}, v{vX}")
    g(f"v_lshrrev_b32 v{vT}, 4, v0", f"v_lshlrev_b32 v{vT}, 7, v{vT}", f"v_and_b32 v{vT+1}, 15, v0",
      f"v_lshlrev_b32 v{vT+1}, 2, v{vT+1}", f"v_add_u32 v{vT}, v{vT}, v{vT+1}",
      f"s_lshl_b32 {sT0}, s3, 9", f"v_add_u32 v{vT}, {sT0}, v{vT}",
      "s_mov_b32 exec_lo, 0x00ff00ff", "s_mov_b32 exec_hi, 0x00ff00ff")
    for r in range(4):
        g(f"ds_write_b32 v{vT}, v{vD+r} offset:{L_RED + r*32}")
    g("s_mov_b64 exec, -1", "s_waitcnt lgkmcnt(0)", "s_barrier")
    stamp(g, 7)
    end(g)


def gen_aux(g, opt):
    vTAU, vI, vG, vMSK = 1, 2, 3, 4
    EX8 = ("s_mov_b32 exec_lo, 0x00030003", "s_mov_b32 exec_hi, 0x00030003")

    def tagify(dst, src):
        g(f"v_and_or_b32 v{dst}, v{src}, v{vMSK}, v{vTAU}")

    g(f"s_load_dword s30, s[28:29], {WS_EPOCH}")
    g(f"s_sub_u32 {sA}, s3, 4")
    make_srd(g, SRD_WS, 28, 0, WS_SIZE)
    g(f"v_and_b32 v{vI}, 15, v0", f"v_lshrrev_b32 v{vG}, 4, v0", f"v_mov_b32 v{vMSK}, {hex(0xffffffff ^ TAGMASK)}")
    g(f"s_mul_i32 {sPHI}, {sX}, 6", f"s_add_u32 {sPHI}, {sPHI}, {sR}", f"s_sub_u32 {sPHI}, {sPHI}, 24",
      f"s_cmp_lt_u32 {sR}, 24", f"s_cselect_b32 {sPHI}, 0xff, {sPHI}",
      f"s_cmp_ge_u32 {sR}, 30", f"s_cselect_b32 {sPHI}, 0xff, {sPHI}",
      f"s_cmp_ge_u32 {sPHI}, 43", f"s_cselect_b32 {sPHI}, 0xff, {sPHI}")

    def tag_ready():
        g("s_waitcnt lgkmcnt(0)", f"s_add_u32 {sTAU}, s30, 1", f"s_and_b32 {sTAU}, {sTAU}, {TAGMASK}", f"v_mov_b32 v{vTAU}, {sTAU}")

    LA1, LA2, LA3, LB1 = g.lab("a1"), g.lab("a2"), g.lab("a3"), g.lab("aux_b1")
    g(f"s_cmp_eq_u32 {sA}, 1", f"s_cbranch_scc1 {LA1}", f"s_cmp_eq_u32 {sA}, 2", f"s_cbranch_scc1 {LA2}",
      f"s_cmp_eq_u32 {sA}, 3", f"s_cbranch_scc1 {LA3}")

    g(f"s_cmp_ge_u32 {sR}, 24", f"s_cbranch_scc1 {LA3}")
    g(f"s_lshr_b32 s64, {sR}, 2", f"s_and_b32 s65, {sR}, 3",
      f"s_mul_i32 {sT0}, s65, {128*6144}", f"s_lshl_b32 {sT1}, s64, 10", f"s_add_u32 {sT0}, {sT0}, {sT1}",
      f"s_lshl_b32 {sT1}, {sX}, 7", f"s_add_u32 {sT0}, {sT0}, {sT1}")
    make_srd(g, SRD_A, 22, sT0, 512 * 3072 * 2)
    make_srd(g, SRD_B, 20, 0, 2048)
    g(f"v_and_b32 v5, 1, v{vG}", "v_lshlrev_b32 v8, 10, v5", f"v_lshlrev_b32 v9, 4, v{vI}", "v_add_u32 v8, v8, v9",
      f"s_lshl_b32 {sT1}, s65, 8", f"buffer_load_dwordx4 v[12:15], v8, {srd(SRD_B)}, {sT1} offen")
    g("v_lshrrev_b32 v9, 3, v0", f"s_mov_b32 {sT2}, 6144", f"v_mul_lo_u32 v9, v9, {sT2}", "v_and_b32 v10, 7, v0",
      "v_lshlrev_b32 v10, 4, v10", "v_add_u32 v9, v9, v10")
    for k in range(16):
        g(f"s_mov_b32 {sT2}, {k * 8 * 6144}")
        dma(g, 9, SRD_A, sT2, L_WMOD + k * 1024, "p1")
    g("s_waitcnt vmcnt(16)" if "p1" not in SKIP else "s_waitcnt vmcnt(0)")
    for r in range(4):
        g(f"v_lshlrev_b32 v{20+2*r}, 16, v{12+r}", f"v_and_b32 v{21+2*r}, 0xffff0000, v{12+r}")
    silu(g, range(20, 28), range(28, 36))
    for r in range(4):
        g(f"v_cvt_pk_bf16_f32 v{12+r}, v{20+2*r}, v{21+2*r}")
    g("v_lshlrev_b32 v8, 8, v5", f"v_lshlrev_b32 v10, 4, v{vI}", "v_add_u32 v8, v8, v10", f"ds_write_b128 v8, v[12:15] offset:{L_ACT1}")
    g(f"v_and_b32 v10, 1, v{vI}", "v_lshlrev_b32 v10, 8, v10", f"v_lshlrev_b32 v11, 4, v{vG}", "v_add_u32 v10, v10, v11")
    tr_addr(g, 11, 12, vI, vG, 7)
    tag_ready()
    for k in range(4):
        g(f"ds_read_b128 {v(40+4*k,4)}, v10 offset:{L_ACT1 + k*64}")
    g("s_waitcnt vmcnt(0)")
    for t in range(4):
        for k in range(4):
            tr_read(g, 64 + (t * 4 + k) * 4, 11, L_WMOD + k * 4096 + t * 32, 128)
        g("s_waitcnt lgkmcnt(0)")
        for k in range(4):
            mfma(g, 16 + 4 * t, 64 + (t * 4 + k) * 4, 40 + 4 * k, k == 0)
    g(f"s_lshl_b32 {sT0}, s64, 3", f"s_add_u32 {sT0}, {sT0}, {sX}", f"s_lshl_b32 s66, {sT0}, 11", f"s_add_u32 s66, s66, {WS_MODP}",
      f"s_lshl_b32 {sT1}, s65, 9", f"s_add_u32 {sT0}, s66, {sT1}",
      f"v_lshlrev_b32 v8, 6, v{vI}", f"v_lshlrev_b32 v9, 4, v{vG}", "v_add_u32 v8, v8, v9", "s_nop 4")
    for r in range(16):
        tagify(16 + r, 16 + r)
    g(*EX8)
    for t in range(4):
        g(f"buffer_store_dwordx4 {v(16+4*t,4)}, v8, {srd(SRD_WS)}, {sT0} offen offset:{t*128} sc1 ;@modp")
    g("s_mov_b64 exec, -1")
    stamp(g, 1)
    g("s_cmp_lg_u32 s65, 0", f"s_cbranch_scc1 {LB1}", "s_cmp_lt_u32 s64, 2", f"s_cbranch_scc1 {LB1}")
    g("v_lshlrev_b32 v8, 4, v0")
    poll(g, "p_fin",
         lambda: g(f"buffer_load_dwordx4 v[16:19], v8, {srd(SRD_WS)}, s66 offen sc1",
                   f"buffer_load_dwordx4 v[20:23], v8, {srd(SRD_WS)}, s66 offen offset:1024 sc1"),
         lambda: check_intag(g, range(16, 24), vTAU, 12))
    for e in range(4):
        g(f"v_add_f32 v{16+e}, v{16+e}, v{20+e}")
    swapreduce(g, range(16, 20), "v_add_f32", range(20, 24), "32")
    g("v_cvt_pk_bf16_f32 v20, v16, v17", "v_cvt_pk_bf16_f32 v21, v18, v19",
      "v_lshlrev_b32 v16, 16, v20", "v_and_b32 v17, 0xffff0000, v20", "v_lshlrev_b32 v18, 16, v21", "v_and_b32 v19, 0xffff0000, v21")
    for e in range(4):
        tagify(16 + e, 16 + e)
    g("v_lshrrev_b32 v8, 3, v0", "v_and_b32 v8, 3, v8", "v_lshlrev_b32 v8, 6, v8", "v_lshrrev_b32 v9, 2, v0", "v_and_b32 v9, 1, v9",
      "v_lshlrev_b32 v9, 11, v9", "v_add_u32 v8, v8, v9", "v_and_b32 v9, 3, v0", "v_lshlrev_b32 v9, 4, v9", "v_add_u32 v8, v8, v9",
      f"s_sub_u32 {sT0}, s64, 2", f"s_lshl_b32 {sT0}, {sT0}, 12", f"s_lshl_b32 {sT1}, {sX}, 8", f"s_add_u32 {sT0}, {sT0}, {sT1}",
      f"s_add_u32 {sT0}, {sT0}, {WS_MODF}", "s_mov_b32 exec_hi, 0",
      f"buffer_store_dwordx4 v[16:19], v8, {srd(SRD_WS)}, {sT0} offen sc1 ;@modf", "s_mov_b64 exec, -1")
    g(f"s_branch {LB1}")

    g(f"{LA1}:")
    g(f"s_lshl_b32 {sT0}, {sJ}, 19", f"s_lshl_b32 {sT1}, {sH}, 8", f"s_add_u32 {sT0}, {sT0}, {sT1}")
    make_srd(g, SRD_A, 10, sT0, 512 * 4096 * 2)
    make_srd(g, SRD_B, 4, 0, 2048)
    g("v_lshlrev_b32 v8, 4, v0")
    g(f"buffer_load_dwordx4 v[12:15], v8, {srd(SRD_B)}, 0 offen", f"buffer_load_dwordx4 v[16:19], v8, {srd(SRD_B)}, 0 offen offset:1024")
    g("v_lshrrev_b32 v5, 2, v0", "v_and_b32 v5, 1, v5",
      "v_lshrrev_b32 v6, 3, v0", "v_and_b32 v6, 3, v6", "v_lshlrev_b32 v6, 4, v6", "v_and_b32 v7, 3, v0", "v_lshlrev_b32 v7, 2, v7",
      "v_add_u32 v6, v6, v7",
      "v_lshlrev_b32 v7, 10, v5", "v_lshlrev_b32 v9, 1, v6", "v_add_u32 v9, v9, v7",
      f"s_lshl_b32 {sT1}, {sJ}, 7", f"buffer_load_dwordx2 v[20:21], v9, {srd(SRD_B)}, {sT1} offen")
    g(f"v_lshlrev_b32 v9, 13, v{vG}", f"v_lshlrev_b32 v10, 4, v{vI}", "v_add_u32 v9, v9, v10")
    for t in range(16):
        g(f"s_mov_b32 {sT2}, {t * 4 * 8192}")
        dma(g, 9, SRD_A, sT2, L_WQ + t * 1024, "wq")
    g("s_waitcnt vmcnt(16)" if "wq" not in SKIP else "s_waitcnt vmcnt(0)")
    for b in range(2):
        for r in range(4):
            g(f"v_lshlrev_b32 v{24+8*b+2*r}, 16, v{12+4*b+r}", f"v_and_b32 v{25+8*b+2*r}, 0xffff0000, v{12+4*b+r}")
    for b in range(2):
        base = 24 + 8 * b
        g(f"v_add_f32 v{40+b}, v{base}, v{base+1}")
        for e in range(2, 8):
            g(f"v_add_f32 v{40+b}, v{40+b}, v{base+e}")
    allreduce(g, [40, 41], "v_add_f32", [44, 45])
    g(f"v_mul_f32 v40, {hex(f2u(1/512))}, v40", f"v_mul_f32 v41, {hex(f2u(1/512))}, v41")
    for b in range(2):
        base = 24 + 8 * b
        for e in range(8):
            g(f"v_sub_f32 v{base+e}, v{base+e}, v{40+b}")
        g(f"v_mul_f32 v{42+b}, v{base}, v{base}")
        for e in range(1, 8):
            g(f"v_fmac_f32 v{42+b}, v{base+e}, v{base+e}")
    allreduce(g, [42, 43], "v_add_f32", [44, 45])
    for b in range(2):
        g(f"v_mov_b32 v44, {hex(f2u(1e-5))}", f"v_fmac_f32 v44, {hex(f2u(1/512))}, v{42+b}", f"v_rsq_f32 v{42+b}, v44", "s_nop 0")
    g("v_cmp_eq_u32 vcc, 1, v5", "s_nop 1", "v_cndmask_b32 v40, v40, v41, vcc", "v_cndmask_b32 v42, v42, v43, vcc",
      "v_lshlrev_b32 v24, 16, v20", "v_and_b32 v25, 0xffff0000, v20", "v_lshlrev_b32 v26, 16, v21", "v_and_b32 v27, 0xffff0000, v21")
    for e in range(4):
        g(f"v_sub_f32 v{24+e}, v{24+e}, v40", f"v_mul_f32 v{24+e}, v{24+e}, v42")
    tr_addr(g, 11, 12, vI, vG, 8)
    g("s_waitcnt vmcnt(0)")
    for t in range(8):
        for k in range(2):
            tr_read(g, 64 + (t * 2 + k) * 4, 11, L_WQ + k * 8192 + t * 32, 256)
        if t % 2 == 1:
            g("s_waitcnt lgkmcnt(0)")
    tag_ready()
    g(f"s_lshl_b32 {sT0}, {sJ}, 11", f"s_add_u32 {sT0}, {sT0}, {WS_MODP}", f"s_add_u32 {sT1}, {sT0}, {8*2048}", "v_lshlrev_b32 v9, 4, v0")
    poll(g, "p_saca",
         lambda: g(f"buffer_load_dwordx4 v[28:31], v9, {srd(SRD_WS)}, {sT0} offen sc1",
                   f"buffer_load_dwordx4 v[32:35], v9, {srd(SRD_WS)}, {sT0} offen offset:1024 sc1",
                   f"buffer_load_dwordx4 v[36:39], v9, {srd(SRD_WS)}, {sT1} offen sc1",
                   f"buffer_load_dwordx4 v[40:43], v9, {srd(SRD_WS)}, {sT1} offen offset:1024 sc1"),
         lambda: check_intag(g, range(28, 44), vTAU, 12))
    stamp(g, 1)
    for e in range(4):
        g(f"v_add_f32 v{28+e}, v{28+e}, v{32+e}", f"v_add_f32 v{36+e}, v{36+e}, v{40+e}")
    swapreduce(g, [28, 29, 30, 31, 36, 37, 38, 39], "v_add_f32", range(44, 52), "32")
    g("v_cvt_pk_bf16_f32 v44, v28, v29", "v_cvt_pk_bf16_f32 v45, v30, v31", "v_cvt_pk_bf16_f32 v46, v36, v37", "v_cvt_pk_bf16_f32 v47, v38, v39")
    for e in range(4):
        src_s, src_c = 44 + e // 2, 46 + e // 2
        if e % 2 == 0:
            g(f"v_lshlrev_b32 v{28+e}, 16, v{src_s}", f"v_lshlrev_b32 v{36+e}, 16, v{src_c}")
        else:
            g(f"v_and_b32 v{28+e}, 0xffff0000, v{src_s}", f"v_and_b32 v{36+e}, 0xffff0000, v{src_c}")
    for e in range(4):
        g(f"v_add_f32 v{36+e}, 1.0, v{36+e}", f"v_fma_f32 v{24+e}, v{24+e}, v{36+e}, v{28+e}")
    g("v_cvt_pk_bf16_f32 v24, v24, v25", "v_cvt_pk_bf16_f32 v25, v26, v27",
      "v_lshlrev_b32 v9, 7, v5", "v_lshlrev_b32 v10, 1, v6", "v_add_u32 v9, v9, v10", f"ds_write_b64 v9, v[24:25] offset:{L_ACT2}",
      f"v_and_b32 v10, 1, v{vI}", "v_lshlrev_b32 v10, 7, v10", f"v_lshlrev_b32 v12, 4, v{vG}", "v_add_u32 v10, v10, v12",
      "s_waitcnt lgkmcnt(0)",
      f"ds_read_b128 v[24:27], v10 offset:{L_ACT2}", f"ds_read_b128 v[28:31], v10 offset:{L_ACT2+64}", "s_waitcnt lgkmcnt(0)")
    for k in range(2):
        for t in range(8):
            mfma(g, 128 + 4 * t, 64 + (t * 2 + k) * 4, 24 + 4 * k, k == 0)
    g(f"s_lshl_b32 {sT0}, {sH}, 13", f"s_lshl_b32 {sT1}, {sJ}, 10", f"s_add_u32 s66, {sT0}, {WS_QP}", f"s_add_u32 {sT0}, s66, {sT1}",
      f"v_lshlrev_b32 v8, 6, v{vI}", f"v_lshlrev_b32 v9, 4, v{vG}", "v_add_u32 v8, v8, v9", "s_nop 3")
    for r in range(32):
        tagify(128 + r, 128 + r)
    g(*EX8)
    for t in range(8):
        g(f"buffer_store_dwordx4 {v(128+4*t,4)}, v8, {srd(SRD_WS)}, {sT0} offen offset:{t*128} sc1 ;@qp")
    g("s_mov_b64 exec, -1")
    stamp(g, 2)
    g("v_lshrrev_b32 v8, 5, v0", "v_lshlrev_b32 v8, 10, v8", "v_lshrrev_b32 v9, 2, v0", "v_and_b32 v9, 7, v9", "v_lshlrev_b32 v10, 7, v9",
      "v_add_u32 v8, v8, v10", "v_and_b32 v10, 3, v0", "v_lshlrev_b32 v11, 4, v10", "v_add_u32 v8, v8, v11",
      f"s_lshl_b32 {sT1}, {sB}, 6", f"s_add_u32 {sT0}, s66, {sT1}")

    def issq():
        for k in range(4):
            g(f"s_add_u32 {sT1}, {sT0}, {k*2048}", f"buffer_load_dwordx4 {v(16+4*k,4)}, v8, {srd(SRD_WS)}, {sT1} offen sc1")
    poll(g, "p_q", issq, lambda: check_intag(g, range(16, 32), vTAU, 12))
    stamp(g, 3)
    for e in range(4):
        g(f"v_add_f32 v{16+e}, v{16+e}, v{20+e}", f"v_add_f32 v{24+e}, v{24+e}, v{28+e}", f"v_add_f32 v{16+e}, v{16+e}, v{24+e}")
    swapreduce(g, range(16, 20), "v_add_f32", range(20, 24), "32")
    g("v_cvt_pk_bf16_f32 v16, v16, v17", "v_cvt_pk_bf16_f32 v17, v18, v19",
      "v_lshlrev_b32 v9, 5, v9", "v_lshlrev_b32 v10, 3, v10", "v_add_u32 v9, v9, v10", f"ds_write_b64 v9, v[16:17] offset:{L_Q}")
    g(f"s_branch {LB1}")

    g(f"{LA2}:")
    g("v_mov_b32 v8, -1", "v_mov_b32 v9, -1", "v_mov_b32 v10, -1", "v_mov_b32 v11, -1", "v_lshlrev_b32 v12, 4, v0",
      f"s_lshl_b32 {sT0}, {sH}, 3", f"s_add_u32 {sT0}, {sT0}, {sJ}", f"s_lshl_b32 {sT0}, {sT0}, 8", f"s_add_u32 {sT0}, {sT0}, {WS_OS}",
      "s_mov_b64 exec, 0xffff", f"buffer_store_dwordx4 v[8:11], v12, {srd(SRD_WS)}, {sT0} offen sc1 ;@inito", "s_mov_b64 exec, -1")
    tag_ready()
    g(f"s_branch {LB1}")

    g(f"{LA3}:")
    if opt.get("codepf", True):
        Lnp = g.lab("nopf")
        g(f"s_cmp_lg_u32 {sA}, 3", f"s_cbranch_scc1 {Lnp}", f"s_cmp_ge_u32 {sR}, {opt.get('codepf_wgs', 1)}", f"s_cbranch_scc1 {Lnp}")
        g("s_getpc_b64 s[64:65]", "L_pc:", "s_sub_u32 s64, s64, (L_pc - " + NAME + "_kernel)", "s_subb_u32 s65, s65, 0",
          "v_lshlrev_b32 v8, 7, v0", "s_mov_b32 s66, (L_end - " + NAME + "_kernel)")
        for k in range(opt.get("codepf_n", 3)):
            g("v_min_u32 v9, s66, v8", f"global_load_dword v{12+k}, v9, s[64:65]", "v_add_u32 v8, 0x2000, v8")
        g(f"{Lnp}:")
    tag_ready()

    g(f"{LB1}:", "s_waitcnt lgkmcnt(0)")
    stamp(g, 4)
    if 'b12' not in SKIP:
        g("s_barrier")
        g("s_barrier")
    LnoML = g.lab("noml")
    g(f"s_cmp_lg_u32 {sA}, 2", f"s_cbranch_scc1 {LnoML}")
    g("v_mov_b32 v8, 0", f"ds_read_b128 v[12:15], v8 offset:{L_MLW}", f"ds_read_b128 v[16:19], v8 offset:{L_MLW+16}", "s_waitcnt lgkmcnt(0)",
      "v_max3_f32 v20, v12, v14, v16", "v_max_f32 v20, v20, v18")
    for m in (12, 14, 16, 18):
        g(f"v_sub_f32 v{m}, v{m}, v20", f"v_exp_f32 v{m}, v{m}")
    g("s_nop 0", "v_mul_f32 v21, v12, v13", "v_fmac_f32 v21, v14, v15", "v_fmac_f32 v21, v16, v17", "v_fmac_f32 v21, v18, v19",
      f"s_mul_i32 {sT1}, {sTAU}, 0x00400401", f"v_mov_b32 v22, {sT1}", f"v_mov_b32 v23, {sT1}",
      f"s_lshl_b32 {sT0}, {sH}, 3", f"s_add_u32 {sT0}, {sT0}, {sJ}", f"s_lshl_b32 {sT0}, {sT0}, 7", f"s_add_u32 {sT0}, {sT0}, {WS_ML}",
      "v_lshlrev_b32 v8, 4, v0", "s_waitcnt vmcnt(0)", "s_mov_b64 exec, 0xff",
      f"buffer_store_dwordx4 v[20:23], v8, {srd(SRD_WS)}, {sT0} offen sc1 ;@ml", "s_mov_b64 exec, -1")
    g(f"{LnoML}:")

    LWO, LT3, LPLAIN = g.lab("wo"), g.lab("t3"), g.lab("plain")
    g(f"s_cmp_lg_u32 {sPHI}, 0xff", f"s_cbranch_scc1 {LT3}", f"s_sub_u32 s67, {sR}, 8", "s_cmp_lt_u32 s67, 8", f"s_cbranch_scc1 {LWO}")

    def publish_o():
        Lno = g.lab("noo")
        g(f"s_cmp_lg_u32 {sA}, 0", f"s_cbranch_scc1 {Lno}", "v_lshlrev_b32 v8, 5, v0", "s_mov_b64 exec, 0xffff")
        for w in range(4):
            g(f"ds_read_b128 {v(12+8*w,4)}, v8 offset:{L_RED + w*512}", f"ds_read_b128 {v(16+8*w,4)}, v8 offset:{L_RED + w*512 + 16}")
        g(f"s_lshl_b32 {sT0}, {sH}, 3", f"s_add_u32 {sT0}, {sT0}, {sJ}", f"s_lshl_b32 {sT0}, {sT0}, 8", f"s_add_u32 {sT0}, {sT0}, {WS_OS}",
          "v_lshlrev_b32 v9, 4, v0", "s_waitcnt lgkmcnt(0)")
        for e in range(8):
            g(f"v_add_f32 v{12+e}, v{12+e}, v{20+e}", f"v_add_f32 v{28+e}, v{28+e}, v{36+e}")
        for e in range(8):
            g(f"v_add_f32 v{12+e}, v{12+e}, v{28+e}")
        for r in range(4):
            g(f"v_cvt_pk_bf16_f32 v{12+r}, v{12+2*r}, v{13+2*r}")
        g(f"buffer_store_dwordx4 v[12:15], v9, {srd(SRD_WS)}, {sT0} offen sc1 ;@opub", "s_mov_b64 exec, -1", f"{Lno}:")

    g(f"{LPLAIN}:", "s_barrier", "s_barrier")
    stamp(g, 5)
    publish_o()
    stamp(g, 6)
    end(g)

    g(f"{LWO}:")
    g(f"s_lshl_b32 {sT0}, {sX}, 2", f"s_add_u32 {sT0}, {sT0}, {sA}", f"s_lshl_b32 s64, {sT0}, 17", "s_lshl_b32 s65, s67, 7",
      "s_add_u32 s64, s64, s65")
    make_srd(g, SRD_A, 12, "s64", 4096 * 512 * 2)
    g("v_lshrrev_b32 v9, 3, v0", "v_lshlrev_b32 v9, 10, v9", "v_and_b32 v10, 7, v0", "v_lshlrev_b32 v10, 4, v10", "v_add_u32 v9, v9, v10",
      f"s_lshl_b32 s65, {sA}, 14", f"s_add_u32 s65, s65, {L_KB}")
    for k in range(16):
        g(f"s_mov_b32 {sT2}, {k*8*1024}", f"s_add_u32 {sT3}, s65, {k*1024}")
        dma(g, 9, SRD_A, sT2, sT3, "wo")
    g("s_barrier")
    g(f"s_lshl_b32 {sT0}, {sX}, 2", f"s_add_u32 {sT0}, {sT0}, {sA}", f"s_lshl_b32 {sT0}, {sT0}, 10", f"s_add_u32 {sT0}, {sT0}, {WS_ML}",
      f"v_and_b32 v8, 1, v{vG}", "v_lshlrev_b32 v8, 9, v8", "v_and_b32 v9, 3, v0", "v_lshlrev_b32 v9, 7, v9", "v_add_u32 v8, v8, v9",
      f"s_mul_i32 {sT1}, {sTAU}, 0x00400401", f"v_mov_b32 v5, {sT1}")

    def chk_ml():
        g("v_xor_b32 v16, v14, v5", "v_xor_b32 v17, v15, v5", "v_or_b32 v16, v16, v17", "v_cmp_ne_u32 vcc, 0, v16")
    poll(g, "p_ml", lambda: g(f"buffer_load_dwordx4 v[12:15], v8, {srd(SRD_WS)}, {sT0} offen sc1"), chk_ml)
    vF = 240
    g("v_mov_b32 v16, v12", "s_nop 1",
      f"v_max_f32_dpp v16, v16, v16 quad_perm:[1,0,3,2] {DPPF}", "s_nop 1",
      f"v_max_f32_dpp v16, v16, v16 quad_perm:[2,3,0,1] {DPPF}",
      "v_sub_f32 v12, v12, v16", "v_exp_f32 v12, v12", "s_nop 0", "v_mul_f32 v13, v13, v12", "s_nop 1",
      f"v_add_f32_dpp v13, v13, v13 quad_perm:[1,0,3,2] {DPPF}", "s_nop 1",
      f"v_add_f32_dpp v13, v13, v13 quad_perm:[2,3,0,1] {DPPF}",
      "v_rcp_f32 v13, v13", "s_nop 0", "v_mul_f32 v12, v12, v13", "s_nop 1")
    for r in range(4):
        g(f"v_mov_b32_dpp v{vF+r}, v12 quad_perm:[{r},{r},{r},{r}] {DPPF}")
    vBW = 128
    tr_addr(g, 11, 12, vI, vG, 7, "s65")
    for t in range(4):
        for k in range(4):
            tr_read(g, vBW + (t * 4 + k) * 4, 11, k * 4096 + t * 32, 128)
        g("s_waitcnt lgkmcnt(0)")
    g(f"s_lshl_b32 {sT0}, {sX}, 2", f"s_add_u32 {sT0}, {sT0}, {sA}", f"s_lshl_b32 s64, {sT0}, 11", f"s_add_u32 s64, s64, {WS_OS}",
      f"v_and_b32 v6, 7, v{vI}", "v_lshlrev_b32 v6, 8, v6", f"v_lshlrev_b32 v7, 4, v{vG}", "v_add_u32 v6, v6, v7",
      f"s_lshl_b32 {sT0}, {sA}, 9", f"v_lshlrev_b32 v7, 6, v{vG}", f"v_lshlrev_b32 v9, 2, v{vI}", "v_add_u32 v7, v7, v9", f"v_add_u32 v7, {sT0}, v7")
    g("s_barrier")
    stamp(g, 5)
    publish_o()
    stamp(g, 6)

    def isso(ks):
        for k in ks:
            g(f"buffer_load_dwordx4 {v(16+4*k,4)}, v6, {srd(SRD_WS)}, s64 offen offset:{k*64} sc1")
    poll(g, "p_o", lambda: isso(range(4)), lambda: check_sentinel(g, range(16, 32), 12),
         pre=(lambda: isso([3]), lambda: check_sentinel(g, range(28, 32), 12)) if opt.get("prepoll", True) else None)
    stamp(g, 7)
    for k in range(4):
        for t in range(4):
            mfma(g, 32 + 4 * t, 16 + 4 * k, vBW + (t * 4 + k) * 4, k == 0)
    g("s_nop 4")
    for t in range(4):
        d = 32 + 4 * t
        g(f"v_mul_f32 v{d}, v{d}, v{vF}", f"v_fmac_f32 v{d}, v{d+1}, v{vF+1}", f"v_fmac_f32 v{d}, v{d+2}, v{vF+2}", f"v_fmac_f32 v{d}, v{d+3}, v{vF+3}")
    g("s_mov_b32 exec_hi, 0")
    for t in range(4):
        g(f"ds_write_b32 v7, v{32+4*t} offset:{L_RED2 + t*128}")
    g("s_mov_b64 exec, -1", "s_waitcnt lgkmcnt(0)", "s_barrier")
    g(f"s_cmp_lg_u32 {sA}, 0", "s_cbranch_scc1 L_exit", "v_lshlrev_b32 v8, 4, v0", "s_mov_b32 exec_hi, 0")
    for w in range(4):
        g(f"ds_read_b128 {v(12+4*w,4)}, v8 offset:{L_RED2 + w*512}")
    g(f"s_lshl_b32 {sT0}, {sX}, 12", "s_lshl_b32 s65, s67, 9", f"s_add_u32 {sT0}, {sT0}, s65", f"s_add_u32 {sT0}, {sT0}, {WS_YS}",
      "s_waitcnt lgkmcnt(0)")
    for e in range(4):
        g(f"v_add_f32 v{12+e}, v{12+e}, v{16+e}", f"v_add_f32 v{20+e}, v{20+e}, v{24+e}", f"v_add_f32 v{12+e}, v{12+e}, v{20+e}")
    for e in range(4):
        tagify(12 + e, 12 + e)
    g(f"buffer_store_dwordx4 v[12:15], v8, {srd(SRD_WS)}, {sT0} offen sc1 ;@ypub")
    stamp(g, 8)
    end(g)

    g(f"{LT3}:")
    g(f"s_mul_i32 {sT0}, {sA}, {128*2752}", f"s_lshl_b32 {sT1}, {sPHI}, 6", f"s_add_u32 s64, {sT0}, {sT1}")
    make_srd(g, SRD_A, 16, "s64", 512 * 1376 * 2)
    g(f"s_lshl_b32 {sT0}, {sPHI}, 15", f"s_lshl_b32 {sT1}, {sA}, 8", f"s_add_u32 s64, {sT0}, {sT1}")
    make_srd(g, SRD_B, 18, "s64", 1376 * 512 * 2)
    g("v_lshrrev_b32 v9, 2, v0", f"s_mov_b32 {sT2}, 2752", f"v_mul_lo_u32 v9, v9, {sT2}", "v_and_b32 v10, 3, v0", "v_lshlrev_b32 v10, 4, v10",
      "v_add_u32 v9, v9, v10", f"s_lshl_b32 s65, {sA}, 13", f"s_add_u32 s65, s65, {L_KB}", "s_add_u32 s66, s65, 32768",
      f"v_lshlrev_b32 v10, 10, v{vG}", f"v_lshlrev_b32 v11, 4, v{vI}", "v_add_u32 v10, v10, v11")
    for t in range(8):
        g(f"s_mov_b32 {sT2}, {t*16*2752}", f"s_add_u32 {sT3}, s65, {t*1024}")
        dma(g, 9, SRD_A, sT2, sT3, "w12")
    for t in range(8):
        g(f"s_mov_b32 {sT2}, {t*4*1024}", f"s_add_u32 {sT3}, s66, {t*1024}")
        dma(g, 10, SRD_B, sT2, sT3, "w12")
    g("s_barrier")
    vX3, vGA3, vC3, vGB = 224, 228, 232, 236
    g(f"s_and_b32 {sT0}, {sA}, 1", f"s_lshl_b32 {sT0}, {sT0}, 6", f"v_add_u32 v8, {sT0}, v0",
      "v_lshlrev_b32 v9, 4, v8", f"s_lshr_b32 s68, {sA}, 1", "s_lshl_b32 s69, s68, 11", f"s_add_u32 {sT0}, s69, {WS_MODF}",
      f"s_add_u32 {sT1}, {sT0}, 4096", f"s_add_u32 {sT2}, {sT0}, 8192")
    g("v_lshrrev_b32 v5, 2, v0", "v_and_b32 v5, 1, v5", "v_lshlrev_b32 v6, 11, v5", "v_and_b32 v7, 3, v0", "v_lshlrev_b32 v7, 4, v7",
      "v_add_u32 v6, v6, v7", f"s_and_b32 {sT3}, {sPHI}, 31", f"s_lshl_b32 {sT3}, {sT3}, 6", f"v_add_u32 v6, {sT3}, v6",
      f"s_mov_b32 s69, {WS_MODF + 3*4096}")
    poll(g, "p_modf",
         lambda: g(f"buffer_load_dwordx4 v[12:15], v9, {srd(SRD_WS)}, {sT0} offen sc1", f"buffer_load_dwordx4 v[16:19], v9, {srd(SRD_WS)}, {sT1} offen sc1",
                   f"buffer_load_dwordx4 v[20:23], v9, {srd(SRD_WS)}, {sT2} offen sc1", f"buffer_load_dwordx4 {v(vGB,4)}, v6, {srd(SRD_WS)}, s69 offen sc1"),
         lambda: check_intag(g, list(range(12, 24)) + list(range(vGB, vGB + 4)), vTAU, 28))
    make_srd(g, SRD_A, 4, 0, 2048)
    g("v_lshlrev_b32 v10, 3, v8", f"s_lshl_b32 {sT2}, s68, 10", f"buffer_load_dwordx2 v[40:41], v10, {srd(SRD_A)}, {sT2} offen")
    for e in range(4):
        g(f"v_and_b32 v{vGA3+e}, v{vMSK}, v{12+e}", f"v_and_b32 v{16+e}, v{vMSK}, v{16+e}", f"v_and_b32 v{20+e}, v{vMSK}, v{20+e}",
          f"v_and_b32 v{vGB+e}, v{vMSK}, v{vGB+e}", f"v_add_f32 v{20+e}, 1.0, v{20+e}")
    g("v_cvt_pk_bf16_f32 v42, v20, v21", "v_cvt_pk_bf16_f32 v43, v22, v23",
      "v_cvt_pk_bf16_f32 v44, v16, v17", "v_cvt_pk_bf16_f32 v45, v18, v19",
      f"v_lshlrev_b32 v{vC3}, 16, v42", f"v_and_b32 v{vC3+1}, 0xffff0000, v42", f"v_lshlrev_b32 v{vC3+2}, 16, v43", f"v_and_b32 v{vC3+3}, 0xffff0000, v43",
      f"v_add_u32 v11, {sT2}, v10",
      f"ds_write_b64 v11, v[42:43] offset:{L_ACT3 + 2*1024}", f"ds_write_b64 v11, v[44:45] offset:{L_ACT3 + 4*1024}",
      "s_waitcnt vmcnt(0)",
      f"v_lshlrev_b32 v{vX3}, 16, v40", f"v_and_b32 v{vX3+1}, 0xffff0000, v40", f"v_lshlrev_b32 v{vX3+2}, 16, v41", f"v_and_b32 v{vX3+3}, 0xffff0000, v41")
    vB1, vB2 = 64, 96
    tr_addr(g, 11, 12, vI, vG, 6, "s65")
    for tau in range(2):
        for k in range(4):
            tr_read(g, vB1 + (tau * 4 + k) * 4, 11, k * 2048 + tau * 32, 64)
        g("s_waitcnt lgkmcnt(0)")
    tr_addr(g, 11, 12, vI, vG, 8, "s66")
    for t in range(8):
        tr_read(g, vB2 + 4 * t, 11, t * 32, 256)
        if t % 4 == 3:
            g("s_waitcnt lgkmcnt(0)")
    vYA, vZA, vXA, vAA, vRA = 200, 201, 202, 203, 204
    g(f"v_lshrrev_b32 v{vYA}, 2, v8", f"v_lshlrev_b32 v{vYA}, 7, v{vYA}", f"v_and_b32 v12, 3, v8", "v_lshlrev_b32 v12, 4, v12",
      f"v_add_u32 v{vYA}, v{vYA}, v12", f"s_lshl_b32 {sT0}, s68, 6", f"v_add_u32 v{vYA}, {sT0}, v{vYA}",
      f"v_lshlrev_b32 v{vZA}, 3, v8", f"s_lshl_b32 {sT0}, s68, 10", f"v_add_u32 v{vZA}, {sT0}, v{vZA}",
      f"v_lshlrev_b32 v{vXA}, 4, v8", f"s_lshl_b32 {sT0}, s68, 11", f"v_add_u32 v{vXA}, {sT0}, v{vXA}",
      f"v_cmp_gt_u32 vcc, 6, v{vI}", "s_nop 1", f"v_cndmask_b32 v{vAA}, 0, v{vI}, vcc", f"v_lshlrev_b32 v{vAA}, 10, v{vAA}",
      f"v_lshlrev_b32 v12, 4, v{vG}", f"v_add_u32 v{vAA}, v{vAA}, v12", f"s_lshl_b32 {sT0}, {sA}, 8", f"v_add_u32 v{vAA}, {sT0}, v{vAA}",
      f"s_lshl_b32 {sT0}, {sA}, 10", f"v_lshlrev_b32 v{vRA}, 4, v0", f"v_add_u32 v{vRA}, {sT0}, v{vRA}")
    g("s_barrier")
    stamp(g, 5)
    publish_o()
    stamp(g, 6)

    def issy(Gs):
        for G_ in Gs:
            g(f"s_mov_b32 {sT1}, {WS_YS + G_*4096}", f"buffer_load_dwordx4 {v(16+4*G_,4)}, v{vYA}, {srd(SRD_WS)}, {sT1} offen sc1")
    poll(g, "p_y", lambda: issy(range(8)), lambda: check_intag(g, range(16, 48), vTAU, 12),
         pre=(lambda: issy([7]), lambda: check_intag(g, range(44, 48), vTAU, 12)) if opt.get("prepoll", True) else None)
    stamp(g, 7)
    for e in range(4):
        g(f"v_add_f32 v{16+e}, v{16+e}, v{20+e}", f"v_add_f32 v{24+e}, v{24+e}, v{28+e}",
          f"v_add_f32 v{32+e}, v{32+e}, v{36+e}", f"v_add_f32 v{40+e}, v{40+e}, v{44+e}")
    for e in range(4):
        g(f"v_add_f32 v{16+e}, v{16+e}, v{24+e}", f"v_add_f32 v{32+e}, v{32+e}, v{40+e}")
    for e in range(4):
        g(f"v_add_f32 v{16+e}, v{16+e}, v{32+e}")
    for e in range(4):
        g(f"v_fma_f32 v{16+e}, v{16+e}, v{vGA3+e}, v{vX3+e}")
    g(f"ds_write_b128 v{vXA}, v[16:19] offset:{L_X1}",
      "v_add_f32 v20, v16, v17", "v_add_f32 v21, v18, v19", "v_add_f32 v20, v20, v21",
      "v_mul_f32 v21, v16, v16", "v_fmac_f32 v21, v17, v17", "v_fmac_f32 v21, v18, v18", "v_fmac_f32 v21, v19, v19")
    for e in range(4):
        g(f"v_mul_f32 v{24+e}, v{16+e}, v{vC3+e}")
    g("v_cvt_pk_bf16_f32 v24, v24, v25", "v_cvt_pk_bf16_f32 v25, v26, v27", f"ds_write_b64 v{vZA}, v[24:25] offset:{L_ACT3}")
    allreduce(g, [20, 21], "v_add_f32", [22, 23])
    g(f"s_lshl_b32 {sT0}, {sA}, 3", f"v_mov_b32 v22, {sT0}", "s_mov_b64 exec, 1", f"ds_write_b64 v22, v[20:21] offset:{L_STAT}",
      "s_mov_b64 exec, -1", "s_waitcnt lgkmcnt(0)", "s_barrier")
    for k in range(4):
        g(f"ds_read_b128 {v(16+4*k,4)}, v{vAA} offset:{L_ACT3 + k*64}")
    g("s_waitcnt lgkmcnt(0)")
    for k in range(4):
        for tau in range(2):
            mfma(g, 32 + 4 * tau, 16 + 4 * k, vB1 + (tau * 4 + k) * 4, k == 0)
    g("v_lshrrev_b32 v8, 5, v0", "v_and_b32 v9, 31, v0", "v_lshrrev_b32 v10, 4, v9", "v_lshlrev_b32 v10, 9, v10",
      f"v_lshlrev_b32 v11, 4, v{vI}", "v_add_u32 v10, v10, v11", "v_lshlrev_b32 v11, 2, v8", "v_add_u32 v10, v10, v11",
      "v_lshlrev_b32 v11, 4, v8", "s_mov_b32 exec_hi, 0",
      f"ds_write_b128 v{vRA}, v[32:35] offset:{L_RED3}", f"ds_write_b128 v{vRA}, v[36:39] offset:{L_RED3+512}",
      "s_mov_b64 exec, -1", "s_waitcnt lgkmcnt(0)", "s_barrier")
    for w in range(4):
        g(f"ds_read_b32 v{12+w}, v10 offset:{L_RED3 + w*1024}", f"ds_read_b32 v{16+w}, v10 offset:{L_RED3 + w*1024 + 8}",
          f"ds_read_b32 v{20+w}, v10 offset:{L_RED3 + w*1024 + 256}")
    g(f"ds_read_b128 v[24:27], v11 offset:{L_STAT}", "s_waitcnt lgkmcnt(0)")
    for base in (12, 16, 20):
        g(f"v_add_f32 v{base}, v{base}, v{base+1}", f"v_add_f32 v{base+2}, v{base+2}, v{base+3}", f"v_add_f32 v{base}, v{base}, v{base+2}")
    g("v_add_f32 v24, v24, v26", "v_add_f32 v25, v25, v27",
      f"v_mul_f32 v24, {hex(f2u(1/512))}, v24", f"v_mul_f32 v25, {hex(f2u(1/512))}, v25",
      "v_fma_f32 v25, -v24, v24, v25", f"v_add_f32 v25, {hex(f2u(1e-5))}, v25", "v_rsq_f32 v25, v25",
      "v_fma_f32 v12, -v24, v16, v12", "v_fma_f32 v12, v12, v25, v20")
    silu(g, [12], [13])
    g("v_cvt_pk_bf16_f32 v12, v12, v12", f"s_lshl_b32 {sT0}, {sA}, 7", "v_lshlrev_b32 v13, 1, v0", f"v_add_u32 v13, {sT0}, v13",
      f"ds_write_b16 v13, v12 offset:{L_ACTG}",
      f"v_and_b32 v14, 1, v{vI}", "v_lshlrev_b32 v14, 6, v14", f"v_lshlrev_b32 v15, 4, v{vG}", "v_add_u32 v14, v14, v15", f"v_add_u32 v14, {sT0}, v14",
      "s_waitcnt lgkmcnt(0)", f"ds_read_b128 v[16:19], v14 offset:{L_ACTG}",
      f"s_lshl_b32 {sT0}, {sPHI}, 12", f"s_lshl_b32 {sT1}, {sA}, 10", f"s_add_u32 {sT0}, {sT0}, {sT1}", f"s_add_u32 {sT0}, {sT0}, {WS_PS}",
      f"v_lshlrev_b32 v8, 6, v{vI}", f"v_lshlrev_b32 v9, 4, v{vG}", "v_add_u32 v8, v8, v9", "s_waitcnt lgkmcnt(0)")
    for t in range(8):
        mfma(g, 128 + 4 * t, vB2 + 4 * t, 16, True)
    g("s_nop 1")
    for t in range(8):
        for e in range(4):
            tagify(128 + 4 * t + e, 128 + 4 * t + e)
        if t == 0:
            pass
    g(*EX8)
    for t in range(8):
        g(f"buffer_store_dwordx4 {v(128+4*t,4)}, v8, {srd(SRD_WS)}, {sT0} offen offset:{t*128} sc1 ;@pspub")
    g("s_mov_b64 exec, -1")
    stamp(g, 8)
    g(f"s_cmp_lg_u32 {sA}, 0", "s_cbranch_scc1 L_exit", f"s_cmp_ge_u32 {sPHI}, 32", "s_cbranch_scc1 L_exit")
    g("v_lshrrev_b32 v9, 3, v0", "v_lshlrev_b32 v8, 12, v9", "v_and_b32 v10, 7, v0", "v_lshlrev_b32 v10, 4, v10", "v_add_u32 v8, v8, v10",
      "v_cmp_gt_u32 vcc, 3, v9", "s_nop 1", "v_cndmask_b32 v11, v10, v8, vcc", "v_cndmask_b32 v12, 0, 1.0, vcc",
      f"s_lshl_b32 {sT0}, {sPHI}, 7", f"s_add_u32 {sT0}, {sT0}, {WS_PS}",
      f"ds_read_b128 v[44:47], v6 offset:{L_X1}")

    def issp(ks):
        for k in ks:
            vv = 11 if k == 5 else 8
            g(f"s_add_u32 {sT1}, {sT0}, {k*8*4096}", f"buffer_load_dwordx4 {v(16+4*k,4)}, v{vv}, {srd(SRD_WS)}, {sT1} offen sc1")
    poll(g, "p_ps", lambda: issp(range(6)), lambda: check_intag(g, range(16, 40), vTAU, 13))
    stamp(g, 9)
    for e in range(4):
        g(f"v_add_f32 v{16+e}, v{16+e}, v{20+e}", f"v_add_f32 v{24+e}, v{24+e}, v{28+e}", f"v_fma_f32 v{32+e}, v{36+e}, v12, v{32+e}")
    for e in range(4):
        g(f"v_add_f32 v{16+e}, v{16+e}, v{24+e}")
    for e in range(4):
        g(f"v_add_f32 v{16+e}, v{16+e}, v{32+e}")
    g("s_nop 0")
    for e in range(4):
        g(f"v_add_f32_dpp v{16+e}, v{16+e}, v{16+e} row_ror:8 {DPPF}")
    swapreduce(g, range(16, 20), "v_add_f32", range(20, 24), "16")
    swapreduce(g, range(16, 20), "v_add_f32", range(20, 24), "32")
    make_srd(g, SRD_B, 24, 0, 2048)
    g("s_waitcnt lgkmcnt(0)")
    for e in range(4):
        g(f"v_fma_f32 v{16+e}, v{16+e}, v{vGB+e}, v{44+e}")
    g("v_cvt_pk_bf16_f32 v16, v16, v17", "v_cvt_pk_bf16_f32 v17, v18, v19", "v_lshrrev_b32 v8, 1, v6", "s_mov_b64 exec, 0xff",
      f"buffer_store_dwordx2 v[16:17], v8, {srd(SRD_B)}, 0 offen")
    stamp(g, 10)
    g(f"s_cmp_lg_u32 {sPHI}, 0", "s_cbranch_scc1 L_exit", "s_mov_b64 exec, 1", "s_add_u32 s30, s30, 1", "v_mov_b32 v8, 0", "v_mov_b32 v9, s30",
      f"buffer_store_dword v9, v8, {srd(SRD_WS)}, 0 offen sc1")
    end(g)


def generate(opt=None):
    global STAMPS, SKIP, POLL_LIMIT
    opt = dict(opt or {})
    POLL_LIMIT = opt.get("poll_limit", 400000)
    SKIP = set(opt.get("skip", ()))
    STAMPS = opt.get("stamps", False)
    g = G()
    hdr = open("cdna_kernels/" + NAME + ".s.ref").read().split("\n")
    for line in hdr:
        if line.startswith(";") and "@launch" not in line and "Override launch" not in line and "grid=ceil" not in line:
            g(line)
        elif not line.startswith(";"):
            break
    g(f"; @launch grid=(256,1,1) block=(512,1,1) lds={LDS_SIZE}")
    g('.amdgcn_target "amdgcn-amd-amdhsa--gfx950"', ".text", f".globl {NAME}_kernel", ".p2align 8",
      f".type {NAME}_kernel,@function", f"{NAME}_kernel:")
    stamp(g, 0)
    g("s_cmp_ge_u32 s2, 0x100", "s_cbranch_scc1 L_end",
      "s_load_dwordx16 s[4:19], s[0:1], 0", "s_load_dwordx8 s[20:27], s[0:1], 64", "s_load_dwordx2 s[28:29], s[0:1], 96",
      "v_lshrrev_b32 v1, 6, v0", "v_and_b32 v0, 63, v0", "s_nop 0", "v_readfirstlane_b32 s3, v1",
      f"s_and_b32 {sX}, s2, 7", f"s_lshr_b32 {sR}, s2, 3", f"s_and_b32 {sT0}, {sR}, 3", f"s_lshl_b32 {sH}, {sX}, 2",
      f"s_add_u32 {sH}, {sH}, {sT0}", f"s_lshr_b32 {sJ}, {sR}, 2", f"s_lshr_b32 {sB}, {sJ}, 2", f"s_and_b32 {sS}, {sJ}, 3",
      "s_waitcnt lgkmcnt(0)")
    if STAMPS:
        for k in range(1, NSTAMP):
            g(f"s_mov_b32 s{80+2*k}, 0")
    g("s_cmp_ge_u32 s3, 4", "s_cbranch_scc1 L_aux")
    gen_stream(g, opt)
    g("L_aux:")
    if 'aux' in SKIP:
        g("s_endpgm")
    gen_aux(g, opt)
    g("L_exit:")
    end(g)
    g("L_end:", "s_endpgm")
    g('.section .rodata,"a"', ".p2align 6", f".amdhsa_kernel {NAME}_kernel",
      "  .amdhsa_next_free_vgpr 256", "  .amdhsa_next_free_sgpr 102", "  .amdhsa_accum_offset 256",
      "  .amdhsa_group_segment_fixed_size 0", "  .amdhsa_kernarg_size 104", "  .amdhsa_user_sgpr_count 2",
      "  .amdhsa_user_sgpr_kernarg_segment_ptr 1", "  .amdhsa_system_sgpr_workgroup_id_x 1",
      "  .amdhsa_float_denorm_mode_32 3", ".end_amdhsa_kernel")
    txt = g.text()
    drop = set(opt.get("drop", ()))
    kept = []
    for line in txt.split("\n"):
        if ";@" in line:
            nm = line.split(";@")[1].strip()
            line = line.split(";@")[0].rstrip()
            if nm in drop:
                continue
        kept.append(line)
    return "\n".join(kept)


if __name__ == "__main__":
    out = sys.argv[1] if len(sys.argv) > 1 else "cdna_kernels/" + NAME + ".s"
    opt = eval(sys.argv[2]) if len(sys.argv) > 2 else {}
    open(out, "w").write(generate(opt))
    print("wrote", out)
```

```python
import struct
import sys

NAME = "adaLN_cond__gqa_block_cached__dense_activation_silu__decode"

WS_EPOCH = 0x0
WS_MODP = 0x1000
WS_MODF = 0x19000
WS_ML = 0x20000
WS_QP = 0x30000
WS_OS = 0x70000
WS_YS = 0x80000
WS_PS = 0x90000
WS_STAMP = 0xC0000
WS_SIZE = 0x100000

L_Q = 0x0000
L_MLW = 0x0100
L_RED = 0x0200
L_RED2 = 0x0A00
L_STAT = 0x1200
L_ACT1 = 0x1300
L_ACT2 = 0x1500
L_ACTG = 0x1600
L_ACT3 = 0x1800
L_RED3 = 0x3000
L_X1 = 0x4000
L_WMOD = 0x5000
L_WQ = 0x9000
L_KB = 0xD000
NL = 24
LDS_SIZE = L_KB + 4 * NL * 1024

sX, sR, sH, sJ, sB, sS = "s48", "s49", "s50", "s51", "s52", "s53"
sT0, sT1, sT2, sT3 = "s54", "s55", "s56", "s57"
sA = "s58"
sPHI = "s59"
sM1, sM0 = "s[60:61]", "s[62:63]"
sCNT = "s70"
sTAU = "s31"
SRD_A, SRD_B, SRD_WS = 32, 36, 40
POLL_LIMIT = 400000
TAGMASK = 0x3FF

LOG2E = 1.4426950408889634
CS = (128 ** -0.5) * LOG2E
STAMPS = False
NSTAMP = 11
SKIP = set()


def f2u(x):
    return struct.unpack("<I", struct.pack("<f", x))[0]


class G:
    def __init__(self):
        self.L = []
        self.n = 0

    def __call__(self, *txt):
        for t in txt:
            self.L.extend(t.split("\n"))

    def lab(self, base):
        self.n += 1
        return f"L_{base}_{self.n}"

    def text(self):
        return "\n".join(self.L) + "\n"


def v(a, n=1):
    return f"v{a}" if n == 1 else f"v[{a}:{a+n-1}]"


def srd(n):
    return f"s[{n}:{n+3}]"


def make_srd(g, d, plo, off, total):
    if isinstance(off, int):
        assert off == 0
        g(f"s_mov_b32 s{d}, s{plo}", f"s_mov_b32 s{d+1}, s{plo+1}", f"s_mov_b32 s{d+2}, {total}")
    else:
        g(f"s_add_u32 s{d}, s{plo}, {off}", f"s_addc_u32 s{d+1}, s{plo+1}, 0",
          f"s_sub_u32 s{d+2}, {total}, {off}")
    g(f"s_mov_b32 s{d+3}, 0x20000")


DPPF = "row_mask:0xf bank_mask:0xf"


def rowreduce(g, regs, op):
    for ctl in ("row_ror:8", "row_ror:4", "row_ror:2", "row_ror:1"):
        g("s_nop 1" if len(regs) < 3 else "s_nop 0")
        for r in regs:
            g(f"{op}_dpp v{r}, v{r}, v{r} {ctl} {DPPF}")


def swapreduce(g, regs, op, tmps, which):
    sw = f"v_permlane{which}_swap_b32"
    g("s_nop 0")
    for r, t in zip(regs, tmps):
        g(f"v_mov_b32 v{t}, v{r}")
    g("s_nop 1")
    for r, t in zip(regs, tmps):
        g(f"{sw} v{r}, v{t}")
    g("s_nop 1")
    for r, t in zip(regs, tmps):
        g(f"{op} v{r}, v{r}, v{t}")


def allreduce(g, regs, op, tmps):
    rowreduce(g, regs, op)
    swapreduce(g, regs, op, tmps, "16")
    swapreduce(g, regs, op, tmps, "32")


def poll(g, name, issue, check, pre=None):
    g(f"s_mov_b32 {sCNT}, 0")
    stages = ([pre] if pre else []) + [(issue, check)]
    dn = g.lab(name + "_done")
    for iss, chk in stages:
        lp = g.lab(name)
        g(f"{lp}:")
        i0 = len(g.L)
        iss()
        for i in range(i0, len(g.L)):
            if g.L[i].startswith("buffer_load"):
                g.L[i] += f" ;@ld_{name}"
        g("s_waitcnt vmcnt(0)")
        chk()
        g(f"s_add_u32 {sCNT}, {sCNT}, 1", f"s_cmp_gt_u32 {sCNT}, {POLL_LIMIT}",
          f"s_cbranch_scc1 {dn}", f"s_cbranch_vccnz {lp}")
    g(f"{dn}:")


def check_intag(g, regs, vtau, tmp):
    regs = list(regs)
    g(f"v_xor_b32 v{tmp}, v{regs[0]}, v{vtau}")
    rest = regs[1:]
    while len(rest) >= 2:
        g(f"v_xor_b32 v{tmp+1}, v{rest[0]}, v{vtau}", f"v_xor_b32 v{tmp+2}, v{rest[1]}, v{vtau}",
          f"v_or3_b32 v{tmp}, v{tmp}, v{tmp+1}, v{tmp+2}")
        rest = rest[2:]
    if rest:
        g(f"v_xor_b32 v{tmp+1}, v{rest[0]}, v{vtau}", f"v_or_b32 v{tmp}, v{tmp}, v{tmp+1}")
    g(f"v_and_b32 v{tmp}, {TAGMASK}, v{tmp}", f"v_cmp_ne_u32 vcc, 0, v{tmp}")


def check_sentinel(g, regs, tmp):
    regs = list(regs)
    g(f"v_max_u32 v{tmp}, v{regs[0]}, v{regs[1]}")
    rest = regs[2:]
    while len(rest) >= 2:
        g(f"v_max3_u32 v{tmp}, v{tmp}, v{rest[0]}, v{rest[1]}")
        rest = rest[2:]
    if rest:
        g(f"v_max_u32 v{tmp}, v{tmp}, v{rest[0]}")
    g(f"v_cmp_eq_u32 vcc, -1, v{tmp}")


def silu(g, xs, ts):
    for x, t in zip(xs, ts):
        g(f"v_mul_f32 v{t}, {hex(f2u(-LOG2E))}, v{x}")
    for t in ts:
        g(f"v_exp_f32 v{t}, v{t}")
    g("s_nop 0")
    for t in ts:
        g(f"v_add_f32 v{t}, 1.0, v{t}")
    for t in ts:
        g(f"v_rcp_f32 v{t}, v{t}")
    g("s_nop 0")
    for x, t in zip(xs, ts):
        g(f"v_mul_f32 v{x}, v{x}, v{t}")


def dma(g, voff, srdn, soff, lds_addr, what="", imm=0):
    if what in SKIP:
        return
    g(f"s_mov_b32 m0, {lds_addr}", "s_nop 0")
    g(f"buffer_load_dwordx4 v{voff}, {srd(srdn)}, {soff} offen nt lds")


def stamp(g, k):
    if STAMPS:
        g(f"s_memrealtime s[{80+2*k}:{81+2*k}]")


DBGT = False


def dbgmax(g, slot, invert=False):
    if not DBGT:
        return
    lab = g.lab("dbg")
    if slot < 4:
        g("s_and_b32 s74, s2, 15", "s_or_b32 s74, s74, s3", "s_cmp_lg_u32 s74, 0", f"s_cbranch_scc1 {lab}")
    g("s_memrealtime s[74:75]", "s_waitcnt lgkmcnt(0)")
    if invert:
        g("s_not_b32 s74, s74")
    g("s_mov_b64 s[76:77], exec", "s_mov_b64 exec, 1", "v_mov_b32 v252, s74", f"v_mov_b32 v253, {slot*4}",
      "global_atomic_umax v253, v252, s[26:27]", "s_mov_b64 exec, s[76:77]", f"{lab}:")


def end(g):
    if STAMPS:
        g("s_mov_b64 exec, -1", "s_waitcnt lgkmcnt(0)")
        for k in range(NSTAMP):
            g(f"v_writelane_b32 v250, s{80+2*k}, {k}")
        g("s_lshl_b32 s72, s2, 3", "s_add_u32 s72, s72, s3", "s_lshl_b32 s72, s72, 6", f"s_add_u32 s72, s72, {WS_STAMP}",
          "s_mov_b32 s76, s28", "s_mov_b32 s77, s29", f"s_mov_b32 s78, {WS_SIZE}", "s_mov_b32 s79, 0x20000",
          "v_lshlrev_b32 v251, 2, v0", f"s_mov_b64 exec, {hex((1 << NSTAMP) - 1)}",
          "buffer_store_dword v250, v251, s[76:79], s72 offen")
    g("s_endpgm")


def tr_addr(g, dst, tmp, vI, vG, rowshift, base=None):
    g(f"v_lshlrev_b32 v{dst}, 3, v{vG}", f"v_lshrrev_b32 v{tmp}, 2, v{vI}", f"v_add_u32 v{dst}, v{dst}, v{tmp}",
      f"v_lshlrev_b32 v{dst}, {rowshift}, v{dst}", f"v_and_b32 v{tmp}, 3, v{vI}", f"v_lshlrev_b32 v{tmp}, 3, v{tmp}",
      f"v_add_u32 v{dst}, v{dst}, v{tmp}")
    if base is not None:
        g(f"v_add_u32 v{dst}, {base}, v{dst}")


def tr_read(g, reg, vaddr, off, rowbytes):
    g(f"ds_read_b64_tr_b16 {v(reg,2)}, v{vaddr} offset:{off}", f"ds_read_b64_tr_b16 {v(reg+2,2)}, v{vaddr} offset:{off + 4*rowbytes}")


def mfma(g, d, a, b, first):
    g(f"v_mfma_f32_16x16x32_bf16 {v(d,4)}, {v(a,4)}, {v(b,4)}, {'0' if first else v(d,4)}")


def gen_stream(g, opt):
    W = opt.get("W", 6)
    NS = 48
    vOFF = 1
    vQ = 2
    vM = 6
    vD = 10
    vB = [14, 18]
    vS = 22
    vT = 26
    vX = 42
    vSL = 48
    vLDS = 46

    order = [("K", n) for n in range(64 - NL, 64)] + [("K", n) for n in range(64 - NL)] + [("V", n) for n in range(64)]
    NREG_K = 64 - NL

    def slot_of(kind, n):
        return vSL + 4 * ((n if kind == "K" else NREG_K + n) % NS)

    g(f"s_lshl_b32 {sT0}, {sB}, 5", f"s_add_u32 {sT0}, {sT0}, {sH}", f"s_lshl_b32 {sT0}, {sT0}, 20",
      f"s_lshl_b32 {sT1}, {sS}, 18", f"s_add_u32 {sT0}, {sT0}, {sT1}")
    g(f"s_add_u32 s{SRD_A}, s6, {sT0}", f"s_addc_u32 s{SRD_A+1}, s7, 0", f"s_mov_b32 s{SRD_A+2}, 0x40000",
      f"s_mov_b32 s{SRD_A+3}, 0x20000")
    g(f"s_add_u32 s{SRD_B}, s8, {sT0}", f"s_addc_u32 s{SRD_B+1}, s9, 0", f"s_mov_b32 s{SRD_B+2}, 0x40000",
      f"s_mov_b32 s{SRD_B+3}, 0x20000")
    g(f"s_lshl_b32 {sT1}, s3, 12", f"v_lshlrev_b32 v{vOFF}, 4, v0", f"s_mul_i32 s64, s3, {NL*1024}", f"s_add_u32 s64, s64, {L_KB}",
      f"v_add_u32 v{vLDS}, s64, v{vOFF}", f"v_add_u32 v{vOFF}, {sT1}, v{vOFF}")

    state = {"K": None, "V": None, "i": 0}

    def issue_next():
        i = state["i"]
        kind, n = order[i]
        rho, t = n >> 2, n & 3
        sreg, sr = (sT2, SRD_A) if kind == "K" else (sT3, SRD_B)
        if i >= W:
            g(f"s_waitcnt vmcnt({W-1})")
        if kind == "K" and n >= NREG_K:
            g(f"s_mov_b32 {sreg}, {rho * 16384 + t * 1024}", f"s_add_u32 m0, s64, {(n - NREG_K) * 1024}")
            state[kind] = None
            g("s_nop 0", f"buffer_load_dwordx4 v{vOFF}, {srd(sr)}, {sreg} offen nt lds")
        else:
            if state[kind] != rho:
                g(f"s_mov_b32 {sreg}, {rho * 16384}")
                state[kind] = rho
            g(f"buffer_load_dwordx4 {v(slot_of(kind, n), 4)}, v{vOFF}, {srd(sr)}, {sreg} offen offset:{t*1024} nt")
        state["i"] = i + 1

    def issued_after(kind, n):
        return state["i"] - 1 - order.index((kind, n))

    NBACK = NL + NS
    for _ in range(NBACK):
        issue_next()
    g(f"v_and_b32 v{vX}, 15, v0", f"v_lshrrev_b32 v{vX+1}, 1, v{vX}", f"v_and_b32 v{vX+2}, 1, v{vX}",
      f"v_mov_b32 v{vX+3}, 0xffff", f"v_mov_b32 v{vT}, 0xffff0000",
      f"v_cmp_eq_u32 vcc, 1, v{vX+2}", "s_nop 1", f"v_cndmask_b32 v{vX+3}, v{vX+3}, v{vT}, vcc")
    for r in range(4):
        g(f"v_cmp_eq_u32 vcc, {r}, v{vX+1}", "s_nop 1", f"v_cndmask_b32 v{vM+r}, 0, v{vX+3}, vcc")
    g("s_mov_b32 s60, 0xcccccccc", "s_mov_b32 s61, 0xcccccccc", "s_mov_b32 s62, 0xaaaaaaaa", "s_mov_b32 s63, 0xaaaaaaaa")
    for r in range(4):
        g(f"v_mov_b32 v{vD+r}, 0")
    g(f"v_lshlrev_b32 v{vX}, 4, v{vX}")
    stamp(g, 1)
    if 'b12' not in SKIP:
        g("s_barrier")
    stamp(g, 2)
    dbgmax(g, 2)
    g(f"ds_read_b128 {v(vQ,4)}, v{vX} offset:{L_Q}")
    g(f"s_waitcnt vmcnt({min(63, issued_after('K', 7))}) lgkmcnt(0)")

    def kreg(n):
        if n < NREG_K:
            return slot_of("K", n)
        return vSL + 4 * (16 + (n & 15))

    def dots(ns):
        for r in range(4):
            for n in ns:
                t = vT + (n & 15)
                c = "0" if r == 0 else f"v{t}"
                g(f"v_dot2_f32_bf16 v{t}, v{kreg(n)+r}, v{vQ+r}, {c}")

    def tree(gam):
        g("s_nop 2")
        for n in range(8):
            g(f"v_add_f32_dpp v{vT+n}, v{vT+n}, v{vT+n} row_ror:8 row_mask:0xf bank_mask:0x3")
            g(f"v_add_f32_dpp v{vT+n}, v{vT+n+8}, v{vT+n+8} row_ror:8 row_mask:0xf bank_mask:0xc")
        for n in range(4):
            g(f"v_add_f32_dpp v{vT+n}, v{vT+n}, v{vT+n} row_shl:4 row_mask:0xf bank_mask:0x5")
            g(f"v_add_f32_dpp v{vT+n}, v{vT+n+4}, v{vT+n+4} row_shr:4 row_mask:0xf bank_mask:0xa")
        g("s_nop 0")
        for n in range(4):
            g(f"v_add_f32_dpp v{vT+n}, v{vT+n}, v{vT+n} quad_perm:[2,3,0,1] {DPPF}")
        g(f"v_cndmask_b32 v{vT}, v{vT}, v{vT+2}, {sM1}", f"v_cndmask_b32 v{vT+1}, v{vT+1}, v{vT+3}, {sM1}", "s_nop 1")
        for n in range(2):
            g(f"v_add_f32_dpp v{vT+n}, v{vT+n}, v{vT+n} quad_perm:[1,0,3,2] {DPPF}")
        g(f"v_cndmask_b32 v{vS+gam}, v{vT}, v{vT+1}, {sM0}")

    def lds_reads(ns):
        for n in ns:
            g(f"ds_read_b128 {v(kreg(n),4)}, v{vLDS} offset:{(n - NREG_K) * 1024}")

    freed = 0

    def can_issue():
        i = state["i"]
        if i >= len(order):
            return False
        kind, n = order[i]
        assert kind == "V"
        s = (NREG_K + n) % NS
        return n < NS - NREG_K or s < freed

    every = opt.get("burst_every", 2)
    qi = 0
    for gam in range(4):
        ns_all = list(range(16 * gam, 16 * gam + 16))
        ldsn = [n for n in ns_all if n >= NREG_K]
        if ldsn:
            lds_reads(ldsn)
        for q4 in range(4):
            ns = ns_all[4 * q4: 4 * q4 + 4]
            regn = [n for n in ns if n < NREG_K]
            if regn:
                g(f"s_waitcnt vmcnt({min(63, issued_after('K', regn[-1]))})")
            if any(n >= NREG_K for n in ns):
                g("s_waitcnt lgkmcnt(0)")
            if 'qk' not in SKIP:
                dots(ns)
            if regn:
                freed = min(regn[-1] + 1, 16)
            qi += 1
            if qi % every == 0 and can_issue():
                issue_next()
        if 'qk' not in SKIP:
            tree(gam)
    freed = NS
    stamp(g, 3)
    g(f"v_max3_f32 v{vX}, v{vS}, v{vS+1}, v{vS+2}", f"v_max_f32 v{vX}, v{vX}, v{vS+3}")
    allreduce(g, [vX], "v_max_f32", [vX + 1])
    g(f"v_mul_f32 v{vX}, {hex(f2u(CS))}, v{vX}")
    g(f"s_mov_b32 {sT0}, {hex(f2u(CS))}")
    issue_next()
    for r in range(4):
        g(f"v_fma_f32 v{vS+r}, v{vS+r}, {sT0}, -v{vX}")
    for r in range(4):
        g(f"v_exp_f32 v{vS+r}, v{vS+r}")
    g("s_nop 0")
    g(f"v_add_f32 v{vX+1}, v{vS}, v{vS+1}", f"v_add_f32 v{vX+2}, v{vS+2}, v{vS+3}", f"v_add_f32 v{vX+1}, v{vX+1}, v{vX+2}")
    for r in range(4):
        g(f"v_cvt_pk_bf16_f32 v{vS+r}, v{vS+r}, v{vS+r}")
    allreduce(g, [vX + 1], "v_add_f32", [vX + 2])
    g(f"s_lshl_b32 {sT0}, s3, 3", f"v_mov_b32 v{vX+2}, {sT0}", "s_mov_b64 exec, 1",
      f"ds_write_b64 v{vX+2}, {v(vX,2)} offset:{L_MLW}", "s_mov_b64 exec, -1", "s_waitcnt lgkmcnt(0)")
    issue_next()
    if 'b12' not in SKIP:
        g("s_barrier")
    stamp(g, 4)
    g(f"v_mov_b32 v{vX+1}, 0", f"ds_read_b128 {v(vT,4)}, v{vX+1} offset:{L_MLW}",
      f"ds_read_b128 {v(vT+4,4)}, v{vX+1} offset:{L_MLW+16}", "s_waitcnt lgkmcnt(0)",
      f"v_max3_f32 v{vX+1}, v{vT}, v{vT+2}, v{vT+4}", f"v_max_f32 v{vX+1}, v{vX+1}, v{vT+6}",
      f"v_sub_f32 v{vX}, v{vX}, v{vX+1}", f"v_exp_f32 v{vX}, v{vX}")

    def pv(n):
        if 'pv' in SKIP:
            return
        B = vB[n & 1]
        for r in range(4):
            g(f"v_and_b32_dpp v{B+r}, v{vS+(n>>4)}, v{vM+r} row_newbcast:{n&15} {DPPF}")
        g("s_nop 1")
        mfma(g, vD, slot_of("V", n), B, False)

    nb2b = opt.get("b2b_at", 24)
    for n in range(64):
        pos = order.index(("V", n))
        while state["i"] < len(order) and state["i"] <= pos + W - 1:
            kind, m = order[state["i"]]
            assert m - NS < n or m < NS
            issue_next()
        if n == nb2b:
            stamp(g, 8)
            g("s_barrier")
        g(f"s_waitcnt vmcnt({min(63, issued_after('V', n))})")
        pv(n)
        if n % 5 == 4 and n < 14 and state["i"] < len(order):
            issue_next()
    stamp(g, 6)
    dbgmax(g, 3)
    g("s_nop 7", "s_nop 1")
    for r in range(4):
        g(f"v_mul_f32 v{vD+r}, v{vD+r}, v{vX}")
    g(f"v_lshrrev_b32 v{vT}, 4, v0", f"v_lshlrev_b32 v{vT}, 7, v{vT}", f"v_and_b32 v{vT+1}, 15, v0",
      f"v_lshlrev_b32 v{vT+1}, 2, v{vT+1}", f"v_add_u32 v{vT}, v{vT}, v{vT+1}",
      f"s_lshl_b32 {sT0}, s3, 9", f"v_add_u32 v{vT}, {sT0}, v{vT}",
      "s_mov_b32 exec_lo, 0x00ff00ff", "s_mov_b32 exec_hi, 0x00ff00ff")
    for r in range(4):
        g(f"ds_write_b32 v{vT}, v{vD+r} offset:{L_RED + r*32}")
    g("s_mov_b64 exec, -1", "s_waitcnt lgkmcnt(0)", "s_barrier")
    stamp(g, 7)
    end(g)


def gen_aux(g, opt):
    vTAU, vI, vG, vMSK = 1, 2, 3, 4
    EX8 = ("s_mov_b32 exec_lo, 0x00030003", "s_mov_b32 exec_hi, 0x00030003")

    def tagify(dst, src):
        g(f"v_and_or_b32 v{dst}, v{src}, v{vMSK}, v{vTAU}")

    g(f"s_load_dword s30, s[28:29], {WS_EPOCH}")
    g(f"s_sub_u32 {sA}, s3, 4")
    make_srd(g, SRD_WS, 28, 0, WS_SIZE)
    g(f"v_and_b32 v{vI}, 15, v0", f"v_lshrrev_b32 v{vG}, 4, v0", f"v_mov_b32 v{vMSK}, {hex(0xffffffff ^ TAGMASK)}")
    g(f"s_mul_i32 {sPHI}, {sX}, 6", f"s_add_u32 {sPHI}, {sPHI}, {sR}", f"s_sub_u32 {sPHI}, {sPHI}, 24",
      f"s_cmp_lt_u32 {sR}, 24", f"s_cselect_b32 {sPHI}, 0xff, {sPHI}",
      f"s_cmp_ge_u32 {sR}, 30", f"s_cselect_b32 {sPHI}, 0xff, {sPHI}",
      f"s_cmp_ge_u32 {sPHI}, 43", f"s_cselect_b32 {sPHI}, 0xff, {sPHI}")

    def tag_ready():
        g("s_waitcnt lgkmcnt(0)", f"s_add_u32 {sTAU}, s30, 1", f"s_and_b32 {sTAU}, {sTAU}, {TAGMASK}", f"v_mov_b32 v{vTAU}, {sTAU}")

    LA1, LA2, LA3, LB1 = g.lab("a1"), g.lab("a2"), g.lab("a3"), g.lab("aux_b1")
    g(f"s_cmp_eq_u32 {sA}, 1", f"s_cbranch_scc1 {LA1}", f"s_cmp_eq_u32 {sA}, 2", f"s_cbranch_scc1 {LA2}",
      f"s_cmp_eq_u32 {sA}, 3", f"s_cbranch_scc1 {LA3}")

    g(f"s_cmp_ge_u32 {sR}, 24", f"s_cbranch_scc1 {LA3}")
    g(f"s_lshr_b32 s64, {sR}, 2", f"s_and_b32 s65, {sR}, 3",
      f"s_mul_i32 {sT0}, s65, {128*6144}", f"s_lshl_b32 {sT1}, s64, 10", f"s_add_u32 {sT0}, {sT0}, {sT1}",
      f"s_lshl_b32 {sT1}, {sX}, 7", f"s_add_u32 {sT0}, {sT0}, {sT1}")
    make_srd(g, SRD_A, 22, sT0, 512 * 3072 * 2)
    make_srd(g, SRD_B, 20, 0, 2048)
    g(f"v_and_b32 v5, 1, v{vG}", "v_lshlrev_b32 v8, 10, v5", f"v_lshlrev_b32 v9, 4, v{vI}", "v_add_u32 v8, v8, v9",
      f"s_lshl_b32 {sT1}, s65, 8", f"buffer_load_dwordx4 v[12:15], v8, {srd(SRD_B)}, {sT1} offen")
    g("v_lshrrev_b32 v9, 3, v0", f"s_mov_b32 {sT2}, 6144", f"v_mul_lo_u32 v9, v9, {sT2}", "v_and_b32 v10, 7, v0",
      "v_lshlrev_b32 v10, 4, v10", "v_add_u32 v9, v9, v10")
    for k in range(16):
        g(f"s_mov_b32 {sT2}, {k * 8 * 6144}")
        dma(g, 9, SRD_A, sT2, L_WMOD + k * 1024, "p1")
    g("s_waitcnt vmcnt(16)" if "p1" not in SKIP else "s_waitcnt vmcnt(0)")
    for r in range(4):
        g(f"v_lshlrev_b32 v{20+2*r}, 16, v{12+r}", f"v_and_b32 v{21+2*r}, 0xffff0000, v{12+r}")
    silu(g, range(20, 28), range(28, 36))
    for r in range(4):
        g(f"v_cvt_pk_bf16_f32 v{12+r}, v{20+2*r}, v{21+2*r}")
    g("v_lshlrev_b32 v8, 8, v5", f"v_lshlrev_b32 v10, 4, v{vI}", "v_add_u32 v8, v8, v10", f"ds_write_b128 v8, v[12:15] offset:{L_ACT1}")
    g(f"v_and_b32 v10, 1, v{vI}", "v_lshlrev_b32 v10, 8, v10", f"v_lshlrev_b32 v11, 4, v{vG}", "v_add_u32 v10, v10, v11")
    tr_addr(g, 11, 12, vI, vG, 7)
    tag_ready()
    for k in range(4):
        g(f"ds_read_b128 {v(40+4*k,4)}, v10 offset:{L_ACT1 + k*64}")
    g("s_waitcnt vmcnt(0)")
    for t in range(4):
        for k in range(4):
            tr_read(g, 64 + (t * 4 + k) * 4, 11, L_WMOD + k * 4096 + t * 32, 128)
        g("s_waitcnt lgkmcnt(0)")
        for k in range(4):
            mfma(g, 16 + 4 * t, 64 + (t * 4 + k) * 4, 40 + 4 * k, k == 0)
    g(f"s_lshl_b32 {sT0}, s64, 3", f"s_add_u32 {sT0}, {sT0}, {sX}", f"s_lshl_b32 s66, {sT0}, 11", f"s_add_u32 s66, s66, {WS_MODP}",
      f"s_lshl_b32 {sT1}, s65, 9", f"s_add_u32 {sT0}, s66, {sT1}",
      f"v_lshlrev_b32 v8, 6, v{vI}", f"v_lshlrev_b32 v9, 4, v{vG}", "v_add_u32 v8, v8, v9", "s_nop 4")
    for r in range(16):
        tagify(16 + r, 16 + r)
    g(*EX8)
    for t in range(4):
        g(f"buffer_store_dwordx4 {v(16+4*t,4)}, v8, {srd(SRD_WS)}, {sT0} offen offset:{t*128} sc1 ;@modp")
    g("s_mov_b64 exec, -1")
    stamp(g, 1)
    g("s_cmp_lg_u32 s65, 0", f"s_cbranch_scc1 {LB1}", "s_cmp_lt_u32 s64, 2", f"s_cbranch_scc1 {LB1}")
    g("v_lshlrev_b32 v8, 4, v0")
    poll(g, "p_fin",
         lambda: g(f"buffer_load_dwordx4 v[16:19], v8, {srd(SRD_WS)}, s66 offen sc1",
                   f"buffer_load_dwordx4 v[20:23], v8, {srd(SRD_WS)}, s66 offen offset:1024 sc1"),
         lambda: check_intag(g, range(16, 24), vTAU, 12))
    for e in range(4):
        g(f"v_add_f32 v{16+e}, v{16+e}, v{20+e}")
    swapreduce(g, range(16, 20), "v_add_f32", range(20, 24), "32")
    g("v_cvt_pk_bf16_f32 v20, v16, v17", "v_cvt_pk_bf16_f32 v21, v18, v19",
      "v_lshlrev_b32 v16, 16, v20", "v_and_b32 v17, 0xffff0000, v20", "v_lshlrev_b32 v18, 16, v21", "v_and_b32 v19, 0xffff0000, v21")
    for e in range(4):
        tagify(16 + e, 16 + e)
    g("v_lshrrev_b32 v8, 3, v0", "v_and_b32 v8, 3, v8", "v_lshlrev_b32 v8, 6, v8", "v_lshrrev_b32 v9, 2, v0", "v_and_b32 v9, 1, v9",
      "v_lshlrev_b32 v9, 11, v9", "v_add_u32 v8, v8, v9", "v_and_b32 v9, 3, v0", "v_lshlrev_b32 v9, 4, v9", "v_add_u32 v8, v8, v9",
      f"s_sub_u32 {sT0}, s64, 2", f"s_lshl_b32 {sT0}, {sT0}, 12", f"s_lshl_b32 {sT1}, {sX}, 8", f"s_add_u32 {sT0}, {sT0}, {sT1}",
      f"s_add_u32 {sT0}, {sT0}, {WS_MODF}", "s_mov_b32 exec_hi, 0",
      f"buffer_store_dwordx4 v[16:19], v8, {srd(SRD_WS)}, {sT0} offen sc1 ;@modf", "s_mov_b64 exec, -1")
    g(f"s_branch {LB1}")

    g(f"{LA1}:")
    g(f"s_lshl_b32 {sT0}, {sJ}, 19", f"s_lshl_b32 {sT1}, {sH}, 8", f"s_add_u32 {sT0}, {sT0}, {sT1}")
    make_srd(g, SRD_A, 10, sT0, 512 * 4096 * 2)
    make_srd(g, SRD_B, 4, 0, 2048)
    g("v_lshlrev_b32 v8, 4, v0")
    g(f"buffer_load_dwordx4 v[12:15], v8, {srd(SRD_B)}, 0 offen", f"buffer_load_dwordx4 v[16:19], v8, {srd(SRD_B)}, 0 offen offset:1024")
    g("v_lshrrev_b32 v5, 2, v0", "v_and_b32 v5, 1, v5",
      "v_lshrrev_b32 v6, 3, v0", "v_and_b32 v6, 3, v6", "v_lshlrev_b32 v6, 4, v6", "v_and_b32 v7, 3, v0", "v_lshlrev_b32 v7, 2, v7",
      "v_add_u32 v6, v6, v7",
      "v_lshlrev_b32 v7, 10, v5", "v_lshlrev_b32 v9, 1, v6", "v_add_u32 v9, v9, v7",
      f"s_lshl_b32 {sT1}, {sJ}, 7", f"buffer_load_dwordx2 v[20:21], v9, {srd(SRD_B)}, {sT1} offen")
    g(f"v_lshlrev_b32 v9, 13, v{vG}", f"v_lshlrev_b32 v10, 4, v{vI}", "v_add_u32 v9, v9, v10")
    for t in range(16):
        g(f"s_mov_b32 {sT2}, {t * 4 * 8192}")
        dma(g, 9, SRD_A, sT2, L_WQ + t * 1024, "wq")
    g("s_waitcnt vmcnt(16)" if "wq" not in SKIP else "s_waitcnt vmcnt(0)")
    for b in range(2):
        for r in range(4):
            g(f"v_lshlrev_b32 v{24+8*b+2*r}, 16, v{12+4*b+r}", f"v_and_b32 v{25+8*b+2*r}, 0xffff0000, v{12+4*b+r}")
    for b in range(2):
        base = 24 + 8 * b
        g(f"v_add_f32 v{40+b}, v{base}, v{base+1}")
        for e in range(2, 8):
            g(f"v_add_f32 v{40+b}, v{40+b}, v{base+e}")
    allreduce(g, [40, 41], "v_add_f32", [44, 45])
    g(f"v_mul_f32 v40, {hex(f2u(1/512))}, v40", f"v_mul_f32 v41, {hex(f2u(1/512))}, v41")
    for b in range(2):
        base = 24 + 8 * b
        for e in range(8):
            g(f"v_sub_f32 v{base+e}, v{base+e}, v{40+b}")
        g(f"v_mul_f32 v{42+b}, v{base}, v{base}")
        for e in range(1, 8):
            g(f"v_fmac_f32 v{42+b}, v{base+e}, v{base+e}")
    allreduce(g, [42, 43], "v_add_f32", [44, 45])
    for b in range(2):
        g(f"v_mov_b32 v44, {hex(f2u(1e-5))}", f"v_fmac_f32 v44, {hex(f2u(1/512))}, v{42+b}", f"v_rsq_f32 v{42+b}, v44", "s_nop 0")
    g("v_cmp_eq_u32 vcc, 1, v5", "s_nop 1", "v_cndmask_b32 v40, v40, v41, vcc", "v_cndmask_b32 v42, v42, v43, vcc",
      "v_lshlrev_b32 v24, 16, v20", "v_and_b32 v25, 0xffff0000, v20", "v_lshlrev_b32 v26, 16, v21", "v_and_b32 v27, 0xffff0000, v21")
    for e in range(4):
        g(f"v_sub_f32 v{24+e}, v{24+e}, v40", f"v_mul_f32 v{24+e}, v{24+e}, v42")
    tr_addr(g, 11, 12, vI, vG, 8)
    g("s_waitcnt vmcnt(0)")
    for t in range(8):
        for k in range(2):
            tr_read(g, 64 + (t * 2 + k) * 4, 11, L_WQ + k * 8192 + t * 32, 256)
        if t % 2 == 1:
            g("s_waitcnt lgkmcnt(0)")
    tag_ready()
    g(f"s_lshl_b32 {sT0}, {sJ}, 11", f"s_add_u32 {sT0}, {sT0}, {WS_MODP}", f"s_add_u32 {sT1}, {sT0}, {8*2048}", "v_lshlrev_b32 v9, 4, v0")
    poll(g, "p_saca",
         lambda: g(f"buffer_load_dwordx4 v[28:31], v9, {srd(SRD_WS)}, {sT0} offen sc1",
                   f"buffer_load_dwordx4 v[32:35], v9, {srd(SRD_WS)}, {sT0} offen offset:1024 sc1",
                   f"buffer_load_dwordx4 v[36:39], v9, {srd(SRD_WS)}, {sT1} offen sc1",
                   f"buffer_load_dwordx4 v[40:43], v9, {srd(SRD_WS)}, {sT1} offen offset:1024 sc1"),
         lambda: check_intag(g, range(28, 44), vTAU, 12))
    stamp(g, 1)
    for e in range(4):
        g(f"v_add_f32 v{28+e}, v{28+e}, v{32+e}", f"v_add_f32 v{36+e}, v{36+e}, v{40+e}")
    swapreduce(g, [28, 29, 30, 31, 36, 37, 38, 39], "v_add_f32", range(44, 52), "32")
    g("v_cvt_pk_bf16_f32 v44, v28, v29", "v_cvt_pk_bf16_f32 v45, v30, v31", "v_cvt_pk_bf16_f32 v46, v36, v37", "v_cvt_pk_bf16_f32 v47, v38, v39")
    for e in range(4):
        src_s, src_c = 44 + e // 2, 46 + e // 2
        if e % 2 == 0:
            g(f"v_lshlrev_b32 v{28+e}, 16, v{src_s}", f"v_lshlrev_b32 v{36+e}, 16, v{src_c}")
        else:
            g(f"v_and_b32 v{28+e}, 0xffff0000, v{src_s}", f"v_and_b32 v{36+e}, 0xffff0000, v{src_c}")
    for e in range(4):
        g(f"v_add_f32 v{36+e}, 1.0, v{36+e}", f"v_fma_f32 v{24+e}, v{24+e}, v{36+e}, v{28+e}")
    g("v_cvt_pk_bf16_f32 v24, v24, v25", "v_cvt_pk_bf16_f32 v25, v26, v27",
      "v_lshlrev_b32 v9, 7, v5", "v_lshlrev_b32 v10, 1, v6", "v_add_u32 v9, v9, v10", f"ds_write_b64 v9, v[24:25] offset:{L_ACT2}",
      f"v_and_b32 v10, 1, v{vI}", "v_lshlrev_b32 v10, 7, v10", f"v_lshlrev_b32 v12, 4, v{vG}", "v_add_u32 v10, v10, v12",
      "s_waitcnt lgkmcnt(0)",
      f"ds_read_b128 v[24:27], v10 offset:{L_ACT2}", f"ds_read_b128 v[28:31], v10 offset:{L_ACT2+64}", "s_waitcnt lgkmcnt(0)")
    for k in range(2):
        for t in range(8):
            mfma(g, 128 + 4 * t, 64 + (t * 2 + k) * 4, 24 + 4 * k, k == 0)
    g(f"s_lshl_b32 {sT0}, {sH}, 13", f"s_lshl_b32 {sT1}, {sJ}, 10", f"s_add_u32 s66, {sT0}, {WS_QP}", f"s_add_u32 {sT0}, s66, {sT1}",
      f"v_lshlrev_b32 v8, 6, v{vI}", f"v_lshlrev_b32 v9, 4, v{vG}", "v_add_u32 v8, v8, v9", "s_nop 3")
    for r in range(32):
        tagify(128 + r, 128 + r)
    g(*EX8)
    for t in range(8):
        g(f"buffer_store_dwordx4 {v(128+4*t,4)}, v8, {srd(SRD_WS)}, {sT0} offen offset:{t*128} sc1 ;@qp")
    g("s_mov_b64 exec, -1")
    stamp(g, 2)
    g("v_lshrrev_b32 v8, 5, v0", "v_lshlrev_b32 v8, 10, v8", "v_lshrrev_b32 v9, 2, v0", "v_and_b32 v9, 7, v9", "v_lshlrev_b32 v10, 7, v9",
      "v_add_u32 v8, v8, v10", "v_and_b32 v10, 3, v0", "v_lshlrev_b32 v11, 4, v10", "v_add_u32 v8, v8, v11",
      f"s_lshl_b32 {sT1}, {sB}, 6", f"s_add_u32 {sT0}, s66, {sT1}")

    def issq():
        for k in range(4):
            g(f"s_add_u32 {sT1}, {sT0}, {k*2048}", f"buffer_load_dwordx4 {v(16+4*k,4)}, v8, {srd(SRD_WS)}, {sT1} offen sc1")
    poll(g, "p_q", issq, lambda: check_intag(g, range(16, 32), vTAU, 12))
    stamp(g, 3)
    for e in range(4):
        g(f"v_add_f32 v{16+e}, v{16+e}, v{20+e}", f"v_add_f32 v{24+e}, v{24+e}, v{28+e}", f"v_add_f32 v{16+e}, v{16+e}, v{24+e}")
    swapreduce(g, range(16, 20), "v_add_f32", range(20, 24), "32")
    g("v_cvt_pk_bf16_f32 v16, v16, v17", "v_cvt_pk_bf16_f32 v17, v18, v19",
      "v_lshlrev_b32 v9, 5, v9", "v_lshlrev_b32 v10, 3, v10", "v_add_u32 v9, v9, v10", f"ds_write_b64 v9, v[16:17] offset:{L_Q}")
    g(f"s_branch {LB1}")

    g(f"{LA2}:")
    g("v_mov_b32 v8, -1", "v_mov_b32 v9, -1", "v_mov_b32 v10, -1", "v_mov_b32 v11, -1", "v_lshlrev_b32 v12, 4, v0",
      f"s_lshl_b32 {sT0}, {sH}, 3", f"s_add_u32 {sT0}, {sT0}, {sJ}", f"s_lshl_b32 {sT0}, {sT0}, 8", f"s_add_u32 {sT0}, {sT0}, {WS_OS}",
      "s_mov_b64 exec, 0xffff", f"buffer_store_dwordx4 v[8:11], v12, {srd(SRD_WS)}, {sT0} offen sc1 ;@inito", "s_mov_b64 exec, -1")
    tag_ready()
    g(f"s_branch {LB1}")

    g(f"{LA3}:")
    if opt.get("codepf", True):
        Lnp = g.lab("nopf")
        g(f"s_cmp_lg_u32 {sA}, 3", f"s_cbranch_scc1 {Lnp}", f"s_cmp_ge_u32 {sR}, {opt.get('codepf_wgs', 1)}", f"s_cbranch_scc1 {Lnp}")
        g("s_getpc_b64 s[64:65]", "L_pc:", "s_sub_u32 s64, s64, (L_pc - " + NAME + "_kernel)", "s_subb_u32 s65, s65, 0",
          "v_lshlrev_b32 v8, 7, v0", "s_mov_b32 s66, (L_end - " + NAME + "_kernel)")
        for k in range(opt.get("codepf_n", 3)):
            g("v_min_u32 v9, s66, v8", f"global_load_dword v{12+k}, v9, s[64:65]", "v_add_u32 v8, 0x2000, v8")
        g(f"{Lnp}:")
    tag_ready()

    g(f"{LB1}:", "s_waitcnt lgkmcnt(0)")
    stamp(g, 4)
    if 'b12' not in SKIP:
        g("s_barrier")
        g("s_barrier")
    LnoML = g.lab("noml")
    g(f"s_cmp_lg_u32 {sA}, 2", f"s_cbranch_scc1 {LnoML}")
    g("v_mov_b32 v8, 0", f"ds_read_b128 v[12:15], v8 offset:{L_MLW}", f"ds_read_b128 v[16:19], v8 offset:{L_MLW+16}", "s_waitcnt lgkmcnt(0)",
      "v_max3_f32 v20, v12, v14, v16", "v_max_f32 v20, v20, v18")
    for m in (12, 14, 16, 18):
        g(f"v_sub_f32 v{m}, v{m}, v20", f"v_exp_f32 v{m}, v{m}")
    g("s_nop 0", "v_mul_f32 v21, v12, v13", "v_fmac_f32 v21, v14, v15", "v_fmac_f32 v21, v16, v17", "v_fmac_f32 v21, v18, v19",
      f"s_mul_i32 {sT1}, {sTAU}, 0x00400401", f"v_mov_b32 v22, {sT1}", f"v_mov_b32 v23, {sT1}",
      f"s_lshl_b32 {sT0}, {sH}, 3", f"s_add_u32 {sT0}, {sT0}, {sJ}", f"s_lshl_b32 {sT0}, {sT0}, 7", f"s_add_u32 {sT0}, {sT0}, {WS_ML}",
      "v_lshlrev_b32 v8, 4, v0", "s_waitcnt vmcnt(0)", "s_mov_b64 exec, 0xff",
      f"buffer_store_dwordx4 v[20:23], v8, {srd(SRD_WS)}, {sT0} offen sc1 ;@ml", "s_mov_b64 exec, -1")
    g(f"{LnoML}:")

    LWO, LT3, LPLAIN = g.lab("wo"), g.lab("t3"), g.lab("plain")
    g(f"s_cmp_lg_u32 {sPHI}, 0xff", f"s_cbranch_scc1 {LT3}", f"s_sub_u32 s67, {sR}, 8", "s_cmp_lt_u32 s67, 8", f"s_cbranch_scc1 {LWO}")

    def publish_o():
        Lno = g.lab("noo")
        g(f"s_cmp_lg_u32 {sA}, 0", f"s_cbranch_scc1 {Lno}", "v_lshlrev_b32 v8, 5, v0", "s_mov_b64 exec, 0xffff")
        for w in range(4):
            g(f"ds_read_b128 {v(12+8*w,4)}, v8 offset:{L_RED + w*512}", f"ds_read_b128 {v(16+8*w,4)}, v8 offset:{L_RED + w*512 + 16}")
        g(f"s_lshl_b32 {sT0}, {sH}, 3", f"s_add_u32 {sT0}, {sT0}, {sJ}", f"s_lshl_b32 {sT0}, {sT0}, 8", f"s_add_u32 {sT0}, {sT0}, {WS_OS}",
          "v_lshlrev_b32 v9, 4, v0", "s_waitcnt lgkmcnt(0)")
        for e in range(8):
            g(f"v_add_f32 v{12+e}, v{12+e}, v{20+e}", f"v_add_f32 v{28+e}, v{28+e}, v{36+e}")
        for e in range(8):
            g(f"v_add_f32 v{12+e}, v{12+e}, v{28+e}")
        for r in range(4):
            g(f"v_cvt_pk_bf16_f32 v{12+r}, v{12+2*r}, v{13+2*r}")
        g(f"buffer_store_dwordx4 v[12:15], v9, {srd(SRD_WS)}, {sT0} offen sc1 ;@opub", "s_mov_b64 exec, -1", f"{Lno}:")

    g(f"{LPLAIN}:", "s_barrier", "s_barrier")
    stamp(g, 5)
    publish_o()
    stamp(g, 6)
    end(g)

    g(f"{LWO}:")
    g(f"s_lshl_b32 {sT0}, {sX}, 2", f"s_add_u32 {sT0}, {sT0}, {sA}", f"s_lshl_b32 s64, {sT0}, 17", "s_lshl_b32 s65, s67, 7",
      "s_add_u32 s64, s64, s65")
    make_srd(g, SRD_A, 12, "s64", 4096 * 512 * 2)
    g("v_lshrrev_b32 v9, 3, v0", "v_lshlrev_b32 v9, 10, v9", "v_and_b32 v10, 7, v0", "v_lshlrev_b32 v10, 4, v10", "v_add_u32 v9, v9, v10",
      f"s_lshl_b32 s65, {sA}, 14", f"s_add_u32 s65, s65, {L_KB}")
    for k in range(16):
        g(f"s_mov_b32 {sT2}, {k*8*1024}", f"s_add_u32 {sT3}, s65, {k*1024}")
        dma(g, 9, SRD_A, sT2, sT3, "wo")
    g("s_barrier")
    g(f"s_lshl_b32 {sT0}, {sX}, 2", f"s_add_u32 {sT0}, {sT0}, {sA}", f"s_lshl_b32 {sT0}, {sT0}, 10", f"s_add_u32 {sT0}, {sT0}, {WS_ML}",
      f"v_and_b32 v8, 1, v{vG}", "v_lshlrev_b32 v8, 9, v8", "v_and_b32 v9, 3, v0", "v_lshlrev_b32 v9, 7, v9", "v_add_u32 v8, v8, v9",
      f"s_mul_i32 {sT1}, {sTAU}, 0x00400401", f"v_mov_b32 v5, {sT1}")

    def chk_ml():
        g("v_xor_b32 v16, v14, v5", "v_xor_b32 v17, v15, v5", "v_or_b32 v16, v16, v17", "v_cmp_ne_u32 vcc, 0, v16")
    poll(g, "p_ml", lambda: g(f"buffer_load_dwordx4 v[12:15], v8, {srd(SRD_WS)}, {sT0} offen sc1"), chk_ml)
    vF = 240
    g("v_mov_b32 v16, v12", "s_nop 1",
      f"v_max_f32_dpp v16, v16, v16 quad_perm:[1,0,3,2] {DPPF}", "s_nop 1",
      f"v_max_f32_dpp v16, v16, v16 quad_perm:[2,3,0,1] {DPPF}",
      "v_sub_f32 v12, v12, v16", "v_exp_f32 v12, v12", "s_nop 0", "v_mul_f32 v13, v13, v12", "s_nop 1",
      f"v_add_f32_dpp v13, v13, v13 quad_perm:[1,0,3,2] {DPPF}", "s_nop 1",
      f"v_add_f32_dpp v13, v13, v13 quad_perm:[2,3,0,1] {DPPF}",
      "v_rcp_f32 v13, v13", "s_nop 0", "v_mul_f32 v12, v12, v13", "s_nop 1")
    for r in range(4):
        g(f"v_mov_b32_dpp v{vF+r}, v12 quad_perm:[{r},{r},{r},{r}] {DPPF}")
    vBW = 128
    tr_addr(g, 11, 12, vI, vG, 7, "s65")
    for t in range(4):
        for k in range(4):
            tr_read(g, vBW + (t * 4 + k) * 4, 11, k * 4096 + t * 32, 128)
        g("s_waitcnt lgkmcnt(0)")
    g(f"s_lshl_b32 {sT0}, {sX}, 2", f"s_add_u32 {sT0}, {sT0}, {sA}", f"s_lshl_b32 s64, {sT0}, 11", f"s_add_u32 s64, s64, {WS_OS}",
      f"v_and_b32 v6, 7, v{vI}", "v_lshlrev_b32 v6, 8, v6", f"v_lshlrev_b32 v7, 4, v{vG}", "v_add_u32 v6, v6, v7",
      f"s_lshl_b32 {sT0}, {sA}, 9", f"v_lshlrev_b32 v7, 6, v{vG}", f"v_lshlrev_b32 v9, 2, v{vI}", "v_add_u32 v7, v7, v9", f"v_add_u32 v7, {sT0}, v7")
    g("s_barrier")
    stamp(g, 5)
    publish_o()
    stamp(g, 6)

    def isso(ks):
        for k in ks:
            g(f"buffer_load_dwordx4 {v(16+4*k,4)}, v6, {srd(SRD_WS)}, s64 offen offset:{k*64} sc1")
    poll(g, "p_o", lambda: isso(range(4)), lambda: check_sentinel(g, range(16, 32), 12),
         pre=(lambda: isso([3]), lambda: check_sentinel(g, range(28, 32), 12)) if opt.get("prepoll", True) else None)
    stamp(g, 7)
    for k in range(4):
        for t in range(4):
            mfma(g, 32 + 4 * t, 16 + 4 * k, vBW + (t * 4 + k) * 4, k == 0)
    g("s_nop 4")
    for t in range(4):
        d = 32 + 4 * t
        g(f"v_mul_f32 v{d}, v{d}, v{vF}", f"v_fmac_f32 v{d}, v{d+1}, v{vF+1}", f"v_fmac_f32 v{d}, v{d+2}, v{vF+2}", f"v_fmac_f32 v{d}, v{d+3}, v{vF+3}")
    g("s_mov_b32 exec_hi, 0")
    for t in range(4):
        g(f"ds_write_b32 v7, v{32+4*t} offset:{L_RED2 + t*128}")
    g("s_mov_b64 exec, -1", "s_waitcnt lgkmcnt(0)", "s_barrier")
    g(f"s_cmp_lg_u32 {sA}, 0", "s_cbranch_scc1 L_exit", "v_lshlrev_b32 v8, 4, v0", "s_mov_b32 exec_hi, 0")
    for w in range(4):
        g(f"ds_read_b128 {v(12+4*w,4)}, v8 offset:{L_RED2 + w*512}")
    g(f"s_lshl_b32 {sT0}, {sX}, 12", "s_lshl_b32 s65, s67, 9", f"s_add_u32 {sT0}, {sT0}, s65", f"s_add_u32 {sT0}, {sT0}, {WS_YS}",
      "s_waitcnt lgkmcnt(0)")
    for e in range(4):
        g(f"v_add_f32 v{12+e}, v{12+e}, v{16+e}", f"v_add_f32 v{20+e}, v{20+e}, v{24+e}", f"v_add_f32 v{12+e}, v{12+e}, v{20+e}")
    for e in range(4):
        tagify(12 + e, 12 + e)
    g(f"buffer_store_dwordx4 v[12:15], v8, {srd(SRD_WS)}, {sT0} offen sc1 ;@ypub")
    stamp(g, 8)
    end(g)

    g(f"{LT3}:")
    g(f"s_mul_i32 {sT0}, {sA}, {128*2752}", f"s_lshl_b32 {sT1}, {sPHI}, 6", f"s_add_u32 s64, {sT0}, {sT1}")
    make_srd(g, SRD_A, 16, "s64", 512 * 1376 * 2)
    g(f"s_lshl_b32 {sT0}, {sPHI}, 15", f"s_lshl_b32 {sT1}, {sA}, 8", f"s_add_u32 s64, {sT0}, {sT1}")
    make_srd(g, SRD_B, 18, "s64", 1376 * 512 * 2)
    g("v_lshrrev_b32 v9, 2, v0", f"s_mov_b32 {sT2}, 2752", f"v_mul_lo_u32 v9, v9, {sT2}", "v_and_b32 v10, 3, v0", "v_lshlrev_b32 v10, 4, v10",
      "v_add_u32 v9, v9, v10", f"s_lshl_b32 s65, {sA}, 13", f"s_add_u32 s65, s65, {L_KB}", "s_add_u32 s66, s65, 32768",
      f"v_lshlrev_b32 v10, 10, v{vG}", f"v_lshlrev_b32 v11, 4, v{vI}", "v_add_u32 v10, v10, v11")
    for t in range(8):
        g(f"s_mov_b32 {sT2}, {t*16*2752}", f"s_add_u32 {sT3}, s65, {t*1024}")
        dma(g, 9, SRD_A, sT2, sT3, "w12")
    for t in range(8):
        g(f"s_mov_b32 {sT2}, {t*4*1024}", f"s_add_u32 {sT3}, s66, {t*1024}")
        dma(g, 10, SRD_B, sT2, sT3, "w12")
    g("s_barrier")
    vX3, vGA3, vC3, vGB = 224, 228, 232, 236
    g(f"s_and_b32 {sT0}, {sA}, 1", f"s_lshl_b32 {sT0}, {sT0}, 6", f"v_add_u32 v8, {sT0}, v0",
      "v_lshlrev_b32 v9, 4, v8", f"s_lshr_b32 s68, {sA}, 1", "s_lshl_b32 s69, s68, 11", f"s_add_u32 {sT0}, s69, {WS_MODF}",
      f"s_add_u32 {sT1}, {sT0}, 4096", f"s_add_u32 {sT2}, {sT0}, 8192")
    g("v_lshrrev_b32 v5, 2, v0", "v_and_b32 v5, 1, v5", "v_lshlrev_b32 v6, 11, v5", "v_and_b32 v7, 3, v0", "v_lshlrev_b32 v7, 4, v7",
      "v_add_u32 v6, v6, v7", f"s_and_b32 {sT3}, {sPHI}, 31", f"s_lshl_b32 {sT3}, {sT3}, 6", f"v_add_u32 v6, {sT3}, v6",
      f"s_mov_b32 s69, {WS_MODF + 3*4096}")
    poll(g, "p_modf",
         lambda: g(f"buffer_load_dwordx4 v[12:15], v9, {srd(SRD_WS)}, {sT0} offen sc1", f"buffer_load_dwordx4 v[16:19], v9, {srd(SRD_WS)}, {sT1} offen sc1",
                   f"buffer_load_dwordx4 v[20:23], v9, {srd(SRD_WS)}, {sT2} offen sc1", f"buffer_load_dwordx4 {v(vGB,4)}, v6, {srd(SRD_WS)}, s69 offen sc1"),
         lambda: check_intag(g, list(range(12, 24)) + list(range(vGB, vGB + 4)), vTAU, 28))
    make_srd(g, SRD_A, 4, 0, 2048)
    g("v_lshlrev_b32 v10, 3, v8", f"s_lshl_b32 {sT2}, s68, 10", f"buffer_load_dwordx2 v[40:41], v10, {srd(SRD_A)}, {sT2} offen")
    for e in range(4):
        g(f"v_and_b32 v{vGA3+e}, v{vMSK}, v{12+e}", f"v_and_b32 v{16+e}, v{vMSK}, v{16+e}", f"v_and_b32 v{20+e}, v{vMSK}, v{20+e}",
          f"v_and_b32 v{vGB+e}, v{vMSK}, v{vGB+e}", f"v_add_f32 v{20+e}, 1.0, v{20+e}")
    g("v_cvt_pk_bf16_f32 v42, v20, v21", "v_cvt_pk_bf16_f32 v43, v22, v23",
      "v_cvt_pk_bf16_f32 v44, v16, v17", "v_cvt_pk_bf16_f32 v45, v18, v19",
      f"v_lshlrev_b32 v{vC3}, 16, v42", f"v_and_b32 v{vC3+1}, 0xffff0000, v42", f"v_lshlrev_b32 v{vC3+2}, 16, v43", f"v_and_b32 v{vC3+3}, 0xffff0000, v43",
      f"v_add_u32 v11, {sT2}, v10",
      f"ds_write_b64 v11, v[42:43] offset:{L_ACT3 + 2*1024}", f"ds_write_b64 v11, v[44:45] offset:{L_ACT3 + 4*1024}",
      "s_waitcnt vmcnt(0)",
      f"v_lshlrev_b32 v{vX3}, 16, v40", f"v_and_b32 v{vX3+1}, 0xffff0000, v40", f"v_lshlrev_b32 v{vX3+2}, 16, v41", f"v_and_b32 v{vX3+3}, 0xffff0000, v41")
    vB1, vB2 = 64, 96
    tr_addr(g, 11, 12, vI, vG, 6, "s65")
    for tau in range(2):
        for k in range(4):
            tr_read(g, vB1 + (tau * 4 + k) * 4, 11, k * 2048 + tau * 32, 64)
        g("s_waitcnt lgkmcnt(0)")
    tr_addr(g, 11, 12, vI, vG, 8, "s66")
    for t in range(8):
        tr_read(g, vB2 + 4 * t, 11, t * 32, 256)
        if t % 4 == 3:
            g("s_waitcnt lgkmcnt(0)")
    vYA, vZA, vXA, vAA, vRA = 200, 201, 202, 203, 204
    g(f"v_lshrrev_b32 v{vYA}, 2, v8", f"v_lshlrev_b32 v{vYA}, 7, v{vYA}", f"v_and_b32 v12, 3, v8", "v_lshlrev_b32 v12, 4, v12",
      f"v_add_u32 v{vYA}, v{vYA}, v12", f"s_lshl_b32 {sT0}, s68, 6", f"v_add_u32 v{vYA}, {sT0}, v{vYA}",
      f"v_lshlrev_b32 v{vZA}, 3, v8", f"s_lshl_b32 {sT0}, s68, 10", f"v_add_u32 v{vZA}, {sT0}, v{vZA}",
      f"v_lshlrev_b32 v{vXA}, 4, v8", f"s_lshl_b32 {sT0}, s68, 11", f"v_add_u32 v{vXA}, {sT0}, v{vXA}",
      f"v_cmp_gt_u32 vcc, 6, v{vI}", "s_nop 1", f"v_cndmask_b32 v{vAA}, 0, v{vI}, vcc", f"v_lshlrev_b32 v{vAA}, 10, v{vAA}",
      f"v_lshlrev_b32 v12, 4, v{vG}", f"v_add_u32 v{vAA}, v{vAA}, v12", f"s_lshl_b32 {sT0}, {sA}, 8", f"v_add_u32 v{vAA}, {sT0}, v{vAA}",
      f"s_lshl_b32 {sT0}, {sA}, 10", f"v_lshlrev_b32 v{vRA}, 4, v0", f"v_add_u32 v{vRA}, {sT0}, v{vRA}")
    g("s_barrier")
    stamp(g, 5)
    publish_o()
    stamp(g, 6)

    def issy(Gs):
        for G_ in Gs:
            g(f"s_mov_b32 {sT1}, {WS_YS + G_*4096}", f"buffer_load_dwordx4 {v(16+4*G_,4)}, v{vYA}, {srd(SRD_WS)}, {sT1} offen sc1")
    poll(g, "p_y", lambda: issy(range(8)), lambda: check_intag(g, range(16, 48), vTAU, 12),
         pre=(lambda: issy([7]), lambda: check_intag(g, range(44, 48), vTAU, 12)) if opt.get("prepoll", True) else None)
    stamp(g, 7)
    for e in range(4):
        g(f"v_add_f32 v{16+e}, v{16+e}, v{20+e}", f"v_add_f32 v{24+e}, v{24+e}, v{28+e}",
          f"v_add_f32 v{32+e}, v{32+e}, v{36+e}", f"v_add_f32 v{40+e}, v{40+e}, v{44+e}")
    for e in range(4):
        g(f"v_add_f32 v{16+e}, v{16+e}, v{24+e}", f"v_add_f32 v{32+e}, v{32+e}, v{40+e}")
    for e in range(4):
        g(f"v_add_f32 v{16+e}, v{16+e}, v{32+e}")
    for e in range(4):
        g(f"v_fma_f32 v{16+e}, v{16+e}, v{vGA3+e}, v{vX3+e}")
    g(f"ds_write_b128 v{vXA}, v[16:19] offset:{L_X1}",
      "v_add_f32 v20, v16, v17", "v_add_f32 v21, v18, v19", "v_add_f32 v20, v20, v21",
      "v_mul_f32 v21, v16, v16", "v_fmac_f32 v21, v17, v17", "v_fmac_f32 v21, v18, v18", "v_fmac_f32 v21, v19, v19")
    for e in range(4):
        g(f"v_mul_f32 v{24+e}, v{16+e}, v{vC3+e}")
    g("v_cvt_pk_bf16_f32 v24, v24, v25", "v_cvt_pk_bf16_f32 v25, v26, v27", f"ds_write_b64 v{vZA}, v[24:25] offset:{L_ACT3}")
    allreduce(g, [20, 21], "v_add_f32", [22, 23])
    g(f"s_lshl_b32 {sT0}, {sA}, 3", f"v_mov_b32 v22, {sT0}", "s_mov_b64 exec, 1", f"ds_write_b64 v22, v[20:21] offset:{L_STAT}",
      "s_mov_b64 exec, -1", "s_waitcnt lgkmcnt(0)", "s_barrier")
    for k in range(4):
        g(f"ds_read_b128 {v(16+4*k,4)}, v{vAA} offset:{L_ACT3 + k*64}")
    g("s_waitcnt lgkmcnt(0)")
    for k in range(4):
        for tau in range(2):
            mfma(g, 32 + 4 * tau, 16 + 4 * k, vB1 + (tau * 4 + k) * 4, k == 0)
    g("v_lshrrev_b32 v8, 5, v0", "v_and_b32 v9, 31, v0", "v_lshrrev_b32 v10, 4, v9", "v_lshlrev_b32 v10, 9, v10",
      f"v_lshlrev_b32 v11, 4, v{vI}", "v_add_u32 v10, v10, v11", "v_lshlrev_b32 v11, 2, v8", "v_add_u32 v10, v10, v11",
      "v_lshlrev_b32 v11, 4, v8", "s_mov_b32 exec_hi, 0",
      f"ds_write_b128 v{vRA}, v[32:35] offset:{L_RED3}", f"ds_write_b128 v{vRA}, v[36:39] offset:{L_RED3+512}",
      "s_mov_b64 exec, -1", "s_waitcnt lgkmcnt(0)", "s_barrier")
    for w in range(4):
        g(f"ds_read_b32 v{12+w}, v10 offset:{L_RED3 + w*1024}", f"ds_read_b32 v{16+w}, v10 offset:{L_RED3 + w*1024 + 8}",
          f"ds_read_b32 v{20+w}, v10 offset:{L_RED3 + w*1024 + 256}")
    g(f"ds_read_b128 v[24:27], v11 offset:{L_STAT}", "s_waitcnt lgkmcnt(0)")
    for base in (12, 16, 20):
        g(f"v_add_f32 v{base}, v{base}, v{base+1}", f"v_add_f32 v{base+2}, v{base+2}, v{base+3}", f"v_add_f32 v{base}, v{base}, v{base+2}")
    g("v_add_f32 v24, v24, v26", "v_add_f32 v25, v25, v27",
      f"v_mul_f32 v24, {hex(f2u(1/512))}, v24", f"v_mul_f32 v25, {hex(f2u(1/512))}, v25",
      "v_fma_f32 v25, -v24, v24, v25", f"v_add_f32 v25, {hex(f2u(1e-5))}, v25", "v_rsq_f32 v25, v25",
      "v_fma_f32 v12, -v24, v16, v12", "v_fma_f32 v12, v12, v25, v20")
    silu(g, [12], [13])
    g("v_cvt_pk_bf16_f32 v12, v12, v12", f"s_lshl_b32 {sT0}, {sA}, 7", "v_lshlrev_b32 v13, 1, v0", f"v_add_u32 v13, {sT0}, v13",
      f"ds_write_b16 v13, v12 offset:{L_ACTG}",
      f"v_and_b32 v14, 1, v{vI}", "v_lshlrev_b32 v14, 6, v14", f"v_lshlrev_b32 v15, 4, v{vG}", "v_add_u32 v14, v14, v15", f"v_add_u32 v14, {sT0}, v14",
      "s_waitcnt lgkmcnt(0)", f"ds_read_b128 v[16:19], v14 offset:{L_ACTG}",
      f"s_lshl_b32 {sT0}, {sPHI}, 12", f"s_lshl_b32 {sT1}, {sA}, 10", f"s_add_u32 {sT0}, {sT0}, {sT1}", f"s_add_u32 {sT0}, {sT0}, {WS_PS}",
      f"v_lshlrev_b32 v8, 6, v{vI}", f"v_lshlrev_b32 v9, 4, v{vG}", "v_add_u32 v8, v8, v9", "s_waitcnt lgkmcnt(0)")
    for t in range(8):
        mfma(g, 128 + 4 * t, vB2 + 4 * t, 16, True)
    g("s_nop 1")
    for t in range(8):
        for e in range(4):
            tagify(128 + 4 * t + e, 128 + 4 * t + e)
        if t == 0:
            pass
    g(*EX8)
    for t in range(8):
        g(f"buffer_store_dwordx4 {v(128+4*t,4)}, v8, {srd(SRD_WS)}, {sT0} offen offset:{t*128} sc1 ;@pspub")
    g("s_mov_b64 exec, -1")
    stamp(g, 8)
    g(f"s_cmp_lg_u32 {sA}, 0", "s_cbranch_scc1 L_exit", f"s_cmp_ge_u32 {sPHI}, 32", "s_cbranch_scc1 L_exit")
    g("v_lshrrev_b32 v9, 3, v0", "v_lshlrev_b32 v8, 12, v9", "v_and_b32 v10, 7, v0", "v_lshlrev_b32 v10, 4, v10", "v_add_u32 v8, v8, v10",
      "v_cmp_gt_u32 vcc, 3, v9", "s_nop 1", "v_cndmask_b32 v11, v10, v8, vcc", "v_cndmask_b32 v12, 0, 1.0, vcc",
      f"s_lshl_b32 {sT0}, {sPHI}, 7", f"s_add_u32 {sT0}, {sT0}, {WS_PS}",
      f"ds_read_b128 v[44:47], v6 offset:{L_X1}")

    def issp(ks):
        for k in ks:
            vv = 11 if k == 5 else 8
            g(f"s_add_u32 {sT1}, {sT0}, {k*8*4096}", f"buffer_load_dwordx4 {v(16+4*k,4)}, v{vv}, {srd(SRD_WS)}, {sT1} offen sc1")
    poll(g, "p_ps", lambda: issp(range(6)), lambda: check_intag(g, range(16, 40), vTAU, 13))
    stamp(g, 9)
    for e in range(4):
        g(f"v_add_f32 v{16+e}, v{16+e}, v{20+e}", f"v_add_f32 v{24+e}, v{24+e}, v{28+e}", f"v_fma_f32 v{32+e}, v{36+e}, v12, v{32+e}")
    for e in range(4):
        g(f"v_add_f32 v{16+e}, v{16+e}, v{24+e}")
    for e in range(4):
        g(f"v_add_f32 v{16+e}, v{16+e}, v{32+e}")
    g("s_nop 0")
    for e in range(4):
        g(f"v_add_f32_dpp v{16+e}, v{16+e}, v{16+e} row_ror:8 {DPPF}")
    swapreduce(g, range(16, 20), "v_add_f32", range(20, 24), "16")
    swapreduce(g, range(16, 20), "v_add_f32", range(20, 24), "32")
    make_srd(g, SRD_B, 24, 0, 2048)
    g("s_waitcnt lgkmcnt(0)")
    for e in range(4):
        g(f"v_fma_f32 v{16+e}, v{16+e}, v{vGB+e}, v{44+e}")
    g("v_cvt_pk_bf16_f32 v16, v16, v17", "v_cvt_pk_bf16_f32 v17, v18, v19", "v_lshrrev_b32 v8, 1, v6", "s_mov_b64 exec, 0xff",
      f"buffer_store_dwordx2 v[16:17], v8, {srd(SRD_B)}, 0 offen")
    stamp(g, 10)
    dbgmax(g, 4)
    g(f"s_cmp_lg_u32 {sPHI}, 0", "s_cbranch_scc1 L_exit", "s_mov_b64 exec, 1", "s_add_u32 s30, s30, 1", "v_mov_b32 v8, 0", "v_mov_b32 v9, s30",
      f"buffer_store_dword v9, v8, {srd(SRD_WS)}, 0 offen sc1")
    end(g)


def generate(opt=None):
    global STAMPS, SKIP, POLL_LIMIT, DBGT
    DBGT = (opt or {}).get("dbgt", False)
    opt = dict(opt or {})
    POLL_LIMIT = opt.get("poll_limit", 400000)
    SKIP = set(opt.get("skip", ()))
    STAMPS = opt.get("stamps", False)
    g = G()
    hdr = open("cdna_kernels/" + NAME + ".s.ref").read().split("\n")
    for line in hdr:
        if line.startswith(";") and "@launch" not in line and "Override launch" not in line and "grid=ceil" not in line:
            g(line)
        elif not line.startswith(";"):
            break
    g(f"; @launch grid=(256,1,1) block=(512,1,1) lds={LDS_SIZE}")
    g('.amdgcn_target "amdgcn-amd-amdhsa--gfx950"', ".text", f".globl {NAME}_kernel", ".p2align 8",
      f".type {NAME}_kernel,@function", f"{NAME}_kernel:")
    stamp(g, 0)
    g("s_cmp_ge_u32 s2, 0x100", "s_cbranch_scc1 L_end",
      "s_load_dwordx16 s[4:19], s[0:1], 0", "s_load_dwordx8 s[20:27], s[0:1], 64", "s_load_dwordx2 s[28:29], s[0:1], 96",
      "v_lshrrev_b32 v1, 6, v0", "v_and_b32 v0, 63, v0", "s_nop 0", "v_readfirstlane_b32 s3, v1",
      f"s_and_b32 {sX}, s2, 7", f"s_lshr_b32 {sR}, s2, 3", f"s_and_b32 {sT0}, {sR}, 3", f"s_lshl_b32 {sH}, {sX}, 2",
      f"s_add_u32 {sH}, {sH}, {sT0}", f"s_lshr_b32 {sJ}, {sR}, 2", f"s_lshr_b32 {sB}, {sJ}, 2", f"s_and_b32 {sS}, {sJ}, 3",
      "s_waitcnt lgkmcnt(0)")
    if STAMPS:
        for k in range(1, NSTAMP):
            g(f"s_mov_b32 s{80+2*k}, 0")
    dbgmax(g, 0, True)
    dbgmax(g, 1)
    g("s_cmp_ge_u32 s3, 4", "s_cbranch_scc1 L_aux")
    gen_stream(g, opt)
    g("L_aux:")
    if 'aux' in SKIP:
        g("s_endpgm")
    gen_aux(g, opt)
    g("L_exit:")
    end(g)
    g("L_end:", "s_endpgm")
    g('.section .rodata,"a"', ".p2align 6", f".amdhsa_kernel {NAME}_kernel",
      "  .amdhsa_next_free_vgpr 256", "  .amdhsa_next_free_sgpr 102", "  .amdhsa_accum_offset 256",
      "  .amdhsa_group_segment_fixed_size 0", "  .amdhsa_kernarg_size 104", "  .amdhsa_user_sgpr_count 2",
      "  .amdhsa_user_sgpr_kernarg_segment_ptr 1", "  .amdhsa_system_sgpr_workgroup_id_x 1",
      "  .amdhsa_float_denorm_mode_32 3", ".end_amdhsa_kernel")
    txt = g.text()
    drop = set(opt.get("drop", ()))
    kept = []
    for line in txt.split("\n"):
        if ";@" in line:
            nm = line.split(";@")[1].strip()
            line = line.split(";@")[0].rstrip()
            if nm in drop:
                continue
        kept.append(line)
    return "\n".join(kept)


if __name__ == "__main__":
    out = sys.argv[1] if len(sys.argv) > 1 else "cdna_kernels/" + NAME + ".s"
    opt = eval(sys.argv[2]) if len(sys.argv) > 2 else {}
    open(out, "w").write(generate(opt))
    print("wrote", out)
```

```python
import struct
import sys

NAME = "adaLN_cond__gqa_block_cached__dense_activation_silu__decode"

WS_EPOCH = 0x0
WS_MODP = 0x1000
WS_MODF = 0x19000
WS_ML = 0x20000
WS_QP = 0x30000
WS_OS = 0x70000
WS_OL = 0x88000
WS_YS = 0x80000
WS_PS = 0x98000
WS_STAMP = 0xD0000
WS_SIZE = 0x100000

L_Q = 0x0000
L_MLW = 0x0100
L_CNT = 0x0180
L_RED = 0x0200
L_RED2 = 0x0A00
L_STAT = 0x1200
L_ACT1 = 0x1300
L_ACT2 = 0x1500
L_ACTG = 0x1600
L_ACT3 = 0x1800
L_RED3 = 0x3000
L_X1 = 0x4000
L_WMOD = 0x5000
L_WQ = 0x9000
L_KB = 0xD000
NL = 24
LDS_SIZE = L_KB + 4 * NL * 1024

sX, sR, sH, sJ, sB, sS = "s48", "s49", "s50", "s51", "s52", "s53"
sT0, sT1, sT2, sT3 = "s54", "s55", "s56", "s57"
sA = "s58"
sPHI = "s59"
sM1, sM0 = "s[60:61]", "s[62:63]"
sCNT = "s70"
sTAU = "s31"
SRD_A, SRD_B, SRD_WS = 32, 36, 40
POLL_LIMIT = 400000
TAGMASK = 0x3FF

LOG2E = 1.4426950408889634
CS = (128 ** -0.5) * LOG2E
STAMPS = False
NSTAMP = 11
SKIP = set()


def f2u(x):
    return struct.unpack("<I", struct.pack("<f", x))[0]


class G:
    def __init__(self):
        self.L = []
        self.n = 0

    def __call__(self, *txt):
        for t in txt:
            self.L.extend(t.split("\n"))

    def lab(self, base):
        self.n += 1
        return f"L_{base}_{self.n}"

    def text(self):
        return "\n".join(self.L) + "\n"


def v(a, n=1):
    return f"v{a}" if n == 1 else f"v[{a}:{a+n-1}]"


def srd(n):
    return f"s[{n}:{n+3}]"


def make_srd(g, d, plo, off, total):
    if isinstance(off, int):
        assert off == 0
        g(f"s_mov_b32 s{d}, s{plo}", f"s_mov_b32 s{d+1}, s{plo+1}", f"s_mov_b32 s{d+2}, {total}")
    else:
        g(f"s_add_u32 s{d}, s{plo}, {off}", f"s_addc_u32 s{d+1}, s{plo+1}, 0",
          f"s_sub_u32 s{d+2}, {total}, {off}")
    g(f"s_mov_b32 s{d+3}, 0x20000")


DPPF = "row_mask:0xf bank_mask:0xf"


def rowreduce(g, regs, op):
    for ctl in ("row_ror:8", "row_ror:4", "row_ror:2", "row_ror:1"):
        g("s_nop 1" if len(regs) < 3 else "s_nop 0")
        for r in regs:
            g(f"{op}_dpp v{r}, v{r}, v{r} {ctl} {DPPF}")


def swapreduce(g, regs, op, tmps, which):
    sw = f"v_permlane{which}_swap_b32"
    g("s_nop 0")
    for r, t in zip(regs, tmps):
        g(f"v_mov_b32 v{t}, v{r}")
    g("s_nop 1")
    for r, t in zip(regs, tmps):
        g(f"{sw} v{r}, v{t}")
    g("s_nop 1")
    for r, t in zip(regs, tmps):
        g(f"{op} v{r}, v{r}, v{t}")


def allreduce(g, regs, op, tmps):
    rowreduce(g, regs, op)
    swapreduce(g, regs, op, tmps, "16")
    swapreduce(g, regs, op, tmps, "32")


sDRY = "s71"


def nodry(g):
    lab = g.lab("nd")
    g(f"s_cmp_lg_u32 {sDRY}, 0", f"s_cbranch_scc1 {lab}")
    return lab


def poll(g, name, issue, check, pre=None, dry=False):
    g(f"s_mov_b32 {sCNT}, {sDRY if dry else 0}")
    stages = ([pre] if pre else []) + [(issue, check)]
    dn = g.lab(name + "_done")
    for iss, chk in stages:
        lp = g.lab(name)
        g(f"{lp}:")
        i0 = len(g.L)
        iss()
        for i in range(i0, len(g.L)):
            if g.L[i].startswith("buffer_load"):
                g.L[i] += f" ;@ld_{name}"
        g("s_waitcnt vmcnt(0)")
        chk()
        g(f"s_add_u32 {sCNT}, {sCNT}, 1", f"s_cmp_gt_u32 {sCNT}, {POLL_LIMIT}",
          f"s_cbranch_scc1 {dn}", f"s_cbranch_vccnz {lp}")
    g(f"{dn}:")


def check_intag(g, regs, vtau, tmp):
    regs = list(regs)
    g(f"v_xor_b32 v{tmp}, v{regs[0]}, v{vtau}")
    rest = regs[1:]
    while len(rest) >= 2:
        g(f"v_xor_b32 v{tmp+1}, v{rest[0]}, v{vtau}", f"v_xor_b32 v{tmp+2}, v{rest[1]}, v{vtau}",
          f"v_or3_b32 v{tmp}, v{tmp}, v{tmp+1}, v{tmp+2}")
        rest = rest[2:]
    if rest:
        g(f"v_xor_b32 v{tmp+1}, v{rest[0]}, v{vtau}", f"v_or_b32 v{tmp}, v{tmp}, v{tmp+1}")
    g(f"v_and_b32 v{tmp}, {TAGMASK}, v{tmp}", f"v_cmp_ne_u32 vcc, 0, v{tmp}")


def check_sentinel(g, regs, tmp):
    regs = list(regs)
    g(f"v_max_u32 v{tmp}, v{regs[0]}, v{regs[1]}")
    rest = regs[2:]
    while len(rest) >= 2:
        g(f"v_max3_u32 v{tmp}, v{tmp}, v{rest[0]}, v{rest[1]}")
        rest = rest[2:]
    if rest:
        g(f"v_max_u32 v{tmp}, v{tmp}, v{rest[0]}")
    g(f"v_cmp_eq_u32 vcc, -1, v{tmp}")


def silu(g, xs, ts):
    for x, t in zip(xs, ts):
        g(f"v_mul_f32 v{t}, {hex(f2u(-LOG2E))}, v{x}")
    for t in ts:
        g(f"v_exp_f32 v{t}, v{t}")
    g("s_nop 0")
    for t in ts:
        g(f"v_add_f32 v{t}, 1.0, v{t}")
    for t in ts:
        g(f"v_rcp_f32 v{t}, v{t}")
    g("s_nop 0")
    for x, t in zip(xs, ts):
        g(f"v_mul_f32 v{x}, v{x}, v{t}")


def dma(g, voff, srdn, soff, lds_addr, what="", imm=0):
    if what in SKIP:
        return
    g(f"s_mov_b32 m0, {lds_addr}", "s_nop 0")
    g(f"buffer_load_dwordx4 v{voff}, {srd(srdn)}, {soff} offen nt lds")


def lds_signal(g, off, vtmp):
    g("s_mov_b64 exec, 1", f"v_mov_b32 v{vtmp}, 0", f"v_mov_b32 v{vtmp+1}, 1", f"ds_add_u32 v{vtmp}, v{vtmp+1} offset:{off}", "s_mov_b64 exec, -1")


def lds_wait(g, off, target, vtmp):
    lp, dn = g.lab("lw"), g.lab("lwd")
    g(f"s_mov_b32 {sCNT}, 0", f"v_mov_b32 v{vtmp}, 0", f"{lp}:", f"ds_read_b32 v{vtmp+1}, v{vtmp} offset:{off}", "s_waitcnt lgkmcnt(0)",
      f"v_readfirstlane_b32 s73, v{vtmp+1}", f"s_add_u32 {sCNT}, {sCNT}, 1", f"s_cmp_gt_u32 {sCNT}, {POLL_LIMIT * 4 + 4}", f"s_cbranch_scc1 {dn}",
      f"s_cmp_lt_u32 s73, {target}", f"s_cbranch_scc1 {lp}", f"{dn}:")


def stamp(g, k):
    if STAMPS:
        g(f"s_memrealtime s[{80+2*k}:{81+2*k}]")


DBGT = False


def dbgmax(g, slot, invert=False):
    if not DBGT:
        return
    lab = g.lab("dbg")
    if slot < 4:
        g("s_and_b32 s74, s2, 15", "s_or_b32 s74, s74, s3", "s_cmp_lg_u32 s74, 0", f"s_cbranch_scc1 {lab}")
    g("s_memrealtime s[74:75]", "s_waitcnt lgkmcnt(0)")
    if invert:
        g("s_not_b32 s74, s74")
    g("s_mov_b64 s[76:77], exec", "s_mov_b64 exec, 1", "v_mov_b32 v252, s74", f"v_mov_b32 v253, {slot*4}",
      "global_atomic_umax v253, v252, s[26:27]", "s_mov_b64 exec, s[76:77]", f"{lab}:")


def end(g):
    if STAMPS:
        g("s_mov_b64 exec, -1", "s_waitcnt lgkmcnt(0)")
        for k in range(NSTAMP):
            g(f"v_writelane_b32 v250, s{80+2*k}, {k}")
        g("s_lshl_b32 s72, s2, 3", "s_add_u32 s72, s72, s3", "s_lshl_b32 s72, s72, 6", f"s_add_u32 s72, s72, {WS_STAMP}",
          "s_mov_b32 s76, s28", "s_mov_b32 s77, s29", f"s_mov_b32 s78, {WS_SIZE}", "s_mov_b32 s79, 0x20000",
          "v_lshlrev_b32 v251, 2, v0", f"s_mov_b64 exec, {hex((1 << NSTAMP) - 1)}",
          "buffer_store_dword v250, v251, s[76:79], s72 offen")
    g("s_endpgm")


def tr_addr(g, dst, tmp, vI, vG, rowshift, base=None):
    g(f"v_lshlrev_b32 v{dst}, 3, v{vG}", f"v_lshrrev_b32 v{tmp}, 2, v{vI}", f"v_add_u32 v{dst}, v{dst}, v{tmp}",
      f"v_lshlrev_b32 v{dst}, {rowshift}, v{dst}", f"v_and_b32 v{tmp}, 3, v{vI}", f"v_lshlrev_b32 v{tmp}, 3, v{tmp}",
      f"v_add_u32 v{dst}, v{dst}, v{tmp}")
    if base is not None:
        g(f"v_add_u32 v{dst}, {base}, v{dst}")


def tr_read(g, reg, vaddr, off, rowbytes):
    g(f"ds_read_b64_tr_b16 {v(reg,2)}, v{vaddr} offset:{off}", f"ds_read_b64_tr_b16 {v(reg+2,2)}, v{vaddr} offset:{off + 4*rowbytes}")


def mfma(g, d, a, b, first):
    g(f"v_mfma_f32_16x16x32_bf16 {v(d,4)}, {v(a,4)}, {v(b,4)}, {'0' if first else v(d,4)}")


def gen_stream(g, opt):
    W = opt.get("W", 6)
    NS = 48
    vOFF = 1
    vQ = 2
    vM = 6
    vD = 10
    vB = [14, 18]
    vS = 22
    vT = 26
    vX = 42
    vSL = 48
    vLDS = 46

    order = [("K", n) for n in range(64 - NL, 64)] + [("K", n) for n in range(64 - NL)] + [("V", n) for n in range(64)]
    NREG_K = 64 - NL

    def slot_of(kind, n):
        return vSL + 4 * ((n if kind == "K" else NREG_K + n) % NS)

    g(f"s_lshl_b32 {sT0}, {sB}, 5", f"s_add_u32 {sT0}, {sT0}, {sH}", f"s_lshl_b32 {sT0}, {sT0}, 20",
      f"s_lshl_b32 {sT1}, {sS}, 18", f"s_add_u32 {sT0}, {sT0}, {sT1}")
    g(f"s_add_u32 s{SRD_A}, s6, {sT0}", f"s_addc_u32 s{SRD_A+1}, s7, 0", f"s_mov_b32 s{SRD_A+2}, 0x40000",
      f"s_mov_b32 s{SRD_A+3}, 0x20000")
    g(f"s_add_u32 s{SRD_B}, s8, {sT0}", f"s_addc_u32 s{SRD_B+1}, s9, 0", f"s_mov_b32 s{SRD_B+2}, 0x40000",
      f"s_mov_b32 s{SRD_B+3}, 0x20000")
    g(f"s_lshl_b32 {sT1}, s3, 12", f"v_lshlrev_b32 v{vOFF}, 4, v0", f"s_mul_i32 s64, s3, {NL*1024}", f"s_add_u32 s64, s64, {L_KB}",
      f"v_add_u32 v{vLDS}, s64, v{vOFF}", f"v_add_u32 v{vOFF}, {sT1}, v{vOFF}")

    EARLY = opt.get("early", True)
    URG = opt.get("urgent_r", 8)
    I_WQ, I_LATE = opt.get("i_wq", W), opt.get("i_late", 3 * W)

    def wmod_dma():
        for k in range(4):
            g(f"s_mov_b32 s68, {k * 8 * 6144}", f"s_add_u32 m0, s69, {k*1024}", "s_nop 0")
            if 'p1' not in SKIP:
                g("buffer_load_dwordx4 v3, s[76:79], s68 offen nt lds")

    def wq_dma():
        for k in range(4):
            g(f"s_mov_b32 s68, {k * 4 * 8192}", f"s_add_u32 m0, s67, {k*1024}", "s_nop 0")
            if 'wq' not in SKIP:
                g("buffer_load_dwordx4 v2, s[72:75], s68 offen nt lds")

    if EARLY:
        g(f"s_lshr_b32 s68, {sR}, 2", f"s_and_b32 s69, {sR}, 3", "s_lshl_b32 s69, s69, 2", "s_add_u32 s69, s69, s3",
          f"s_mul_i32 s69, s69, {32*6144}", "s_lshl_b32 s68, s68, 10", "s_add_u32 s69, s69, s68", f"s_lshl_b32 s68, {sX}, 7", "s_add_u32 s69, s69, s68")
        g(f"s_cmp_ge_u32 {sR}, 24", "s_cselect_b32 s69, 0, s69")
        make_srd(g, 76, 22, "s69", 512 * 3072 * 2)
        g("v_lshrrev_b32 v3, 3, v0", "s_mov_b32 s68, 6144", "v_mul_lo_u32 v3, v3, s68", "v_and_b32 v4, 7, v0", "v_lshlrev_b32 v4, 4, v4",
          "v_add_u32 v3, v3, v4", "s_lshl_b32 s69, s3, 12", f"s_add_u32 s69, s69, {L_WMOD}")
        Lnp = g.lab("nourg")
        g(f"s_cmp_ge_u32 {sR}, {URG}", f"s_cbranch_scc1 {Lnp}")
        wmod_dma()
        g(f"{Lnp}:")
        g(f"s_lshl_b32 s66, {sJ}, 19", f"s_lshl_b32 s67, {sH}, 8", "s_add_u32 s66, s66, s67", "s_lshl_b32 s67, s3, 17", "s_add_u32 s66, s66, s67")
        make_srd(g, 72, 10, "s66", 512 * 4096 * 2)
        g("v_lshrrev_b32 v2, 4, v0", "v_lshlrev_b32 v2, 13, v2", "v_and_b32 v4, 15, v0", "v_lshlrev_b32 v4, 4, v4", "v_add_u32 v2, v2, v4",
          "s_lshl_b32 s67, s3, 12", f"s_add_u32 s67, s67, {L_WQ}")

    state = {"K": None, "V": None, "i": 0}
    if STAMPS:
        g("s_memtime s[98:99]")

    def issue_next():
        i = state["i"]
        kind, n = order[i]
        rho, t = n >> 2, n & 3
        sreg, sr = (sT2, SRD_A) if kind == "K" else (sT3, SRD_B)
        if i >= W:
            g(f"s_waitcnt vmcnt({W-1})")
        if kind == "K" and n >= NREG_K:
            g(f"s_mov_b32 {sreg}, {rho * 16384 + t * 1024}", f"s_add_u32 m0, s64, {(n - NREG_K) * 1024}")
            state[kind] = None
            g("s_nop 0", f"buffer_load_dwordx4 v{vOFF}, {srd(sr)}, {sreg} offen nt lds")
        else:
            if state[kind] != rho:
                g(f"s_mov_b32 {sreg}, {rho * 16384}")
                state[kind] = rho
            g(f"buffer_load_dwordx4 {v(slot_of(kind, n), 4)}, v{vOFF}, {srd(sr)}, {sreg} offen offset:{t*1024} nt")
        state["i"] = i + 1

    def issued_after(kind, n):
        return state["i"] - 1 - order.index((kind, n))

    NBACK = NL + NS
    for i in range(NBACK):
        issue_next()
        if not EARLY:
            continue
        if i == W - 1:
            g("s_barrier")
        if i == W:
            lab = g.lab("sigm")
            g(f"s_cmp_ge_u32 {sR}, {URG}", f"s_cbranch_scc1 {lab}")
            lds_signal(g, L_CNT + 4, 4)
            g(f"{lab}:")
        if i == I_WQ:
            wq_dma()
        if i == I_WQ + W:
            lds_signal(g, L_CNT + 8, 4)
        if i == I_LATE:
            lab = g.lab("late")
            g(f"s_cmp_lt_u32 {sR}, {URG}", f"s_cbranch_scc1 {lab}", f"s_cmp_ge_u32 {sR}, 24", f"s_cbranch_scc1 {lab}")
            wmod_dma()
            g(f"{lab}:")
        if i == I_LATE + W:
            lab = g.lab("sigl")
            g(f"s_cmp_lt_u32 {sR}, {URG}", f"s_cbranch_scc1 {lab}")
            lds_signal(g, L_CNT + 4, 4)
            g(f"{lab}:")
    g(f"v_and_b32 v{vX}, 15, v0", f"v_lshrrev_b32 v{vX+1}, 1, v{vX}", f"v_and_b32 v{vX+2}, 1, v{vX}",
      f"v_mov_b32 v{vX+3}, 0xffff", f"v_mov_b32 v{vT}, 0xffff0000",
      f"v_cmp_eq_u32 vcc, 1, v{vX+2}", "s_nop 1", f"v_cndmask_b32 v{vX+3}, v{vX+3}, v{vT}, vcc")
    for r in range(4):
        g(f"v_cmp_eq_u32 vcc, {r}, v{vX+1}", "s_nop 1", f"v_cndmask_b32 v{vM+r}, 0, v{vX+3}, vcc")
    g("s_mov_b32 s60, 0xcccccccc", "s_mov_b32 s61, 0xcccccccc", "s_mov_b32 s62, 0xaaaaaaaa", "s_mov_b32 s63, 0xaaaaaaaa")
    for r in range(4):
        g(f"v_mov_b32 v{vD+r}, 0")
    g(f"v_lshlrev_b32 v{vX}, 4, v{vX}")
    stamp(g, 1)
    if 'b12' not in SKIP:
        g("s_barrier")
    stamp(g, 2)
    dbgmax(g, 2)
    g(f"ds_read_b128 {v(vQ,4)}, v{vX} offset:{L_Q}")
    g(f"s_waitcnt vmcnt({min(63, issued_after('K', 7))}) lgkmcnt(0)")

    def kreg(n):
        if n < NREG_K:
            return slot_of("K", n)
        return vSL + 4 * (16 + (n & 15))

    def dots(ns):
        for r in range(4):
            for n in ns:
                t = vT + (n & 15)
                c = "0" if r == 0 else f"v{t}"
                g(f"v_dot2_f32_bf16 v{t}, v{kreg(n)+r}, v{vQ+r}, {c}")

    def tree(gam):
        g("s_nop 2")
        for n in range(8):
            g(f"v_add_f32_dpp v{vT+n}, v{vT+n}, v{vT+n} row_ror:8 row_mask:0xf bank_mask:0x3")
            g(f"v_add_f32_dpp v{vT+n}, v{vT+n+8}, v{vT+n+8} row_ror:8 row_mask:0xf bank_mask:0xc")
        for n in range(4):
            g(f"v_add_f32_dpp v{vT+n}, v{vT+n}, v{vT+n} row_shl:4 row_mask:0xf bank_mask:0x5")
            g(f"v_add_f32_dpp v{vT+n}, v{vT+n+4}, v{vT+n+4} row_shr:4 row_mask:0xf bank_mask:0xa")
        g("s_nop 0")
        for n in range(4):
            g(f"v_add_f32_dpp v{vT+n}, v{vT+n}, v{vT+n} quad_perm:[2,3,0,1] {DPPF}")
        g(f"v_cndmask_b32 v{vT}, v{vT}, v{vT+2}, {sM1}", f"v_cndmask_b32 v{vT+1}, v{vT+1}, v{vT+3}, {sM1}", "s_nop 1")
        for n in range(2):
            g(f"v_add_f32_dpp v{vT+n}, v{vT+n}, v{vT+n} quad_perm:[1,0,3,2] {DPPF}")
        g(f"v_cndmask_b32 v{vS+gam}, v{vT}, v{vT+1}, {sM0}")

    def lds_reads(ns):
        for n in ns:
            g(f"ds_read_b128 {v(kreg(n),4)}, v{vLDS} offset:{(n - NREG_K) * 1024}")

    freed = 0

    def can_issue():
        i = state["i"]
        if i >= len(order):
            return False
        kind, n = order[i]
        assert kind == "V"
        s = (NREG_K + n) % NS
        return n < NS - NREG_K or s < freed

    every = opt.get("burst_every", 2)
    qi = 0
    for gam in range(4):
        ns_all = list(range(16 * gam, 16 * gam + 16))
        ldsn = [n for n in ns_all if n >= NREG_K]
        if ldsn:
            lds_reads(ldsn)
        for q4 in range(4):
            ns = ns_all[4 * q4: 4 * q4 + 4]
            regn = [n for n in ns if n < NREG_K]
            if regn:
                g(f"s_waitcnt vmcnt({min(63, issued_after('K', regn[-1]))})")
            if any(n >= NREG_K for n in ns):
                g("s_waitcnt lgkmcnt(0)")
            if 'qk' not in SKIP:
                dots(ns)
            if regn:
                freed = min(regn[-1] + 1, 16)
            qi += 1
            if qi % every == 0 and can_issue():
                issue_next()
        if 'qk' not in SKIP:
            tree(gam)
    freed = NS
    stamp(g, 3)
    g(f"v_max3_f32 v{vX}, v{vS}, v{vS+1}, v{vS+2}", f"v_max_f32 v{vX}, v{vX}, v{vS+3}")
    allreduce(g, [vX], "v_max_f32", [vX + 1])
    g(f"v_mul_f32 v{vX}, {hex(f2u(CS))}, v{vX}")
    g(f"s_mov_b32 {sT0}, {hex(f2u(CS))}")
    issue_next()
    for r in range(4):
        g(f"v_fma_f32 v{vS+r}, v{vS+r}, {sT0}, -v{vX}")
    for r in range(4):
        g(f"v_exp_f32 v{vS+r}, v{vS+r}")
    g("s_nop 0")
    g(f"v_add_f32 v{vX+1}, v{vS}, v{vS+1}", f"v_add_f32 v{vX+2}, v{vS+2}, v{vS+3}", f"v_add_f32 v{vX+1}, v{vX+1}, v{vX+2}")
    for r in range(4):
        g(f"v_cvt_pk_bf16_f32 v{vS+r}, v{vS+r}, v{vS+r}")
    allreduce(g, [vX + 1], "v_add_f32", [vX + 2])
    g(f"s_lshl_b32 {sT0}, s3, 3", f"v_mov_b32 v{vX+2}, {sT0}", "s_mov_b64 exec, 1",
      f"ds_write_b64 v{vX+2}, {v(vX,2)} offset:{L_MLW}", "s_mov_b64 exec, -1", "s_waitcnt lgkmcnt(0)")
    issue_next()
    if 'b12' not in SKIP:
        g("s_barrier")
    stamp(g, 4)
    g(f"v_mov_b32 v{vX+1}, 0", f"ds_read_b128 {v(vT,4)}, v{vX+1} offset:{L_MLW}",
      f"ds_read_b128 {v(vT+4,4)}, v{vX+1} offset:{L_MLW+16}", "s_waitcnt lgkmcnt(0)",
      f"v_max3_f32 v{vX+1}, v{vT}, v{vT+2}, v{vT+4}", f"v_max_f32 v{vX+1}, v{vX+1}, v{vT+6}",
      f"v_sub_f32 v{vX}, v{vX}, v{vX+1}", f"v_exp_f32 v{vX}, v{vX}")

    def pv(n):
        if 'pv' in SKIP:
            return
        B = vB[n & 1]
        for r in range(4):
            g(f"v_and_b32_dpp v{B+r}, v{vS+(n>>4)}, v{vM+r} row_newbcast:{n&15} {DPPF}")
        g("s_nop 1")
        mfma(g, vD, slot_of("V", n), B, False)

    nb2b = opt.get("b2b_at", 24)
    nb3 = opt.get("b3_at", 64 - W)
    for n in range(64):
        pos = order.index(("V", n))
        while state["i"] < len(order) and state["i"] <= pos + W - 1:
            kind, m = order[state["i"]]
            assert m - NS < n or m < NS
            issue_next()
        if n == nb2b:
            stamp(g, 8)
            g("s_barrier")
        if n == nb3:
            stamp(g, 5)
            g("s_barrier")
        g(f"s_waitcnt vmcnt({min(63, issued_after('V', n))})")
        pv(n)
        if n % 5 == 4 and n < 14 and state["i"] < len(order):
            issue_next()
    stamp(g, 6)
    dbgmax(g, 3)
    g("s_nop 7", "s_nop 1")
    for r in range(4):
        g(f"v_mul_f32 v{vD+r}, v{vD+r}, v{vX}")
    g(f"v_lshrrev_b32 v{vT}, 4, v0", f"v_lshlrev_b32 v{vT}, 7, v{vT}", f"v_and_b32 v{vT+1}, 15, v0",
      f"v_lshlrev_b32 v{vT+1}, 2, v{vT+1}", f"v_add_u32 v{vT}, v{vT}, v{vT+1}",
      f"s_lshl_b32 {sT0}, s3, 9", f"v_add_u32 v{vT}, {sT0}, v{vT}",
      "s_mov_b32 exec_lo, 0x00ff00ff", "s_mov_b32 exec_hi, 0x00ff00ff")
    for r in range(4):
        g(f"ds_write_b32 v{vT}, v{vD+r} offset:{L_RED + r*32}")
    Lno = g.lab("notlast")
    g("s_mov_b64 exec, 1", f"v_mov_b32 v{vT}, 0", f"v_mov_b32 v{vT+1}, 1", "s_waitcnt lgkmcnt(0)",
      f"ds_add_rtn_u32 v{vT+1}, v{vT}, v{vT+1} offset:{L_CNT}",
      f"s_lshl_b32 {sT0}, {sH}, 3", f"s_add_u32 {sT0}, {sT0}, {sJ}", f"s_lshl_b32 {sT0}, {sT0}, 8", f"s_add_u32 {sT0}, {sT0}, {WS_OS}",
      f"s_add_u32 {sT1}, {sT0}, {WS_OL - WS_OS}")
    make_srd(g, SRD_WS, 28, 0, WS_SIZE)
    g("s_waitcnt lgkmcnt(0)", f"v_readfirstlane_b32 {sT2}, v{vT+1}", "s_mov_b64 exec, 0xffff", f"v_lshlrev_b32 v{vT}, 5, v0",
      f"s_cmp_lg_u32 {sT2}, 3", f"s_cbranch_scc1 {Lno}")
    R = vSL
    for w in range(4):
        g(f"ds_read_b128 {v(R+8*w,4)}, v{vT} offset:{L_RED + w*512}", f"ds_read_b128 {v(R+4+8*w,4)}, v{vT} offset:{L_RED + w*512 + 16}")
    g(f"v_lshlrev_b32 v{vT+1}, 4, v0", "s_waitcnt lgkmcnt(0)")
    for e in range(8):
        g(f"v_add_f32 v{R+e}, v{R+e}, v{R+8+e}", f"v_add_f32 v{R+16+e}, v{R+16+e}, v{R+24+e}")
    for e in range(8):
        g(f"v_add_f32 v{R+e}, v{R+e}, v{R+16+e}")
    for r in range(4):
        g(f"v_cvt_pk_bf16_f32 v{R+r}, v{R+2*r}, v{R+2*r+1}")
    g(f"buffer_store_dwordx4 {v(R,4)}, v{vT+1}, {srd(SRD_WS)}, {sT1} offen ;@opub",
      f"buffer_store_dwordx4 {v(R,4)}, v{vT+1}, {srd(SRD_WS)}, {sT0} offen sc1 ;@opub")
    stamp(g, 7)
    g(f"{Lno}:")
    if STAMPS:
        g("s_memtime s[100:101]")
    end(g)


def gen_aux(g, opt):
    vTAU, vI, vG, vMSK = 1, 2, 3, 4
    EX8 = ("s_mov_b32 exec_lo, 0x00030003", "s_mov_b32 exec_hi, 0x00030003")

    def tagify(dst, src):
        g(f"v_and_or_b32 v{dst}, v{src}, v{vMSK}, v{vTAU}")

    g(f"s_load_dword s30, s[28:29], {WS_EPOCH}")
    g(f"s_sub_u32 {sA}, s3, 4")
    make_srd(g, SRD_WS, 28, 0, WS_SIZE)
    g(f"v_and_b32 v{vI}, 15, v0", f"v_lshrrev_b32 v{vG}, 4, v0", f"v_mov_b32 v{vMSK}, {hex(0xffffffff ^ TAGMASK)}")
    g(f"s_mul_i32 {sPHI}, {sX}, 6", f"s_add_u32 {sPHI}, {sPHI}, {sR}", f"s_sub_u32 {sPHI}, {sPHI}, 24",
      f"s_cmp_lt_u32 {sR}, 24", f"s_cselect_b32 {sPHI}, 0xff, {sPHI}",
      f"s_cmp_ge_u32 {sR}, 30", f"s_cselect_b32 {sPHI}, 0xff, {sPHI}",
      f"s_cmp_ge_u32 {sPHI}, 43", f"s_cselect_b32 {sPHI}, 0xff, {sPHI}")

    EARLY = opt.get("early", True)
    if EARLY:
        lab = g.lab("zc")
        g(f"s_cmp_lg_u32 {sA}, 2", f"s_cbranch_scc1 {lab}", "v_mov_b32 v8, 0", "v_mov_b32 v9, 0", "v_mov_b32 v10, 0", "v_mov_b32 v11, 0",
          f"ds_write_b96 v8, v[9:11] offset:{L_CNT}" if False else f"ds_write_b64 v8, v[10:11] offset:{L_CNT}", f"ds_write_b32 v8, v8 offset:{L_CNT+8}",
          "s_waitcnt lgkmcnt(0)", f"{lab}:", "s_barrier")

    def tag_ready():
        g("s_waitcnt lgkmcnt(0)", f"s_add_u32 {sTAU}, s30, 1", f"s_and_b32 {sTAU}, {sTAU}, {TAGMASK}", f"v_mov_b32 v{vTAU}, {sTAU}")

    LA1, LA2, LA3, LB1 = g.lab("a1"), g.lab("a2"), g.lab("a3"), g.lab("aux_b1")
    g(f"s_cmp_eq_u32 {sA}, 1", f"s_cbranch_scc1 {LA1}", f"s_cmp_eq_u32 {sA}, 2", f"s_cbranch_scc1 {LA2}",
      f"s_cmp_eq_u32 {sA}, 3", f"s_cbranch_scc1 {LA3}")

    g(f"s_cmp_ge_u32 {sR}, 24", f"s_cbranch_scc1 {LA3}")
    g(f"s_lshr_b32 s64, {sR}, 2", f"s_and_b32 s65, {sR}, 3",
      f"s_mul_i32 {sT0}, s65, {128*6144}", f"s_lshl_b32 {sT1}, s64, 10", f"s_add_u32 {sT0}, {sT0}, {sT1}",
      f"s_lshl_b32 {sT1}, {sX}, 7", f"s_add_u32 {sT0}, {sT0}, {sT1}")
    make_srd(g, SRD_A, 22, sT0, 512 * 3072 * 2)
    make_srd(g, SRD_B, 20, 0, 2048)
    g(f"v_and_b32 v5, 1, v{vG}", "v_lshlrev_b32 v8, 10, v5", f"v_lshlrev_b32 v9, 4, v{vI}", "v_add_u32 v8, v8, v9",
      f"s_lshl_b32 {sT1}, s65, 8", f"buffer_load_dwordx4 v[12:15], v8, {srd(SRD_B)}, {sT1} offen")
    g("v_lshrrev_b32 v9, 3, v0", f"s_mov_b32 {sT2}, 6144", f"v_mul_lo_u32 v9, v9, {sT2}", "v_and_b32 v10, 7, v0",
      "v_lshlrev_b32 v10, 4, v10", "v_add_u32 v9, v9, v10")
    if not EARLY:
        for k in range(16):
            g(f"s_mov_b32 {sT2}, {k * 8 * 6144}")
            dma(g, 9, SRD_A, sT2, L_WMOD + k * 1024, "p1")
    g("s_waitcnt vmcnt(16)" if "p1" not in SKIP and not EARLY else "s_waitcnt vmcnt(0)")
    for r in range(4):
        g(f"v_lshlrev_b32 v{20+2*r}, 16, v{12+r}", f"v_and_b32 v{21+2*r}, 0xffff0000, v{12+r}")
    silu(g, range(20, 28), range(28, 36))
    for r in range(4):
        g(f"v_cvt_pk_bf16_f32 v{12+r}, v{20+2*r}, v{21+2*r}")
    g("v_lshlrev_b32 v8, 8, v5", f"v_lshlrev_b32 v10, 4, v{vI}", "v_add_u32 v8, v8, v10", f"ds_write_b128 v8, v[12:15] offset:{L_ACT1}")
    g(f"v_and_b32 v10, 1, v{vI}", "v_lshlrev_b32 v10, 8, v10", f"v_lshlrev_b32 v11, 4, v{vG}", "v_add_u32 v10, v10, v11")
    tr_addr(g, 11, 12, vI, vG, 7)
    tag_ready()
    for k in range(4):
        g(f"ds_read_b128 {v(40+4*k,4)}, v10 offset:{L_ACT1 + k*64}")
    g("s_waitcnt vmcnt(0)")
    if EARLY:
        lds_wait(g, L_CNT + 4, 4, 12)
    for t in range(4):
        for k in range(4):
            tr_read(g, 64 + (t * 4 + k) * 4, 11, L_WMOD + k * 4096 + t * 32, 128)
        g("s_waitcnt lgkmcnt(0)")
        for k in range(4):
            mfma(g, 16 + 4 * t, 64 + (t * 4 + k) * 4, 40 + 4 * k, k == 0)
    g(f"s_lshl_b32 {sT0}, s64, 3", f"s_add_u32 {sT0}, {sT0}, {sX}", f"s_lshl_b32 s66, {sT0}, 11", f"s_add_u32 s66, s66, {WS_MODP}",
      f"s_lshl_b32 {sT1}, s65, 9", f"s_add_u32 {sT0}, s66, {sT1}",
      f"v_lshlrev_b32 v8, 6, v{vI}", f"v_lshlrev_b32 v9, 4, v{vG}", "v_add_u32 v8, v8, v9", "s_nop 4")
    for r in range(16):
        tagify(16 + r, 16 + r)
    g(*EX8)
    for t in range(4):
        g(f"buffer_store_dwordx4 {v(16+4*t,4)}, v8, {srd(SRD_WS)}, {sT0} offen offset:{t*128} sc1 ;@modp")
    g("s_mov_b64 exec, -1")
    stamp(g, 1)
    g("s_cmp_lg_u32 s65, 0", f"s_cbranch_scc1 {LB1}", "s_cmp_lt_u32 s64, 2", f"s_cbranch_scc1 {LB1}")
    g("v_lshlrev_b32 v8, 4, v0")
    poll(g, "p_fin",
         lambda: g(f"buffer_load_dwordx4 v[16:19], v8, {srd(SRD_WS)}, s66 offen sc1",
                   f"buffer_load_dwordx4 v[20:23], v8, {srd(SRD_WS)}, s66 offen offset:1024 sc1"),
         lambda: check_intag(g, range(16, 24), vTAU, 12))
    for e in range(4):
        g(f"v_add_f32 v{16+e}, v{16+e}, v{20+e}")
    swapreduce(g, range(16, 20), "v_add_f32", range(20, 24), "32")
    g("v_cvt_pk_bf16_f32 v20, v16, v17", "v_cvt_pk_bf16_f32 v21, v18, v19",
      "v_lshlrev_b32 v16, 16, v20", "v_and_b32 v17, 0xffff0000, v20", "v_lshlrev_b32 v18, 16, v21", "v_and_b32 v19, 0xffff0000, v21")
    for e in range(4):
        tagify(16 + e, 16 + e)
    g("v_lshrrev_b32 v8, 3, v0", "v_and_b32 v8, 3, v8", "v_lshlrev_b32 v8, 6, v8", "v_lshrrev_b32 v9, 2, v0", "v_and_b32 v9, 1, v9",
      "v_lshlrev_b32 v9, 11, v9", "v_add_u32 v8, v8, v9", "v_and_b32 v9, 3, v0", "v_lshlrev_b32 v9, 4, v9", "v_add_u32 v8, v8, v9",
      f"s_sub_u32 {sT0}, s64, 2", f"s_lshl_b32 {sT0}, {sT0}, 12", f"s_lshl_b32 {sT1}, {sX}, 8", f"s_add_u32 {sT0}, {sT0}, {sT1}",
      f"s_add_u32 {sT0}, {sT0}, {WS_MODF}", "s_mov_b32 exec_hi, 0",
      f"buffer_store_dwordx4 v[16:19], v8, {srd(SRD_WS)}, {sT0} offen sc1 ;@modf", "s_mov_b64 exec, -1")
    g(f"s_branch {LB1}")

    g(f"{LA1}:")
    g(f"s_lshl_b32 {sT0}, {sJ}, 19", f"s_lshl_b32 {sT1}, {sH}, 8", f"s_add_u32 {sT0}, {sT0}, {sT1}")
    make_srd(g, SRD_A, 10, sT0, 512 * 4096 * 2)
    make_srd(g, SRD_B, 4, 0, 2048)
    g("v_lshlrev_b32 v8, 4, v0")
    g(f"buffer_load_dwordx4 v[12:15], v8, {srd(SRD_B)}, 0 offen", f"buffer_load_dwordx4 v[16:19], v8, {srd(SRD_B)}, 0 offen offset:1024")
    g("v_lshrrev_b32 v5, 2, v0", "v_and_b32 v5, 1, v5",
      "v_lshrrev_b32 v6, 3, v0", "v_and_b32 v6, 3, v6", "v_lshlrev_b32 v6, 4, v6", "v_and_b32 v7, 3, v0", "v_lshlrev_b32 v7, 2, v7",
      "v_add_u32 v6, v6, v7",
      "v_lshlrev_b32 v7, 10, v5", "v_lshlrev_b32 v9, 1, v6", "v_add_u32 v9, v9, v7",
      f"s_lshl_b32 {sT1}, {sJ}, 7", f"buffer_load_dwordx2 v[20:21], v9, {srd(SRD_B)}, {sT1} offen")
    g(f"v_lshlrev_b32 v9, 13, v{vG}", f"v_lshlrev_b32 v10, 4, v{vI}", "v_add_u32 v9, v9, v10")
    if not EARLY:
        for t in range(16):
            g(f"s_mov_b32 {sT2}, {t * 4 * 8192}")
            dma(g, 9, SRD_A, sT2, L_WQ + t * 1024, "wq")
    g("s_waitcnt vmcnt(16)" if "wq" not in SKIP and not EARLY else "s_waitcnt vmcnt(0)")
    for b in range(2):
        for r in range(4):
            g(f"v_lshlrev_b32 v{24+8*b+2*r}, 16, v{12+4*b+r}", f"v_and_b32 v{25+8*b+2*r}, 0xffff0000, v{12+4*b+r}")
    for b in range(2):
        base = 24 + 8 * b
        g(f"v_add_f32 v{40+b}, v{base}, v{base+1}")
        for e in range(2, 8):
            g(f"v_add_f32 v{40+b}, v{40+b}, v{base+e}")
    allreduce(g, [40, 41], "v_add_f32", [44, 45])
    g(f"v_mul_f32 v40, {hex(f2u(1/512))}, v40", f"v_mul_f32 v41, {hex(f2u(1/512))}, v41")
    for b in range(2):
        base = 24 + 8 * b
        for e in range(8):
            g(f"v_sub_f32 v{base+e}, v{base+e}, v{40+b}")
        g(f"v_mul_f32 v{42+b}, v{base}, v{base}")
        for e in range(1, 8):
            g(f"v_fmac_f32 v{42+b}, v{base+e}, v{base+e}")
    allreduce(g, [42, 43], "v_add_f32", [44, 45])
    for b in range(2):
        g(f"v_mov_b32 v44, {hex(f2u(1e-5))}", f"v_fmac_f32 v44, {hex(f2u(1/512))}, v{42+b}", f"v_rsq_f32 v{42+b}, v44", "s_nop 0")
    g("v_cmp_eq_u32 vcc, 1, v5", "s_nop 1", "v_cndmask_b32 v40, v40, v41, vcc", "v_cndmask_b32 v42, v42, v43, vcc",
      "v_lshlrev_b32 v24, 16, v20", "v_and_b32 v25, 0xffff0000, v20", "v_lshlrev_b32 v26, 16, v21", "v_and_b32 v27, 0xffff0000, v21")
    for e in range(4):
        g(f"v_sub_f32 v{24+e}, v{24+e}, v40", f"v_mul_f32 v{24+e}, v{24+e}, v42")
    tr_addr(g, 11, 12, vI, vG, 8)
    g("s_waitcnt vmcnt(0)")
    if EARLY:
        lds_wait(g, L_CNT + 8, 4, 12)
    for t in range(8):
        for k in range(2):
            tr_read(g, 64 + (t * 2 + k) * 4, 11, L_WQ + k * 8192 + t * 32, 256)
        if t % 2 == 1:
            g("s_waitcnt lgkmcnt(0)")
    tag_ready()
    g(f"s_lshl_b32 {sT0}, {sJ}, 11", f"s_add_u32 {sT0}, {sT0}, {WS_MODP}", f"s_add_u32 {sT1}, {sT0}, {8*2048}", "v_lshlrev_b32 v9, 4, v0")
    for _ in range(opt.get("saca_sleep", 0)):
        g("s_sleep 64")
    poll(g, "p_saca",
         lambda: g(f"buffer_load_dwordx4 v[28:31], v9, {srd(SRD_WS)}, {sT0} offen sc1",
                   f"buffer_load_dwordx4 v[32:35], v9, {srd(SRD_WS)}, {sT0} offen offset:1024 sc1",
                   f"buffer_load_dwordx4 v[36:39], v9, {srd(SRD_WS)}, {sT1} offen sc1",
                   f"buffer_load_dwordx4 v[40:43], v9, {srd(SRD_WS)}, {sT1} offen offset:1024 sc1"),
         lambda: check_intag(g, range(28, 44), vTAU, 12))
    stamp(g, 1)
    for e in range(4):
        g(f"v_add_f32 v{28+e}, v{28+e}, v{32+e}", f"v_add_f32 v{36+e}, v{36+e}, v{40+e}")
    swapreduce(g, [28, 29, 30, 31, 36, 37, 38, 39], "v_add_f32", range(44, 52), "32")
    g("v_cvt_pk_bf16_f32 v44, v28, v29", "v_cvt_pk_bf16_f32 v45, v30, v31", "v_cvt_pk_bf16_f32 v46, v36, v37", "v_cvt_pk_bf16_f32 v47, v38, v39")
    for e in range(4):
        src_s, src_c = 44 + e // 2, 46 + e // 2
        if e % 2 == 0:
            g(f"v_lshlrev_b32 v{28+e}, 16, v{src_s}", f"v_lshlrev_b32 v{36+e}, 16, v{src_c}")
        else:
            g(f"v_and_b32 v{28+e}, 0xffff0000, v{src_s}", f"v_and_b32 v{36+e}, 0xffff0000, v{src_c}")
    for e in range(4):
        g(f"v_add_f32 v{36+e}, 1.0, v{36+e}", f"v_fma_f32 v{24+e}, v{24+e}, v{36+e}, v{28+e}")
    g("v_cvt_pk_bf16_f32 v24, v24, v25", "v_cvt_pk_bf16_f32 v25, v26, v27",
      "v_lshlrev_b32 v9, 7, v5", "v_lshlrev_b32 v10, 1, v6", "v_add_u32 v9, v9, v10", f"ds_write_b64 v9, v[24:25] offset:{L_ACT2}",
      f"v_and_b32 v10, 1, v{vI}", "v_lshlrev_b32 v10, 7, v10", f"v_lshlrev_b32 v12, 4, v{vG}", "v_add_u32 v10, v10, v12",
      "s_waitcnt lgkmcnt(0)",
      f"ds_read_b128 v[24:27], v10 offset:{L_ACT2}", f"ds_read_b128 v[28:31], v10 offset:{L_ACT2+64}", "s_waitcnt lgkmcnt(0)")
    for k in range(2):
        for t in range(8):
            mfma(g, 128 + 4 * t, 64 + (t * 2 + k) * 4, 24 + 4 * k, k == 0)
    g(f"s_lshl_b32 {sT0}, {sH}, 13", f"s_lshl_b32 {sT1}, {sJ}, 9", f"s_add_u32 s66, {sT0}, {WS_QP}", f"s_add_u32 {sT0}, s66, {sT1}",
      f"v_and_b32 v8, 1, v{vI}", "v_lshlrev_b32 v8, 12, v8", f"v_lshrrev_b32 v9, 1, v{vI}", "v_and_b32 v9, 1, v9", "v_cmp_eq_u32 vcc, 1, v9",
      "v_lshlrev_b32 v9, 6, v9", "v_add_u32 v8, v8, v9", f"v_lshlrev_b32 v9, 4, v{vG}", "v_add_u32 v8, v8, v9", "s_nop 1")
    for tp in range(4):
        for e in range(4):
            g(f"v_cndmask_b32 v{128+8*tp+e}, v{128+8*tp+e}, v{132+8*tp+e}, vcc")
        for e in range(4):
            tagify(128 + 8 * tp + e, 128 + 8 * tp + e)
    g("s_mov_b32 exec_lo, 0x000f000f", "s_mov_b32 exec_hi, 0x000f000f")
    for tp in range(4):
        g(f"buffer_store_dwordx4 {v(128+8*tp,4)}, v8, {srd(SRD_WS)}, {sT0} offen offset:{tp*128} sc1 ;@qp")
    g("s_mov_b64 exec, -1")
    stamp(g, 2)
    for _ in range(opt.get("q_sleep", 0)):
        g("s_sleep 64")
    g("v_lshlrev_b32 v8, 4, v0", f"s_lshl_b32 {sT1}, {sB}, 12", f"s_add_u32 {sT0}, s66, {sT1}")

    def issq():
        for k in range(4):
            g(f"buffer_load_dwordx4 {v(16+4*k,4)}, v8, {srd(SRD_WS)}, {sT0} offen offset:{k*1024} sc1")
    poll(g, "p_q", issq, lambda: check_intag(g, range(16, 32), vTAU, 12))
    stamp(g, 3)
    for e in range(4):
        g(f"v_add_f32 v{16+e}, v{16+e}, v{20+e}", f"v_add_f32 v{24+e}, v{24+e}, v{28+e}", f"v_add_f32 v{16+e}, v{16+e}, v{24+e}")
    swapreduce(g, range(16, 20), "v_add_f32", range(20, 24), "32")
    g("v_cvt_pk_bf16_f32 v16, v16, v17", "v_cvt_pk_bf16_f32 v17, v18, v19",
      "v_and_b32 v9, 31, v0", "v_lshlrev_b32 v9, 3, v9", f"ds_write_b64 v9, v[16:17] offset:{L_Q}")
    g(f"s_branch {LB1}")

    g(f"{LA2}:")
    g("v_mov_b32 v8, -1", "v_mov_b32 v9, -1", "v_mov_b32 v10, -1", "v_mov_b32 v11, -1", "v_lshlrev_b32 v12, 4, v0",
      f"s_lshl_b32 {sT0}, {sH}, 3", f"s_add_u32 {sT0}, {sT0}, {sJ}", f"s_lshl_b32 {sT0}, {sT0}, 8", f"s_add_u32 {sT0}, {sT0}, {WS_OS}",
      f"s_add_u32 {sT1}, {sT0}, {WS_OL - WS_OS}",
      "s_mov_b64 exec, 0xffff", f"buffer_store_dwordx4 v[8:11], v12, {srd(SRD_WS)}, {sT0} offen sc1 ;@inito",
      f"buffer_store_dwordx4 v[8:11], v12, {srd(SRD_WS)}, {sT1} offen ;@inito", "s_mov_b64 exec, -1")
    if not EARLY:
        g("v_mov_b32 v8, 0", f"ds_write_b32 v8, v8 offset:{L_CNT}")
    tag_ready()
    g(f"s_branch {LB1}")

    g(f"{LA3}:")
    if opt.get("codepf", True):
        Lnp = g.lab("nopf")
        g(f"s_cmp_lg_u32 {sA}, 3", f"s_cbranch_scc1 {Lnp}", f"s_cmp_ge_u32 {sR}, {opt.get('codepf_wgs', 1)}", f"s_cbranch_scc1 {Lnp}")
        g("s_getpc_b64 s[64:65]", "L_pc:", "s_sub_u32 s64, s64, (L_pc - " + NAME + "_kernel)", "s_subb_u32 s65, s65, 0",
          "v_lshlrev_b32 v8, 7, v0", "s_mov_b32 s66, (L_end - " + NAME + "_kernel)")
        for k in range(opt.get("codepf_n", 3)):
            g("v_min_u32 v9, s66, v8", f"global_load_dword v{12+k}, v9, s[64:65]", "v_add_u32 v8, 0x2000, v8")
        g(f"{Lnp}:")
    tag_ready()

    g(f"{LB1}:", "s_waitcnt lgkmcnt(0)")
    stamp(g, 4)
    if 'b12' not in SKIP:
        g("s_barrier")
        g("s_barrier")
    LnoML = g.lab("noml")
    g(f"s_cmp_lg_u32 {sA}, 2", f"s_cbranch_scc1 {LnoML}")
    g("v_mov_b32 v8, 0", f"ds_read_b128 v[12:15], v8 offset:{L_MLW}", f"ds_read_b128 v[16:19], v8 offset:{L_MLW+16}", "s_waitcnt lgkmcnt(0)",
      "v_max3_f32 v20, v12, v14, v16", "v_max_f32 v20, v20, v18")
    for m in (12, 14, 16, 18):
        g(f"v_sub_f32 v{m}, v{m}, v20", f"v_exp_f32 v{m}, v{m}")
    g("s_nop 0", "v_mul_f32 v21, v12, v13", "v_fmac_f32 v21, v14, v15", "v_fmac_f32 v21, v16, v17", "v_fmac_f32 v21, v18, v19",
      f"s_mul_i32 {sT1}, {sTAU}, 0x00400401", f"v_mov_b32 v22, {sT1}", "s_getreg_b32 s64, hwreg(HW_REG_XCC_ID, 0, 4)",
      f"s_add_u32 {sT1}, {sT1}, s64", f"v_mov_b32 v23, {sT1}",
      f"s_lshl_b32 {sT0}, {sH}, 3", f"s_add_u32 {sT0}, {sT0}, {sJ}", f"s_lshl_b32 {sT0}, {sT0}, 7", f"s_add_u32 {sT0}, {sT0}, {WS_ML}",
      "v_lshlrev_b32 v8, 4, v0", "s_waitcnt vmcnt(0)", "s_mov_b64 exec, 0xff",
      f"buffer_store_dwordx4 v[20:23], v8, {srd(SRD_WS)}, {sT0} offen sc1 ;@ml", "s_mov_b64 exec, -1")
    g(f"{LnoML}:")

    LWO, LT3, LPLAIN = g.lab("wo"), g.lab("t3"), g.lab("plain")
    g(f"s_cmp_lg_u32 {sPHI}, 0xff", f"s_cbranch_scc1 {LT3}", f"s_sub_u32 s67, {sR}, 8", "s_cmp_lt_u32 s67, 8", f"s_cbranch_scc1 {LWO}")

    DRY = opt.get("dry", True)
    DEFER = opt.get("defer", True)

    def barrier_nd():
        lab = nodry(g)
        g("s_barrier", f"{lab}:")

    def publish_o():
        Lno = g.lab("noo")
        g(f"s_cmp_lg_u32 {sA}, 0", f"s_cbranch_scc1 {Lno}", "v_lshlrev_b32 v8, 5, v0", "s_mov_b64 exec, 0xffff")
        for w in range(4):
            g(f"ds_read_b128 {v(12+8*w,4)}, v8 offset:{L_RED + w*512}", f"ds_read_b128 {v(16+8*w,4)}, v8 offset:{L_RED + w*512 + 16}")
        g(f"s_lshl_b32 {sT0}, {sH}, 3", f"s_add_u32 {sT0}, {sT0}, {sJ}", f"s_lshl_b32 {sT0}, {sT0}, 8", f"s_add_u32 {sT0}, {sT0}, {WS_OS}",
          f"s_add_u32 {sT1}, {sT0}, {WS_OL - WS_OS}", "v_lshlrev_b32 v9, 4, v0", "s_waitcnt lgkmcnt(0)")
        for e in range(8):
            g(f"v_add_f32 v{12+e}, v{12+e}, v{20+e}", f"v_add_f32 v{28+e}, v{28+e}, v{36+e}")
        for e in range(8):
            g(f"v_add_f32 v{12+e}, v{12+e}, v{28+e}")
        for r in range(4):
            g(f"v_cvt_pk_bf16_f32 v{12+r}, v{12+2*r}, v{13+2*r}")
        lab = nodry(g)
        g(f"buffer_store_dwordx4 v[12:15], v9, {srd(SRD_WS)}, {sT1} offen ;@opub",
          f"buffer_store_dwordx4 v[12:15], v9, {srd(SRD_WS)}, {sT0} offen sc1 ;@opub", f"{lab}:")
        g("s_mov_b64 exec, -1", f"{Lno}:")

    def start_tail(Lreal):
        g(f"s_mov_b32 {sDRY}, {POLL_LIMIT + 1 if DRY else 0}")
        if DRY:
            Lt = g.lab("tail")
            g(f"s_branch {Lt}")
            g(f"{Lreal}:", f"s_mov_b32 {sDRY}, 0", "s_mov_b64 exec, -1", "s_waitcnt vmcnt(0) lgkmcnt(0)")
            return Lt
        return None

    def tail_exit(Lreal, cond=None):
        if DRY:
            g(f"s_cmp_lg_u32 {sDRY}, 0", f"s_cbranch_scc1 {Lreal}")
        end(g)

    g(f"{LPLAIN}:", "s_barrier", "s_barrier")
    end(g)

    g(f"{LWO}:")
    g(f"s_lshl_b32 {sT0}, {sX}, 2", f"s_add_u32 {sT0}, {sT0}, {sA}", f"s_lshl_b32 s64, {sT0}, 17", "s_lshl_b32 s65, s67, 7",
      "s_add_u32 s64, s64, s65")
    make_srd(g, SRD_A, 12, "s64", 4096 * 512 * 2)
    g("v_lshrrev_b32 v205, 3, v0", "v_lshlrev_b32 v205, 10, v205", "v_and_b32 v10, 7, v0", "v_lshlrev_b32 v10, 4, v10", "v_add_u32 v205, v205, v10",
      f"s_lshl_b32 s65, {sA}, 14", f"s_add_u32 s65, s65, {L_KB}")

    def wo_dma():
        for k in range(16):
            g(f"s_mov_b32 {sT2}, {k*8*1024}", f"s_add_u32 {sT3}, s65, {k*1024}")
            dma(g, 205, SRD_A, sT2, sT3, "wo")
    if not DEFER:
        wo_dma()
    g("s_barrier")
    g(f"s_lshl_b32 {sT0}, {sX}, 2", f"s_add_u32 {sT0}, {sT0}, {sA}", f"s_lshl_b32 {sT0}, {sT0}, 10", f"s_add_u32 {sT0}, {sT0}, {WS_ML}",
      f"v_and_b32 v8, 1, v{vG}", "v_lshlrev_b32 v8, 9, v8", "v_and_b32 v9, 3, v0", "v_lshlrev_b32 v9, 7, v9", "v_add_u32 v8, v8, v9",
      f"s_mul_i32 {sT1}, {sTAU}, 0x00400401", f"v_mov_b32 v5, {sT1}")

    def chk_ml():
        g("v_xor_b32 v16, v14, v5", "v_sub_u32 v17, v15, v5", "v_lshrrev_b32 v18, 4, v17", "v_or_b32 v16, v16, v18", "v_cmp_ne_u32 vcc, 0, v16")
    poll(g, "p_ml", lambda: g(f"buffer_load_dwordx4 v[12:15], v8, {srd(SRD_WS)}, {sT0} offen sc1"), chk_ml)
    g("s_getreg_b32 s64, hwreg(HW_REG_XCC_ID, 0, 4)", "v_cmp_ne_u32 vcc, s64, v17", "s_nop 4",
      "s_cmp_eq_u64 vcc, 0", f"s_cselect_b32 s66, {WS_OL - WS_OS}, 0", f"s_add_u32 s66, s66, {WS_OS}")
    if not opt.get("local", True):
        g(f"s_mov_b32 s66, {WS_OS}")
    vF = 240
    g("v_mov_b32 v16, v12", "s_nop 1",
      f"v_max_f32_dpp v16, v16, v16 quad_perm:[1,0,3,2] {DPPF}", "s_nop 1",
      f"v_max_f32_dpp v16, v16, v16 quad_perm:[2,3,0,1] {DPPF}",
      "v_sub_f32 v12, v12, v16", "v_exp_f32 v12, v12", "s_nop 0", "v_mul_f32 v13, v13, v12", "s_nop 1",
      f"v_add_f32_dpp v13, v13, v13 quad_perm:[1,0,3,2] {DPPF}", "s_nop 1",
      f"v_add_f32_dpp v13, v13, v13 quad_perm:[2,3,0,1] {DPPF}",
      "v_rcp_f32 v13, v13", "s_nop 0", "v_mul_f32 v12, v12, v13", "s_nop 1")
    for r in range(4):
        g(f"v_mov_b32_dpp v{vF+r}, v12 quad_perm:[{r},{r},{r},{r}] {DPPF}")
    vBW = 128
    tr_addr(g, 206, 12, vI, vG, 7, "s65")
    g(f"s_lshl_b32 {sT0}, {sX}, 2", f"s_add_u32 {sT0}, {sT0}, {sA}", f"s_lshl_b32 s64, {sT0}, 11", "s_add_u32 s64, s64, s66",
      f"v_and_b32 v6, 7, v{vI}", "v_lshlrev_b32 v6, 8, v6", f"v_lshlrev_b32 v7, 4, v{vG}", "v_add_u32 v6, v6, v7",
      f"s_lshl_b32 {sT0}, {sA}, 9", f"v_lshlrev_b32 v7, 6, v{vG}", f"v_lshlrev_b32 v9, 2, v{vI}", "v_add_u32 v7, v7, v9", f"v_add_u32 v7, {sT0}, v7")
    Lreal = g.lab("wo_real")
    Lt = start_tail(Lreal)
    g("s_barrier")
    if DEFER:
        wo_dma()
    stamp(g, 5)
    if Lt:
        g(f"{Lt}:")
    g("s_waitcnt vmcnt(0)")
    stamp(g, 6)
    for t in range(4):
        for k in range(4):
            tr_read(g, vBW + (t * 4 + k) * 4, 206, k * 4096 + t * 32, 128)
        if t % 2 == 1:
            g("s_waitcnt lgkmcnt(0)")

    def isso(ks):
        for k in ks:
            g(f"buffer_load_dwordx4 {v(16+4*k,4)}, v6, {srd(SRD_WS)}, s64 offen offset:{k*64} sc1")
    poll(g, "p_o", lambda: isso(range(4)), lambda: check_sentinel(g, range(16, 32), 12), dry=True)
    stamp(g, 7)
    for k in range(4):
        for t in range(4):
            mfma(g, 32 + 4 * t, 16 + 4 * k, vBW + (t * 4 + k) * 4, k == 0)
    g("s_nop 4")
    for t in range(4):
        d = 32 + 4 * t
        g(f"v_mul_f32 v{d}, v{d}, v{vF}", f"v_fmac_f32 v{d}, v{d+1}, v{vF+1}", f"v_fmac_f32 v{d}, v{d+2}, v{vF+2}", f"v_fmac_f32 v{d}, v{d+3}, v{vF+3}")
    g("s_mov_b32 exec_hi, 0")
    for t in range(4):
        g(f"ds_write_b32 v7, v{32+4*t} offset:{L_RED2 + t*128}")
    g("s_mov_b64 exec, -1", "s_waitcnt lgkmcnt(0)")
    barrier_nd()
    Lx = g.lab("wo_x")
    g(f"s_cmp_lg_u32 {sA}, 0", f"s_cbranch_scc1 {Lx}", "v_lshlrev_b32 v8, 4, v0", "s_mov_b32 exec_hi, 0")
    for w in range(4):
        g(f"ds_read_b128 {v(12+4*w,4)}, v8 offset:{L_RED2 + w*512}")
    g(f"s_lshl_b32 {sT0}, {sX}, 12", f"s_lshl_b32 {sT1}, s67, 9", f"s_add_u32 {sT0}, {sT0}, {sT1}", f"s_add_u32 {sT0}, {sT0}, {WS_YS}",
      "s_waitcnt lgkmcnt(0)")
    for e in range(4):
        g(f"v_add_f32 v{12+e}, v{12+e}, v{16+e}", f"v_add_f32 v{20+e}, v{20+e}, v{24+e}", f"v_add_f32 v{12+e}, v{12+e}, v{20+e}")
    for e in range(4):
        tagify(12 + e, 12 + e)
    lab = nodry(g)
    g(f"buffer_store_dwordx4 v[12:15], v8, {srd(SRD_WS)}, {sT0} offen sc1 ;@ypub", f"{lab}:")
    stamp(g, 8)
    g(f"{Lx}:")
    tail_exit(Lreal)

    g(f"{LT3}:")
    g(f"s_mul_i32 {sT0}, {sA}, {128*2752}", f"s_lshl_b32 {sT1}, {sPHI}, 6", f"s_add_u32 s64, {sT0}, {sT1}")
    make_srd(g, SRD_A, 16, "s64", 512 * 1376 * 2)
    g(f"s_lshl_b32 {sT0}, {sPHI}, 15", f"s_lshl_b32 {sT1}, {sA}, 8", f"s_add_u32 s64, {sT0}, {sT1}")
    make_srd(g, SRD_B, 18, "s64", 1376 * 512 * 2)
    g("v_lshrrev_b32 v205, 2, v0", f"s_mov_b32 {sT2}, 2752", f"v_mul_lo_u32 v205, v205, {sT2}", "v_and_b32 v10, 3, v0", "v_lshlrev_b32 v10, 4, v10",
      "v_add_u32 v205, v205, v10", f"s_lshl_b32 s65, {sA}, 13", f"s_add_u32 s65, s65, {L_KB}", "s_add_u32 s66, s65, 32768",
      f"v_lshlrev_b32 v206, 10, v{vG}", f"v_lshlrev_b32 v11, 4, v{vI}", "v_add_u32 v206, v206, v11")

    def w12_dma():
        for t in range(8):
            g(f"s_mov_b32 {sT2}, {t*16*2752}", f"s_add_u32 {sT3}, s65, {t*1024}")
            dma(g, 205, SRD_A, sT2, sT3, "w12")
        for t in range(8):
            g(f"s_mov_b32 {sT2}, {t*4*1024}", f"s_add_u32 {sT3}, s66, {t*1024}")
            dma(g, 206, SRD_B, sT2, sT3, "w12")
    if not DEFER:
        w12_dma()
    g("s_barrier")
    vX3, vGA3, vC3, vGB = 224, 228, 232, 236
    g(f"s_and_b32 {sT0}, {sA}, 1", f"s_lshl_b32 {sT0}, {sT0}, 6", f"v_add_u32 v8, {sT0}, v0",
      "v_lshlrev_b32 v9, 4, v8", f"s_lshr_b32 s68, {sA}, 1", "s_lshl_b32 s69, s68, 11", f"s_add_u32 {sT0}, s69, {WS_MODF}",
      f"s_add_u32 {sT1}, {sT0}, 4096", f"s_add_u32 {sT2}, {sT0}, 8192")
    g("v_lshrrev_b32 v5, 2, v0", "v_and_b32 v5, 1, v5", "v_lshlrev_b32 v6, 11, v5", "v_and_b32 v7, 3, v0", "v_lshlrev_b32 v7, 4, v7",
      "v_add_u32 v6, v6, v7", f"s_and_b32 {sT3}, {sPHI}, 31", f"s_lshl_b32 {sT3}, {sT3}, 6", f"v_add_u32 v6, {sT3}, v6",
      f"s_mov_b32 s69, {WS_MODF + 3*4096}")
    poll(g, "p_modf",
         lambda: g(f"buffer_load_dwordx4 v[12:15], v9, {srd(SRD_WS)}, {sT0} offen sc1", f"buffer_load_dwordx4 v[16:19], v9, {srd(SRD_WS)}, {sT1} offen sc1",
                   f"buffer_load_dwordx4 v[20:23], v9, {srd(SRD_WS)}, {sT2} offen sc1", f"buffer_load_dwordx4 {v(vGB,4)}, v6, {srd(SRD_WS)}, s69 offen sc1"),
         lambda: check_intag(g, list(range(12, 24)) + list(range(vGB, vGB + 4)), vTAU, 28))
    g("s_mov_b32 s72, s4", "s_mov_b32 s73, s5", "s_mov_b32 s74, 2048", "s_mov_b32 s75, 0x20000")
    g("v_lshlrev_b32 v10, 3, v8", f"s_lshl_b32 {sT2}, s68, 10", f"buffer_load_dwordx2 v[40:41], v10, s[72:75], {sT2} offen")
    for e in range(4):
        g(f"v_and_b32 v{vGA3+e}, v{vMSK}, v{12+e}", f"v_and_b32 v{16+e}, v{vMSK}, v{16+e}", f"v_and_b32 v{20+e}, v{vMSK}, v{20+e}",
          f"v_and_b32 v{vGB+e}, v{vMSK}, v{vGB+e}", f"v_add_f32 v{20+e}, 1.0, v{20+e}")
    g("v_cvt_pk_bf16_f32 v42, v20, v21", "v_cvt_pk_bf16_f32 v43, v22, v23",
      "v_cvt_pk_bf16_f32 v44, v16, v17", "v_cvt_pk_bf16_f32 v45, v18, v19",
      f"v_lshlrev_b32 v{vC3}, 16, v42", f"v_and_b32 v{vC3+1}, 0xffff0000, v42", f"v_lshlrev_b32 v{vC3+2}, 16, v43", f"v_and_b32 v{vC3+3}, 0xffff0000, v43",
      f"v_add_u32 v11, {sT2}, v10",
      f"ds_write_b64 v11, v[42:43] offset:{L_ACT3 + 2*1024}", f"ds_write_b64 v11, v[44:45] offset:{L_ACT3 + 4*1024}",
      "s_waitcnt vmcnt(0)",
      f"v_lshlrev_b32 v{vX3}, 16, v40", f"v_and_b32 v{vX3+1}, 0xffff0000, v40", f"v_lshlrev_b32 v{vX3+2}, 16, v41", f"v_and_b32 v{vX3+3}, 0xffff0000, v41")
    vB1, vB2 = 64, 96
    vTR1, vTR2 = 207, 208
    tr_addr(g, vTR1, 12, vI, vG, 6, "s65")
    tr_addr(g, vTR2, 12, vI, vG, 8, "s66")
    vYA, vZA, vXA, vAA, vRA, vUA, vSA, vGW, vGR, vPA = 200, 201, 202, 203, 204, 209, 210, 211, 212, 213
    g(f"v_lshrrev_b32 v{vYA}, 2, v8", f"v_lshlrev_b32 v{vYA}, 7, v{vYA}", f"v_and_b32 v12, 3, v8", "v_lshlrev_b32 v12, 4, v12",
      f"v_add_u32 v{vYA}, v{vYA}, v12", f"s_lshl_b32 {sT0}, s68, 6", f"v_add_u32 v{vYA}, {sT0}, v{vYA}",
      f"v_lshlrev_b32 v{vZA}, 3, v8", f"s_lshl_b32 {sT0}, s68, 10", f"v_add_u32 v{vZA}, {sT0}, v{vZA}",
      f"v_lshlrev_b32 v{vXA}, 4, v8", f"s_lshl_b32 {sT0}, s68, 11", f"v_add_u32 v{vXA}, {sT0}, v{vXA}",
      f"v_cmp_gt_u32 vcc, 6, v{vI}", "s_nop 1", f"v_cndmask_b32 v{vAA}, 0, v{vI}, vcc", f"v_lshlrev_b32 v{vAA}, 10, v{vAA}",
      f"v_lshlrev_b32 v12, 4, v{vG}", f"v_add_u32 v{vAA}, v{vAA}, v12", f"s_lshl_b32 {sT0}, {sA}, 8", f"v_add_u32 v{vAA}, {sT0}, v{vAA}",
      f"s_lshl_b32 {sT0}, {sA}, 10", f"v_lshlrev_b32 v{vRA}, 4, v0", f"v_add_u32 v{vRA}, {sT0}, v{vRA}")
    g("v_lshrrev_b32 v8, 5, v0", "v_and_b32 v9, 31, v0", "v_lshrrev_b32 v10, 4, v9", "v_lshlrev_b32 v10, 9, v10",
      f"v_lshlrev_b32 v11, 4, v{vI}", "v_add_u32 v10, v10, v11", "v_lshlrev_b32 v11, 2, v8", f"v_add_u32 v{vUA}, v10, v11",
      f"v_lshlrev_b32 v{vSA}, 4, v8",
      f"s_lshl_b32 {sT0}, {sA}, 7", f"v_lshlrev_b32 v{vGW}, 1, v0", f"v_add_u32 v{vGW}, {sT0}, v{vGW}",
      f"v_and_b32 v14, 1, v{vI}", "v_lshlrev_b32 v14, 6, v14", f"v_lshlrev_b32 v15, 4, v{vG}", "v_add_u32 v14, v14, v15", f"v_add_u32 v{vGR}, {sT0}, v14",
      f"v_lshlrev_b32 v{vPA}, 6, v{vI}", f"v_lshlrev_b32 v9, 4, v{vG}", f"v_add_u32 v{vPA}, v{vPA}, v9",
      f"s_lshl_b32 s68, {sPHI}, 12", f"s_lshl_b32 {sT1}, {sA}, 10", f"s_add_u32 s68, s68, {sT1}", f"s_add_u32 s68, s68, {WS_PS}")
    Lreal = g.lab("t3_real")
    Lt = start_tail(Lreal)
    g("s_barrier")
    if DEFER:
        w12_dma()
    stamp(g, 5)
    if Lt:
        g(f"{Lt}:")
    g("s_waitcnt vmcnt(0)")
    stamp(g, 6)
    for tau in range(2):
        for k in range(4):
            tr_read(g, vB1 + (tau * 4 + k) * 4, vTR1, k * 2048 + tau * 32, 64)
    g("s_waitcnt lgkmcnt(0)")
    for t in range(8):
        tr_read(g, vB2 + 4 * t, vTR2, t * 32, 256)
    g("s_waitcnt lgkmcnt(0)")

    def issy(Gs):
        for G_ in Gs:
            g(f"s_mov_b32 {sT1}, {WS_YS + G_*4096}", f"buffer_load_dwordx4 {v(16+4*G_,4)}, v{vYA}, {srd(SRD_WS)}, {sT1} offen sc1")
    poll(g, "p_y", lambda: issy(range(8)), lambda: check_intag(g, range(16, 48), vTAU, 12),
         pre=(lambda: issy([7]), lambda: check_intag(g, range(44, 48), vTAU, 12)) if opt.get("prepoll", False) else None, dry=True)
    stamp(g, 7)
    for e in range(4):
        g(f"v_add_f32 v{16+e}, v{16+e}, v{20+e}", f"v_add_f32 v{24+e}, v{24+e}, v{28+e}",
          f"v_add_f32 v{32+e}, v{32+e}, v{36+e}", f"v_add_f32 v{40+e}, v{40+e}, v{44+e}")
    for e in range(4):
        g(f"v_add_f32 v{16+e}, v{16+e}, v{24+e}", f"v_add_f32 v{32+e}, v{32+e}, v{40+e}")
    for e in range(4):
        g(f"v_add_f32 v{16+e}, v{16+e}, v{32+e}")
    for e in range(4):
        g(f"v_fma_f32 v{16+e}, v{16+e}, v{vGA3+e}, v{vX3+e}")
    for e in range(4):
        g(f"v_mul_f32 v{24+e}, v{16+e}, v{vC3+e}")
    g("v_cvt_pk_bf16_f32 v24, v24, v25", "v_cvt_pk_bf16_f32 v25, v26, v27", f"ds_write_b64 v{vZA}, v[24:25] offset:{L_ACT3}",
      f"ds_write_b128 v{vXA}, v[16:19] offset:{L_X1}",
      "v_add_f32 v20, v16, v17", "v_add_f32 v21, v18, v19", "v_add_f32 v48, v20, v21",
      "v_mul_f32 v49, v16, v16", "v_fmac_f32 v49, v17, v17", "v_fmac_f32 v49, v18, v18", "v_fmac_f32 v49, v19, v19",
      "s_waitcnt lgkmcnt(0)")
    barrier_nd()
    if opt.get("fine"): stamp(g, 1)
    for k in range(4):
        g(f"ds_read_b128 {v(16+4*k,4)}, v{vAA} offset:{L_ACT3 + k*64}")
    rowreduce(g, [48, 49], "v_add_f32")
    g("s_waitcnt lgkmcnt(0)")
    for k in range(4):
        for tau in range(2):
            mfma(g, 32 + 4 * tau, 16 + 4 * k, vB1 + (tau * 4 + k) * 4, k == 0)
    swapreduce(g, [48, 49], "v_add_f32", [50, 51], "16")
    swapreduce(g, [48, 49], "v_add_f32", [50, 51], "32")
    g(f"s_lshl_b32 {sT0}, {sA}, 3", f"v_mov_b32 v50, {sT0}", "s_mov_b64 exec, 1", f"ds_write_b64 v50, v[48:49] offset:{L_STAT}",
      "s_mov_b32 exec_lo, -1",
      f"ds_write_b128 v{vRA}, v[32:35] offset:{L_RED3}", f"ds_write_b128 v{vRA}, v[36:39] offset:{L_RED3+512}",
      "s_mov_b64 exec, -1", "s_waitcnt lgkmcnt(0)")
    barrier_nd()
    if opt.get("fine"): stamp(g, 2)
    for w in range(4):
        g(f"ds_read_b32 v{12+w}, v{vUA} offset:{L_RED3 + w*1024}", f"ds_read_b32 v{16+w}, v{vUA} offset:{L_RED3 + w*1024 + 8}",
          f"ds_read_b32 v{20+w}, v{vUA} offset:{L_RED3 + w*1024 + 256}")
    g(f"ds_read_b128 v[24:27], v{vSA} offset:{L_STAT}", "s_waitcnt lgkmcnt(0)")
    for base in (12, 16, 20):
        g(f"v_add_f32 v{base}, v{base}, v{base+1}", f"v_add_f32 v{base+2}, v{base+2}, v{base+3}")
    g("v_add_f32 v24, v24, v26", "v_add_f32 v25, v25, v27")
    for base in (12, 16, 20):
        g(f"v_add_f32 v{base}, v{base}, v{base+2}")
    g(f"v_mul_f32 v24, {hex(f2u(1/512))}, v24", f"v_mul_f32 v25, {hex(f2u(1/512))}, v25",
      "v_fma_f32 v25, -v24, v24, v25", f"v_add_f32 v25, {hex(f2u(1e-5))}, v25", "v_rsq_f32 v25, v25",
      "v_fma_f32 v12, -v24, v16, v12", "v_fma_f32 v12, v12, v25, v20")
    silu(g, [12], [13])
    g("v_cvt_pk_bf16_f32 v12, v12, v12", f"ds_write_b16 v{vGW}, v12 offset:{L_ACTG}",
      "s_waitcnt lgkmcnt(0)", f"ds_read_b128 v[16:19], v{vGR} offset:{L_ACTG}", "s_waitcnt lgkmcnt(0)")
    if opt.get("fine"): stamp(g, 3)
    for t in range(8):
        mfma(g, 128 + 4 * t, vB2 + 4 * t, 16, True)
    g("s_nop 1")
    for t in range(8):
        for e in range(4):
            tagify(128 + 4 * t + e, 128 + 4 * t + e)
    lab = nodry(g)
    g(*EX8)
    for t in range(8):
        g(f"buffer_store_dwordx4 {v(128+4*t,4)}, v{vPA}, {srd(SRD_WS)}, s68 offen offset:{t*128} sc1 ;@pspub")
    g("s_mov_b64 exec, -1", f"{lab}:")
    stamp(g, 8)
    Lx = g.lab("t3_x")
    g(f"s_cmp_lg_u32 {sA}, 0", f"s_cbranch_scc1 {Lx}", f"s_cmp_ge_u32 {sPHI}, 32", f"s_cbranch_scc1 {Lx}")
    g("v_lshrrev_b32 v9, 3, v0", "v_lshlrev_b32 v8, 12, v9", "v_and_b32 v10, 7, v0", "v_lshlrev_b32 v10, 4, v10", "v_add_u32 v8, v8, v10",
      "v_cmp_gt_u32 vcc, 3, v9", "s_nop 1", "v_cndmask_b32 v11, v10, v8, vcc", "v_cndmask_b32 v12, 0, 1.0, vcc",
      f"s_lshl_b32 {sT0}, {sPHI}, 7", f"s_add_u32 {sT0}, {sT0}, {WS_PS}",
      f"ds_read_b128 v[44:47], v6 offset:{L_X1}")

    def issp(ks):
        for k in ks:
            vv = 11 if k == 5 else 8
            g(f"s_add_u32 {sT1}, {sT0}, {k*8*4096}", f"buffer_load_dwordx4 {v(16+4*k,4)}, v{vv}, {srd(SRD_WS)}, {sT1} offen sc1")
    poll(g, "p_ps", lambda: issp(range(6)), lambda: check_intag(g, range(16, 40), vTAU, 13), dry=True)
    stamp(g, 9)
    for e in range(4):
        g(f"v_add_f32 v{16+e}, v{16+e}, v{20+e}", f"v_add_f32 v{24+e}, v{24+e}, v{28+e}", f"v_fma_f32 v{32+e}, v{36+e}, v12, v{32+e}")
    for e in range(4):
        g(f"v_add_f32 v{16+e}, v{16+e}, v{24+e}")
    for e in range(4):
        g(f"v_add_f32 v{16+e}, v{16+e}, v{32+e}")
    g("s_nop 0")
    for e in range(4):
        g(f"v_add_f32_dpp v{16+e}, v{16+e}, v{16+e} row_ror:8 {DPPF}")
    swapreduce(g, range(16, 20), "v_add_f32", range(20, 24), "16")
    swapreduce(g, range(16, 20), "v_add_f32", range(20, 24), "32")
    g("s_mov_b32 s72, s24", "s_mov_b32 s73, s25", "s_mov_b32 s74, 2048", "s_mov_b32 s75, 0x20000", "s_waitcnt lgkmcnt(0)")
    for e in range(4):
        g(f"v_fma_f32 v{16+e}, v{16+e}, v{vGB+e}, v{44+e}")
    g("v_cvt_pk_bf16_f32 v16, v16, v17", "v_cvt_pk_bf16_f32 v17, v18, v19", "v_lshrrev_b32 v8, 1, v6")
    lab = nodry(g)
    g("s_mov_b64 exec, 0xff", "buffer_store_dwordx2 v[16:17], v8, s[72:75], 0 offen")
    stamp(g, 10)
    dbgmax(g, 4)
    g(f"s_cmp_lg_u32 {sPHI}, 0", f"s_cbranch_scc1 {lab}", "s_mov_b64 exec, 1", "s_add_u32 s30, s30, 1", "v_mov_b32 v8, 0", "v_mov_b32 v9, s30",
      f"buffer_store_dword v9, v8, {srd(SRD_WS)}, 0 offen sc1", f"{lab}:")
    g(f"{Lx}:")
    tail_exit(Lreal)


def generate(opt=None):
    global STAMPS, SKIP, POLL_LIMIT, DBGT
    DBGT = (opt or {}).get("dbgt", False)
    opt = dict(opt or {})
    POLL_LIMIT = opt.get("poll_limit", 400000)
    SKIP = set(opt.get("skip", ()))
    STAMPS = opt.get("stamps", False)
    g = G()
    hdr = open("cdna_kernels/" + NAME + ".s.ref").read().split("\n")
    for line in hdr:
        if line.startswith(";") and "@launch" not in line and "Override launch" not in line and "grid=ceil" not in line:
            g(line)
        elif not line.startswith(";"):
            break
    g(f"; @launch grid=(256,1,1) block=(512,1,1) lds={LDS_SIZE}")
    g('.amdgcn_target "amdgcn-amd-amdhsa--gfx950"', ".text", f".globl {NAME}_kernel", ".p2align 8",
      f".type {NAME}_kernel,@function", f"{NAME}_kernel:")
    stamp(g, 0)
    g("s_cmp_ge_u32 s2, 0x100", "s_cbranch_scc1 L_end",
      "s_load_dwordx16 s[4:19], s[0:1], 0", "s_load_dwordx8 s[20:27], s[0:1], 64", "s_load_dwordx2 s[28:29], s[0:1], 96",
      "v_lshrrev_b32 v1, 6, v0", "v_and_b32 v0, 63, v0", "s_nop 0", "v_readfirstlane_b32 s3, v1",
      f"s_and_b32 {sX}, s2, 7", f"s_lshr_b32 {sR}, s2, 3", f"s_and_b32 {sT0}, {sR}, 3", f"s_lshl_b32 {sH}, {sX}, 2",
      f"s_add_u32 {sH}, {sH}, {sT0}", f"s_lshr_b32 {sJ}, {sR}, 2", f"s_lshr_b32 {sB}, {sJ}, 2", f"s_and_b32 {sS}, {sJ}, 3",
      "s_waitcnt lgkmcnt(0)")
    if STAMPS:
        for k in range(1, NSTAMP):
            g(f"s_mov_b32 s{80+2*k}, 0")
    dbgmax(g, 0, True)
    dbgmax(g, 1)
    g("s_cmp_ge_u32 s3, 4", "s_cbranch_scc1 L_aux")
    gen_stream(g, opt)
    g("L_aux:")
    if 'aux' in SKIP:
        g("s_endpgm")
    gen_aux(g, opt)
    g("L_exit:")
    end(g)
    g("L_end:", "s_endpgm")
    g('.section .rodata,"a"', ".p2align 6", f".amdhsa_kernel {NAME}_kernel",
      "  .amdhsa_next_free_vgpr 256", "  .amdhsa_next_free_sgpr 102", "  .amdhsa_accum_offset 256",
      "  .amdhsa_group_segment_fixed_size 0", "  .amdhsa_kernarg_size 104", "  .amdhsa_user_sgpr_count 2",
      "  .amdhsa_user_sgpr_kernarg_segment_ptr 1", "  .amdhsa_system_sgpr_workgroup_id_x 1",
      "  .amdhsa_float_denorm_mode_32 3", ".end_amdhsa_kernel")
    txt = g.text()
    drop = set(opt.get("drop", ()))
    kept = []
    for line in txt.split("\n"):
        if ";@" in line:
            nm = line.split(";@")[1].strip()
            line = line.split(";@")[0].rstrip()
            if nm in drop:
                continue
        kept.append(line)
    return "\n".join(kept)


if __name__ == "__main__":
    out = sys.argv[1] if len(sys.argv) > 1 else "cdna_kernels/" + NAME + ".s"
    opt = eval(sys.argv[2]) if len(sys.argv) > 2 else {}
    open(out, "w").write(generate(opt))
    print("wrote", out)
```

```python
import struct
import sys

NAME = "adaLN_cond__gqa_block_cached__dense_activation_silu__decode"

WS_EPOCH = 0x0
WS_MODP = 0x1000
WS_MODF = 0x19000
WS_ML = 0x20000
WS_QP = 0x30000
WS_OS = 0x70000
WS_OL = 0x88000
WS_YS = 0x80000
WS_PS = 0x98000
WS_STAMP = 0xD0000
WS_SIZE = 0x100000

L_Q = 0x0000
L_MLW = 0x0100
L_CNT = 0x0180
L_RED = 0x0200
L_RED2 = 0x0A00
L_RED3 = 0x1200
L_STAT = 0x2200
L_ACT1 = 0x2300
L_ACT2 = 0x2500
L_ACTG = 0x2600
L_ACT3 = 0x2800
L_X1 = 0x4000
L_WMOD = 0x5000
L_WQ = 0x9000
L_KB = 0xD000
NL = 24
LDS_SIZE = L_KB + 4 * NL * 1024

sX, sR, sH, sJ, sB, sS = "s48", "s49", "s50", "s51", "s52", "s53"
sT0, sT1, sT2, sT3 = "s54", "s55", "s56", "s57"
sA = "s58"
sPHI = "s59"
sM1, sM0 = "s[60:61]", "s[62:63]"
sCNT = "s70"
sTAU = "s31"
SRD_A, SRD_B, SRD_WS = 32, 36, 40
POLL_LIMIT = 400000
TAGMASK = 0x3FF

LOG2E = 1.4426950408889634
CS = (128 ** -0.5) * LOG2E
STAMPS = False
NSTAMP = 11
SKIP = set()


def f2u(x):
    return struct.unpack("<I", struct.pack("<f", x))[0]


class G:
    def __init__(self):
        self.L = []
        self.n = 0

    def __call__(self, *txt):
        for t in txt:
            self.L.extend(t.split("\n"))

    def lab(self, base):
        self.n += 1
        return f"L_{base}_{self.n}"

    def text(self):
        return "\n".join(self.L) + "\n"


def v(a, n=1):
    return f"v{a}" if n == 1 else f"v[{a}:{a+n-1}]"


def srd(n):
    return f"s[{n}:{n+3}]"


def make_srd(g, d, plo, off, total):
    if isinstance(off, int):
        assert off == 0
        g(f"s_mov_b32 s{d}, s{plo}", f"s_mov_b32 s{d+1}, s{plo+1}", f"s_mov_b32 s{d+2}, {total}")
    else:
        g(f"s_add_u32 s{d}, s{plo}, {off}", f"s_addc_u32 s{d+1}, s{plo+1}, 0",
          f"s_sub_u32 s{d+2}, {total}, {off}")
    g(f"s_mov_b32 s{d+3}, 0x20000")


DPPF = "row_mask:0xf bank_mask:0xf"


def rowreduce(g, regs, op):
    for ctl in ("row_ror:8", "row_ror:4", "row_ror:2", "row_ror:1"):
        g("s_nop 1" if len(regs) < 3 else "s_nop 0")
        for r in regs:
            g(f"{op}_dpp v{r}, v{r}, v{r} {ctl} {DPPF}")


def swapreduce(g, regs, op, tmps, which):
    sw = f"v_permlane{which}_swap_b32"
    g("s_nop 0")
    for r, t in zip(regs, tmps):
        g(f"v_mov_b32 v{t}, v{r}")
    g("s_nop 1")
    for r, t in zip(regs, tmps):
        g(f"{sw} v{r}, v{t}")
    g("s_nop 1")
    for r, t in zip(regs, tmps):
        g(f"{op} v{r}, v{r}, v{t}")


def allreduce(g, regs, op, tmps):
    rowreduce(g, regs, op)
    swapreduce(g, regs, op, tmps, "16")
    swapreduce(g, regs, op, tmps, "32")


sDRY = "s71"


def nodry(g):
    lab = g.lab("nd")
    g(f"s_cmp_lg_u32 {sDRY}, 0", f"s_cbranch_scc1 {lab}")
    return lab


def poll(g, name, issue, check, pre=None, dry=False):
    g(f"s_mov_b32 {sCNT}, {sDRY if dry else 0}")
    stages = ([pre] if pre else []) + [(issue, check)]
    dn = g.lab(name + "_done")
    for iss, chk in stages:
        lp = g.lab(name)
        g(f"{lp}:")
        i0 = len(g.L)
        iss()
        for i in range(i0, len(g.L)):
            if g.L[i].startswith("buffer_load"):
                g.L[i] += f" ;@ld_{name}"
        g("s_waitcnt vmcnt(0)")
        chk()
        g(f"s_add_u32 {sCNT}, {sCNT}, 1", f"s_cmp_gt_u32 {sCNT}, {POLL_LIMIT}",
          f"s_cbranch_scc1 {dn}", f"s_cbranch_vccnz {lp}")
    g(f"{dn}:")


def check_intag(g, regs, vtau, tmp):
    regs = list(regs)
    g(f"v_xor_b32 v{tmp}, v{regs[0]}, v{vtau}")
    rest = regs[1:]
    while len(rest) >= 2:
        g(f"v_xor_b32 v{tmp+1}, v{rest[0]}, v{vtau}", f"v_xor_b32 v{tmp+2}, v{rest[1]}, v{vtau}",
          f"v_or3_b32 v{tmp}, v{tmp}, v{tmp+1}, v{tmp+2}")
        rest = rest[2:]
    if rest:
        g(f"v_xor_b32 v{tmp+1}, v{rest[0]}, v{vtau}", f"v_or_b32 v{tmp}, v{tmp}, v{tmp+1}")
    g(f"v_and_b32 v{tmp}, {TAGMASK}, v{tmp}", f"v_cmp_ne_u32 vcc, 0, v{tmp}")


def check_sentinel(g, regs, tmp):
    regs = list(regs)
    g(f"v_max_u32 v{tmp}, v{regs[0]}, v{regs[1]}")
    rest = regs[2:]
    while len(rest) >= 2:
        g(f"v_max3_u32 v{tmp}, v{tmp}, v{rest[0]}, v{rest[1]}")
        rest = rest[2:]
    if rest:
        g(f"v_max_u32 v{tmp}, v{tmp}, v{rest[0]}")
    g(f"v_cmp_eq_u32 vcc, -1, v{tmp}")


def silu(g, xs, ts):
    for x, t in zip(xs, ts):
        g(f"v_mul_f32 v{t}, {hex(f2u(-LOG2E))}, v{x}")
    for t in ts:
        g(f"v_exp_f32 v{t}, v{t}")
    g("s_nop 0")
    for t in ts:
        g(f"v_add_f32 v{t}, 1.0, v{t}")
    for t in ts:
        g(f"v_rcp_f32 v{t}, v{t}")
    g("s_nop 0")
    for x, t in zip(xs, ts):
        g(f"v_mul_f32 v{x}, v{x}, v{t}")


def dma(g, voff, srdn, soff, lds_addr, what="", imm=0):
    if what in SKIP:
        return
    g(f"s_mov_b32 m0, {lds_addr}", "s_nop 0")
    g(f"buffer_load_dwordx4 v{voff}, {srd(srdn)}, {soff} offen nt lds")


def lds_signal(g, off, vtmp):
    g("s_mov_b64 exec, 1", f"v_mov_b32 v{vtmp}, 0", f"v_mov_b32 v{vtmp+1}, 1", f"ds_add_u32 v{vtmp}, v{vtmp+1} offset:{off}", "s_mov_b64 exec, -1")


def lds_wait(g, off, target, vtmp):
    lp, dn = g.lab("lw"), g.lab("lwd")
    g(f"s_mov_b32 {sCNT}, 0", f"v_mov_b32 v{vtmp}, 0", f"{lp}:", f"ds_read_b32 v{vtmp+1}, v{vtmp} offset:{off}", "s_waitcnt lgkmcnt(0)",
      f"v_readfirstlane_b32 s73, v{vtmp+1}", f"s_add_u32 {sCNT}, {sCNT}, 1", f"s_cmp_gt_u32 {sCNT}, {POLL_LIMIT * 4 + 4}", f"s_cbranch_scc1 {dn}",
      f"s_cmp_lt_u32 s73, {target}", f"s_cbranch_scc1 {lp}", f"{dn}:")


def stamp(g, k):
    if STAMPS:
        g(f"s_memrealtime s[{80+2*k}:{81+2*k}]")


DBGT = False


def dbgmax(g, slot, invert=False):
    if not DBGT:
        return
    lab = g.lab("dbg")
    if slot < 4:
        g("s_and_b32 s74, s2, 15", "s_or_b32 s74, s74, s3", "s_cmp_lg_u32 s74, 0", f"s_cbranch_scc1 {lab}")
    g("s_memrealtime s[74:75]", "s_waitcnt lgkmcnt(0)")
    if invert:
        g("s_not_b32 s74, s74")
    g("s_mov_b64 s[76:77], exec", "s_mov_b64 exec, 1", "v_mov_b32 v252, s74", f"v_mov_b32 v253, {slot*4 + 32}",
      "global_atomic_umax v253, v252, s[26:27]", "s_mov_b64 exec, s[76:77]", f"{lab}:")


def end(g):
    if STAMPS:
        g("s_mov_b64 exec, -1", "s_waitcnt lgkmcnt(0)")
        for k in range(NSTAMP):
            g(f"v_writelane_b32 v250, s{80+2*k}, {k}")
        g("s_lshl_b32 s72, s2, 3", "s_add_u32 s72, s72, s3", "s_lshl_b32 s72, s72, 6", f"s_add_u32 s72, s72, {WS_STAMP}",
          "s_mov_b32 s76, s28", "s_mov_b32 s77, s29", f"s_mov_b32 s78, {WS_SIZE}", "s_mov_b32 s79, 0x20000",
          "v_lshlrev_b32 v251, 2, v0", f"s_mov_b64 exec, {hex((1 << NSTAMP) - 1)}",
          "buffer_store_dword v250, v251, s[76:79], s72 offen")
    g("s_endpgm")


def tr_addr(g, dst, tmp, vI, vG, rowshift, base=None):
    g(f"v_lshlrev_b32 v{dst}, 3, v{vG}", f"v_lshrrev_b32 v{tmp}, 2, v{vI}", f"v_add_u32 v{dst}, v{dst}, v{tmp}",
      f"v_lshlrev_b32 v{dst}, {rowshift}, v{dst}", f"v_and_b32 v{tmp}, 3, v{vI}", f"v_lshlrev_b32 v{tmp}, 3, v{tmp}",
      f"v_add_u32 v{dst}, v{dst}, v{tmp}")
    if base is not None:
        g(f"v_add_u32 v{dst}, {base}, v{dst}")


def tr_read(g, reg, vaddr, off, rowbytes):
    g(f"ds_read_b64_tr_b16 {v(reg,2)}, v{vaddr} offset:{off}", f"ds_read_b64_tr_b16 {v(reg+2,2)}, v{vaddr} offset:{off + 4*rowbytes}")


def mfma(g, d, a, b, first):
    g(f"v_mfma_f32_16x16x32_bf16 {v(d,4)}, {v(a,4)}, {v(b,4)}, {'0' if first else v(d,4)}")


def gen_entry(g, opt):
    URG = opt.get("urgent_r", 8)
    g("s_cmp_ge_u32 s2, 0x100", "s_cbranch_scc1 L_end",
      "s_load_dwordx16 s[4:19], s[0:1], 0", "s_load_dwordx8 s[20:27], s[0:1], 64", "s_load_dwordx2 s[28:29], s[0:1], 96",
      "v_lshrrev_b32 v1, 6, v0", "v_and_b32 v0, 63, v0", f"s_and_b32 {sX}, s2, 7", "v_readfirstlane_b32 s3, v1",
      f"s_lshr_b32 {sR}, s2, 3", f"s_and_b32 {sT0}, {sR}, 3", f"s_lshl_b32 {sH}, {sX}, 2",
      f"s_add_u32 {sH}, {sH}, {sT0}", f"s_lshr_b32 {sJ}, {sR}, 2", f"s_lshr_b32 {sB}, {sJ}, 2", f"s_and_b32 {sS}, {sJ}, 3")
    g(f"s_lshl_b32 s65, {sB}, 5", f"s_add_u32 s65, s65, {sH}", "s_lshl_b32 s65, s65, 20", f"s_lshl_b32 {sT1}, {sS}, 18", f"s_add_u32 s65, s65, {sT1}",
      f"s_lshl_b32 {sT1}, s3, 12", "v_lshlrev_b32 v1, 4, v0", f"s_mul_i32 s64, s3, {NL*1024}", f"s_add_u32 s64, s64, {L_KB}",
      "v_add_u32 v46, s64, v1", f"v_add_u32 v1, {sT1}, v1")
    g(f"s_lshr_b32 s68, {sR}, 2", f"s_and_b32 s69, {sR}, 3", "s_lshl_b32 s69, s69, 2", "s_add_u32 s69, s69, s3",
      f"s_mul_i32 s69, s69, {32*6144}", "s_lshl_b32 s68, s68, 10", "s_add_u32 s69, s69, s68", f"s_lshl_b32 s68, {sX}, 7", "s_add_u32 s69, s69, s68",
      f"s_cmp_ge_u32 {sR}, 24", "s_cselect_b32 s69, 0, s69",
      "v_lshrrev_b32 v3, 3, v0", "v_mul_u32_u24 v3, 0x1800, v3", "v_and_b32 v4, 7, v0", "v_lshlrev_b32 v4, 4, v4", "v_add_u32 v3, v3, v4",
      "s_lshl_b32 s71, s3, 12", f"s_add_u32 s71, s71, {L_WMOD}")
    g("s_waitcnt lgkmcnt(0)")


def gen_stream(g, opt):
    W = opt.get("W", 6)
    NS = 48
    vOFF, vQ, vM, vD = 1, 2, 6, 10
    vB = [14, 18]
    vS, vT, vX, vSL, vLDS = 22, 26, 42, 48, 46
    NREG_K = 64 - NL
    URG = opt.get("urgent_r", 8)
    I_WQ, I_LATE = opt.get("i_wq", W), opt.get("i_late", 3 * W)

    order = [("K", n) for n in range(NREG_K, 64)] + [("K", n) for n in range(NREG_K)] + [("V", n) for n in range(64)]

    def slot_of(kind, n):
        return vSL + 4 * ((n if kind == "K" else NREG_K + n) % NS)

    def wmod_dma():
        for k in range(4):
            g(f"s_mov_b32 s68, {k * 8 * 6144}", f"s_add_u32 m0, s71, {k*1024}", "s_nop 0")
            if 'p1' not in SKIP:
                g("buffer_load_dwordx4 v3, s[76:79], s68 offen nt lds")

    def wq_dma():
        for k in range(4):
            g(f"s_mov_b32 s68, {k * 4 * 8192}", f"s_add_u32 m0, s67, {k*1024}", "s_nop 0")
            if 'wq' not in SKIP:
                g("buffer_load_dwordx4 v2, s[72:75], s68 offen nt lds")

    g(f"s_add_u32 s{SRD_A}, s6, s65", f"s_addc_u32 s{SRD_A+1}, s7, 0", f"s_mov_b32 s{SRD_A+2}, 0x40000", f"s_mov_b32 s{SRD_A+3}, 0x20000")
    make_srd(g, 76, 22, "s69", 512 * 3072 * 2)
    Lnp = g.lab("nourg")
    g(f"s_cmp_ge_u32 {sR}, {URG}", f"s_cbranch_scc1 {Lnp}")
    wmod_dma()
    g(f"{Lnp}:")

    state = {"K": None, "V": None, "i": 0}
    if STAMPS:
        g("s_memtime s[98:99]")

    def issue_next():
        i = state["i"]
        kind, n = order[i]
        rho, t = n >> 2, n & 3
        sreg, sr = (sT2, SRD_A) if kind == "K" else (sT3, SRD_B)
        if i >= W:
            g(f"s_waitcnt vmcnt({W-1})")
        if kind == "K" and n >= NREG_K:
            g(f"s_mov_b32 {sreg}, {rho * 16384 + t * 1024}", f"s_add_u32 m0, s64, {(n - NREG_K) * 1024}")
            state[kind] = None
            g("s_nop 0", f"buffer_load_dwordx4 v{vOFF}, {srd(sr)}, {sreg} offen nt lds")
        else:
            if state[kind] != rho:
                g(f"s_mov_b32 {sreg}, {rho * 16384}")
                state[kind] = rho
            g(f"buffer_load_dwordx4 {v(slot_of(kind, n), 4)}, v{vOFF}, {srd(sr)}, {sreg} offen offset:{t*1024} nt")
        state["i"] = i + 1

    def issued_after(kind, n):
        return state["i"] - 1 - order.index((kind, n))

    NBACK = NL + NS
    for i in range(NBACK):
        issue_next()
        if i == W - 1:
            g(f"s_add_u32 s{SRD_B}, s8, s65", f"s_addc_u32 s{SRD_B+1}, s9, 0", f"s_mov_b32 s{SRD_B+2}, 0x40000", f"s_mov_b32 s{SRD_B+3}, 0x20000")
            g(f"s_lshl_b32 s66, {sJ}, 19", f"s_lshl_b32 s67, {sH}, 8", "s_add_u32 s66, s66, s67", "s_lshl_b32 s67, s3, 17", "s_add_u32 s66, s66, s67")
            make_srd(g, 72, 10, "s66", 512 * 4096 * 2)
            g("v_lshrrev_b32 v2, 4, v0", "v_lshlrev_b32 v2, 13, v2", "v_and_b32 v4, 15, v0", "v_lshlrev_b32 v4, 4, v4", "v_add_u32 v2, v2, v4",
              "s_lshl_b32 s67, s3, 12", f"s_add_u32 s67, s67, {L_WQ}")
            g("s_barrier")
        if i == W:
            lab = g.lab("sigm")
            g(f"s_cmp_ge_u32 {sR}, {URG}", f"s_cbranch_scc1 {lab}")
            lds_signal(g, L_CNT + 4, 4)
            g(f"{lab}:")
        if i == I_WQ:
            wq_dma()
        if i == I_WQ + W:
            lds_signal(g, L_CNT + 8, 4)
        if i == I_LATE:
            lab = g.lab("late")
            g(f"s_cmp_lt_u32 {sR}, {URG}", f"s_cbranch_scc1 {lab}", f"s_cmp_ge_u32 {sR}, 24", f"s_cbranch_scc1 {lab}")
            wmod_dma()
            g(f"{lab}:")
        if i == I_LATE + W:
            lab = g.lab("sigl")
            g(f"s_cmp_lt_u32 {sR}, {URG}", f"s_cbranch_scc1 {lab}")
            lds_signal(g, L_CNT + 4, 4)
            g(f"{lab}:")
    g(f"v_and_b32 v{vX}, 15, v0", f"v_lshrrev_b32 v{vX+1}, 1, v{vX}", f"v_and_b32 v{vX+2}, 1, v{vX}",
      f"v_mov_b32 v{vX+3}, 0xffff", f"v_mov_b32 v{vT}, 0xffff0000",
      f"v_cmp_eq_u32 vcc, 1, v{vX+2}", "s_nop 1", f"v_cndmask_b32 v{vX+3}, v{vX+3}, v{vT}, vcc")
    for r in range(4):
        g(f"v_cmp_eq_u32 vcc, {r}, v{vX+1}", "s_nop 1", f"v_cndmask_b32 v{vM+r}, 0, v{vX+3}, vcc")
    g("s_mov_b32 s60, 0xcccccccc", "s_mov_b32 s61, 0xcccccccc", "s_mov_b32 s62, 0xaaaaaaaa", "s_mov_b32 s63, 0xaaaaaaaa")
    for r in range(4):
        g(f"v_mov_b32 v{vD+r}, 0")
    g(f"v_lshlrev_b32 v{vX}, 4, v{vX}")
    stamp(g, 1)
    g("s_barrier")
    stamp(g, 2)
    dbgmax(g, 2)
    g(f"ds_read_b128 {v(vQ,4)}, v{vX} offset:{L_Q}", "s_waitcnt lgkmcnt(0)")

    def kreg(n):
        if n < NREG_K:
            return slot_of("K", n)
        return vSL + 4 * (16 + (n & 15))

    def dots(ns):
        for r in range(4):
            for n in ns:
                t = vT + (n & 15)
                c = "0" if r == 0 else f"v{t}"
                g(f"v_dot2_f32_bf16 v{t}, v{kreg(n)+r}, v{vQ+r}, {c}")

    def tree(gam):
        g("s_nop 2")
        for n in range(8):
            g(f"v_add_f32_dpp v{vT+n}, v{vT+n}, v{vT+n} row_ror:8 row_mask:0xf bank_mask:0x3")
            g(f"v_add_f32_dpp v{vT+n}, v{vT+n+8}, v{vT+n+8} row_ror:8 row_mask:0xf bank_mask:0xc")
        for n in range(4):
            g(f"v_add_f32_dpp v{vT+n}, v{vT+n}, v{vT+n} row_shl:4 row_mask:0xf bank_mask:0x5")
            g(f"v_add_f32_dpp v{vT+n}, v{vT+n+4}, v{vT+n+4} row_shr:4 row_mask:0xf bank_mask:0xa")
        g("s_nop 0")
        for n in range(4):
            g(f"v_add_f32_dpp v{vT+n}, v{vT+n}, v{vT+n} quad_perm:[2,3,0,1] {DPPF}")
        g(f"v_cndmask_b32 v{vT}, v{vT}, v{vT+2}, {sM1}", f"v_cndmask_b32 v{vT+1}, v{vT+1}, v{vT+3}, {sM1}", "s_nop 1")
        for n in range(2):
            g(f"v_add_f32_dpp v{vT+n}, v{vT+n}, v{vT+n} quad_perm:[1,0,3,2] {DPPF}")
        g(f"v_cndmask_b32 v{vS+gam}, v{vT}, v{vT+1}, {sM0}")

    freed = 0

    def can_issue():
        i = state["i"]
        if i >= len(order):
            return False
        kind, n = order[i]
        return n < NS - NREG_K or (NREG_K + n) % NS < freed

    every = opt.get("burst_every", 2)
    qi = 0
    for gam in range(4):
        ns_all = list(range(16 * gam, 16 * gam + 16))
        for n in ns_all:
            if n >= NREG_K:
                g(f"ds_read_b128 {v(kreg(n),4)}, v{vLDS} offset:{(n - NREG_K) * 1024}")
        for q4 in range(4):
            ns = ns_all[4 * q4: 4 * q4 + 4]
            regn = [n for n in ns if n < NREG_K]
            if regn:
                g(f"s_waitcnt vmcnt({min(63, issued_after('K', regn[-1]))})")
            if any(n >= NREG_K for n in ns):
                g("s_waitcnt lgkmcnt(0)")
            if 'qk' not in SKIP:
                dots(ns)
            if regn:
                freed = min(regn[-1] + 1, 16)
            qi += 1
            if qi % every == 0 and can_issue():
                issue_next()
        if 'qk' not in SKIP:
            tree(gam)
    freed = NS
    stamp(g, 3)
    for _ in range(opt.get("sm_issue0", 0)):
        issue_next()
    g(f"v_max3_f32 v{vX}, v{vS}, v{vS+1}, v{vS+2}", f"v_max_f32 v{vX}, v{vX}, v{vS+3}")
    allreduce(g, [vX], "v_max_f32", [vX + 1])
    g(f"v_mul_f32 v{vX}, {hex(f2u(CS))}, v{vX}", f"s_mov_b32 {sT0}, {hex(f2u(CS))}")
    issue_next()
    for r in range(4):
        g(f"v_fma_f32 v{vS+r}, v{vS+r}, {sT0}, -v{vX}")
    for r in range(4):
        g(f"v_exp_f32 v{vS+r}, v{vS+r}")
    g("s_nop 0")
    g(f"v_add_f32 v{vX+1}, v{vS}, v{vS+1}", f"v_add_f32 v{vX+2}, v{vS+2}, v{vS+3}", f"v_add_f32 v{vX+1}, v{vX+1}, v{vX+2}")
    allreduce(g, [vX + 1], "v_add_f32", [vX + 2])
    g(f"s_lshl_b32 {sT0}, s3, 3", f"v_mov_b32 v{vX+2}, {sT0}", "s_mov_b64 exec, 1",
      f"ds_write_b64 v{vX+2}, {v(vX,2)} offset:{L_MLW}", "s_mov_b64 exec, -1", "s_waitcnt lgkmcnt(0)")
    issue_next()
    g("s_barrier")
    stamp(g, 4)
    g(f"v_mov_b32 v{vX+1}, 0", f"ds_read_b128 {v(vT,4)}, v{vX+1} offset:{L_MLW}",
      f"ds_read_b128 {v(vT+4,4)}, v{vX+1} offset:{L_MLW+16}", "s_waitcnt lgkmcnt(0)",
      f"v_max3_f32 v{vX+1}, v{vT}, v{vT+2}, v{vT+4}", f"v_max_f32 v{vX+1}, v{vX+1}, v{vT+6}",
      f"v_sub_f32 v{vX}, v{vX}, v{vX+1}", f"v_exp_f32 v{vX}, v{vX}", "s_nop 0")
    for r in range(4):
        g(f"v_mul_f32 v{vS+r}, v{vS+r}, v{vX}")
    for r in range(4):
        g(f"v_cvt_pk_bf16_f32 v{vS+r}, v{vS+r}, v{vS+r}")
    vRA, vOA, vOB = vT + 8, vT + 9, vT + 10
    g(f"v_lshrrev_b32 v{vRA}, 4, v0", f"v_lshlrev_b32 v{vRA}, 7, v{vRA}", f"v_and_b32 v{vX+1}, 15, v0",
      f"v_lshlrev_b32 v{vX+1}, 2, v{vX+1}", f"v_add_u32 v{vRA}, v{vRA}, v{vX+1}", f"s_lshl_b32 s66, s3, 9", f"v_add_u32 v{vRA}, s66, v{vRA}",
      f"v_lshlrev_b32 v{vOA}, 5, v0", f"v_lshlrev_b32 v{vOB}, 4, v0",
      f"s_lshl_b32 s66, {sH}, 3", f"s_add_u32 s66, s66, {sJ}", "s_lshl_b32 s66, s66, 8", f"s_add_u32 s66, s66, {WS_OS}",
      f"s_add_u32 s67, s66, {WS_OL - WS_OS}")
    make_srd(g, SRD_WS, 28, 0, WS_SIZE)

    def pv(n):
        if 'pv' in SKIP:
            return
        B = vB[n & 1]
        for r in range(4):
            g(f"v_and_b32_dpp v{B+r}, v{vS+(n>>4)}, v{vM+r} row_newbcast:{n&15} {DPPF}")
        g("s_nop 1")
        mfma(g, vD, slot_of("V", n), B, False)

    nb2b = opt.get("b2b_at", 24)
    nb3 = opt.get("b3_at", 64 - W)
    for n in range(64):
        pos = order.index(("V", n))
        while state["i"] < len(order) and state["i"] <= pos + W - 1:
            issue_next()
        if n == nb2b:
            stamp(g, 8)
            g("s_barrier")
        if n == nb3:
            stamp(g, 5)
            g("s_barrier")
        g(f"s_waitcnt vmcnt({min(63, issued_after('V', n))})")
        pv(n)
        cu = opt.get("catchup", 5)
        if n % cu == cu - 1 and state["i"] < len(order) and state["i"] > pos + W:
            issue_next()
    stamp(g, 6)
    dbgmax(g, 3)
    Lno = g.lab("notlast")
    g(f"v_mov_b32 v{vT}, 0", f"v_mov_b32 v{vT+1}, 1", "s_mov_b32 exec_lo, 0x00ff00ff", "s_mov_b32 exec_hi, 0x00ff00ff", "s_nop 4")
    for r in range(4):
        g(f"ds_write_b32 v{vRA}, v{vD+r} offset:{L_RED + r*32}")
    g("s_mov_b64 exec, 1", f"ds_add_rtn_u32 v{vT+1}, v{vT}, v{vT+1} offset:{L_CNT}", "s_waitcnt lgkmcnt(0)",
      f"v_readfirstlane_b32 {sT2}, v{vT+1}", "s_mov_b64 exec, 0xffff", f"s_cmp_lg_u32 {sT2}, 3", f"s_cbranch_scc1 {Lno}")
    R = vSL
    for w in range(4):
        g(f"ds_read_b128 {v(R+8*w,4)}, v{vOA} offset:{L_RED + w*512}", f"ds_read_b128 {v(R+4+8*w,4)}, v{vOA} offset:{L_RED + w*512 + 16}")
    g("s_waitcnt lgkmcnt(4)")
    for e in range(8):
        g(f"v_add_f32 v{R+e}, v{R+e}, v{R+8+e}")
    g("s_waitcnt lgkmcnt(0)")
    for e in range(8):
        g(f"v_add_f32 v{R+16+e}, v{R+16+e}, v{R+24+e}")
    for e in range(8):
        g(f"v_add_f32 v{R+e}, v{R+e}, v{R+16+e}")
    for r in range(4):
        g(f"v_cvt_pk_bf16_f32 v{R+r}, v{R+2*r}, v{R+2*r+1}")
    g(f"buffer_store_dwordx4 {v(R,4)}, v{vOB}, {srd(SRD_WS)}, s67 offen ;@opub",
      f"buffer_store_dwordx4 {v(R,4)}, v{vOB}, {srd(SRD_WS)}, s66 offen sc1 ;@opub")
    stamp(g, 7)
    g(f"{Lno}:")
    if STAMPS:
        g("s_memtime s[100:101]")
    end(g)


def gen_aux(g, opt):
    vTAU, vI, vG, vMSK = 1, 2, 3, 4
    EX8 = ("s_mov_b32 exec_lo, 0x00030003", "s_mov_b32 exec_hi, 0x00030003")
    SPROT = opt.get("sprot", True)

    def tagify(dst, src):
        g(f"v_and_or_b32 v{dst}, v{src}, v{vMSK}, v{vTAU}")

    g(f"s_load_dword s30, s[28:29], {WS_EPOCH}")
    g(f"s_sub_u32 {sA}, s3, 4")
    lab = g.lab("zc")
    g(f"s_cmp_lg_u32 {sA}, 2", f"s_cbranch_scc1 {lab}", "v_mov_b32 v8, 0", "v_mov_b32 v9, 0", "v_mov_b32 v10, 0", "v_mov_b32 v11, 0",
      "s_nop 0")
    g("s_mov_b64 exec, 1", f"ds_write_b128 v8, v[8:11] offset:{L_CNT}", f"ds_write_b128 v8, v[8:11] offset:{L_CNT + 16}", "s_mov_b64 exec, -1", "s_waitcnt lgkmcnt(0)", f"{lab}:", "s_barrier")
    make_srd(g, SRD_WS, 28, 0, WS_SIZE)
    g(f"v_and_b32 v{vI}, 15, v0", f"v_lshrrev_b32 v{vG}, 4, v0", f"v_mov_b32 v{vMSK}, {hex(0xffffffff ^ TAGMASK)}")
    g(f"s_mul_i32 {sPHI}, {sX}, 6", f"s_add_u32 {sPHI}, {sPHI}, {sR}", f"s_sub_u32 {sPHI}, {sPHI}, 24",
      f"s_cmp_lt_u32 {sR}, 24", f"s_cselect_b32 {sPHI}, 0xff, {sPHI}",
      f"s_cmp_ge_u32 {sR}, 30", f"s_cselect_b32 {sPHI}, 0xff, {sPHI}",
      f"s_cmp_ge_u32 {sPHI}, 43", f"s_cselect_b32 {sPHI}, 0xff, {sPHI}")

    def tag_ready():
        g("s_waitcnt lgkmcnt(0)", f"s_add_u32 {sTAU}, s30, 1", f"s_and_b32 {sTAU}, {sTAU}, {TAGMASK}", f"v_mov_b32 v{vTAU}, {sTAU}")

    LA1, LA2, LA3, LB1 = g.lab("a1"), g.lab("a2"), g.lab("a3"), g.lab("aux_b1")
    g(f"s_cmp_eq_u32 {sA}, 1", f"s_cbranch_scc1 {LA1}", f"s_cmp_eq_u32 {sA}, 2", f"s_cbranch_scc1 {LA2}",
      f"s_cmp_eq_u32 {sA}, 3", f"s_cbranch_scc1 {LA3}")

    g(f"s_cmp_ge_u32 {sR}, 24", f"s_cbranch_scc1 {LA3}")
    g(f"s_lshr_b32 s64, {sR}, 2", f"s_and_b32 s65, {sR}, 3")
    make_srd(g, SRD_B, 20, 0, 2048)
    g(f"v_and_b32 v5, 1, v{vG}", "v_lshlrev_b32 v8, 10, v5", f"v_lshlrev_b32 v9, 4, v{vI}", "v_add_u32 v8, v8, v9",
      f"s_lshl_b32 {sT1}, s65, 8", f"buffer_load_dwordx4 v[12:15], v8, {srd(SRD_B)}, {sT1} offen")
    g("v_lshlrev_b32 v8, 8, v5", "v_add_u32 v8, v8, v9")
    g(f"v_and_b32 v10, 1, v{vI}", "v_lshlrev_b32 v10, 8, v10", f"v_lshlrev_b32 v11, 4, v{vG}", "v_add_u32 v10, v10, v11")
    tr_addr(g, 11, 16, vI, vG, 7)
    g("s_waitcnt vmcnt(0)")
    for r in range(4):
        g(f"v_lshlrev_b32 v{20+2*r}, 16, v{12+r}", f"v_and_b32 v{21+2*r}, 0xffff0000, v{12+r}")
    silu(g, range(20, 28), range(28, 36))
    for r in range(4):
        g(f"v_cvt_pk_bf16_f32 v{12+r}, v{20+2*r}, v{21+2*r}")
    g(f"ds_write_b128 v8, v[12:15] offset:{L_ACT1}")
    tag_ready()
    for k in range(4):
        g(f"ds_read_b128 {v(40+4*k,4)}, v10 offset:{L_ACT1 + k*64}")
    g("s_waitcnt lgkmcnt(0)")
    lds_wait(g, L_CNT + 4, 4, 12)
    for t in range(4):
        for k in range(4):
            tr_read(g, 64 + (t * 4 + k) * 4, 11, L_WMOD + k * 4096 + t * 32, 128)
        g("s_waitcnt lgkmcnt(0)")
        for k in range(4):
            mfma(g, 16 + 4 * t, 64 + (t * 4 + k) * 4, 40 + 4 * k, k == 0)
    g(f"s_lshl_b32 {sT0}, s64, 3", f"s_add_u32 {sT0}, {sT0}, {sX}", f"s_lshl_b32 s66, {sT0}, 11", f"s_add_u32 s66, s66, {WS_MODP}",
      f"s_lshl_b32 {sT1}, s65, 9", f"s_add_u32 {sT0}, s66, {sT1}",
      f"v_lshlrev_b32 v8, 6, v{vI}", f"v_lshlrev_b32 v9, 4, v{vG}", "v_add_u32 v8, v8, v9", "s_nop 4")
    for r in range(16):
        tagify(16 + r, 16 + r)
    g(*EX8)
    for t in range(4):
        g(f"buffer_store_dwordx4 {v(16+4*t,4)}, v8, {srd(SRD_WS)}, {sT0} offen offset:{t*128} sc1 ;@modp")
    g("s_mov_b64 exec, -1")
    stamp(g, 1)
    g("s_cmp_lg_u32 s65, 0", f"s_cbranch_scc1 {LB1}", "s_cmp_lt_u32 s64, 2", f"s_cbranch_scc1 {LB1}")
    for _ in range(opt.get("fin_sleep", 1)):
        g("s_sleep 64")
    g("v_lshlrev_b32 v8, 4, v0")
    poll(g, "p_fin",
         lambda: g(f"buffer_load_dwordx4 v[16:19], v8, {srd(SRD_WS)}, s66 offen sc1",
                   f"buffer_load_dwordx4 v[20:23], v8, {srd(SRD_WS)}, s66 offen offset:1024 sc1"),
         lambda: check_intag(g, range(16, 24), vTAU, 12))
    for e in range(4):
        g(f"v_add_f32 v{16+e}, v{16+e}, v{20+e}")
    swapreduce(g, range(16, 20), "v_add_f32", range(20, 24), "32")
    g("v_cvt_pk_bf16_f32 v20, v16, v17", "v_cvt_pk_bf16_f32 v21, v18, v19",
      "v_lshlrev_b32 v16, 16, v20", "v_and_b32 v17, 0xffff0000, v20", "v_lshlrev_b32 v18, 16, v21", "v_and_b32 v19, 0xffff0000, v21")
    for e in range(4):
        tagify(16 + e, 16 + e)
    g("v_lshrrev_b32 v8, 3, v0", "v_and_b32 v8, 3, v8", "v_lshlrev_b32 v8, 6, v8", "v_lshrrev_b32 v9, 2, v0", "v_and_b32 v9, 1, v9",
      "v_lshlrev_b32 v9, 11, v9", "v_add_u32 v8, v8, v9", "v_and_b32 v9, 3, v0", "v_lshlrev_b32 v9, 4, v9", "v_add_u32 v8, v8, v9",
      f"s_sub_u32 {sT0}, s64, 2", f"s_lshl_b32 {sT0}, {sT0}, 12", f"s_lshl_b32 {sT1}, {sX}, 8", f"s_add_u32 {sT0}, {sT0}, {sT1}",
      f"s_add_u32 {sT0}, {sT0}, {WS_MODF}", "s_mov_b32 exec_hi, 0",
      f"buffer_store_dwordx4 v[16:19], v8, {srd(SRD_WS)}, {sT0} offen sc1 ;@modf", "s_mov_b64 exec, -1")
    g(f"s_branch {LB1}")

    g(f"{LA1}:")
    make_srd(g, SRD_B, 4, 0, 2048)
    g("v_lshlrev_b32 v8, 4, v0")
    g(f"buffer_load_dwordx4 v[12:15], v8, {srd(SRD_B)}, 0 offen", f"buffer_load_dwordx4 v[16:19], v8, {srd(SRD_B)}, 0 offen offset:1024")
    g("v_lshrrev_b32 v5, 2, v0", "v_and_b32 v5, 1, v5",
      "v_lshrrev_b32 v6, 3, v0", "v_and_b32 v6, 3, v6", "v_lshlrev_b32 v6, 4, v6", "v_and_b32 v7, 3, v0", "v_lshlrev_b32 v7, 2, v7",
      "v_add_u32 v6, v6, v7",
      "v_lshlrev_b32 v7, 10, v5", "v_lshlrev_b32 v9, 1, v6", "v_add_u32 v9, v9, v7",
      f"s_lshl_b32 {sT1}, {sJ}, 7", f"buffer_load_dwordx2 v[20:21], v9, {srd(SRD_B)}, {sT1} offen")
    tr_addr(g, 11, 22, vI, vG, 8)
    g("s_waitcnt vmcnt(0)")
    for b in range(2):
        for r in range(4):
            g(f"v_lshlrev_b32 v{24+8*b+2*r}, 16, v{12+4*b+r}", f"v_and_b32 v{25+8*b+2*r}, 0xffff0000, v{12+4*b+r}")
    for b in range(2):
        base = 24 + 8 * b
        g(f"v_add_f32 v{40+b}, v{base}, v{base+1}")
        for e in range(2, 8):
            g(f"v_add_f32 v{40+b}, v{40+b}, v{base+e}")
    allreduce(g, [40, 41], "v_add_f32", [44, 45])
    g(f"v_mul_f32 v40, {hex(f2u(1/512))}, v40", f"v_mul_f32 v41, {hex(f2u(1/512))}, v41")
    for b in range(2):
        base = 24 + 8 * b
        for e in range(8):
            g(f"v_sub_f32 v{base+e}, v{base+e}, v{40+b}")
        g(f"v_mul_f32 v{42+b}, v{base}, v{base}")
        for e in range(1, 8):
            g(f"v_fmac_f32 v{42+b}, v{base+e}, v{base+e}")
    allreduce(g, [42, 43], "v_add_f32", [44, 45])
    for b in range(2):
        g(f"v_mov_b32 v44, {hex(f2u(1e-5))}", f"v_fmac_f32 v44, {hex(f2u(1/512))}, v{42+b}", f"v_rsq_f32 v{42+b}, v44", "s_nop 0")
    g("v_cmp_eq_u32 vcc, 1, v5", "s_nop 1", "v_cndmask_b32 v40, v40, v41, vcc", "v_cndmask_b32 v42, v42, v43, vcc",
      "v_lshlrev_b32 v24, 16, v20", "v_and_b32 v25, 0xffff0000, v20", "v_lshlrev_b32 v26, 16, v21", "v_and_b32 v27, 0xffff0000, v21")
    for e in range(4):
        g(f"v_sub_f32 v{24+e}, v{24+e}, v40", f"v_mul_f32 v{24+e}, v{24+e}, v42")
    tag_ready()
    lds_wait(g, L_CNT + 8, 4, 12)
    for t in range(8):
        for k in range(2):
            tr_read(g, 64 + (t * 2 + k) * 4, 11, L_WQ + k * 8192 + t * 32, 256)
        if t % 2 == 1:
            g("s_waitcnt lgkmcnt(0)")
    g(f"s_lshl_b32 {sT0}, {sJ}, 11", f"s_add_u32 {sT0}, {sT0}, {WS_MODP}", f"s_add_u32 {sT1}, {sT0}, {8*2048}", "v_lshlrev_b32 v9, 4, v0")
    for _ in range(opt.get("saca_sleep", 0)):
        g("s_sleep 64")
    poll(g, "p_saca",
         lambda: g(f"buffer_load_dwordx4 v[28:31], v9, {srd(SRD_WS)}, {sT0} offen sc1",
                   f"buffer_load_dwordx4 v[32:35], v9, {srd(SRD_WS)}, {sT0} offen offset:1024 sc1",
                   f"buffer_load_dwordx4 v[36:39], v9, {srd(SRD_WS)}, {sT1} offen sc1",
                   f"buffer_load_dwordx4 v[40:43], v9, {srd(SRD_WS)}, {sT1} offen offset:1024 sc1"),
         lambda: check_intag(g, range(28, 44), vTAU, 12))
    stamp(g, 1)
    for e in range(4):
        g(f"v_add_f32 v{28+e}, v{28+e}, v{32+e}", f"v_add_f32 v{36+e}, v{36+e}, v{40+e}")
    swapreduce(g, [28, 29, 30, 31, 36, 37, 38, 39], "v_add_f32", range(44, 52), "32")
    g("v_cvt_pk_bf16_f32 v44, v28, v29", "v_cvt_pk_bf16_f32 v45, v30, v31", "v_cvt_pk_bf16_f32 v46, v36, v37", "v_cvt_pk_bf16_f32 v47, v38, v39")
    for e in range(4):
        src_s, src_c = 44 + e // 2, 46 + e // 2
        if e % 2 == 0:
            g(f"v_lshlrev_b32 v{28+e}, 16, v{src_s}", f"v_lshlrev_b32 v{36+e}, 16, v{src_c}")
        else:
            g(f"v_and_b32 v{28+e}, 0xffff0000, v{src_s}", f"v_and_b32 v{36+e}, 0xffff0000, v{src_c}")
    for e in range(4):
        g(f"v_add_f32 v{36+e}, 1.0, v{36+e}", f"v_fma_f32 v{24+e}, v{24+e}, v{36+e}, v{28+e}")
    g("v_cvt_pk_bf16_f32 v24, v24, v25", "v_cvt_pk_bf16_f32 v25, v26, v27",
      "v_lshlrev_b32 v9, 7, v5", "v_lshlrev_b32 v10, 1, v6", "v_add_u32 v9, v9, v10", f"ds_write_b64 v9, v[24:25] offset:{L_ACT2}",
      f"v_and_b32 v10, 1, v{vI}", "v_lshlrev_b32 v10, 7, v10", f"v_lshlrev_b32 v12, 4, v{vG}", "v_add_u32 v10, v10, v12",
      "s_waitcnt lgkmcnt(0)",
      f"ds_read_b128 v[24:27], v10 offset:{L_ACT2}", f"ds_read_b128 v[28:31], v10 offset:{L_ACT2+64}", "s_waitcnt lgkmcnt(0)")
    for k in range(2):
        for t in range(8):
            mfma(g, 128 + 4 * t, 64 + (t * 2 + k) * 4, 24 + 4 * k, k == 0)
    g(f"s_lshl_b32 {sT0}, {sH}, 13", f"s_lshl_b32 {sT1}, {sJ}, 9", f"s_add_u32 s66, {sT0}, {WS_QP}", f"s_add_u32 {sT0}, s66, {sT1}",
      f"v_and_b32 v8, 1, v{vI}", "v_lshlrev_b32 v8, 12, v8", f"v_lshrrev_b32 v9, 1, v{vI}", "v_and_b32 v9, 1, v9", "v_cmp_eq_u32 vcc, 1, v9",
      "v_lshlrev_b32 v9, 6, v9", "v_add_u32 v8, v8, v9", f"v_lshlrev_b32 v9, 4, v{vG}", "v_add_u32 v8, v8, v9", "s_nop 1")
    for tp in range(4):
        for e in range(4):
            g(f"v_cndmask_b32 v{128+8*tp+e}, v{128+8*tp+e}, v{132+8*tp+e}, vcc")
        for e in range(4):
            tagify(128 + 8 * tp + e, 128 + 8 * tp + e)
    g("s_mov_b32 exec_lo, 0x000f000f", "s_mov_b32 exec_hi, 0x000f000f")
    for tp in range(4):
        g(f"buffer_store_dwordx4 {v(128+8*tp,4)}, v8, {srd(SRD_WS)}, {sT0} offen offset:{tp*128} sc1 ;@qp")
    g("s_mov_b64 exec, -1")
    stamp(g, 2)
    for _ in range(opt.get("q_sleep", 1)):
        g("s_sleep 64")
    g("v_lshlrev_b32 v8, 4, v0", f"s_lshl_b32 {sT1}, {sB}, 12", f"s_add_u32 {sT0}, s66, {sT1}")

    def issq():
        for k in range(4):
            g(f"buffer_load_dwordx4 {v(16+4*k,4)}, v8, {srd(SRD_WS)}, {sT0} offen offset:{k*1024} sc1")
    poll(g, "p_q", issq, lambda: check_intag(g, range(16, 32), vTAU, 12))
    stamp(g, 3)
    for e in range(4):
        g(f"v_add_f32 v{16+e}, v{16+e}, v{20+e}", f"v_add_f32 v{24+e}, v{24+e}, v{28+e}", f"v_add_f32 v{16+e}, v{16+e}, v{24+e}")
    swapreduce(g, range(16, 20), "v_add_f32", range(20, 24), "32")
    g("v_cvt_pk_bf16_f32 v16, v16, v17", "v_cvt_pk_bf16_f32 v17, v18, v19",
      "v_and_b32 v9, 31, v0", "v_lshlrev_b32 v9, 3, v9", f"ds_write_b64 v9, v[16:17] offset:{L_Q}")
    g(f"s_branch {LB1}")

    g(f"{LA2}:")
    g("v_mov_b32 v8, -1", "v_mov_b32 v9, -1", "v_mov_b32 v10, -1", "v_mov_b32 v11, -1", "v_lshlrev_b32 v12, 4, v0",
      f"s_lshl_b32 {sT0}, {sH}, 3", f"s_add_u32 {sT0}, {sT0}, {sJ}", f"s_lshl_b32 {sT0}, {sT0}, 8", f"s_add_u32 {sT0}, {sT0}, {WS_OS}",
      f"s_add_u32 {sT1}, {sT0}, {WS_OL - WS_OS}",
      "s_mov_b64 exec, 0xffff", f"buffer_store_dwordx4 v[8:11], v12, {srd(SRD_WS)}, {sT0} offen sc1 ;@inito",
      f"buffer_store_dwordx4 v[8:11], v12, {srd(SRD_WS)}, {sT1} offen ;@inito", "s_mov_b64 exec, -1")
    tag_ready()
    g(f"s_branch {LB1}")

    g(f"{LA3}:")
    tag_ready()

    g(f"{LB1}:", "s_waitcnt lgkmcnt(0)")
    stamp(g, 4)
    g("s_barrier")
    LnoML = g.lab("noml")
    g(f"s_sub_u32 s67, {sR}, 8")
    if SPROT:
        Lni, Lt3i = g.lab("noinit"), g.lab("t3init")
        g(f"s_cmp_lg_u32 {sA}, 2", f"s_cbranch_scc1 {Lni}", "v_lshlrev_b32 v12, 4, v0",
          f"s_cmp_lg_u32 {sPHI}, 0xff", f"s_cbranch_scc1 {Lt3i}", "s_cmp_ge_u32 s67, 8", f"s_cbranch_scc1 {Lni}",
          f"s_lshl_b32 {sT0}, {sX}, 12", f"s_lshl_b32 {sT1}, s67, 9", f"s_add_u32 {sT0}, {sT0}, {sT1}", f"s_add_u32 {sT0}, {sT0}, {WS_YS}",
          "s_mov_b32 exec_hi, 0", f"buffer_store_dwordx4 v[8:11], v12, {srd(SRD_WS)}, {sT0} offen sc1 ;@inity", "s_mov_b64 exec, -1",
          f"s_branch {Lni}", f"{Lt3i}:", f"s_lshl_b32 {sT0}, {sPHI}, 12", f"s_add_u32 {sT0}, {sT0}, {WS_PS}")
        for k in range(4):
            g(f"buffer_store_dwordx4 v[8:11], v12, {srd(SRD_WS)}, {sT0} offen offset:{k*1024} sc1 ;@initp")
        g(f"{Lni}:")
    g("s_barrier")
    g(f"s_cmp_lg_u32 {sA}, 2", f"s_cbranch_scc1 {LnoML}")
    g("v_mov_b32 v8, 0", f"ds_read_b128 v[12:15], v8 offset:{L_MLW}", f"ds_read_b128 v[16:19], v8 offset:{L_MLW+16}", "s_waitcnt lgkmcnt(0)",
      "v_max3_f32 v20, v12, v14, v16", "v_max_f32 v20, v20, v18")
    for m in (12, 14, 16, 18):
        g(f"v_sub_f32 v{m}, v{m}, v20", f"v_exp_f32 v{m}, v{m}")
    g("s_nop 0", "v_mul_f32 v21, v12, v13", "v_fmac_f32 v21, v14, v15", "v_fmac_f32 v21, v16, v17", "v_fmac_f32 v21, v18, v19",
      f"s_mul_i32 {sT1}, {sTAU}, 0x00400401", f"v_mov_b32 v22, {sT1}", "s_getreg_b32 s64, hwreg(HW_REG_XCC_ID, 0, 4)",
      f"s_add_u32 {sT1}, {sT1}, s64", f"v_mov_b32 v23, {sT1}",
      f"s_lshl_b32 {sT0}, {sH}, 3", f"s_add_u32 {sT0}, {sT0}, {sJ}", f"s_lshl_b32 {sT0}, {sT0}, 7", f"s_add_u32 {sT0}, {sT0}, {WS_ML}",
      "v_lshlrev_b32 v8, 4, v0", "s_waitcnt vmcnt(0)", "s_mov_b64 exec, 0xff",
      f"buffer_store_dwordx4 v[20:23], v8, {srd(SRD_WS)}, {sT0} offen sc1 ;@ml", "s_mov_b64 exec, -1")
    g(f"{LnoML}:")

    LWO, LT3 = g.lab("wo"), g.lab("t3")
    DYN = opt.get("dyn_wo", False)
    g(f"s_cmp_lg_u32 {sPHI}, 0xff", f"s_cbranch_scc1 {LT3}")
    if DYN:
        g("s_barrier", "s_barrier")
        Lw, Lgot = g.lab("wticket"), g.lab("gticket")
        g(f"s_cmp_lg_u32 {sA}, 0", f"s_cbranch_scc1 {Lw}", "s_mov_b64 exec, 1", f"s_lshl_b32 {sT0}, {sX}, 2", f"v_mov_b32 v8, {sT0}", "v_mov_b32 v9, 1",
          "global_atomic_add v9, v8, v9, s[26:27] sc0", "s_waitcnt vmcnt(0)", "v_add_u32 v9, 1, v9", "v_mov_b32 v8, 0",
          f"ds_write_b32 v8, v9 offset:{L_CNT + 16}", "s_mov_b64 exec, -1", f"{Lw}:")
        lds_wait(g, L_CNT + 16, 1, 12)
        g("s_sub_u32 s67, s73, 1", "s_cmp_ge_u32 s67, 8", "s_cbranch_scc1 L_exit")
    else:
        g("s_cmp_lt_u32 s67, 8", f"s_cbranch_scc1 {LWO}")
        g("s_barrier", "s_barrier")
        end(g)

    def chk_ml(t):
        g("v_xor_b32 v16, v14, v5", "v_sub_u32 v17, v15, v5", "v_lshrrev_b32 v18, 4, v17", "v_or_b32 v16, v16, v18", "v_cmp_ne_u32 vcc, 0, v16")

    g(f"{LWO}:")
    DEFER_WO = opt.get("defer_wo", True)
    g(f"s_lshl_b32 {sT0}, {sX}, 2", f"s_add_u32 {sT0}, {sT0}, {sA}", f"s_lshl_b32 s64, {sT0}, 17", "s_lshl_b32 s65, s67, 7",
      "s_add_u32 s64, s64, s65")
    make_srd(g, SRD_A, 12, "s64", 4096 * 512 * 2)
    g("v_lshrrev_b32 v205, 3, v0", "v_lshlrev_b32 v205, 10, v205", "v_and_b32 v10, 7, v0", "v_lshlrev_b32 v10, 4, v10", "v_add_u32 v205, v205, v10",
      f"s_lshl_b32 s65, {sA}, 14", f"s_add_u32 s65, s65, {L_KB}")
    vBW, vF = 128, 240

    def wo_dma():
        for k in range(16):
            g(f"s_mov_b32 {sT2}, {k*8*1024}", f"s_add_u32 {sT3}, s65, {k*1024}")
            dma(g, 205, SRD_A, sT2, sT3, "wo")

    def wo_frags():
        g("s_waitcnt vmcnt(0)")
        for t in range(4):
            for k in range(4):
                tr_read(g, vBW + (t * 4 + k) * 4, 206, k * 4096 + t * 32, 128)
            if t % 2 == 1:
                g("s_waitcnt lgkmcnt(0)")
    if DYN:
        wo_dma()
        stamp(g, 5)
    else:
        if not DEFER_WO:
            wo_dma()
        g("s_barrier")
    g(f"s_lshl_b32 {sT0}, {sX}, 2", f"s_add_u32 {sT0}, {sT0}, {sA}", f"s_lshl_b32 {sT0}, {sT0}, 10", f"s_add_u32 {sT0}, {sT0}, {WS_ML}",
      f"v_and_b32 v8, 1, v{vG}", "v_lshlrev_b32 v8, 9, v8", "v_and_b32 v9, 3, v0", "v_lshlrev_b32 v9, 7, v9", "v_add_u32 v8, v8, v9",
      f"s_mul_i32 {sT1}, {sTAU}, 0x00400401", f"v_mov_b32 v5, {sT1}")
    poll(g, "p_ml", lambda: g(f"buffer_load_dwordx4 v[12:15], v8, {srd(SRD_WS)}, {sT0} offen sc1"), lambda: chk_ml(0))
    g("s_getreg_b32 s64, hwreg(HW_REG_XCC_ID, 0, 4)", "v_cmp_ne_u32 vcc, s64, v17", "s_nop 4",
      "s_cmp_eq_u64 vcc, 0", f"s_cselect_b32 s66, {WS_OL - WS_OS}, 0", f"s_add_u32 s66, s66, {WS_OS}")
    if not opt.get("local", True):
        g(f"s_mov_b32 s66, {WS_OS}")
    g("v_mov_b32 v16, v12", "s_nop 1",
      f"v_max_f32_dpp v16, v16, v16 quad_perm:[1,0,3,2] {DPPF}", "s_nop 1",
      f"v_max_f32_dpp v16, v16, v16 quad_perm:[2,3,0,1] {DPPF}",
      "v_sub_f32 v12, v12, v16", "v_exp_f32 v12, v12", "s_nop 0", "v_mul_f32 v13, v13, v12", "s_nop 1",
      f"v_add_f32_dpp v13, v13, v13 quad_perm:[1,0,3,2] {DPPF}", "s_nop 1",
      f"v_add_f32_dpp v13, v13, v13 quad_perm:[2,3,0,1] {DPPF}",
      "v_rcp_f32 v13, v13", "s_nop 0", "v_mul_f32 v12, v12, v13", "s_nop 1")
    for r in range(4):
        g(f"v_mov_b32_dpp v{vF+r}, v12 quad_perm:[{r},{r},{r},{r}] {DPPF}")
    tr_addr(g, 206, 12, vI, vG, 7, "s65")
    if DYN or not DEFER_WO:
        wo_frags()
    g(f"s_lshl_b32 {sT0}, {sX}, 2", f"s_add_u32 {sT0}, {sT0}, {sA}", f"s_lshl_b32 s64, {sT0}, 11", "s_add_u32 s64, s64, s66",
      f"v_and_b32 v6, 7, v{vI}", "v_lshlrev_b32 v6, 8, v6", f"v_lshlrev_b32 v7, 4, v{vG}", "v_add_u32 v6, v6, v7",
      f"v_lshlrev_b32 v7, 6, v{vG}", f"v_lshlrev_b32 v9, 2, v{vI}", "v_add_u32 v7, v7, v9", f"s_lshl_b32 {sT1}, {sA}, 9", f"v_add_u32 v7, {sT1}, v7",
      "v_lshlrev_b32 v8, 4, v0",
      f"s_lshl_b32 s68, {sX}, 12", f"s_lshl_b32 {sT1}, s67, 9", f"s_add_u32 s68, s68, {sT1}", f"s_add_u32 s68, s68, {WS_YS}",
      "v_mov_b32 v10, 0", "v_mov_b32 v11, 1")
    if not DYN:
        g("s_barrier")
        if DEFER_WO:
            wo_dma()
            stamp(g, 5)
            wo_frags()
    stamp(g, 6)

    def isso():
        for k in range(4):
            g(f"buffer_load_dwordx4 {v(16+4*k,4)}, v6, {srd(SRD_WS)}, s64 offen offset:{k*64} sc1")
    poll(g, "p_o", isso, lambda: check_sentinel(g, range(16, 32), 12))
    stamp(g, 7)
    for k in range(4):
        for t in range(4):
            mfma(g, 32 + 4 * t, 16 + 4 * k, vBW + (t * 4 + k) * 4, k == 0)
    g("s_mov_b32 exec_hi, 0", "s_nop 3")
    for t in range(4):
        d = 32 + 4 * t
        g(f"v_mul_f32 v{d}, v{d}, v{vF}", f"v_fmac_f32 v{d}, v{d+1}, v{vF+1}", f"v_fmac_f32 v{d}, v{d+2}, v{vF+2}", f"v_fmac_f32 v{d}, v{d+3}, v{vF+3}",
          f"ds_write_b32 v7, v{d} offset:{L_RED2 + t*128}")
    g("s_mov_b64 exec, 1", f"ds_add_rtn_u32 v11, v10, v11 offset:{L_CNT + 12}", "s_waitcnt lgkmcnt(0)", f"v_readfirstlane_b32 {sT2}, v11",
      "s_mov_b32 exec_lo, -1", f"s_cmp_lg_u32 {sT2}, 3", "s_cbranch_scc1 L_exit",
      f"ds_read_b128 v[12:15], v8 offset:{L_RED2}", f"ds_read_b128 v[16:19], v8 offset:{L_RED2 + 512}",
      f"ds_read_b128 v[20:23], v8 offset:{L_RED2 + 1024}", f"ds_read_b128 v[24:27], v8 offset:{L_RED2 + 1536}", "s_waitcnt lgkmcnt(0)")
    for e in range(4):
        g(f"v_add_f32 v{12+e}, v{12+e}, v{16+e}", f"v_add_f32 v{20+e}, v{20+e}, v{24+e}")
    for e in range(4):
        g(f"v_add_f32 v{12+e}, v{12+e}, v{20+e}")
    if not SPROT:
        for e in range(4):
            tagify(12 + e, 12 + e)
    g(f"buffer_store_dwordx4 v[12:15], v8, {srd(SRD_WS)}, s68 offen sc1 ;@ypub")
    stamp(g, 8)
    end(g)

    g(f"{LT3}:")
    DEFER_T3 = opt.get("defer_t3", True)
    g(f"s_mul_i32 {sT0}, {sA}, {128*2752}", f"s_lshl_b32 {sT1}, {sPHI}, 6", f"s_add_u32 s64, {sT0}, {sT1}")
    make_srd(g, SRD_A, 16, "s64", 512 * 1376 * 2)
    g(f"s_lshl_b32 {sT0}, {sPHI}, 15", f"s_lshl_b32 {sT1}, {sA}, 8", f"s_add_u32 s64, {sT0}, {sT1}")
    make_srd(g, SRD_B, 18, "s64", 1376 * 512 * 2)
    g("v_lshrrev_b32 v205, 2, v0", "v_mul_u32_u24 v205, 2752, v205", "v_and_b32 v10, 3, v0", "v_lshlrev_b32 v10, 4, v10",
      "v_add_u32 v205, v205, v10", f"s_lshl_b32 s65, {sA}, 13", f"s_add_u32 s65, s65, {L_KB}", "s_add_u32 s66, s65, 32768",
      f"v_lshlrev_b32 v206, 10, v{vG}", f"v_lshlrev_b32 v11, 4, v{vI}", "v_add_u32 v206, v206, v11")
    vB1, vB2 = 64, 96
    vTR1, vTR2 = 207, 208

    def w12_dma():
        for t in range(8):
            g(f"s_mov_b32 {sT2}, {t*16*2752}", f"s_add_u32 {sT3}, s65, {t*1024}")
            dma(g, 205, SRD_A, sT2, sT3, "w12")
        for t in range(8):
            g(f"s_mov_b32 {sT2}, {t*4*1024}", f"s_add_u32 {sT3}, s66, {t*1024}")
            dma(g, 206, SRD_B, sT2, sT3, "w12")

    def w12_frags():
        g("s_waitcnt vmcnt(0)")
        for tau in range(2):
            for k in range(4):
                tr_read(g, vB1 + (tau * 4 + k) * 4, vTR1, k * 2048 + tau * 32, 64)
        g("s_waitcnt lgkmcnt(0)")
        for t in range(8):
            tr_read(g, vB2 + 4 * t, vTR2, t * 32, 256)
        g("s_waitcnt lgkmcnt(0)")
    if not DEFER_T3:
        w12_dma()
    g("s_barrier")
    vX3, vGA3, vC3, vGB = 224, 228, 232, 236
    g("v_lshrrev_b32 v5, 5, v0", "v_and_b32 v8, 31, v0",
      f"s_lshl_b32 s68, {sA}, 9", "v_lshlrev_b32 v9, 11, v5", "v_lshlrev_b32 v10, 4, v8", "v_add_u32 v9, v9, v10", "v_add_u32 v9, s68, v9",
      f"s_mov_b32 {sT0}, {WS_MODF}", f"s_mov_b32 {sT1}, {WS_MODF + 4096}", f"s_mov_b32 {sT2}, {WS_MODF + 8192}")
    vXA = 202
    g(f"v_mov_b32 v{vXA}, v9")
    g("v_lshrrev_b32 v7, 2, v0", "v_and_b32 v7, 1, v7", "v_lshlrev_b32 v6, 11, v7", "v_and_b32 v7, 3, v0", "v_lshlrev_b32 v7, 4, v7",
      "v_add_u32 v6, v6, v7", f"s_and_b32 {sT3}, {sPHI}, 31", f"s_lshl_b32 {sT3}, {sT3}, 6", f"v_add_u32 v6, {sT3}, v6",
      f"s_mov_b32 s69, {WS_MODF + 3*4096}")
    poll(g, "p_modf",
         lambda: g(f"buffer_load_dwordx4 v[12:15], v9, {srd(SRD_WS)}, {sT0} offen sc1", f"buffer_load_dwordx4 v[16:19], v9, {srd(SRD_WS)}, {sT1} offen sc1",
                   f"buffer_load_dwordx4 v[20:23], v9, {srd(SRD_WS)}, {sT2} offen sc1", f"buffer_load_dwordx4 {v(vGB,4)}, v6, {srd(SRD_WS)}, s69 offen sc1"),
         lambda: check_intag(g, list(range(12, 24)) + list(range(vGB, vGB + 4)), vTAU, 28))
    g("s_mov_b32 s72, s4", "s_mov_b32 s73, s5", "s_mov_b32 s74, 2048", "s_mov_b32 s75, 0x20000")
    g("v_lshrrev_b32 v10, 1, v9", "buffer_load_dwordx2 v[40:41], v10, s[72:75], 0 offen")
    for e in range(4):
        g(f"v_and_b32 v{vGA3+e}, v{vMSK}, v{12+e}", f"v_and_b32 v{16+e}, v{vMSK}, v{16+e}", f"v_and_b32 v{20+e}, v{vMSK}, v{20+e}",
          f"v_and_b32 v{vGB+e}, v{vMSK}, v{vGB+e}", f"v_add_f32 v{20+e}, 1.0, v{20+e}")
    vZA, vYA, vAA, vRA, vUA, vSA, vGW, vGR, vPA = 201, 200, 203, 204, 209, 210, 211, 212, 213
    g(f"s_mul_i32 s68, {sA}, 1536", f"s_add_u32 s68, s68, {L_ACT3}", f"v_lshlrev_b32 v{vZA}, 8, v5", "v_lshlrev_b32 v10, 3, v8",
      f"v_add_u32 v{vZA}, v{vZA}, v10", f"v_add_u32 v{vZA}, s68, v{vZA}",
      "v_cvt_pk_bf16_f32 v42, v20, v21", "v_cvt_pk_bf16_f32 v43, v22, v23",
      "v_cvt_pk_bf16_f32 v44, v16, v17", "v_cvt_pk_bf16_f32 v45, v18, v19",
      f"v_lshlrev_b32 v{vC3}, 16, v42", f"v_and_b32 v{vC3+1}, 0xffff0000, v42", f"v_lshlrev_b32 v{vC3+2}, 16, v43", f"v_and_b32 v{vC3+3}, 0xffff0000, v43",
      f"ds_write_b64 v{vZA}, v[42:43] offset:512", f"ds_write_b64 v{vZA}, v[44:45] offset:1024",
      "s_waitcnt vmcnt(0)",
      f"v_lshlrev_b32 v{vX3}, 16, v40", f"v_and_b32 v{vX3+1}, 0xffff0000, v40", f"v_lshlrev_b32 v{vX3+2}, 16, v41", f"v_and_b32 v{vX3+3}, 0xffff0000, v41")
    tr_addr(g, vTR1, 12, vI, vG, 6, "s65")
    tr_addr(g, vTR2, 12, vI, vG, 8, "s66")
    g(f"v_lshrrev_b32 v{vYA}, 2, v8", f"v_lshlrev_b32 v{vYA}, 7, v{vYA}", "v_and_b32 v12, 3, v8", "v_lshlrev_b32 v12, 4, v12",
      f"v_add_u32 v{vYA}, v{vYA}, v12", "v_lshlrev_b32 v12, 6, v5", f"v_add_u32 v{vYA}, v{vYA}, v12",
      f"s_lshl_b32 {sT0}, {sA}, 10", f"v_add_u32 v{vYA}, {sT0}, v{vYA}")
    g(f"v_cmp_gt_u32 vcc, 6, v{vI}", "s_nop 1", f"v_cndmask_b32 v{vAA}, 0, v{vI}, vcc", f"v_lshlrev_b32 v{vAA}, 8, v{vAA}",
      f"v_lshlrev_b32 v12, 4, v{vG}", f"v_add_u32 v{vAA}, v{vAA}, v12", f"v_add_u32 v{vAA}, s68, v{vAA}",
      f"s_lshl_b32 {sT0}, {sA}, 10", f"v_lshlrev_b32 v{vRA}, 4, v0", f"v_add_u32 v{vRA}, {sT0}, v{vRA}")
    vSW = 214
    g("v_lshrrev_b32 v10, 4, v8", "v_lshlrev_b32 v10, 9, v10", f"v_lshlrev_b32 v11, 4, v{vI}", "v_add_u32 v10, v10, v11",
      "v_lshlrev_b32 v11, 2, v5", f"v_add_u32 v{vUA}, v10, v11", f"v_lshlrev_b32 v{vSA}, 5, v5",
      f"s_lshl_b32 {sT0}, {sA}, 3", f"v_add_u32 v{vSW}, {sT0}, v{vSA}",
      f"s_lshl_b32 {sT0}, {sA}, 7", f"v_lshlrev_b32 v{vGW}, 1, v0", f"v_add_u32 v{vGW}, {sT0}, v{vGW}",
      f"v_and_b32 v14, 1, v{vI}", "v_lshlrev_b32 v14, 6, v14", f"v_lshlrev_b32 v15, 4, v{vG}", "v_add_u32 v14, v14, v15", f"v_add_u32 v{vGR}, {sT0}, v14",
      f"v_lshlrev_b32 v{vPA}, 6, v{vI}", f"v_lshlrev_b32 v9, 4, v{vG}", f"v_add_u32 v{vPA}, v{vPA}, v9",
      f"s_lshl_b32 s68, {sPHI}, 12", f"s_lshl_b32 {sT1}, {sA}, 10", f"s_add_u32 s68, s68, {sT1}", f"s_add_u32 s68, s68, {WS_PS}")
    if SPROT:
        Lnv = g.lab("nover")
        g(f"s_cmp_lg_u32 {sA}, 3", f"s_cbranch_scc1 {Lnv}", f"s_mul_i32 {sT1}, {sTAU}, 0x00400401", f"v_mov_b32 v5, {sT1}")
        g("v_lshrrev_b32 v8, 3, v0", "v_lshlrev_b32 v8, 2, v8", "v_and_b32 v9, 3, v0", "v_add_u32 v8, v8, v9", "v_lshlrev_b32 v8, 3, v8",
          "v_lshrrev_b32 v9, 2, v0", "v_and_b32 v9, 1, v9", "v_add_u32 v8, v8, v9", "v_add_u32 v8, 2, v8", "v_lshlrev_b32 v8, 7, v8")
        g("v_min_u32 v9, 42, v0", "v_mul_u32_u24 v10, 43, v9", "v_lshrrev_b32 v10, 8, v10", "v_mul_u32_u24 v11, 6, v10", "v_sub_u32 v11, v9, v11",
          "v_and_b32 v9, 3, v11", "v_lshlrev_b32 v10, 2, v10", "v_add_u32 v9, v9, v10", "v_lshlrev_b32 v9, 3, v9",
          "v_lshrrev_b32 v11, 2, v11", "v_add_u32 v9, v9, v11", "v_add_u32 v9, 6, v9", "v_lshlrev_b32 v9, 7, v9", f"s_mov_b32 {sT0}, {WS_ML}")

        def chk2():
            g("v_xor_b32 v20, v14, v5", "v_xor_b32 v21, v18, v5", "v_or_b32 v20, v20, v21", "v_cmp_ne_u32 vcc, 0, v20")
        poll(g, "p_ver", lambda: g(f"buffer_load_dwordx4 v[12:15], v8, {srd(SRD_WS)}, {sT0} offen sc1",
                                   f"buffer_load_dwordx4 v[16:19], v9, {srd(SRD_WS)}, {sT0} offen sc1"), chk2)
        g(f"{Lnv}:")
    if not DEFER_T3:
        w12_frags()
    g("s_waitcnt lgkmcnt(0)", "s_barrier")
    if DEFER_T3:
        w12_dma()
        stamp(g, 5)
        w12_frags()
    stamp(g, 6)

    def issy():
        for G_ in range(8):
            g(f"s_mov_b32 {sT1}, {WS_YS + G_*4096}", f"buffer_load_dwordx4 {v(16+4*G_,4)}, v{vYA}, {srd(SRD_WS)}, {sT1} offen sc1")
    poll(g, "p_y", issy, (lambda: check_sentinel(g, range(16, 48), 12)) if SPROT else (lambda: check_intag(g, range(16, 48), vTAU, 12)))
    stamp(g, 7)
    for e in range(4):
        g(f"v_add_f32 v{16+e}, v{16+e}, v{20+e}", f"v_add_f32 v{24+e}, v{24+e}, v{28+e}",
          f"v_add_f32 v{32+e}, v{32+e}, v{36+e}", f"v_add_f32 v{40+e}, v{40+e}, v{44+e}")
    for e in range(4):
        g(f"v_add_f32 v{16+e}, v{16+e}, v{24+e}", f"v_add_f32 v{32+e}, v{32+e}, v{40+e}")
    for e in range(4):
        g(f"v_add_f32 v{16+e}, v{16+e}, v{32+e}")
    for e in range(4):
        g(f"v_fma_f32 v{16+e}, v{16+e}, v{vGA3+e}, v{vX3+e}")
    for e in range(4):
        g(f"v_mul_f32 v{24+e}, v{16+e}, v{vC3+e}")
    g("v_cvt_pk_bf16_f32 v24, v24, v25", "v_cvt_pk_bf16_f32 v25, v26, v27", f"ds_write_b64 v{vZA}, v[24:25]",
      "v_add_f32 v20, v16, v17", "v_add_f32 v21, v18, v19", "v_add_f32 v48, v20, v21",
      "v_mul_f32 v49, v16, v16", "v_fmac_f32 v49, v17, v17", "v_fmac_f32 v49, v18, v18", "v_fmac_f32 v49, v19, v19")
    for k in range(4):
        g(f"ds_read_b128 {v(20+4*k,4)}, v{vAA} offset:{k*64}")
    g(f"ds_write_b128 v{vXA}, v[16:19] offset:{L_X1}")
    rowreduce(g, [48, 49], "v_add_f32")
    g("s_waitcnt lgkmcnt(1)")
    for k in range(4):
        for tau in range(2):
            mfma(g, 36 + 4 * tau, 20 + 4 * k, vB1 + (tau * 4 + k) * 4, k == 0)
    swapreduce(g, [48, 49], "v_add_f32", [50, 51], "16")
    g("s_mov_b32 exec_lo, 1", "s_mov_b32 exec_hi, 1", f"ds_write_b64 v{vSW}, v[48:49] offset:{L_STAT}",
      "s_mov_b32 exec_lo, -1", "s_mov_b32 exec_hi, 0",
      f"ds_write_b128 v{vRA}, v[36:39] offset:{L_RED3}", f"ds_write_b128 v{vRA}, v[40:43] offset:{L_RED3 + 512}",
      "s_mov_b64 exec, -1", "s_waitcnt lgkmcnt(0)", "s_barrier")
    if opt.get("fine"): stamp(g, 2)
    for w in range(4):
        g(f"ds_read_b32 v{12+w}, v{vUA} offset:{L_RED3 + w*1024}", f"ds_read_b32 v{16+w}, v{vUA} offset:{L_RED3 + w*1024 + 8}",
          f"ds_read_b32 v{20+w}, v{vUA} offset:{L_RED3 + w*1024 + 256}")
    g(f"ds_read_b128 v[24:27], v{vSA} offset:{L_STAT}", f"ds_read_b128 v[28:31], v{vSA} offset:{L_STAT + 16}", "s_waitcnt lgkmcnt(0)")
    g("v_add_f32 v24, v24, v26", "v_add_f32 v25, v25, v27", "v_add_f32 v28, v28, v30", "v_add_f32 v29, v29, v31")
    for base in (12, 16, 20):
        g(f"v_add_f32 v{base}, v{base}, v{base+1}", f"v_add_f32 v{base+2}, v{base+2}, v{base+3}")
    g("v_add_f32 v24, v24, v28", "v_add_f32 v25, v25, v29")
    for base in (12, 16, 20):
        g(f"v_add_f32 v{base}, v{base}, v{base+2}")
    g(f"v_mul_f32 v24, {hex(f2u(1/512))}, v24", f"v_mul_f32 v25, {hex(f2u(1/512))}, v25",
      "v_fma_f32 v25, -v24, v24, v25", f"v_add_f32 v25, {hex(f2u(1e-5))}, v25", "v_rsq_f32 v25, v25",
      "v_fma_f32 v12, -v24, v16, v12", "v_fma_f32 v12, v12, v25, v20")
    silu(g, [12], [13])
    g("v_cvt_pk_bf16_f32 v12, v12, v12", f"ds_write_b16 v{vGW}, v12 offset:{L_ACTG}",
      f"ds_read_b128 v[16:19], v{vGR} offset:{L_ACTG}", "s_waitcnt lgkmcnt(0)")
    if opt.get("fine"): stamp(g, 3)
    for t in range(8):
        mfma(g, 128 + 4 * t, vB2 + 4 * t, 16, True)
    if SPROT:
        g(*EX8, "s_nop 0")
    else:
        g("s_nop 1")
        for t in range(8):
            for e in range(4):
                tagify(128 + 4 * t + e, 128 + 4 * t + e)
        g(*EX8)
    for t in range(8):
        if SPROT and t == 7:
            g("s_nop 4")
        g(f"buffer_store_dwordx4 {v(128+4*t,4)}, v{vPA}, {srd(SRD_WS)}, s68 offen offset:{t*128} sc1 ;@pspub")
    g("s_mov_b64 exec, -1")
    stamp(g, 8)
    g(f"s_cmp_lg_u32 {sA}, 0", "s_cbranch_scc1 L_exit", f"s_cmp_ge_u32 {sPHI}, 32", "s_cbranch_scc1 L_exit")
    g("v_lshrrev_b32 v9, 3, v0", "v_lshlrev_b32 v8, 12, v9", "v_and_b32 v10, 7, v0", "v_lshlrev_b32 v10, 4, v10", "v_add_u32 v8, v8, v10",
      "v_cmp_gt_u32 vcc, 3, v9", f"s_lshl_b32 {sT0}, {sPHI}, 7", f"s_add_u32 {sT0}, {sT0}, {WS_PS}",
      "v_cndmask_b32 v11, v10, v8, vcc", "v_cndmask_b32 v12, 0, 1.0, vcc",
      f"ds_read_b128 v[44:47], v6 offset:{L_X1}")

    def issp():
        for k in range(6):
            vv = 11 if k == 5 else 8
            g(f"s_add_u32 {sT1}, {sT0}, {k*8*4096}", f"buffer_load_dwordx4 {v(16+4*k,4)}, v{vv}, {srd(SRD_WS)}, {sT1} offen sc1")
    poll(g, "p_ps", issp, (lambda: check_sentinel(g, range(16, 40), 13)) if SPROT else (lambda: check_intag(g, range(16, 40), vTAU, 13)))
    stamp(g, 9)
    for e in range(4):
        g(f"v_add_f32 v{16+e}, v{16+e}, v{20+e}", f"v_add_f32 v{24+e}, v{24+e}, v{28+e}", f"v_fma_f32 v{32+e}, v{36+e}, v12, v{32+e}")
    for e in range(4):
        g(f"v_add_f32 v{16+e}, v{16+e}, v{24+e}")
    for e in range(4):
        g(f"v_add_f32 v{16+e}, v{16+e}, v{32+e}")
    g("s_nop 0")
    for e in range(4):
        g(f"v_add_f32_dpp v{16+e}, v{16+e}, v{16+e} row_ror:8 {DPPF}")
    swapreduce(g, range(16, 20), "v_add_f32", range(20, 24), "16")
    swapreduce(g, range(16, 20), "v_add_f32", range(20, 24), "32")
    g("s_mov_b32 s72, s24", "s_mov_b32 s73, s25", "s_mov_b32 s74, 2048", "s_mov_b32 s75, 0x20000", "s_waitcnt lgkmcnt(0)")
    for e in range(4):
        g(f"v_fma_f32 v{16+e}, v{16+e}, v{vGB+e}, v{44+e}")
    g("v_cvt_pk_bf16_f32 v16, v16, v17", "v_cvt_pk_bf16_f32 v17, v18, v19", "v_lshrrev_b32 v8, 1, v6",
      "s_mov_b64 exec, 0xff", "buffer_store_dwordx2 v[16:17], v8, s[72:75], 0 offen")
    stamp(g, 10)
    dbgmax(g, 4)
    g(f"s_cmp_lg_u32 {sPHI}, 0", "s_cbranch_scc1 L_exit", "s_mov_b64 exec, 1", "s_add_u32 s30, s30, 1", "v_mov_b32 v8, 0", "v_mov_b32 v9, s30",
      f"buffer_store_dword v9, v8, {srd(SRD_WS)}, 0 offen sc1")
    end(g)


def generate(opt=None):
    global STAMPS, SKIP, POLL_LIMIT, DBGT, NL, LDS_SIZE
    opt = dict(opt or {})
    DBGT = opt.get("dbgt", False)
    POLL_LIMIT = opt.get("poll_limit", 400000)
    SKIP = set(opt.get("skip", ()))
    STAMPS = opt.get("stamps", False)
    NL = opt.get("NL", 24)
    LDS_SIZE = L_KB + 4 * NL * 1024
    g = G()
    hdr = open("cdna_kernels/" + NAME + ".s.ref").read().split("\n")
    for line in hdr:
        if line.startswith(";") and "@launch" not in line and "Override launch" not in line and "grid=ceil" not in line:
            g(line)
        elif not line.startswith(";"):
            break
    g(f"; @launch grid=(256,1,1) block=(512,1,1) lds={LDS_SIZE}")
    g('.amdgcn_target "amdgcn-amd-amdhsa--gfx950"', ".text", f".globl {NAME}_kernel", ".p2align 8",
      f".type {NAME}_kernel,@function", f"{NAME}_kernel:")
    stamp(g, 0)
    gen_entry(g, opt)
    if STAMPS:
        for k in range(1, NSTAMP):
            g(f"s_mov_b32 s{80+2*k}, 0")
    dbgmax(g, 0, True)
    dbgmax(g, 1)
    g("s_cmp_ge_u32 s3, 4", "s_cbranch_scc1 L_aux")
    gen_stream(g, opt)
    g("L_aux:")
    if 'aux' in SKIP:
        g("s_endpgm")
    gen_aux(g, opt)
    g("L_exit:")
    end(g)
    g("L_end:", "s_endpgm")
    g('.section .rodata,"a"', ".p2align 6", f".amdhsa_kernel {NAME}_kernel",
      "  .amdhsa_next_free_vgpr 256", "  .amdhsa_next_free_sgpr 102", "  .amdhsa_accum_offset 256",
      "  .amdhsa_group_segment_fixed_size 0", "  .amdhsa_kernarg_size 104", "  .amdhsa_user_sgpr_count 2",
      "  .amdhsa_user_sgpr_kernarg_segment_ptr 1", "  .amdhsa_system_sgpr_workgroup_id_x 1",
      "  .amdhsa_float_denorm_mode_32 3", ".end_amdhsa_kernel")
    txt = g.text()
    drop = set(opt.get("drop", ()))
    kept = []
    for line in txt.split("\n"):
        if ";@" in line:
            nm = line.split(";@")[1].strip()
            line = line.split(";@")[0].rstrip()
            if nm in drop:
                continue
        kept.append(line)
    return "\n".join(kept)


if __name__ == "__main__":
    out = sys.argv[1] if len(sys.argv) > 1 else "cdna_kernels/" + NAME + ".s"
    opt = eval(sys.argv[2]) if len(sys.argv) > 2 else {}
    open(out, "w").write(generate(opt))
    print("wrote", out)
```

```python
import struct
import sys

NAME = "adaLN_cond__gqa_block_cached__dense_activation_silu__decode"

WS_EPOCH = 0x0
WS_MODP = 0x1000
WS_MODF = 0x19000
WS_ML = 0x20000
WS_QP = 0x30000
WS_OS = 0x70000
WS_XL = 0x28000
WS_YS = 0x80000
WS_PS = 0x98000
WS_YP = 0xD0000
WS_STAMP = 0x100000
WS_SIZE = 0x120000

L_Q = 0x0000
L_MLW = 0x0100
L_CNT = 0x0180
L_RED = 0x0200
L_RED2 = 0x0A00
L_RED3 = 0x1200
L_STAT = 0x2200
L_ACT1 = 0x2300
L_ACT2 = 0x2500
L_ACTG = 0x2600
L_ACT3 = 0x2800
L_X1 = 0x4000
L_WMOD = 0x5000
L_WQ = 0x9000
L_KB = 0xD000
NL = 24
LDS_SIZE = L_KB + 4 * NL * 1024

sX, sR, sH, sJ, sB, sS = "s48", "s49", "s50", "s51", "s52", "s53"
sT0, sT1, sT2, sT3 = "s54", "s55", "s56", "s57"
sA = "s58"
sPHI = "s59"
sM1, sM0 = "s[60:61]", "s[62:63]"
sCNT = "s70"
sTAU = "s31"
SRD_A, SRD_B, SRD_WS = 32, 36, 40
POLL_LIMIT = 400000
TAGMASK = 0x3FF

LOG2E = 1.4426950408889634
CS = (128 ** -0.5) * LOG2E
STAMPS = False
NSTAMP = 11
SKIP = set()


def f2u(x):
    return struct.unpack("<I", struct.pack("<f", x))[0]


class G:
    def __init__(self):
        self.L = []
        self.n = 0

    def __call__(self, *txt):
        for t in txt:
            self.L.extend(t.split("\n"))

    def lab(self, base):
        self.n += 1
        return f"L_{base}_{self.n}"

    def text(self):
        return "\n".join(self.L) + "\n"


def v(a, n=1):
    return f"v{a}" if n == 1 else f"v[{a}:{a+n-1}]"


def srd(n):
    return f"s[{n}:{n+3}]"


def make_srd(g, d, plo, off, total):
    if isinstance(off, int):
        assert off == 0
        g(f"s_mov_b32 s{d}, s{plo}", f"s_mov_b32 s{d+1}, s{plo+1}", f"s_mov_b32 s{d+2}, {total}")
    else:
        g(f"s_add_u32 s{d}, s{plo}, {off}", f"s_addc_u32 s{d+1}, s{plo+1}, 0",
          f"s_sub_u32 s{d+2}, {total}, {off}")
    g(f"s_mov_b32 s{d+3}, 0x20000")


DPPF = "row_mask:0xf bank_mask:0xf"


def rowreduce(g, regs, op):
    for ctl in ("row_ror:8", "row_ror:4", "row_ror:2", "row_ror:1"):
        g("s_nop 1" if len(regs) < 3 else "s_nop 0")
        for r in regs:
            g(f"{op}_dpp v{r}, v{r}, v{r} {ctl} {DPPF}")


def swapreduce(g, regs, op, tmps, which):
    sw = f"v_permlane{which}_swap_b32"
    g("s_nop 0")
    for r, t in zip(regs, tmps):
        g(f"v_mov_b32 v{t}, v{r}")
    g("s_nop 1")
    for r, t in zip(regs, tmps):
        g(f"{sw} v{r}, v{t}")
    g("s_nop 1")
    for r, t in zip(regs, tmps):
        g(f"{op} v{r}, v{r}, v{t}")


def allreduce(g, regs, op, tmps):
    rowreduce(g, regs, op)
    swapreduce(g, regs, op, tmps, "16")
    swapreduce(g, regs, op, tmps, "32")


sDRY = "s71"


def nodry(g):
    lab = g.lab("nd")
    g(f"s_cmp_lg_u32 {sDRY}, 0", f"s_cbranch_scc1 {lab}")
    return lab


def poll(g, name, issue, check, pre=None, dry=False):
    g(f"s_mov_b32 {sCNT}, {sDRY if dry else 0}")
    stages = ([pre] if pre else []) + [(issue, check)]
    dn = g.lab(name + "_done")
    for iss, chk in stages:
        lp = g.lab(name)
        g(f"{lp}:")
        i0 = len(g.L)
        iss()
        for i in range(i0, len(g.L)):
            if g.L[i].startswith("buffer_load"):
                g.L[i] += f" ;@ld_{name}"
        g("s_waitcnt vmcnt(0)")
        chk()
        g(f"s_add_u32 {sCNT}, {sCNT}, 1", f"s_cmp_gt_u32 {sCNT}, {POLL_LIMIT}",
          f"s_cbranch_scc1 {dn}", f"s_cbranch_vccnz {lp}")
    g(f"{dn}:")


def check_intag(g, regs, vtau, tmp):
    regs = list(regs)
    g(f"v_xor_b32 v{tmp}, v{regs[0]}, v{vtau}")
    rest = regs[1:]
    while len(rest) >= 2:
        g(f"v_xor_b32 v{tmp+1}, v{rest[0]}, v{vtau}", f"v_xor_b32 v{tmp+2}, v{rest[1]}, v{vtau}",
          f"v_or3_b32 v{tmp}, v{tmp}, v{tmp+1}, v{tmp+2}")
        rest = rest[2:]
    if rest:
        g(f"v_xor_b32 v{tmp+1}, v{rest[0]}, v{vtau}", f"v_or_b32 v{tmp}, v{tmp}, v{tmp+1}")
    g(f"v_and_b32 v{tmp}, {TAGMASK}, v{tmp}", f"v_cmp_ne_u32 vcc, 0, v{tmp}")


def check_sentinel(g, regs, tmp):
    regs = list(regs)
    g(f"v_max_u32 v{tmp}, v{regs[0]}, v{regs[1]}")
    rest = regs[2:]
    while len(rest) >= 2:
        g(f"v_max3_u32 v{tmp}, v{tmp}, v{rest[0]}, v{rest[1]}")
        rest = rest[2:]
    if rest:
        g(f"v_max_u32 v{tmp}, v{tmp}, v{rest[0]}")
    g(f"v_cmp_eq_u32 vcc, -1, v{tmp}")


def silu(g, xs, ts):
    for x, t in zip(xs, ts):
        g(f"v_mul_f32 v{t}, {hex(f2u(-LOG2E))}, v{x}")
    for t in ts:
        g(f"v_exp_f32 v{t}, v{t}")
    g("s_nop 0")
    for t in ts:
        g(f"v_add_f32 v{t}, 1.0, v{t}")
    for t in ts:
        g(f"v_rcp_f32 v{t}, v{t}")
    g("s_nop 0")
    for x, t in zip(xs, ts):
        g(f"v_mul_f32 v{x}, v{x}, v{t}")


def dma(g, voff, srdn, soff, lds_addr, what="", imm=0):
    if what in SKIP:
        return
    g(f"s_mov_b32 m0, {lds_addr}", "s_nop 0")
    g(f"buffer_load_dwordx4 v{voff}, {srd(srdn)}, {soff} offen nt lds")


def lds_signal(g, off, vtmp):
    g("s_mov_b64 exec, 1", f"v_mov_b32 v{vtmp}, 0", f"v_mov_b32 v{vtmp+1}, 1", f"ds_add_u32 v{vtmp}, v{vtmp+1} offset:{off}", "s_mov_b64 exec, -1")


def lds_wait(g, off, target, vtmp):
    lp, dn = g.lab("lw"), g.lab("lwd")
    g(f"s_mov_b32 {sCNT}, 0", f"v_mov_b32 v{vtmp}, 0", f"{lp}:", f"ds_read_b32 v{vtmp+1}, v{vtmp} offset:{off}", "s_waitcnt lgkmcnt(0)",
      f"v_readfirstlane_b32 s47, v{vtmp+1}", f"s_add_u32 {sCNT}, {sCNT}, 1", f"s_cmp_gt_u32 {sCNT}, {POLL_LIMIT * 4 + 4}", f"s_cbranch_scc1 {dn}",
      f"s_cmp_lt_u32 s47, {target}", f"s_cbranch_scc1 {lp}", f"{dn}:")


def store_sel(g, sflag, *instrs):
    l1, l2 = g.lab("wt"), g.lab("wte")
    g(f"s_cmp_eq_u32 {sflag}, 0", f"s_cbranch_scc1 {l1}")
    for i in instrs:
        g(i.replace(" @SC", ""))
    g(f"s_branch {l2}", f"{l1}:")
    for i in instrs:
        g(i.replace(" @SC", " sc1"))
    g(f"{l2}:")


def stamp(g, k):
    if STAMPS:
        g(f"s_memrealtime s[{80+2*k}:{81+2*k}]")


DBGT = False


def dbgmax(g, slot, invert=False):
    if not DBGT:
        return
    lab = g.lab("dbg")
    if slot < 4:
        g("s_and_b32 s74, s2, 15", "s_or_b32 s74, s74, s3", "s_cmp_lg_u32 s74, 0", f"s_cbranch_scc1 {lab}")
    g("s_memrealtime s[74:75]", "s_waitcnt lgkmcnt(0)")
    if invert:
        g("s_not_b32 s74, s74")
    g("s_mov_b64 s[76:77], exec", "s_mov_b64 exec, 1", "v_mov_b32 v252, s74", f"v_mov_b32 v253, {slot*4 + 32}",
      "global_atomic_umax v253, v252, s[26:27]", "s_mov_b64 exec, s[76:77]", f"{lab}:")


def end(g):
    if STAMPS:
        g("s_mov_b64 exec, -1", "s_waitcnt lgkmcnt(0)")
        for k in range(NSTAMP):
            g(f"v_writelane_b32 v250, s{80+2*k}, {k}")
        g("s_lshl_b32 s72, s2, 3", "s_add_u32 s72, s72, s3", "s_lshl_b32 s72, s72, 6", f"s_add_u32 s72, s72, {WS_STAMP}",
          "s_mov_b32 s76, s28", "s_mov_b32 s77, s29", f"s_mov_b32 s78, {WS_SIZE}", "s_mov_b32 s79, 0x20000",
          "v_lshlrev_b32 v251, 2, v0", f"s_mov_b64 exec, {hex((1 << NSTAMP) - 1)}",
          "buffer_store_dword v250, v251, s[76:79], s72 offen")
    g("s_endpgm")


def tr_addr(g, dst, tmp, vI, vG, rowshift, base=None):
    g(f"v_lshlrev_b32 v{dst}, 3, v{vG}", f"v_lshrrev_b32 v{tmp}, 2, v{vI}", f"v_add_u32 v{dst}, v{dst}, v{tmp}",
      f"v_lshlrev_b32 v{dst}, {rowshift}, v{dst}", f"v_and_b32 v{tmp}, 3, v{vI}", f"v_lshlrev_b32 v{tmp}, 3, v{tmp}",
      f"v_add_u32 v{dst}, v{dst}, v{tmp}")
    if base is not None:
        g(f"v_add_u32 v{dst}, {base}, v{dst}")


def tr_read(g, reg, vaddr, off, rowbytes):
    g(f"ds_read_b64_tr_b16 {v(reg,2)}, v{vaddr} offset:{off}", f"ds_read_b64_tr_b16 {v(reg+2,2)}, v{vaddr} offset:{off + 4*rowbytes}")


def mfma(g, d, a, b, first):
    g(f"v_mfma_f32_16x16x32_bf16 {v(d,4)}, {v(a,4)}, {v(b,4)}, {'0' if first else v(d,4)}")


def backoff(g, n):
    while n > 0:
        g(f"s_sleep {min(n, 127)}")
        n -= min(n, 127)


def gen_entry(g, opt):
    URG = opt.get("urgent_r", 8)
    g("s_cmp_ge_u32 s2, 0x100", "s_cbranch_scc1 L_end",
      "s_load_dwordx16 s[4:19], s[0:1], 0", "s_load_dwordx8 s[20:27], s[0:1], 64", "s_load_dwordx2 s[28:29], s[0:1], 96",
      "v_lshrrev_b32 v1, 6, v0", "v_and_b32 v0, 63, v0", f"s_and_b32 {sX}, s2, 7", "v_readfirstlane_b32 s3, v1",
      f"s_lshr_b32 {sR}, s2, 3", f"s_and_b32 {sT0}, {sR}, 3", f"s_lshl_b32 {sH}, {sX}, 2",
      f"s_add_u32 {sH}, {sH}, {sT0}", f"s_lshr_b32 {sJ}, {sR}, 2", f"s_lshr_b32 {sB}, {sJ}, 2", f"s_and_b32 {sS}, {sJ}, 3")
    g(f"s_lshl_b32 s65, {sB}, 5", f"s_add_u32 s65, s65, {sH}", "s_lshl_b32 s65, s65, 20", f"s_lshl_b32 {sT1}, {sS}, 18", f"s_add_u32 s65, s65, {sT1}",
      f"s_lshl_b32 {sT1}, s3, 12", "v_lshlrev_b32 v1, 4, v0", f"s_mul_i32 s64, s3, {NL*1024}", f"s_add_u32 s64, s64, {L_KB}",
      "v_add_u32 v46, s64, v1", f"v_add_u32 v1, {sT1}, v1")
    g(f"s_lshr_b32 s68, {sR}, 2", f"s_and_b32 s69, {sR}, 3", "s_lshl_b32 s69, s69, 2", "s_add_u32 s69, s69, s3",
      f"s_mul_i32 s69, s69, {32*6144}", "s_lshl_b32 s68, s68, 10", "s_add_u32 s69, s69, s68", f"s_lshl_b32 s68, {sX}, 7", "s_add_u32 s69, s69, s68",
      f"s_cmp_ge_u32 {sR}, 24", "s_cselect_b32 s69, 0, s69",
      "v_lshrrev_b32 v3, 3, v0", "v_mul_u32_u24 v3, 0x1800, v3", "v_and_b32 v4, 7, v0", "v_lshlrev_b32 v4, 4, v4", "v_add_u32 v3, v3, v4",
      "s_lshl_b32 s71, s3, 12", f"s_add_u32 s71, s71, {L_WMOD}")
    g("s_waitcnt lgkmcnt(0)")


def gen_stream(g, opt):
    W = opt.get("W", 6)
    NS = 48
    vOFF, vQ, vM, vD = 1, 2, 6, 10
    vB = [14, 18]
    vS, vT, vX, vSL, vLDS = 22, 26, 42, 48, 46
    NREG_K = 64 - NL
    URG = opt.get("urgent_r", 8)
    W0 = opt.get("W0", W)
    I_WQ, I_LATE = opt.get("i_wq", W0), opt.get("i_late", W0 + 2 * W)

    order = [("K", n) for n in range(NREG_K, 64)] + [("K", n) for n in range(NREG_K)] + [("V", n) for n in range(64)]

    def slot_of(kind, n):
        return vSL + 4 * ((n if kind == "K" else NREG_K + n) % NS)

    def wmod_dma():
        for k in range(4):
            g(f"s_mov_b32 s68, {k * 8 * 6144}", f"s_add_u32 m0, s71, {k*1024}", "s_nop 0")
            if 'p1' not in SKIP:
                g("buffer_load_dwordx4 v3, s[76:79], s68 offen nt lds")

    def wq_dma():
        for k in range(4):
            g(f"s_mov_b32 s68, {k * 4 * 8192}", f"s_add_u32 m0, s67, {k*1024}", "s_nop 0")
            if 'wq' not in SKIP:
                g("buffer_load_dwordx4 v2, s[72:75], s68 offen nt lds")

    g(f"s_add_u32 s{SRD_A}, s6, s65", f"s_addc_u32 s{SRD_A+1}, s7, 0", f"s_mov_b32 s{SRD_A+2}, 0x40000", f"s_mov_b32 s{SRD_A+3}, 0x20000")
    make_srd(g, 76, 22, "s69", 512 * 3072 * 2)
    Lnp = g.lab("nourg")
    g(f"s_cmp_ge_u32 {sR}, {URG}", f"s_cbranch_scc1 {Lnp}")
    wmod_dma()
    g(f"{Lnp}:")

    state = {"K": None, "V": None, "i": 0}
    if STAMPS:
        g("s_memtime s[98:99]")

    def issue_next():
        i = state["i"]
        kind, n = order[i]
        rho, t = n >> 2, n & 3
        sreg, sr = (sT2, SRD_A) if kind == "K" else (sT3, SRD_B)
        if i >= W0:
            g(f"s_waitcnt vmcnt({W-1})")
        if kind == "K" and n >= NREG_K:
            g(f"s_mov_b32 {sreg}, {rho * 16384 + t * 1024}", f"s_add_u32 m0, s64, {(n - NREG_K) * 1024}")
            state[kind] = None
            g("s_nop 0", f"buffer_load_dwordx4 v{vOFF}, {srd(sr)}, {sreg} offen nt lds")
        else:
            if state[kind] != rho:
                g(f"s_mov_b32 {sreg}, {rho * 16384}")
                state[kind] = rho
            g(f"buffer_load_dwordx4 {v(slot_of(kind, n), 4)}, v{vOFF}, {srd(sr)}, {sreg} offen offset:{t*1024} nt")
        state["i"] = i + 1

    def issued_after(kind, n):
        return state["i"] - 1 - order.index((kind, n))

    NBACK = NL + NS
    for i in range(NBACK):
        issue_next()
        if i == W0 - 1:
            g(f"s_add_u32 s{SRD_B}, s8, s65", f"s_addc_u32 s{SRD_B+1}, s9, 0", f"s_mov_b32 s{SRD_B+2}, 0x40000", f"s_mov_b32 s{SRD_B+3}, 0x20000")
            g(f"s_lshl_b32 s66, {sJ}, 19", f"s_lshl_b32 s67, {sH}, 8", "s_add_u32 s66, s66, s67", "s_lshl_b32 s67, s3, 17", "s_add_u32 s66, s66, s67")
            make_srd(g, 72, 10, "s66", 512 * 4096 * 2)
            g("v_lshrrev_b32 v2, 4, v0", "v_lshlrev_b32 v2, 13, v2", "v_and_b32 v4, 15, v0", "v_lshlrev_b32 v4, 4, v4", "v_add_u32 v2, v2, v4",
              "s_lshl_b32 s67, s3, 12", f"s_add_u32 s67, s67, {L_WQ}")
            g("s_barrier")
        if i == W0 and opt.get("st_ka"):
            stamp(g, 5)
        if i == W0:
            lab = g.lab("sigm")
            g(f"s_cmp_ge_u32 {sR}, {URG}", f"s_cbranch_scc1 {lab}")
            lds_signal(g, L_CNT + 4, 4)
            g(f"{lab}:")
        if i == I_WQ:
            wq_dma()
        if i == I_WQ + W:
            lds_signal(g, L_CNT + 8, 4)
        if i == I_LATE:
            lab = g.lab("late")
            g(f"s_cmp_lt_u32 {sR}, {URG}", f"s_cbranch_scc1 {lab}", f"s_cmp_ge_u32 {sR}, 24", f"s_cbranch_scc1 {lab}")
            wmod_dma()
            g(f"{lab}:")
        if i == I_LATE + W:
            lab = g.lab("sigl")
            g(f"s_cmp_lt_u32 {sR}, {URG}", f"s_cbranch_scc1 {lab}")
            lds_signal(g, L_CNT + 4, 4)
            g(f"{lab}:")
    g(f"v_and_b32 v{vX}, 15, v0", f"v_lshrrev_b32 v{vX+1}, 1, v{vX}", f"v_and_b32 v{vX+2}, 1, v{vX}",
      f"v_mov_b32 v{vX+3}, 0xffff", f"v_mov_b32 v{vT}, 0xffff0000",
      f"v_cmp_eq_u32 vcc, 1, v{vX+2}", "s_nop 1", f"v_cndmask_b32 v{vX+3}, v{vX+3}, v{vT}, vcc")
    for r in range(4):
        g(f"v_cmp_eq_u32 vcc, {r}, v{vX+1}", "s_nop 1", f"v_cndmask_b32 v{vM+r}, 0, v{vX+3}, vcc")
    g("s_mov_b32 s60, 0xcccccccc", "s_mov_b32 s61, 0xcccccccc", "s_mov_b32 s62, 0xaaaaaaaa", "s_mov_b32 s63, 0xaaaaaaaa")
    for r in range(4):
        g(f"v_mov_b32 v{vD+r}, 0")
    g(f"v_lshlrev_b32 v{vX}, 4, v{vX}")
    stamp(g, 1)
    g("s_barrier")
    stamp(g, 2)
    dbgmax(g, 2)
    g(f"ds_read_b128 {v(vQ,4)}, v{vX} offset:{L_Q}", "s_waitcnt lgkmcnt(0)")

    def kreg(n):
        if n < NREG_K:
            return slot_of("K", n)
        return vSL + 4 * (16 + (n & 15))

    def dots(ns):
        for r in range(4):
            for n in ns:
                t = vT + (n & 15)
                c = "0" if r == 0 else f"v{t}"
                g(f"v_dot2_f32_bf16 v{t}, v{kreg(n)+r}, v{vQ+r}, {c}")

    def tree(gam):
        g("s_nop 2")
        for n in range(8):
            g(f"v_add_f32_dpp v{vT+n}, v{vT+n}, v{vT+n} row_ror:8 row_mask:0xf bank_mask:0x3")
            g(f"v_add_f32_dpp v{vT+n}, v{vT+n+8}, v{vT+n+8} row_ror:8 row_mask:0xf bank_mask:0xc")
        for n in range(4):
            g(f"v_add_f32_dpp v{vT+n}, v{vT+n}, v{vT+n} row_shl:4 row_mask:0xf bank_mask:0x5")
            g(f"v_add_f32_dpp v{vT+n}, v{vT+n+4}, v{vT+n+4} row_shr:4 row_mask:0xf bank_mask:0xa")
        g("s_nop 0")
        for n in range(4):
            g(f"v_add_f32_dpp v{vT+n}, v{vT+n}, v{vT+n} quad_perm:[2,3,0,1] {DPPF}")
        g(f"v_cndmask_b32 v{vT}, v{vT}, v{vT+2}, {sM1}", f"v_cndmask_b32 v{vT+1}, v{vT+1}, v{vT+3}, {sM1}", "s_nop 1")
        for n in range(2):
            g(f"v_add_f32_dpp v{vT+n}, v{vT+n}, v{vT+n} quad_perm:[1,0,3,2] {DPPF}")
        g(f"v_cndmask_b32 v{vS+gam}, v{vT}, v{vT+1}, {sM0}")

    freed = 0

    def can_issue():
        i = state["i"]
        if i >= len(order):
            return False
        kind, n = order[i]
        return n < NS - NREG_K or (NREG_K + n) % NS < freed

    every = opt.get("burst_every", 2)
    qi = 0
    for gam in range(4):
        ns_all = list(range(16 * gam, 16 * gam + 16))
        for n in ns_all:
            if n >= NREG_K:
                g(f"ds_read_b128 {v(kreg(n),4)}, v{vLDS} offset:{(n - NREG_K) * 1024}")
        for q4 in range(4):
            ns = ns_all[4 * q4: 4 * q4 + 4]
            regn = [n for n in ns if n < NREG_K]
            if regn:
                g(f"s_waitcnt vmcnt({min(63, issued_after('K', regn[-1]))})")
            if any(n >= NREG_K for n in ns):
                g("s_waitcnt lgkmcnt(0)")
            if 'qk' not in SKIP:
                dots(ns)
            if regn:
                freed = min(regn[-1] + 1, 16)
            qi += 1
            if qi % every == 0 and can_issue():
                issue_next()
        if 'qk' not in SKIP:
            tree(gam)
    freed = NS
    stamp(g, 3)
    for _ in range(opt.get("sm_issue0", 0)):
        issue_next()
    g(f"v_max3_f32 v{vX}, v{vS}, v{vS+1}, v{vS+2}", f"v_max_f32 v{vX}, v{vX}, v{vS+3}")
    allreduce(g, [vX], "v_max_f32", [vX + 1])
    g(f"v_mul_f32 v{vX}, {hex(f2u(CS))}, v{vX}", f"s_mov_b32 {sT0}, {hex(f2u(CS))}")
    issue_next()
    for r in range(4):
        g(f"v_fma_f32 v{vS+r}, v{vS+r}, {sT0}, -v{vX}")
    for r in range(4):
        g(f"v_exp_f32 v{vS+r}, v{vS+r}")
    g("s_nop 0")
    g(f"v_add_f32 v{vX+1}, v{vS}, v{vS+1}", f"v_add_f32 v{vX+2}, v{vS+2}, v{vS+3}", f"v_add_f32 v{vX+1}, v{vX+1}, v{vX+2}")
    allreduce(g, [vX + 1], "v_add_f32", [vX + 2])
    g(f"s_lshl_b32 {sT0}, s3, 3", f"v_mov_b32 v{vX+2}, {sT0}", "s_mov_b64 exec, 1",
      f"ds_write_b64 v{vX+2}, {v(vX,2)} offset:{L_MLW}", "s_mov_b64 exec, -1", "s_waitcnt lgkmcnt(0)")
    issue_next()
    g("s_barrier")
    stamp(g, 4)
    g(f"v_mov_b32 v{vX+1}, 0", f"ds_read_b128 {v(vT,4)}, v{vX+1} offset:{L_MLW}",
      f"ds_read_b128 {v(vT+4,4)}, v{vX+1} offset:{L_MLW+16}", "s_waitcnt lgkmcnt(0)",
      f"v_max3_f32 v{vX+1}, v{vT}, v{vT+2}, v{vT+4}", f"v_max_f32 v{vX+1}, v{vX+1}, v{vT+6}",
      f"v_sub_f32 v{vX}, v{vX}, v{vX+1}", f"v_exp_f32 v{vX}, v{vX}", "s_nop 0")
    for r in range(4):
        g(f"v_mul_f32 v{vS+r}, v{vS+r}, v{vX}")
    for r in range(4):
        g(f"v_cvt_pk_bf16_f32 v{vS+r}, v{vS+r}, v{vS+r}")
    vRA, vOA, vOB = vT + 8, vT + 9, vT + 10
    g(f"v_lshrrev_b32 v{vRA}, 4, v0", f"v_lshlrev_b32 v{vRA}, 7, v{vRA}", f"v_and_b32 v{vX+1}, 15, v0",
      f"v_lshlrev_b32 v{vX+1}, 2, v{vX+1}", f"v_add_u32 v{vRA}, v{vRA}, v{vX+1}", f"s_lshl_b32 s66, s3, 9", f"v_add_u32 v{vRA}, s66, v{vRA}",
      f"v_lshlrev_b32 v{vOA}, 5, v0", f"v_lshlrev_b32 v{vOB}, 4, v0",
      f"s_lshl_b32 s66, {sH}, 3", f"s_add_u32 s66, s66, {sJ}", "s_lshl_b32 s66, s66, 8", f"s_add_u32 s66, s66, {WS_OS}",
      f"v_mov_b32 v{vX+1}, 0", f"ds_read_b32 v{vX+1}, v{vX+1} offset:{L_CNT + 20}", "s_waitcnt lgkmcnt(0)", f"v_readfirstlane_b32 s67, v{vX+1}")
    make_srd(g, SRD_WS, 28, 0, WS_SIZE)

    def pv(n):
        if 'pv' in SKIP:
            return
        B = vB[n & 1]
        for r in range(4):
            g(f"v_and_b32_dpp v{B+r}, v{vS+(n>>4)}, v{vM+r} row_newbcast:{n&15} {DPPF}")
        g("s_nop 1")
        mfma(g, vD, slot_of("V", n), B, False)

    nb2b = opt.get("b2b_at", 24)
    nb3 = opt.get("b3_at", 64 - W)
    for n in range(64):
        pos = order.index(("V", n))
        while state["i"] < len(order) and state["i"] <= pos + W - 1:
            issue_next()
        if n == nb2b:
            if not opt.get("st_ka"):
                stamp(g, 8)
            lds_signal(g, L_CNT + 24, vX + 1)
        if n == nb3:
            if not opt.get("st_ka"):
                stamp(g, 5)
            lds_signal(g, L_CNT + 28, vX + 1)
        g(f"s_waitcnt vmcnt({min(63, issued_after('V', n))})")
        pv(n)
        cu = opt.get("catchup", 5)
        if n % cu == cu - 1 and state["i"] < len(order) and state["i"] > pos + W:
            issue_next()
    stamp(g, 6)
    dbgmax(g, 3)
    Lno = g.lab("notlast")
    g(f"v_mov_b32 v{vT}, 0", f"v_mov_b32 v{vT+1}, 1", "s_mov_b32 exec_lo, 0x00ff00ff", "s_mov_b32 exec_hi, 0x00ff00ff", "s_nop 4")
    for r in range(4):
        g(f"ds_write_b32 v{vRA}, v{vD+r} offset:{L_RED + r*32}")
    g("s_mov_b64 exec, 1", f"ds_add_rtn_u32 v{vT+1}, v{vT}, v{vT+1} offset:{L_CNT}", "s_waitcnt lgkmcnt(0)",
      f"v_readfirstlane_b32 {sT2}, v{vT+1}", "s_mov_b64 exec, 0xffff", f"s_cmp_lg_u32 {sT2}, 3", f"s_cbranch_scc1 {Lno}")
    R = vSL
    for w in range(4):
        g(f"ds_read_b128 {v(R+8*w,4)}, v{vOA} offset:{L_RED + w*512}", f"ds_read_b128 {v(R+4+8*w,4)}, v{vOA} offset:{L_RED + w*512 + 16}")
    g("s_waitcnt lgkmcnt(4)")
    for e in range(8):
        g(f"v_add_f32 v{R+e}, v{R+e}, v{R+8+e}")
    g("s_waitcnt lgkmcnt(0)")
    for e in range(8):
        g(f"v_add_f32 v{R+16+e}, v{R+16+e}, v{R+24+e}")
    for e in range(8):
        g(f"v_add_f32 v{R+e}, v{R+e}, v{R+16+e}")
    for r in range(4):
        g(f"v_cvt_pk_bf16_f32 v{R+r}, v{R+2*r}, v{R+2*r+1}")
    store_sel(g, "s67", f"buffer_store_dwordx4 {v(R,4)}, v{vOB}, {srd(SRD_WS)}, s66 offen @SC ;@opub")
    stamp(g, 7)
    g(f"{Lno}:")
    if STAMPS:
        g("s_memtime s[100:101]")
    end(g)


def gen_aux(g, opt):
    vTAU, vI, vG, vMSK = 1, 2, 3, 4
    EX8 = ("s_mov_b32 exec_lo, 0x00030003", "s_mov_b32 exec_hi, 0x00030003")
    SPROT = False

    def tagify(dst, src):
        g(f"v_and_or_b32 v{dst}, v{src}, v{vMSK}, v{vTAU}")

    g(f"s_load_dword s30, s[28:29], {WS_EPOCH}")
    g(f"s_sub_u32 {sA}, s3, 4")
    lab = g.lab("zc")
    g(f"s_cmp_lg_u32 {sA}, 2", f"s_cbranch_scc1 {lab}", "v_mov_b32 v8, 0", "v_mov_b32 v9, 0", "v_mov_b32 v10, 0", "v_mov_b32 v11, 0",
      "s_nop 0")
    g("s_mov_b64 exec, 1", f"ds_write_b128 v8, v[8:11] offset:{L_CNT}", f"ds_write_b128 v8, v[8:11] offset:{L_CNT + 16}", "s_mov_b64 exec, -1", "s_waitcnt lgkmcnt(0)", f"{lab}:", "s_barrier")
    make_srd(g, SRD_WS, 28, 0, WS_SIZE)
    g(f"v_and_b32 v{vI}, 15, v0", f"v_lshrrev_b32 v{vG}, 4, v0", f"v_mov_b32 v{vMSK}, {hex(0xffffffff ^ TAGMASK)}")
    g(f"s_mul_i32 {sPHI}, {sX}, 6", f"s_add_u32 {sPHI}, {sPHI}, {sR}", f"s_sub_u32 {sPHI}, {sPHI}, 24",
      f"s_cmp_lt_u32 {sR}, 24", f"s_cselect_b32 {sPHI}, 0xff, {sPHI}",
      f"s_cmp_ge_u32 {sR}, 30", f"s_cselect_b32 {sPHI}, 0xff, {sPHI}",
      f"s_cmp_ge_u32 {sPHI}, 43", f"s_cselect_b32 {sPHI}, 0xff, {sPHI}")

    def tag_ready():
        g("s_waitcnt lgkmcnt(0)", f"s_add_u32 {sTAU}, s30, 1", f"s_and_b32 {sTAU}, {sTAU}, {TAGMASK}", f"v_mov_b32 v{vTAU}, {sTAU}")

    LA1, LA2, LA3, LB1 = g.lab("a1"), g.lab("a2"), g.lab("a3"), g.lab("aux_b1")
    g(f"s_cmp_eq_u32 {sA}, 1", f"s_cbranch_scc1 {LA1}", f"s_cmp_eq_u32 {sA}, 2", f"s_cbranch_scc1 {LA2}",
      f"s_cmp_eq_u32 {sA}, 3", f"s_cbranch_scc1 {LA3}")

    g(f"s_cmp_ge_u32 {sR}, 24", f"s_cbranch_scc1 {LA3}")
    g(f"s_lshr_b32 s64, {sR}, 2", f"s_and_b32 s65, {sR}, 3")
    make_srd(g, SRD_B, 20, 0, 2048)
    g(f"v_and_b32 v5, 1, v{vG}", "v_lshlrev_b32 v8, 10, v5", f"v_lshlrev_b32 v9, 4, v{vI}", "v_add_u32 v8, v8, v9",
      f"s_lshl_b32 {sT1}, s65, 8", f"buffer_load_dwordx4 v[12:15], v8, {srd(SRD_B)}, {sT1} offen")
    g("v_lshlrev_b32 v8, 8, v5", "v_add_u32 v8, v8, v9")
    g(f"v_and_b32 v10, 1, v{vI}", "v_lshlrev_b32 v10, 8, v10", f"v_lshlrev_b32 v11, 4, v{vG}", "v_add_u32 v10, v10, v11")
    tr_addr(g, 11, 16, vI, vG, 7)
    g("s_waitcnt vmcnt(0)")
    for r in range(4):
        g(f"v_lshlrev_b32 v{20+2*r}, 16, v{12+r}", f"v_and_b32 v{21+2*r}, 0xffff0000, v{12+r}")
    silu(g, range(20, 28), range(28, 36))
    for r in range(4):
        g(f"v_cvt_pk_bf16_f32 v{12+r}, v{20+2*r}, v{21+2*r}")
    g(f"ds_write_b128 v8, v[12:15] offset:{L_ACT1}")
    tag_ready()
    for k in range(4):
        g(f"ds_read_b128 {v(40+4*k,4)}, v10 offset:{L_ACT1 + k*64}")
    g("s_waitcnt lgkmcnt(0)")
    lds_wait(g, L_CNT + 4, 4, 12)
    for t in range(4):
        for k in range(4):
            tr_read(g, 64 + (t * 4 + k) * 4, 11, L_WMOD + k * 4096 + t * 32, 128)
        g("s_waitcnt lgkmcnt(0)")
        for k in range(4):
            mfma(g, 16 + 4 * t, 64 + (t * 4 + k) * 4, 40 + 4 * k, k == 0)
    g(f"s_lshl_b32 {sT0}, s64, 3", f"s_add_u32 {sT0}, {sT0}, {sX}", f"s_lshl_b32 s66, {sT0}, 11", f"s_add_u32 s66, s66, {WS_MODP}",
      f"s_lshl_b32 {sT1}, s65, 9", f"s_add_u32 {sT0}, s66, {sT1}",
      f"v_lshlrev_b32 v8, 6, v{vI}", f"v_lshlrev_b32 v9, 4, v{vG}", "v_add_u32 v8, v8, v9", "s_nop 4")
    for r in range(16):
        tagify(16 + r, 16 + r)
    g(*EX8)
    for t in range(4):
        g(f"buffer_store_dwordx4 {v(16+4*t,4)}, v8, {srd(SRD_WS)}, {sT0} offen offset:{t*128} sc1 ;@modp")
    g("s_mov_b64 exec, -1")
    stamp(g, 1)
    g("s_cmp_lg_u32 s65, 0", f"s_cbranch_scc1 {LB1}", "s_cmp_lt_u32 s64, 2", f"s_cbranch_scc1 {LB1}")
    backoff(g, opt.get("fin_sl", 64))
    g("v_lshlrev_b32 v8, 4, v0")
    poll(g, "p_fin",
         lambda: g(f"buffer_load_dwordx4 v[16:19], v8, {srd(SRD_WS)}, s66 offen sc1",
                   f"buffer_load_dwordx4 v[20:23], v8, {srd(SRD_WS)}, s66 offen offset:1024 sc1"),
         lambda: check_intag(g, range(16, 24), vTAU, 12))
    for e in range(4):
        g(f"v_add_f32 v{16+e}, v{16+e}, v{20+e}")
    swapreduce(g, range(16, 20), "v_add_f32", range(20, 24), "32")
    g("v_cvt_pk_bf16_f32 v20, v16, v17", "v_cvt_pk_bf16_f32 v21, v18, v19",
      "v_lshlrev_b32 v16, 16, v20", "v_and_b32 v17, 0xffff0000, v20", "v_lshlrev_b32 v18, 16, v21", "v_and_b32 v19, 0xffff0000, v21")
    for e in range(4):
        tagify(16 + e, 16 + e)
    g("v_lshrrev_b32 v8, 3, v0", "v_and_b32 v8, 3, v8", "v_lshlrev_b32 v8, 6, v8", "v_lshrrev_b32 v9, 2, v0", "v_and_b32 v9, 1, v9",
      "v_lshlrev_b32 v9, 11, v9", "v_add_u32 v8, v8, v9", "v_and_b32 v9, 3, v0", "v_lshlrev_b32 v9, 4, v9", "v_add_u32 v8, v8, v9",
      f"s_sub_u32 {sT0}, s64, 2", f"s_lshl_b32 {sT0}, {sT0}, 12", f"s_lshl_b32 {sT1}, {sX}, 8", f"s_add_u32 {sT0}, {sT0}, {sT1}",
      f"s_add_u32 {sT0}, {sT0}, {WS_MODF}", "s_mov_b32 exec_hi, 0",
      f"buffer_store_dwordx4 v[16:19], v8, {srd(SRD_WS)}, {sT0} offen sc1 ;@modf", "s_mov_b64 exec, -1")
    g(f"s_branch {LB1}")

    g(f"{LA1}:")
    make_srd(g, SRD_B, 4, 0, 2048)
    g("v_lshlrev_b32 v8, 4, v0")
    g(f"buffer_load_dwordx4 v[12:15], v8, {srd(SRD_B)}, 0 offen", f"buffer_load_dwordx4 v[16:19], v8, {srd(SRD_B)}, 0 offen offset:1024")
    g("v_lshrrev_b32 v5, 2, v0", "v_and_b32 v5, 1, v5",
      "v_lshrrev_b32 v6, 3, v0", "v_and_b32 v6, 3, v6", "v_lshlrev_b32 v6, 4, v6", "v_and_b32 v7, 3, v0", "v_lshlrev_b32 v7, 2, v7",
      "v_add_u32 v6, v6, v7",
      "v_lshlrev_b32 v7, 10, v5", "v_lshlrev_b32 v9, 1, v6", "v_add_u32 v9, v9, v7",
      f"s_lshl_b32 {sT1}, {sJ}, 7", f"buffer_load_dwordx2 v[20:21], v9, {srd(SRD_B)}, {sT1} offen")
    tr_addr(g, 11, 22, vI, vG, 8)
    g("s_waitcnt vmcnt(0)")
    for b in range(2):
        for r in range(4):
            g(f"v_lshlrev_b32 v{24+8*b+2*r}, 16, v{12+4*b+r}", f"v_and_b32 v{25+8*b+2*r}, 0xffff0000, v{12+4*b+r}")
    for b in range(2):
        base = 24 + 8 * b
        g(f"v_add_f32 v{40+b}, v{base}, v{base+1}")
        for e in range(2, 8):
            g(f"v_add_f32 v{40+b}, v{40+b}, v{base+e}")
    allreduce(g, [40, 41], "v_add_f32", [44, 45])
    g(f"v_mul_f32 v40, {hex(f2u(1/512))}, v40", f"v_mul_f32 v41, {hex(f2u(1/512))}, v41")
    for b in range(2):
        base = 24 + 8 * b
        for e in range(8):
            g(f"v_sub_f32 v{base+e}, v{base+e}, v{40+b}")
        g(f"v_mul_f32 v{42+b}, v{base}, v{base}")
        for e in range(1, 8):
            g(f"v_fmac_f32 v{42+b}, v{base+e}, v{base+e}")
    allreduce(g, [42, 43], "v_add_f32", [44, 45])
    for b in range(2):
        g(f"v_mov_b32 v44, {hex(f2u(1e-5))}", f"v_fmac_f32 v44, {hex(f2u(1/512))}, v{42+b}", f"v_rsq_f32 v{42+b}, v44", "s_nop 0")
    g("v_cmp_eq_u32 vcc, 1, v5", "s_nop 1", "v_cndmask_b32 v40, v40, v41, vcc", "v_cndmask_b32 v42, v42, v43, vcc",
      "v_lshlrev_b32 v24, 16, v20", "v_and_b32 v25, 0xffff0000, v20", "v_lshlrev_b32 v26, 16, v21", "v_and_b32 v27, 0xffff0000, v21")
    for e in range(4):
        g(f"v_sub_f32 v{24+e}, v{24+e}, v40", f"v_mul_f32 v{24+e}, v{24+e}, v42")
    tag_ready()
    lds_wait(g, L_CNT + 8, 4, 12)
    for t in range(8):
        for k in range(2):
            tr_read(g, 64 + (t * 2 + k) * 4, 11, L_WQ + k * 8192 + t * 32, 256)
        if t % 2 == 1:
            g("s_waitcnt lgkmcnt(0)")
    g(f"s_lshl_b32 {sT0}, {sJ}, 11", f"s_add_u32 {sT0}, {sT0}, {WS_MODP}", f"s_add_u32 {sT1}, {sT0}, {8*2048}", "v_lshlrev_b32 v9, 4, v0")
    backoff(g, opt.get("saca_sl", 0))
    g("v_and_b32 v10, 31, v0", "v_lshlrev_b32 v10, 7, v10", f"s_lshl_b32 {sT2}, {sX}, 12", f"s_add_u32 {sT2}, {sT2}, {WS_XL}",
      f"s_mul_i32 {sT3}, {sTAU}, 0x00400401", f"v_mov_b32 v7, {sT3}")

    def chk_saca():
        check_intag(g, range(28, 44), vTAU, 12)
        g("v_xor_b32 v13, v52, v7", "v_sub_u32 v56, v53, v7", "v_lshrrev_b32 v14, 4, v56", "v_or3_b32 v12, v12, v13, v14", "v_cmp_ne_u32 vcc, 0, v12")
    poll(g, "p_saca",
         lambda: g(f"buffer_load_dwordx4 v[28:31], v9, {srd(SRD_WS)}, {sT0} offen sc1",
                   f"buffer_load_dwordx4 v[32:35], v9, {srd(SRD_WS)}, {sT0} offen offset:1024 sc1",
                   f"buffer_load_dwordx4 v[36:39], v9, {srd(SRD_WS)}, {sT1} offen sc1",
                   f"buffer_load_dwordx4 v[40:43], v9, {srd(SRD_WS)}, {sT1} offen offset:1024 sc1",
                   f"buffer_load_dwordx4 v[52:55], v10, {srd(SRD_WS)}, {sT2} offen sc1"),
         chk_saca)
    stamp(g, 1)
    g("s_getreg_b32 s64, hwreg(HW_REG_XCC_ID, 0, 4)", "v_cmp_ne_u32 vcc, s64, v56", "s_nop 4", "s_cmp_eq_u64 vcc, 0", "s_cselect_b32 s69, 1, 0")
    if not opt.get("local", True):
        g("s_mov_b32 s69, 0")
    g("v_mov_b32 v12, 0", "v_mov_b32 v13, s69", f"ds_write_b32 v12, v13 offset:{L_CNT + 20}")
    for e in range(4):
        g(f"v_add_f32 v{28+e}, v{28+e}, v{32+e}", f"v_add_f32 v{36+e}, v{36+e}, v{40+e}")
    swapreduce(g, [28, 29, 30, 31, 36, 37, 38, 39], "v_add_f32", range(44, 52), "32")
    g("v_cvt_pk_bf16_f32 v44, v28, v29", "v_cvt_pk_bf16_f32 v45, v30, v31", "v_cvt_pk_bf16_f32 v46, v36, v37", "v_cvt_pk_bf16_f32 v47, v38, v39")
    for e in range(4):
        src_s, src_c = 44 + e // 2, 46 + e // 2
        if e % 2 == 0:
            g(f"v_lshlrev_b32 v{28+e}, 16, v{src_s}", f"v_lshlrev_b32 v{36+e}, 16, v{src_c}")
        else:
            g(f"v_and_b32 v{28+e}, 0xffff0000, v{src_s}", f"v_and_b32 v{36+e}, 0xffff0000, v{src_c}")
    for e in range(4):
        g(f"v_add_f32 v{36+e}, 1.0, v{36+e}", f"v_fma_f32 v{24+e}, v{24+e}, v{36+e}, v{28+e}")
    g("v_cvt_pk_bf16_f32 v24, v24, v25", "v_cvt_pk_bf16_f32 v25, v26, v27",
      "v_lshlrev_b32 v9, 7, v5", "v_lshlrev_b32 v10, 1, v6", "v_add_u32 v9, v9, v10", f"ds_write_b64 v9, v[24:25] offset:{L_ACT2}",
      f"v_and_b32 v10, 1, v{vI}", "v_lshlrev_b32 v10, 7, v10", f"v_lshlrev_b32 v12, 4, v{vG}", "v_add_u32 v10, v10, v12",
      "s_waitcnt lgkmcnt(0)",
      f"ds_read_b128 v[24:27], v10 offset:{L_ACT2}", f"ds_read_b128 v[28:31], v10 offset:{L_ACT2+64}", "s_waitcnt lgkmcnt(0)")
    for k in range(2):
        for t in range(8):
            mfma(g, 128 + 4 * t, 64 + (t * 2 + k) * 4, 24 + 4 * k, k == 0)
    g(f"s_lshl_b32 {sT0}, {sH}, 13", f"s_lshl_b32 {sT1}, {sJ}, 9", f"s_add_u32 s66, {sT0}, {WS_QP}", f"s_add_u32 {sT0}, s66, {sT1}",
      f"v_and_b32 v8, 1, v{vI}", "v_lshlrev_b32 v8, 12, v8", f"v_lshrrev_b32 v9, 1, v{vI}", "v_and_b32 v9, 1, v9", "v_cmp_eq_u32 vcc, 1, v9",
      "v_lshlrev_b32 v9, 6, v9", "v_add_u32 v8, v8, v9", f"v_lshlrev_b32 v9, 4, v{vG}", "v_add_u32 v8, v8, v9", "s_nop 1")
    for tp in range(4):
        for e in range(4):
            g(f"v_cndmask_b32 v{128+8*tp+e}, v{128+8*tp+e}, v{132+8*tp+e}, vcc")
        for e in range(4):
            tagify(128 + 8 * tp + e, 128 + 8 * tp + e)
    g("s_mov_b32 exec_lo, 0x000f000f", "s_mov_b32 exec_hi, 0x000f000f")
    store_sel(g, "s69", *[f"buffer_store_dwordx4 {v(128+8*tp,4)}, v8, {srd(SRD_WS)}, {sT0} offen offset:{tp*128} @SC ;@qp" for tp in range(4)])
    g("s_mov_b64 exec, -1")
    stamp(g, 2)
    backoff(g, opt.get("q_sl", 64))
    g("v_lshlrev_b32 v8, 4, v0", f"s_lshl_b32 {sT1}, {sB}, 12", f"s_add_u32 {sT0}, s66, {sT1}")

    def issq():
        for k in range(4):
            g(f"buffer_load_dwordx4 {v(16+4*k,4)}, v8, {srd(SRD_WS)}, {sT0} offen offset:{k*1024} sc1")
    poll(g, "p_q", issq, lambda: check_intag(g, range(16, 32), vTAU, 12))
    stamp(g, 3)
    for e in range(4):
        g(f"v_add_f32 v{16+e}, v{16+e}, v{20+e}", f"v_add_f32 v{24+e}, v{24+e}, v{28+e}", f"v_add_f32 v{16+e}, v{16+e}, v{24+e}")
    swapreduce(g, range(16, 20), "v_add_f32", range(20, 24), "32")
    g("v_cvt_pk_bf16_f32 v16, v16, v17", "v_cvt_pk_bf16_f32 v17, v18, v19",
      "v_and_b32 v9, 31, v0", "v_lshlrev_b32 v9, 3, v9", f"ds_write_b64 v9, v[16:17] offset:{L_Q}")
    g(f"s_branch {LB1}")

    g(f"{LA2}:")
    tag_ready()
    g(f"s_mul_i32 {sT1}, {sTAU}, 0x00400401", "s_getreg_b32 s64, hwreg(HW_REG_XCC_ID, 0, 4)", f"s_add_u32 s64, s64, {sT1}",
      f"v_mov_b32 v8, {sT1}", "v_mov_b32 v9, s64", f"v_mov_b32 v10, {sT1}", f"v_mov_b32 v11, {sT1}", "v_lshlrev_b32 v12, 4, v0",
      f"s_lshl_b32 {sT0}, {sX}, 5", f"s_add_u32 {sT0}, {sT0}, {sR}", f"s_lshl_b32 {sT0}, {sT0}, 7", f"s_add_u32 {sT0}, {sT0}, {WS_XL}",
      "s_mov_b64 exec, 0xff", f"buffer_store_dwordx4 v[8:11], v12, {srd(SRD_WS)}, {sT0} offen sc1 ;@xl", "s_mov_b64 exec, -1")
    g(f"s_branch {LB1}")

    g(f"{LA3}:")
    tag_ready()

    g(f"{LB1}:", "s_waitcnt lgkmcnt(0)")
    stamp(g, 4)
    g("s_barrier")
    LnoML = g.lab("noml")
    Lni = g.lab("noinit")
    g(f"s_cmp_lg_u32 {sA}, 2", f"s_cbranch_scc1 {Lni}", "v_mov_b32 v8, 0", f"ds_read_b32 v8, v8 offset:{L_CNT + 20}",
      "v_lshlrev_b32 v12, 4, v0", "s_waitcnt lgkmcnt(0)", "v_readfirstlane_b32 s69, v8",
      "v_mov_b32 v8, -1", "v_mov_b32 v9, -1", "v_mov_b32 v10, -1", "v_mov_b32 v11, -1",
      f"s_lshl_b32 {sT0}, {sH}, 3", f"s_add_u32 {sT0}, {sT0}, {sJ}", f"s_lshl_b32 {sT0}, {sT0}, 8", f"s_add_u32 {sT0}, {sT0}, {WS_OS}",
      "s_mov_b64 exec, 0xffff")
    store_sel(g, "s69", f"buffer_store_dwordx4 v[8:11], v12, {srd(SRD_WS)}, {sT0} offen @SC ;@inito")
    g("s_mov_b64 exec, -1", f"{Lni}:")
    g("s_barrier")
    g(f"s_cmp_lg_u32 {sA}, 2", f"s_cbranch_scc1 {LnoML}")
    g("v_mov_b32 v8, 0", f"ds_read_b128 v[12:15], v8 offset:{L_MLW}", f"ds_read_b128 v[16:19], v8 offset:{L_MLW+16}", "s_waitcnt lgkmcnt(0)",
      "v_max3_f32 v20, v12, v14, v16", "v_max_f32 v20, v20, v18")
    for m in (12, 14, 16, 18):
        g(f"v_sub_f32 v{m}, v{m}, v20", f"v_exp_f32 v{m}, v{m}")
    g("s_nop 0", "v_mul_f32 v21, v12, v13", "v_fmac_f32 v21, v14, v15", "v_fmac_f32 v21, v16, v17", "v_fmac_f32 v21, v18, v19",
      f"s_mul_i32 {sT1}, {sTAU}, 0x00400401", f"v_mov_b32 v22, {sT1}", "s_getreg_b32 s64, hwreg(HW_REG_XCC_ID, 0, 4)",
      f"s_add_u32 {sT1}, {sT1}, s64", f"v_mov_b32 v23, {sT1}",
      f"s_lshl_b32 {sT0}, {sH}, 3", f"s_add_u32 {sT0}, {sT0}, {sJ}", f"s_lshl_b32 {sT0}, {sT0}, 7", f"s_add_u32 {sT0}, {sT0}, {WS_ML}",
      "v_lshlrev_b32 v8, 4, v0", "s_waitcnt vmcnt(0)", "s_mov_b64 exec, 0xff")
    store_sel(g, "s69", f"buffer_store_dwordx4 v[20:23], v8, {srd(SRD_WS)}, {sT0} offen @SC ;@ml")
    g("s_mov_b64 exec, -1")
    g(f"{LnoML}:")

    LT3P, LWOP, LT3, LLEAD = g.lab("t3prep"), g.lab("woprep"), g.lab("t3"), g.lab("lead")
    g("v_mov_b32 v8, 0", f"ds_read_b32 v8, v8 offset:{L_CNT + 20}", "s_waitcnt lgkmcnt(0)", "v_readfirstlane_b32 s71, v8")
    lds_wait(g, L_CNT + 24, 4, 12)
    g(f"s_cmp_eq_u32 {sPHI}, 0xff", f"s_cbranch_scc1 {LWOP}")

    g(f"s_mul_i32 {sT0}, {sA}, {128*2752}", f"s_lshl_b32 {sT1}, {sPHI}, 6", f"s_add_u32 s64, {sT0}, {sT1}")
    make_srd(g, SRD_A, 16, "s64", 512 * 1376 * 2)
    g(f"s_lshl_b32 {sT0}, {sPHI}, 15", f"s_lshl_b32 {sT1}, {sA}, 8", f"s_add_u32 s64, {sT0}, {sT1}")
    make_srd(g, SRD_B, 18, "s64", 1376 * 512 * 2)
    g("v_lshrrev_b32 v205, 2, v0", "v_mul_u32_u24 v205, 2752, v205", "v_and_b32 v10, 3, v0", "v_lshlrev_b32 v10, 4, v10",
      "v_add_u32 v205, v205, v10", f"s_lshl_b32 s65, {sA}, 13", f"s_add_u32 s65, s65, {L_KB}", "s_add_u32 s66, s65, 32768",
      f"v_lshlrev_b32 v206, 10, v{vG}", f"v_lshlrev_b32 v11, 4, v{vI}", "v_add_u32 v206, v206, v11")
    vB1, vB2 = 64, 96
    vTR1, vTR2 = 207, 208
    vX3, vGA3, vC3, vGB = 224, 228, 232, 236
    g("v_lshrrev_b32 v5, 5, v0", "v_and_b32 v8, 31, v0",
      f"s_lshl_b32 s68, {sA}, 9", "v_lshlrev_b32 v9, 11, v5", "v_lshlrev_b32 v10, 4, v8", "v_add_u32 v9, v9, v10", "v_add_u32 v9, s68, v9",
      f"s_mov_b32 {sT0}, {WS_MODF}", f"s_mov_b32 {sT1}, {WS_MODF + 4096}", f"s_mov_b32 {sT2}, {WS_MODF + 8192}")
    vXA, vFA = 202, 199
    g(f"v_mov_b32 v{vXA}, v9")
    g("v_lshrrev_b32 v7, 2, v0", "v_and_b32 v7, 1, v7", f"v_lshlrev_b32 v{vFA}, 11, v7", "v_and_b32 v7, 3, v0", "v_lshlrev_b32 v7, 4, v7",
      f"v_add_u32 v{vFA}, v{vFA}, v7", f"s_and_b32 {sT3}, {sPHI}, 31", f"s_lshl_b32 {sT3}, {sT3}, 6", f"v_add_u32 v{vFA}, {sT3}, v{vFA}",
      f"s_mov_b32 s69, {WS_MODF + 3*4096}")
    poll(g, "p_modf",
         lambda: g(f"buffer_load_dwordx4 v[12:15], v9, {srd(SRD_WS)}, {sT0} offen sc1", f"buffer_load_dwordx4 v[16:19], v9, {srd(SRD_WS)}, {sT1} offen sc1",
                   f"buffer_load_dwordx4 v[20:23], v9, {srd(SRD_WS)}, {sT2} offen sc1", f"buffer_load_dwordx4 {v(vGB,4)}, v{vFA}, {srd(SRD_WS)}, s69 offen sc1"),
         lambda: check_intag(g, list(range(12, 24)) + list(range(vGB, vGB + 4)), vTAU, 28))
    g("s_mov_b32 s72, s4", "s_mov_b32 s73, s5", "s_mov_b32 s74, 2048", "s_mov_b32 s75, 0x20000")
    g("v_lshrrev_b32 v10, 1, v9", "buffer_load_dwordx2 v[40:41], v10, s[72:75], 0 offen")
    for e in range(4):
        g(f"v_and_b32 v{vGA3+e}, v{vMSK}, v{12+e}", f"v_and_b32 v{16+e}, v{vMSK}, v{16+e}", f"v_and_b32 v{20+e}, v{vMSK}, v{20+e}",
          f"v_and_b32 v{vGB+e}, v{vMSK}, v{vGB+e}", f"v_add_f32 v{20+e}, 1.0, v{20+e}")
    vZA, vYA, vAA, vRA, vUA, vSA, vGW, vGR, vPA, vSW = 201, 200, 203, 204, 209, 210, 211, 212, 213, 214
    g(f"s_mul_i32 s68, {sA}, 1536", f"s_add_u32 s68, s68, {L_ACT3}", f"v_lshlrev_b32 v{vZA}, 8, v5", "v_lshlrev_b32 v10, 3, v8",
      f"v_add_u32 v{vZA}, v{vZA}, v10", f"v_add_u32 v{vZA}, s68, v{vZA}",
      "v_cvt_pk_bf16_f32 v42, v20, v21", "v_cvt_pk_bf16_f32 v43, v22, v23",
      "v_cvt_pk_bf16_f32 v44, v16, v17", "v_cvt_pk_bf16_f32 v45, v18, v19",
      f"v_lshlrev_b32 v{vC3}, 16, v42", f"v_and_b32 v{vC3+1}, 0xffff0000, v42", f"v_lshlrev_b32 v{vC3+2}, 16, v43", f"v_and_b32 v{vC3+3}, 0xffff0000, v43",
      f"ds_write_b64 v{vZA}, v[42:43] offset:512", f"ds_write_b64 v{vZA}, v[44:45] offset:1024",
      "s_waitcnt vmcnt(0)",
      f"v_lshlrev_b32 v{vX3}, 16, v40", f"v_and_b32 v{vX3+1}, 0xffff0000, v40", f"v_lshlrev_b32 v{vX3+2}, 16, v41", f"v_and_b32 v{vX3+3}, 0xffff0000, v41")
    tr_addr(g, vTR1, 12, vI, vG, 6, "s65")
    tr_addr(g, vTR2, 12, vI, vG, 8, "s66")
    g(f"v_lshrrev_b32 v{vYA}, 2, v8", f"v_lshlrev_b32 v{vYA}, 7, v{vYA}", "v_and_b32 v12, 3, v8", "v_lshlrev_b32 v12, 4, v12",
      f"v_add_u32 v{vYA}, v{vYA}, v12", "v_lshlrev_b32 v12, 6, v5", f"v_add_u32 v{vYA}, v{vYA}, v12",
      f"s_lshl_b32 {sT0}, {sA}, 10", f"v_add_u32 v{vYA}, {sT0}, v{vYA}")
    g(f"v_cmp_gt_u32 vcc, 6, v{vI}", "s_nop 1", f"v_cndmask_b32 v{vAA}, 0, v{vI}, vcc", f"v_lshlrev_b32 v{vAA}, 8, v{vAA}",
      f"v_lshlrev_b32 v12, 4, v{vG}", f"v_add_u32 v{vAA}, v{vAA}, v12", f"v_add_u32 v{vAA}, s68, v{vAA}",
      f"s_lshl_b32 {sT0}, {sA}, 10", f"v_lshlrev_b32 v{vRA}, 4, v0", f"v_add_u32 v{vRA}, {sT0}, v{vRA}")
    g("v_lshrrev_b32 v10, 4, v8", "v_lshlrev_b32 v10, 9, v10", f"v_lshlrev_b32 v11, 4, v{vI}", "v_add_u32 v10, v10, v11",
      "v_lshlrev_b32 v11, 2, v5", f"v_add_u32 v{vUA}, v10, v11", f"v_lshlrev_b32 v{vSA}, 5, v5",
      f"s_lshl_b32 {sT0}, {sA}, 3", f"v_add_u32 v{vSW}, {sT0}, v{vSA}",
      f"s_lshl_b32 {sT0}, {sA}, 7", f"v_lshlrev_b32 v{vGW}, 1, v0", f"v_add_u32 v{vGW}, {sT0}, v{vGW}",
      f"v_and_b32 v14, 1, v{vI}", "v_lshlrev_b32 v14, 6, v14", f"v_lshlrev_b32 v15, 4, v{vG}", "v_add_u32 v14, v14, v15", f"v_add_u32 v{vGR}, {sT0}, v14",
      f"v_lshlrev_b32 v{vPA}, 6, v{vI}", f"v_lshlrev_b32 v9, 4, v{vG}", f"v_add_u32 v{vPA}, v{vPA}, v9",
      f"s_lshl_b32 s68, {sPHI}, 12", f"s_lshl_b32 {sT1}, {sA}, 10", f"s_add_u32 s68, s68, {sT1}", f"s_add_u32 s68, s68, {WS_PS}")

    g(f"{LWOP}:")
    DEFER_WO = opt.get("defer_wo", True)
    vBW, vF, vWO, vWT, vOG, vYP = 128, 240, 215, 216, 217, 218
    g(f"s_lshl_b32 s64, {sH}, 17", f"s_lshl_b32 s77, {sA}, 15", "s_add_u32 s64, s64, s77", f"s_lshl_b32 s77, {sJ}, 7", "s_add_u32 s64, s64, s77")
    make_srd(g, 72, 12, "s64", 4096 * 512 * 2)
    g(f"v_lshrrev_b32 v{vWO}, 3, v0", f"v_lshlrev_b32 v{vWO}, 10, v{vWO}", "v_and_b32 v10, 7, v0", "v_lshlrev_b32 v10, 4, v10",
      f"v_add_u32 v{vWO}, v{vWO}, v10", f"s_lshl_b32 s77, {sA}, 12", f"s_add_u32 s77, s77, {L_WQ}")

    def wo_dma():
        if "wo" in SKIP:
            return
        for k in range(4):
            g(f"s_mov_b32 {sT2}, {k*8*1024}", f"s_add_u32 m0, s77, {k*1024}", "s_nop 0",
              f"buffer_load_dwordx4 v{vWO}, s[72:75], {sT2} offen nt lds")

    def wo_frags():
        g("s_waitcnt vmcnt(0)")
        lds_signal(g, L_CNT + 12, 12)
        lds_wait(g, L_CNT + 12, 4, 12)
        for k in range(4):
            tr_read(g, vBW + 4 * k, vWT, k * 4096, 128)
        g("s_waitcnt lgkmcnt(0)")
    if not DEFER_WO:
        wo_dma()
    g(f"s_lshl_b32 {sT0}, {sH}, 10", f"s_add_u32 {sT0}, {sT0}, {WS_ML}",
      f"v_and_b32 v8, 1, v{vG}", "v_lshlrev_b32 v8, 9, v8", "v_and_b32 v9, 3, v0", "v_lshlrev_b32 v9, 7, v9", "v_add_u32 v8, v8, v9",
      f"s_mul_i32 {sT1}, {sTAU}, 0x00400401", f"v_mov_b32 v5, {sT1}")

    def chk_ml():
        g("v_xor_b32 v16, v14, v5", "v_sub_u32 v17, v15, v5", "v_lshrrev_b32 v18, 4, v17", "v_or_b32 v16, v16, v18", "v_cmp_ne_u32 vcc, 0, v16")
    poll(g, "p_ml", lambda: g(f"buffer_load_dwordx4 v[12:15], v8, {srd(SRD_WS)}, {sT0} offen sc1"), chk_ml)
    g("v_mov_b32 v16, v12", "s_nop 1",
      f"v_max_f32_dpp v16, v16, v16 quad_perm:[1,0,3,2] {DPPF}", "s_nop 1",
      f"v_max_f32_dpp v16, v16, v16 quad_perm:[2,3,0,1] {DPPF}",
      "v_sub_f32 v12, v12, v16", "v_exp_f32 v12, v12", "s_nop 0", "v_mul_f32 v13, v13, v12", "s_nop 1",
      f"v_add_f32_dpp v13, v13, v13 quad_perm:[1,0,3,2] {DPPF}", "s_nop 1",
      f"v_add_f32_dpp v13, v13, v13 quad_perm:[2,3,0,1] {DPPF}",
      "v_rcp_f32 v13, v13", "s_nop 0", "v_mul_f32 v12, v12, v13", "s_nop 1")
    for r in range(4):
        g(f"v_mov_b32_dpp v{vF+r}, v12 quad_perm:[{r},{r},{r},{r}] {DPPF}")
    tr_addr(g, vWT, 12, vI, vG, 7)
    g(f"s_lshl_b32 {sT0}, {sA}, 5", f"s_add_u32 {sT0}, {sT0}, {L_WQ}", f"v_add_u32 v{vWT}, {sT0}, v{vWT}")
    if not DEFER_WO:
        wo_frags()
    g(f"s_lshl_b32 s64, {sH}, 11", f"s_add_u32 s64, s64, {WS_OS}",
      f"v_and_b32 v{vOG}, 7, v{vI}", f"v_lshlrev_b32 v{vOG}, 8, v{vOG}", f"v_lshlrev_b32 v7, 4, v{vG}", f"v_add_u32 v{vOG}, v{vOG}, v7",
      f"v_lshlrev_b32 v{vYP}, 6, v{vG}", f"v_lshlrev_b32 v9, 2, v{vI}", f"v_add_u32 v{vYP}, v{vYP}, v9",
      f"s_lshl_b32 s76, {sX}, 14", f"s_lshl_b32 {sT1}, {sJ}, 11", f"s_add_u32 s76, s76, {sT1}", f"s_add_u32 s76, s76, {WS_YP}",
      f"s_and_b32 {sT1}, {sR}, 3", f"s_lshl_b32 {sT1}, {sT1}, 9", f"s_add_u32 s76, s76, {sT1}", f"s_lshl_b32 {sT1}, {sA}, 7", f"s_add_u32 s76, s76, {sT1}")
    lds_wait(g, L_CNT + 28, opt.get("s3_cnt", 4), 12)
    if DEFER_WO:
        wo_dma()
        stamp(g, 5)
        wo_frags()
    stamp(g, 6)

    def isso():
        for k in range(4):
            g(f"buffer_load_dwordx4 {v(16+4*k,4)}, v{vOG}, {srd(SRD_WS)}, s64 offen offset:{k*64} sc1")
    poll(g, "p_o", isso, lambda: check_sentinel(g, range(16, 32), 12))
    stamp(g, 7)
    for k in range(4):
        mfma(g, 32, 16 + 4 * k, vBW + 4 * k, k == 0)
    g("s_mov_b32 exec_hi, 0", "s_nop 6",
      f"v_mul_f32 v32, v32, v{vF}", f"v_fmac_f32 v32, v33, v{vF+1}", f"v_fmac_f32 v32, v34, v{vF+2}", f"v_fmac_f32 v32, v35, v{vF+3}")
    tagify(32, 32)
    store_sel(g, "s71", f"buffer_store_dword v32, v{vYP}, {srd(SRD_WS)}, s76 offen @SC ;@yp")
    g("s_mov_b64 exec, -1")
    g(f"s_cmp_lg_u32 {sPHI}, 0xff", f"s_cbranch_scc1 {LT3}")
    g(f"s_cmp_ge_u32 {sR}, 8", "s_cbranch_scc1 L_exit", f"s_cmp_lg_u32 {sA}, 0", "s_cbranch_scc1 L_exit")
    g(f"s_lshl_b32 s66, {sX}, 14", f"s_lshl_b32 {sT1}, {sR}, 11", f"s_add_u32 s66, s66, {sT1}", f"s_add_u32 s66, s66, {WS_YP}",
      f"s_lshl_b32 s67, {sX}, 12", f"s_lshl_b32 {sT1}, {sR}, 9", f"s_add_u32 s67, s67, {sT1}", f"s_add_u32 s67, s67, {WS_YS}",
      "v_lshlrev_b32 v8, 4, v0")
    poll(g, "p_yp", lambda: g(f"buffer_load_dwordx4 v[16:19], v8, {srd(SRD_WS)}, s66 offen sc1",
                              f"buffer_load_dwordx4 v[20:23], v8, {srd(SRD_WS)}, s66 offen offset:1024 sc1"),
         lambda: check_intag(g, range(16, 24), vTAU, 12))
    stamp(g, 9)
    g("v_pk_add_f32 v[16:17], v[16:17], v[20:21]", "v_pk_add_f32 v[18:19], v[18:19], v[22:23]")
    swapreduce(g, range(16, 20), "v_add_f32", range(20, 24), "32")
    for e in range(4):
        tagify(16 + e, 16 + e)
    g("s_mov_b32 exec_hi, 0", f"buffer_store_dwordx4 v[16:19], v8, {srd(SRD_WS)}, s67 offen sc1 ;@ypub")
    stamp(g, 8)
    end(g)

    g(f"{LT3}:")
    for t in range(8):
        g(f"s_mov_b32 {sT2}, {t*16*2752}", f"s_add_u32 {sT3}, s65, {t*1024}")
        dma(g, 205, SRD_A, sT2, sT3, "w12")
    for t in range(8):
        g(f"s_mov_b32 {sT2}, {t*4*1024}", f"s_add_u32 {sT3}, s66, {t*1024}")
        dma(g, 206, SRD_B, sT2, sT3, "w12")
    g("s_waitcnt vmcnt(8)" if "w12" not in SKIP else "s_waitcnt vmcnt(0)")
    for tau in range(2):
        for k in range(4):
            tr_read(g, vB1 + (tau * 4 + k) * 4, vTR1, k * 2048 + tau * 32, 64)
    g("s_waitcnt vmcnt(0)")
    for t in range(8):
        tr_read(g, vB2 + 4 * t, vTR2, t * 32, 256)
    g("s_waitcnt lgkmcnt(0)")
    stamp(g, 10 if opt.get("fine") else 6)

    def pk(d, a_, b_):
        g(f"v_pk_add_f32 {v(d,2)}, {v(a_,2)}, {v(b_,2)}")

    def issy():
        for G_ in range(8):
            g(f"s_mov_b32 {sT1}, {WS_YS + G_*4096}", f"buffer_load_dwordx4 {v(16+4*G_,4)}, v{vYA}, {srd(SRD_WS)}, {sT1} offen sc1")
    poll(g, "p_y", issy, lambda: check_intag(g, range(16, 48), vTAU, 12))
    stamp(g, 7)
    for e in (0, 2):
        pk(16 + e, 16 + e, 20 + e); pk(24 + e, 24 + e, 28 + e); pk(32 + e, 32 + e, 36 + e); pk(40 + e, 40 + e, 44 + e)
    for e in (0, 2):
        pk(16 + e, 16 + e, 24 + e); pk(32 + e, 32 + e, 40 + e)
    for e in (0, 2):
        pk(16 + e, 16 + e, 32 + e)
    for e in (0, 2):
        g(f"v_pk_fma_f32 {v(16+e,2)}, {v(16+e,2)}, {v(vGA3+e,2)}, {v(vX3+e,2)}")
    for e in (0, 2):
        g(f"v_pk_mul_f32 {v(24+e,2)}, {v(16+e,2)}, {v(vC3+e,2)}")
    g("v_cvt_pk_bf16_f32 v24, v24, v25", "v_cvt_pk_bf16_f32 v25, v26, v27", f"ds_write_b64 v{vZA}, v[24:25]")
    for k in range(4):
        g(f"ds_read_b128 {v(28+4*k,4)}, v{vAA} offset:{k*64}")
    g(f"ds_write_b128 v{vXA}, v[16:19] offset:{L_X1}",
      "v_pk_add_f32 v[20:21], v[16:17], v[18:19]", "v_mul_f32 v49, v16, v16", "v_add_f32 v48, v20, v21",
      "v_fmac_f32 v49, v17, v17", "v_fmac_f32 v49, v18, v18", "v_fmac_f32 v49, v19, v19")
    rowreduce(g, [48, 49], "v_add_f32")
    g("s_waitcnt lgkmcnt(1)")
    for k in range(4):
        for tau in range(2):
            mfma(g, 16 + 4 * tau, 28 + 4 * k, vB1 + (tau * 4 + k) * 4, k == 0)
    swapreduce(g, [48, 49], "v_add_f32", [50, 51], "16")
    g("s_mov_b32 exec_lo, 1", "s_mov_b32 exec_hi, 1", f"ds_write_b64 v{vSW}, v[48:49] offset:{L_STAT}",
      "s_mov_b32 exec_lo, -1", "s_mov_b32 exec_hi, 0",
      f"ds_write_b128 v{vRA}, v[16:19] offset:{L_RED3}", f"ds_write_b128 v{vRA}, v[20:23] offset:{L_RED3 + 512}",
      "s_mov_b64 exec, -1", "s_waitcnt lgkmcnt(0)", "s_barrier")
    if opt.get("fine"): stamp(g, 2)
    for w in range(4):
        g(f"ds_read_b32 v{12+w}, v{vUA} offset:{L_RED3 + w*1024}", f"ds_read_b32 v{16+w}, v{vUA} offset:{L_RED3 + w*1024 + 8}",
          f"ds_read_b32 v{20+w}, v{vUA} offset:{L_RED3 + w*1024 + 256}")
    g(f"ds_read_b128 v[24:27], v{vSA} offset:{L_STAT}", f"ds_read_b128 v[28:31], v{vSA} offset:{L_STAT + 16}", "s_waitcnt lgkmcnt(0)")
    pk(24, 24, 26); pk(28, 28, 30); pk(12, 12, 14); pk(16, 16, 18); pk(20, 20, 22); pk(24, 24, 28)
    g("v_add_f32 v12, v12, v13", "v_add_f32 v16, v16, v17", "v_add_f32 v20, v20, v21")
    g(f"v_mul_f32 v24, {hex(f2u(1/512))}, v24", f"v_mul_f32 v25, {hex(f2u(1/512))}, v25",
      "v_fma_f32 v25, -v24, v24, v25", f"v_add_f32 v25, {hex(f2u(1e-5))}, v25", "v_rsq_f32 v25, v25",
      "v_fma_f32 v12, -v24, v16, v12", "v_fma_f32 v12, v12, v25, v20")
    silu(g, [12], [13])
    g("v_cvt_pk_bf16_f32 v12, v12, v12", f"ds_write_b16 v{vGW}, v12 offset:{L_ACTG}",
      f"ds_read_b128 v[16:19], v{vGR} offset:{L_ACTG}", "s_waitcnt lgkmcnt(0)")
    if opt.get("fine"): stamp(g, 3)
    for t in range(8):
        mfma(g, 128 + 4 * t, vB2 + 4 * t, 16, True)
    g(*EX8)
    for t in range(8):
        if t == 7:
            g("s_nop 1")
        for e in range(4):
            tagify(128 + 4 * t + e, 128 + 4 * t + e)
        g(f"buffer_store_dwordx4 {v(128+4*t,4)}, v{vPA}, {srd(SRD_WS)}, s68 offen offset:{t*128} sc1 ;@pspub")
    g("s_mov_b64 exec, -1")
    stamp(g, 8)
    g(f"s_cmp_lg_u32 {sA}, 0", "s_cbranch_scc1 L_exit", f"s_cmp_ge_u32 {sPHI}, 32", "s_cbranch_scc1 L_exit")
    g("v_lshrrev_b32 v9, 3, v0", "v_lshlrev_b32 v8, 12, v9", "v_and_b32 v10, 7, v0", "v_lshlrev_b32 v10, 4, v10", "v_add_u32 v8, v8, v10",
      "v_cmp_gt_u32 vcc, 3, v9", f"s_lshl_b32 {sT0}, {sPHI}, 7", f"s_add_u32 {sT0}, {sT0}, {WS_PS}",
      "v_cndmask_b32 v11, v10, v8, vcc", "v_cndmask_b32 v12, 0, 1.0, vcc",
      f"ds_read_b128 v[44:47], v{vFA} offset:{L_X1}", f"v_lshrrev_b32 v48, 1, v{vFA}",
      "s_mov_b32 s72, s24", "s_mov_b32 s73, s25", "s_mov_b32 s74, 2048", "s_mov_b32 s75, 0x20000")

    def issp():
        for k in range(6):
            vv = 11 if k == 5 else 8
            g(f"s_add_u32 {sT1}, {sT0}, {k*8*4096}", f"buffer_load_dwordx4 {v(16+4*k,4)}, v{vv}, {srd(SRD_WS)}, {sT1} offen sc1")
    poll(g, "p_ps", issp, lambda: check_intag(g, range(16, 40), vTAU, 13))
    stamp(g, 9)
    for e in (0, 2):
        pk(16 + e, 16 + e, 20 + e); pk(24 + e, 24 + e, 28 + e)
    for e in range(4):
        g(f"v_fma_f32 v{32+e}, v{36+e}, v12, v{32+e}")
    for e in (0, 2):
        pk(16 + e, 16 + e, 24 + e)
    for e in (0, 2):
        pk(16 + e, 16 + e, 32 + e)
    g("s_nop 0")
    for e in range(4):
        g(f"v_add_f32_dpp v{16+e}, v{16+e}, v{16+e} row_ror:8 {DPPF}")
    swapreduce(g, range(16, 20), "v_add_f32", range(20, 24), "16")
    swapreduce(g, range(16, 20), "v_add_f32", range(20, 24), "32")
    g("s_waitcnt lgkmcnt(0)")
    for e in (0, 2):
        g(f"v_pk_fma_f32 {v(16+e,2)}, {v(16+e,2)}, {v(vGB+e,2)}, {v(44+e,2)}")
    g("v_cvt_pk_bf16_f32 v16, v16, v17", "v_cvt_pk_bf16_f32 v17, v18, v19",
      "s_mov_b64 exec, 0xff", "buffer_store_dwordx2 v[16:17], v48, s[72:75], 0 offen")
    stamp(g, 10)
    dbgmax(g, 4)
    g(f"s_cmp_lg_u32 {sPHI}, 0", "s_cbranch_scc1 L_exit", "s_mov_b64 exec, 1", "s_add_u32 s30, s30, 1", "v_mov_b32 v8, 0", "v_mov_b32 v9, s30",
      f"buffer_store_dword v9, v8, {srd(SRD_WS)}, 0 offen sc1")
    end(g)


def generate(opt=None):
    global STAMPS, SKIP, POLL_LIMIT, DBGT, NL, LDS_SIZE
    opt = dict(opt or {})
    DBGT = opt.get("dbgt", False)
    POLL_LIMIT = opt.get("poll_limit", 400000)
    SKIP = set(opt.get("skip", ()))
    STAMPS = opt.get("stamps", False)
    NL = opt.get("NL", 24)
    LDS_SIZE = L_KB + 4 * NL * 1024
    g = G()
    hdr = open("cdna_kernels/" + NAME + ".s.ref").read().split("\n")
    for line in hdr:
        if line.startswith(";") and "@launch" not in line and "Override launch" not in line and "grid=ceil" not in line:
            g(line)
        elif not line.startswith(";"):
            break
    g(f"; @launch grid=(256,1,1) block=(512,1,1) lds={LDS_SIZE}")
    g('.amdgcn_target "amdgcn-amd-amdhsa--gfx950"', ".text", f".globl {NAME}_kernel", ".p2align 8",
      f".type {NAME}_kernel,@function", f"{NAME}_kernel:")
    stamp(g, 0)
    gen_entry(g, opt)
    if STAMPS:
        for k in range(1, NSTAMP):
            g(f"s_mov_b32 s{80+2*k}, 0")
    dbgmax(g, 0, True)
    dbgmax(g, 1)
    if opt.get("st_ka"):
        stamp(g, 8)
    g("s_cmp_ge_u32 s3, 4", "s_cbranch_scc1 L_aux")
    gen_stream(g, opt)
    g("L_aux:")
    if 'aux' in SKIP:
        g("s_endpgm")
    gen_aux(g, opt)
    g("L_exit:")
    end(g)
    g("L_end:", "s_endpgm")
    g('.section .rodata,"a"', ".p2align 6", f".amdhsa_kernel {NAME}_kernel",
      "  .amdhsa_next_free_vgpr 256", "  .amdhsa_next_free_sgpr 102", "  .amdhsa_accum_offset 256",
      "  .amdhsa_group_segment_fixed_size 0", "  .amdhsa_kernarg_size 104", "  .amdhsa_user_sgpr_count 2",
      "  .amdhsa_user_sgpr_kernarg_segment_ptr 1", "  .amdhsa_system_sgpr_workgroup_id_x 1",
      "  .amdhsa_float_denorm_mode_32 3", ".end_amdhsa_kernel")
    txt = g.text()
    drop = set(opt.get("drop", ()))
    kept = []
    for line in txt.split("\n"):
        if ";@" in line:
            nm = line.split(";@")[1].strip()
            line = line.split(";@")[0].rstrip()
            if nm in drop:
                continue
        kept.append(line)
    return "\n".join(kept)


if __name__ == "__main__":
    out = sys.argv[1] if len(sys.argv) > 1 else "cdna_kernels/" + NAME + ".s"
    opt = eval(sys.argv[2]) if len(sys.argv) > 2 else {}
    open(out, "w").write(generate(opt))
    print("wrote", out)
```

```python
import struct
import sys

NAME = "adaLN_cond__gqa_block_cached__dense_activation_silu__decode"

WS_EPOCH = 0x0
WS_MODP = 0x1000
WS_MODF = 0x19000
WS_ML = 0x20000
WS_QP = 0x30000
WS_OS = 0x70000
WS_XL = 0x28000
WS_YS = 0x80000
WS_PS = 0x98000
WS_YP = 0xD0000
WS_STAMP = 0x100000
WS_SIZE = 0x120000

L_Q = 0x0000
L_MLW = 0x0100
L_CNT = 0x0180
L_RED = 0x0200
L_RED2 = 0x0A00
L_RED3 = 0x1200
L_STAT = 0x2200
L_ACT1 = 0x2300
L_ACT2 = 0x2500
L_ACTG = 0x2600
L_ACT3 = 0x2800
L_X1 = 0x4000
L_WMOD = 0x5000
L_WQ = 0x9000
L_KB = 0xD000
NL = 24
LDS_SIZE = L_KB + 4 * NL * 1024

sX, sR, sH, sJ, sB, sS = "s48", "s49", "s50", "s51", "s52", "s53"
sT0, sT1, sT2, sT3 = "s54", "s55", "s56", "s57"
sA = "s58"
sPHI = "s59"
sM1, sM0 = "s[60:61]", "s[62:63]"
sCNT = "s70"
sTAU = "s31"
SRD_A, SRD_B, SRD_WS = 32, 36, 40
POLL_LIMIT = 400000
TAGMASK = 0x3FF

LOG2E = 1.4426950408889634
CS = (128 ** -0.5) * LOG2E
STAMPS = False
NSTAMP = 11
SKIP = set()


def f2u(x):
    return struct.unpack("<I", struct.pack("<f", x))[0]


class G:
    def __init__(self):
        self.L = []
        self.n = 0

    def __call__(self, *txt):
        for t in txt:
            self.L.extend(t.split("\n"))

    def lab(self, base):
        self.n += 1
        return f"L_{base}_{self.n}"

    def text(self):
        return "\n".join(self.L) + "\n"


def v(a, n=1):
    return f"v{a}" if n == 1 else f"v[{a}:{a+n-1}]"


def srd(n):
    return f"s[{n}:{n+3}]"


def make_srd(g, d, plo, off, total):
    if isinstance(off, int):
        assert off == 0
        g(f"s_mov_b32 s{d}, s{plo}", f"s_mov_b32 s{d+1}, s{plo+1}", f"s_mov_b32 s{d+2}, {total}")
    else:
        g(f"s_add_u32 s{d}, s{plo}, {off}", f"s_addc_u32 s{d+1}, s{plo+1}, 0",
          f"s_sub_u32 s{d+2}, {total}, {off}")
    g(f"s_mov_b32 s{d+3}, 0x20000")


DPPF = "row_mask:0xf bank_mask:0xf"


def rowreduce(g, regs, op):
    for ctl in ("row_ror:8", "row_ror:4", "row_ror:2", "row_ror:1"):
        g("s_nop 1" if len(regs) < 3 else "s_nop 0")
        for r in regs:
            g(f"{op}_dpp v{r}, v{r}, v{r} {ctl} {DPPF}")


def swapreduce(g, regs, op, tmps, which):
    sw = f"v_permlane{which}_swap_b32"
    g("s_nop 0")
    for r, t in zip(regs, tmps):
        g(f"v_mov_b32 v{t}, v{r}")
    g("s_nop 1")
    for r, t in zip(regs, tmps):
        g(f"{sw} v{r}, v{t}")
    g("s_nop 1")
    for r, t in zip(regs, tmps):
        g(f"{op} v{r}, v{r}, v{t}")


def allreduce(g, regs, op, tmps):
    rowreduce(g, regs, op)
    swapreduce(g, regs, op, tmps, "16")
    swapreduce(g, regs, op, tmps, "32")


sDRY = "s71"


def nodry(g):
    lab = g.lab("nd")
    g(f"s_cmp_lg_u32 {sDRY}, 0", f"s_cbranch_scc1 {lab}")
    return lab


def poll(g, name, issue, check, pre=None, dry=False, sleep=0):
    g(f"s_mov_b32 {sCNT}, {sDRY if dry else 0}")
    stages = ([pre] if pre else []) + [(issue, check)]
    dn = g.lab(name + "_done")
    for iss, chk in stages:
        lp = g.lab(name)
        g(f"{lp}:")
        if sleep:
            g(f"s_sleep {sleep}")
        i0 = len(g.L)
        iss()
        for i in range(i0, len(g.L)):
            if g.L[i].startswith("buffer_load"):
                g.L[i] += f" ;@ld_{name}"
        g("s_waitcnt vmcnt(0)")
        chk()
        g(f"s_add_u32 {sCNT}, {sCNT}, 1", f"s_cmp_gt_u32 {sCNT}, {POLL_LIMIT}",
          f"s_cbranch_scc1 {dn}", f"s_cbranch_vccnz {lp}")
    g(f"{dn}:")


def check_intag(g, regs, vtau, tmp):
    regs = list(regs)
    g(f"v_xor_b32 v{tmp}, v{regs[0]}, v{vtau}")
    rest = regs[1:]
    while len(rest) >= 2:
        g(f"v_xor_b32 v{tmp+1}, v{rest[0]}, v{vtau}", f"v_xor_b32 v{tmp+2}, v{rest[1]}, v{vtau}",
          f"v_or3_b32 v{tmp}, v{tmp}, v{tmp+1}, v{tmp+2}")
        rest = rest[2:]
    if rest:
        g(f"v_xor_b32 v{tmp+1}, v{rest[0]}, v{vtau}", f"v_or_b32 v{tmp}, v{tmp}, v{tmp+1}")
    g(f"v_and_b32 v{tmp}, {TAGMASK}, v{tmp}", f"v_cmp_ne_u32 vcc, 0, v{tmp}")


def check_sentinel(g, regs, tmp):
    regs = list(regs)
    g(f"v_max_u32 v{tmp}, v{regs[0]}, v{regs[1]}")
    rest = regs[2:]
    while len(rest) >= 2:
        g(f"v_max3_u32 v{tmp}, v{tmp}, v{rest[0]}, v{rest[1]}")
        rest = rest[2:]
    if rest:
        g(f"v_max_u32 v{tmp}, v{tmp}, v{rest[0]}")
    g(f"v_cmp_eq_u32 vcc, -1, v{tmp}")


def silu(g, xs, ts):
    for x, t in zip(xs, ts):
        g(f"v_mul_f32 v{t}, {hex(f2u(-LOG2E))}, v{x}")
    for t in ts:
        g(f"v_exp_f32 v{t}, v{t}")
    g("s_nop 0")
    for t in ts:
        g(f"v_add_f32 v{t}, 1.0, v{t}")
    for t in ts:
        g(f"v_rcp_f32 v{t}, v{t}")
    g("s_nop 0")
    for x, t in zip(xs, ts):
        g(f"v_mul_f32 v{x}, v{x}, v{t}")


def dma(g, voff, srdn, soff, lds_addr, what="", imm=0):
    if what in SKIP:
        return
    g(f"s_mov_b32 m0, {lds_addr}", "s_nop 0")
    g(f"buffer_load_dwordx4 v{voff}, {srd(srdn)}, {soff} offen nt lds")


def lds_signal(g, off, vtmp):
    g("s_mov_b64 exec, 1", f"v_mov_b32 v{vtmp}, 0", f"v_mov_b32 v{vtmp+1}, 1", f"ds_add_u32 v{vtmp}, v{vtmp+1} offset:{off}", "s_mov_b64 exec, -1")


def lds_wait(g, off, target, vtmp):
    lp, dn = g.lab("lw"), g.lab("lwd")
    g(f"s_mov_b32 {sCNT}, 0", f"v_mov_b32 v{vtmp}, 0", f"{lp}:", f"ds_read_b32 v{vtmp+1}, v{vtmp} offset:{off}", "s_waitcnt lgkmcnt(0)",
      f"v_readfirstlane_b32 s47, v{vtmp+1}", f"s_add_u32 {sCNT}, {sCNT}, 1", f"s_cmp_gt_u32 {sCNT}, {POLL_LIMIT * 4 + 4}", f"s_cbranch_scc1 {dn}",
      f"s_cmp_lt_u32 s47, {target}", f"s_cbranch_scc1 {lp}", f"{dn}:")


def store_sel(g, sflag, *instrs):
    l1, l2 = g.lab("wt"), g.lab("wte")
    g(f"s_cmp_eq_u32 {sflag}, 0", f"s_cbranch_scc1 {l1}")
    for i in instrs:
        g(i.replace(" @SC", ""))
    g(f"s_branch {l2}", f"{l1}:")
    for i in instrs:
        g(i.replace(" @SC", " sc1"))
    g(f"{l2}:")


def stamp(g, k):
    if STAMPS:
        g(f"s_memrealtime s[{80+2*k}:{81+2*k}]")


DBGT = False


def dbgmax(g, slot, invert=False):
    if not DBGT:
        return
    lab = g.lab("dbg")
    if slot < 4:
        g("s_and_b32 s74, s2, 15", "s_or_b32 s74, s74, s3", "s_cmp_lg_u32 s74, 0", f"s_cbranch_scc1 {lab}")
    g("s_memrealtime s[74:75]", "s_waitcnt lgkmcnt(0)")
    if invert:
        g("s_not_b32 s74, s74")
    g("s_mov_b64 s[76:77], exec", "s_mov_b64 exec, 1", "v_mov_b32 v252, s74", f"v_mov_b32 v253, {slot*4 + 32}",
      "global_atomic_umax v253, v252, s[26:27]", "s_mov_b64 exec, s[76:77]", f"{lab}:")


def end(g):
    if STAMPS:
        g("s_mov_b64 exec, -1", "s_waitcnt lgkmcnt(0)")
        for k in range(NSTAMP):
            g(f"v_writelane_b32 v250, s{80+2*k}, {k}")
        g("s_lshl_b32 s72, s2, 3", "s_add_u32 s72, s72, s3", "s_lshl_b32 s72, s72, 6", f"s_add_u32 s72, s72, {WS_STAMP}",
          "s_mov_b32 s76, s28", "s_mov_b32 s77, s29", f"s_mov_b32 s78, {WS_SIZE}", "s_mov_b32 s79, 0x20000",
          "v_lshlrev_b32 v251, 2, v0", f"s_mov_b64 exec, {hex((1 << NSTAMP) - 1)}",
          "buffer_store_dword v250, v251, s[76:79], s72 offen")
    g("s_endpgm")


def tr_addr(g, dst, tmp, vI, vG, rowshift, base=None):
    g(f"v_lshlrev_b32 v{dst}, 3, v{vG}", f"v_lshrrev_b32 v{tmp}, 2, v{vI}", f"v_add_u32 v{dst}, v{dst}, v{tmp}",
      f"v_lshlrev_b32 v{dst}, {rowshift}, v{dst}", f"v_and_b32 v{tmp}, 3, v{vI}", f"v_lshlrev_b32 v{tmp}, 3, v{tmp}",
      f"v_add_u32 v{dst}, v{dst}, v{tmp}")
    if base is not None:
        g(f"v_add_u32 v{dst}, {base}, v{dst}")


def tr_read(g, reg, vaddr, off, rowbytes):
    g(f"ds_read_b64_tr_b16 {v(reg,2)}, v{vaddr} offset:{off}", f"ds_read_b64_tr_b16 {v(reg+2,2)}, v{vaddr} offset:{off + 4*rowbytes}")


def mfma(g, d, a, b, first):
    g(f"v_mfma_f32_16x16x32_bf16 {v(d,4)}, {v(a,4)}, {v(b,4)}, {'0' if first else v(d,4)}")


def backoff(g, n):
    while n > 0:
        g(f"s_sleep {min(n, 127)}")
        n -= min(n, 127)


def gen_entry(g, opt):
    URG = opt.get("urgent_r", 8)
    g("s_cmp_ge_u32 s2, 0x100", "s_cbranch_scc1 L_end",
      "s_load_dwordx16 s[4:19], s[0:1], 0", "s_load_dwordx8 s[20:27], s[0:1], 64", "s_load_dwordx2 s[28:29], s[0:1], 96",
      "v_lshrrev_b32 v1, 6, v0", "v_and_b32 v0, 63, v0", f"s_and_b32 {sX}, s2, 7", "v_readfirstlane_b32 s3, v1",
      f"s_lshr_b32 {sR}, s2, 3", f"s_and_b32 {sT0}, {sR}, 3", f"s_lshl_b32 {sH}, {sX}, 2",
      f"s_add_u32 {sH}, {sH}, {sT0}", f"s_lshr_b32 {sJ}, {sR}, 2", f"s_lshr_b32 {sB}, {sJ}, 2", f"s_and_b32 {sS}, {sJ}, 3")
    g(f"s_lshl_b32 s65, {sB}, 5", f"s_add_u32 s65, s65, {sH}", "s_lshl_b32 s65, s65, 20", f"s_lshl_b32 {sT1}, {sS}, 18", f"s_add_u32 s65, s65, {sT1}",
      f"s_lshl_b32 {sT1}, s3, 12", "v_lshlrev_b32 v1, 4, v0", f"s_mul_i32 s64, s3, {NL*1024}", f"s_add_u32 s64, s64, {L_KB}",
      "v_add_u32 v46, s64, v1", f"v_add_u32 v1, {sT1}, v1")
    g(f"s_lshr_b32 s68, {sR}, 2", f"s_and_b32 s69, {sR}, 3", "s_lshl_b32 s69, s69, 2", "s_add_u32 s69, s69, s3",
      f"s_mul_i32 s69, s69, {32*6144}", "s_lshl_b32 s68, s68, 10", "s_add_u32 s69, s69, s68", f"s_lshl_b32 s68, {sX}, 7", "s_add_u32 s69, s69, s68",
      f"s_cmp_ge_u32 {sR}, 24", "s_cselect_b32 s69, 0, s69",
      "v_lshrrev_b32 v3, 3, v0", "v_mul_u32_u24 v3, 0x1800, v3", "v_and_b32 v4, 7, v0", "v_lshlrev_b32 v4, 4, v4", "v_add_u32 v3, v3, v4",
      "s_lshl_b32 s71, s3, 12", f"s_add_u32 s71, s71, {L_WMOD}")
    g("s_waitcnt lgkmcnt(0)")


def gen_stream(g, opt):
    W = opt.get("W", 6)
    NS = 48
    vOFF, vQ, vM, vD = 1, 2, 6, 10
    vB = [14, 18]
    vS, vT, vX, vSL, vLDS = 22, 26, 42, 48, 46
    NREG_K = 64 - NL
    URG = opt.get("urgent_r", 8)
    W0 = opt.get("W0", W)
    I_WQ, I_LATE = opt.get("i_wq", W0), opt.get("i_late", W0 + 2 * W)

    order = [("K", n) for n in range(NREG_K, 64)] + [("K", n) for n in range(NREG_K)] + [("V", n) for n in range(64)]

    def slot_of(kind, n):
        return vSL + 4 * ((n if kind == "K" else NREG_K + n) % NS)

    def wmod_dma():
        for k in range(4):
            g(f"s_mov_b32 s68, {k * 8 * 6144}", f"s_add_u32 m0, s71, {k*1024}", "s_nop 0")
            if 'p1' not in SKIP:
                g("buffer_load_dwordx4 v3, s[76:79], s68 offen nt lds")

    def wq_dma():
        for k in range(4):
            g(f"s_mov_b32 s68, {k * 4 * 8192}", f"s_add_u32 m0, s67, {k*1024}", "s_nop 0")
            if 'wq' not in SKIP:
                g("buffer_load_dwordx4 v2, s[72:75], s68 offen nt lds")

    g(f"s_add_u32 s{SRD_A}, s6, s65", f"s_addc_u32 s{SRD_A+1}, s7, 0", f"s_mov_b32 s{SRD_A+2}, 0x40000", f"s_mov_b32 s{SRD_A+3}, 0x20000")
    make_srd(g, 76, 22, "s69", 512 * 3072 * 2)
    Lnp = g.lab("nourg")
    g(f"s_cmp_ge_u32 {sR}, {URG}", f"s_cbranch_scc1 {Lnp}")
    wmod_dma()
    g(f"{Lnp}:")

    state = {"K": None, "V": None, "i": 0}
    if STAMPS:
        g("s_memtime s[98:99]")

    def issue_next():
        i = state["i"]
        kind, n = order[i]
        rho, t = n >> 2, n & 3
        sreg, sr = (sT2, SRD_A) if kind == "K" else (sT3, SRD_B)
        if i >= W0:
            g(f"s_waitcnt vmcnt({W-1})")
        if kind == "K" and n >= NREG_K:
            g(f"s_mov_b32 {sreg}, {rho * 16384 + t * 1024}", f"s_add_u32 m0, s64, {(n - NREG_K) * 1024}")
            state[kind] = None
            g("s_nop 0", f"buffer_load_dwordx4 v{vOFF}, {srd(sr)}, {sreg} offen nt lds")
        else:
            if state[kind] != rho:
                g(f"s_mov_b32 {sreg}, {rho * 16384}")
                state[kind] = rho
            g(f"buffer_load_dwordx4 {v(slot_of(kind, n), 4)}, v{vOFF}, {srd(sr)}, {sreg} offen offset:{t*1024} nt")
        state["i"] = i + 1

    def issued_after(kind, n):
        return state["i"] - 1 - order.index((kind, n))

    NBACK = NL + NS
    for i in range(NBACK):
        issue_next()
        if i == W0 - 1:
            g(f"s_add_u32 s{SRD_B}, s8, s65", f"s_addc_u32 s{SRD_B+1}, s9, 0", f"s_mov_b32 s{SRD_B+2}, 0x40000", f"s_mov_b32 s{SRD_B+3}, 0x20000")
            g(f"s_lshl_b32 s66, {sJ}, 19", f"s_lshl_b32 s67, {sH}, 8", "s_add_u32 s66, s66, s67", "s_lshl_b32 s67, s3, 17", "s_add_u32 s66, s66, s67")
            make_srd(g, 72, 10, "s66", 512 * 4096 * 2)
            g("v_lshrrev_b32 v2, 4, v0", "v_lshlrev_b32 v2, 13, v2", "v_and_b32 v4, 15, v0", "v_lshlrev_b32 v4, 4, v4", "v_add_u32 v2, v2, v4",
              "s_lshl_b32 s67, s3, 12", f"s_add_u32 s67, s67, {L_WQ}")
            g("s_barrier")
        if i == W0 and opt.get("st_ka"):
            stamp(g, 5)
        if i == W0:
            lab = g.lab("sigm")
            g(f"s_cmp_ge_u32 {sR}, {URG}", f"s_cbranch_scc1 {lab}")
            lds_signal(g, L_CNT + 4, 4)
            g(f"{lab}:")
        if i == I_WQ:
            wq_dma()
        if i == I_WQ + W:
            lds_signal(g, L_CNT + 8, 4)
        if i == I_LATE:
            lab = g.lab("late")
            g(f"s_cmp_lt_u32 {sR}, {URG}", f"s_cbranch_scc1 {lab}", f"s_cmp_ge_u32 {sR}, 24", f"s_cbranch_scc1 {lab}")
            wmod_dma()
            g(f"{lab}:")
        if i == I_LATE + W:
            lab = g.lab("sigl")
            g(f"s_cmp_lt_u32 {sR}, {URG}", f"s_cbranch_scc1 {lab}")
            lds_signal(g, L_CNT + 4, 4)
            g(f"{lab}:")
    g(f"v_and_b32 v{vX}, 15, v0", f"v_lshrrev_b32 v{vX+1}, 1, v{vX}", f"v_and_b32 v{vX+2}, 1, v{vX}",
      f"v_mov_b32 v{vX+3}, 0xffff", f"v_mov_b32 v{vT}, 0xffff0000",
      f"v_cmp_eq_u32 vcc, 1, v{vX+2}", "s_nop 1", f"v_cndmask_b32 v{vX+3}, v{vX+3}, v{vT}, vcc")
    for r in range(4):
        g(f"v_cmp_eq_u32 vcc, {r}, v{vX+1}", "s_nop 1", f"v_cndmask_b32 v{vM+r}, 0, v{vX+3}, vcc")
    g("s_mov_b32 s60, 0xcccccccc", "s_mov_b32 s61, 0xcccccccc", "s_mov_b32 s62, 0xaaaaaaaa", "s_mov_b32 s63, 0xaaaaaaaa")
    for r in range(4):
        g(f"v_mov_b32 v{vD+r}, 0")
    g(f"v_lshlrev_b32 v{vX}, 4, v{vX}")
    stamp(g, 1)
    g("s_barrier")
    stamp(g, 2)
    dbgmax(g, 2)
    g(f"ds_read_b128 {v(vQ,4)}, v{vX} offset:{L_Q}", "s_waitcnt lgkmcnt(0)")

    def kreg(n):
        if n < NREG_K:
            return slot_of("K", n)
        return vSL + 4 * (16 + (n & 15))

    def dots(ns):
        for r in range(4):
            for n in ns:
                t = vT + (n & 15)
                c = "0" if r == 0 else f"v{t}"
                g(f"v_dot2_f32_bf16 v{t}, v{kreg(n)+r}, v{vQ+r}, {c}")

    def tree(gam):
        g("s_nop 2")
        for n in range(8):
            g(f"v_add_f32_dpp v{vT+n}, v{vT+n}, v{vT+n} row_ror:8 row_mask:0xf bank_mask:0x3")
            g(f"v_add_f32_dpp v{vT+n}, v{vT+n+8}, v{vT+n+8} row_ror:8 row_mask:0xf bank_mask:0xc")
        for n in range(4):
            g(f"v_add_f32_dpp v{vT+n}, v{vT+n}, v{vT+n} row_shl:4 row_mask:0xf bank_mask:0x5")
            g(f"v_add_f32_dpp v{vT+n}, v{vT+n+4}, v{vT+n+4} row_shr:4 row_mask:0xf bank_mask:0xa")
        g("s_nop 0")
        for n in range(4):
            g(f"v_add_f32_dpp v{vT+n}, v{vT+n}, v{vT+n} quad_perm:[2,3,0,1] {DPPF}")
        g(f"v_cndmask_b32 v{vT}, v{vT}, v{vT+2}, {sM1}", f"v_cndmask_b32 v{vT+1}, v{vT+1}, v{vT+3}, {sM1}", "s_nop 1")
        for n in range(2):
            g(f"v_add_f32_dpp v{vT+n}, v{vT+n}, v{vT+n} quad_perm:[1,0,3,2] {DPPF}")
        g(f"v_cndmask_b32 v{vS+gam}, v{vT}, v{vT+1}, {sM0}")

    freed = 0

    def can_issue():
        i = state["i"]
        if i >= len(order):
            return False
        kind, n = order[i]
        return n < NS - NREG_K or (NREG_K + n) % NS < freed

    every = opt.get("burst_every", 2)
    qi = 0
    for gam in range(4):
        ns_all = list(range(16 * gam, 16 * gam + 16))
        for n in ns_all:
            if n >= NREG_K:
                g(f"ds_read_b128 {v(kreg(n),4)}, v{vLDS} offset:{(n - NREG_K) * 1024}")
        for q4 in range(4):
            ns = ns_all[4 * q4: 4 * q4 + 4]
            regn = [n for n in ns if n < NREG_K]
            if regn:
                g(f"s_waitcnt vmcnt({min(63, issued_after('K', regn[-1]))})")
            if any(n >= NREG_K for n in ns):
                g("s_waitcnt lgkmcnt(0)")
            if 'qk' not in SKIP:
                dots(ns)
            if regn:
                freed = min(regn[-1] + 1, 16)
            qi += 1
            if qi % every == 0 and can_issue():
                issue_next()
        if 'qk' not in SKIP:
            tree(gam)
    freed = NS
    stamp(g, 3)
    for _ in range(opt.get("sm_issue0", 0)):
        issue_next()
    g(f"v_max3_f32 v{vX}, v{vS}, v{vS+1}, v{vS+2}", f"v_max_f32 v{vX}, v{vX}, v{vS+3}")
    allreduce(g, [vX], "v_max_f32", [vX + 1])
    g(f"v_mul_f32 v{vX}, {hex(f2u(CS))}, v{vX}", f"s_mov_b32 {sT0}, {hex(f2u(CS))}")
    issue_next()
    for r in range(4):
        g(f"v_fma_f32 v{vS+r}, v{vS+r}, {sT0}, -v{vX}")
    for r in range(4):
        g(f"v_exp_f32 v{vS+r}, v{vS+r}")
    g("s_nop 0")
    g(f"v_add_f32 v{vX+1}, v{vS}, v{vS+1}", f"v_add_f32 v{vX+2}, v{vS+2}, v{vS+3}", f"v_add_f32 v{vX+1}, v{vX+1}, v{vX+2}")
    allreduce(g, [vX + 1], "v_add_f32", [vX + 2])
    g(f"s_lshl_b32 {sT0}, s3, 3", f"v_mov_b32 v{vX+2}, {sT0}", "s_mov_b64 exec, 1",
      f"ds_write_b64 v{vX+2}, {v(vX,2)} offset:{L_MLW}", "s_mov_b64 exec, -1", "s_waitcnt lgkmcnt(0)")
    issue_next()
    g("s_barrier")
    stamp(g, 4)
    g(f"v_mov_b32 v{vX+1}, 0", f"ds_read_b128 {v(vT,4)}, v{vX+1} offset:{L_MLW}",
      f"ds_read_b128 {v(vT+4,4)}, v{vX+1} offset:{L_MLW+16}", "s_waitcnt lgkmcnt(0)",
      f"v_max3_f32 v{vX+1}, v{vT}, v{vT+2}, v{vT+4}", f"v_max_f32 v{vX+1}, v{vX+1}, v{vT+6}",
      f"v_sub_f32 v{vX}, v{vX}, v{vX+1}", f"v_exp_f32 v{vX}, v{vX}", "s_nop 0")
    for r in range(4):
        g(f"v_mul_f32 v{vS+r}, v{vS+r}, v{vX}")
    for r in range(4):
        g(f"v_cvt_pk_bf16_f32 v{vS+r}, v{vS+r}, v{vS+r}")
    vRA, vOA, vOB = vT + 8, vT + 9, vT + 10
    g(f"v_lshrrev_b32 v{vRA}, 4, v0", f"v_lshlrev_b32 v{vRA}, 7, v{vRA}", f"v_and_b32 v{vX+1}, 15, v0",
      f"v_lshlrev_b32 v{vX+1}, 2, v{vX+1}", f"v_add_u32 v{vRA}, v{vRA}, v{vX+1}", f"s_lshl_b32 s66, s3, 9", f"v_add_u32 v{vRA}, s66, v{vRA}",
      f"v_lshlrev_b32 v{vOA}, 5, v0", f"v_lshlrev_b32 v{vOB}, 4, v0",
      f"s_lshl_b32 s66, {sH}, 3", f"s_add_u32 s66, s66, {sJ}", "s_lshl_b32 s66, s66, 8", f"s_add_u32 s66, s66, {WS_OS}",
      f"v_mov_b32 v{vX+1}, 0", f"ds_read_b32 v{vX+1}, v{vX+1} offset:{L_CNT + 20}", "s_waitcnt lgkmcnt(0)", f"v_readfirstlane_b32 s67, v{vX+1}")
    make_srd(g, SRD_WS, 28, 0, WS_SIZE)

    def pv(n):
        if 'pv' in SKIP:
            return
        B = vB[n & 1]
        for r in range(4):
            g(f"v_and_b32_dpp v{B+r}, v{vS+(n>>4)}, v{vM+r} row_newbcast:{n&15} {DPPF}")
        g("s_nop 1")
        mfma(g, vD, slot_of("V", n), B, False)

    nb2b = opt.get("b2b_at", 24)
    nb3 = opt.get("b3_at", 64 - W)
    for n in range(64):
        pos = order.index(("V", n))
        while state["i"] < len(order) and state["i"] <= pos + W - 1:
            issue_next()
        if n == nb2b:
            if not opt.get("st_ka"):
                stamp(g, 8)
            lds_signal(g, L_CNT + 24, vX + 1)
        if n == nb3:
            if not opt.get("st_ka"):
                stamp(g, 5)
            lds_signal(g, L_CNT + 28, vX + 1)
        g(f"s_waitcnt vmcnt({min(63, issued_after('V', n))})")
        pv(n)
        cu = opt.get("catchup", 5)
        if n % cu == cu - 1 and state["i"] < len(order) and state["i"] > pos + W:
            issue_next()
    stamp(g, 6)
    dbgmax(g, 3)
    Lno = g.lab("notlast")
    g(f"v_mov_b32 v{vT}, 0", f"v_mov_b32 v{vT+1}, 1", "s_mov_b32 exec_lo, 0x00ff00ff", "s_mov_b32 exec_hi, 0x00ff00ff", "s_nop 4")
    for r in range(4):
        g(f"ds_write_b32 v{vRA}, v{vD+r} offset:{L_RED + r*32}")
    g("s_mov_b64 exec, 1", f"ds_add_rtn_u32 v{vT+1}, v{vT}, v{vT+1} offset:{L_CNT}", "s_waitcnt lgkmcnt(0)",
      f"v_readfirstlane_b32 {sT2}, v{vT+1}", "s_mov_b64 exec, 0xffff", f"s_cmp_lg_u32 {sT2}, 3", f"s_cbranch_scc1 {Lno}")
    R = vSL
    for w in range(4):
        g(f"ds_read_b128 {v(R+8*w,4)}, v{vOA} offset:{L_RED + w*512}", f"ds_read_b128 {v(R+4+8*w,4)}, v{vOA} offset:{L_RED + w*512 + 16}")
    g("s_waitcnt lgkmcnt(4)")
    for e in range(8):
        g(f"v_add_f32 v{R+e}, v{R+e}, v{R+8+e}")
    g("s_waitcnt lgkmcnt(0)")
    for e in range(8):
        g(f"v_add_f32 v{R+16+e}, v{R+16+e}, v{R+24+e}")
    for e in range(8):
        g(f"v_add_f32 v{R+e}, v{R+e}, v{R+16+e}")
    for r in range(4):
        g(f"v_cvt_pk_bf16_f32 v{R+r}, v{R+2*r}, v{R+2*r+1}")
    store_sel(g, "s67", f"buffer_store_dwordx4 {v(R,4)}, v{vOB}, {srd(SRD_WS)}, s66 offen @SC ;@opub")
    stamp(g, 7)
    g(f"{Lno}:")
    if STAMPS:
        g("s_memtime s[100:101]")
    end(g)


def gen_aux(g, opt):
    vTAU, vI, vG, vMSK = 1, 2, 3, 4
    EX8 = ("s_mov_b32 exec_lo, 0x00030003", "s_mov_b32 exec_hi, 0x00030003")
    SPROT = False

    def tagify(dst, src):
        g(f"v_and_or_b32 v{dst}, v{src}, v{vMSK}, v{vTAU}")

    g(f"s_load_dword s30, s[28:29], {WS_EPOCH}")
    g(f"s_sub_u32 {sA}, s3, 4")
    lab = g.lab("zc")
    g(f"s_cmp_lg_u32 {sA}, 2", f"s_cbranch_scc1 {lab}", "v_mov_b32 v8, 0", "v_mov_b32 v9, 0", "v_mov_b32 v10, 0", "v_mov_b32 v11, 0",
      "s_nop 0")
    g("s_mov_b64 exec, 1", f"ds_write_b128 v8, v[8:11] offset:{L_CNT}", f"ds_write_b128 v8, v[8:11] offset:{L_CNT + 16}", "s_mov_b64 exec, -1", "s_waitcnt lgkmcnt(0)", f"{lab}:", "s_barrier")
    make_srd(g, SRD_WS, 28, 0, WS_SIZE)
    g(f"v_and_b32 v{vI}, 15, v0", f"v_lshrrev_b32 v{vG}, 4, v0", f"v_mov_b32 v{vMSK}, {hex(0xffffffff ^ TAGMASK)}")
    g(f"s_mul_i32 {sPHI}, {sX}, 6", f"s_add_u32 {sPHI}, {sPHI}, {sR}", f"s_sub_u32 {sPHI}, {sPHI}, 24",
      f"s_cmp_lt_u32 {sR}, 24", f"s_cselect_b32 {sPHI}, 0xff, {sPHI}",
      f"s_cmp_ge_u32 {sR}, 30", f"s_cselect_b32 {sPHI}, 0xff, {sPHI}",
      f"s_cmp_ge_u32 {sPHI}, 43", f"s_cselect_b32 {sPHI}, 0xff, {sPHI}")

    def tag_ready():
        g("s_waitcnt lgkmcnt(0)", f"s_add_u32 {sTAU}, s30, 1", f"s_and_b32 {sTAU}, {sTAU}, {TAGMASK}", f"v_mov_b32 v{vTAU}, {sTAU}")

    LA1, LA2, LA3, LB1 = g.lab("a1"), g.lab("a2"), g.lab("a3"), g.lab("aux_b1")
    g(f"s_cmp_eq_u32 {sA}, 1", f"s_cbranch_scc1 {LA1}", f"s_cmp_eq_u32 {sA}, 2", f"s_cbranch_scc1 {LA2}",
      f"s_cmp_eq_u32 {sA}, 3", f"s_cbranch_scc1 {LA3}")

    g(f"s_cmp_ge_u32 {sR}, 24", f"s_cbranch_scc1 {LA3}")
    g(f"s_lshr_b32 s64, {sR}, 2", f"s_and_b32 s65, {sR}, 3")
    make_srd(g, SRD_B, 20, 0, 2048)
    g(f"v_and_b32 v5, 1, v{vG}", "v_lshlrev_b32 v8, 10, v5", f"v_lshlrev_b32 v9, 4, v{vI}", "v_add_u32 v8, v8, v9",
      f"s_lshl_b32 {sT1}, s65, 8", f"buffer_load_dwordx4 v[12:15], v8, {srd(SRD_B)}, {sT1} offen")
    g("v_lshlrev_b32 v8, 8, v5", "v_add_u32 v8, v8, v9")
    g(f"v_and_b32 v10, 1, v{vI}", "v_lshlrev_b32 v10, 8, v10", f"v_lshlrev_b32 v11, 4, v{vG}", "v_add_u32 v10, v10, v11")
    tr_addr(g, 11, 16, vI, vG, 7)
    g("s_waitcnt vmcnt(0)")
    for r in range(4):
        g(f"v_lshlrev_b32 v{20+2*r}, 16, v{12+r}", f"v_and_b32 v{21+2*r}, 0xffff0000, v{12+r}")
    silu(g, range(20, 28), range(28, 36))
    for r in range(4):
        g(f"v_cvt_pk_bf16_f32 v{12+r}, v{20+2*r}, v{21+2*r}")
    g(f"ds_write_b128 v8, v[12:15] offset:{L_ACT1}")
    tag_ready()
    for k in range(4):
        g(f"ds_read_b128 {v(40+4*k,4)}, v10 offset:{L_ACT1 + k*64}")
    g("s_waitcnt lgkmcnt(0)")
    lds_wait(g, L_CNT + 4, 4, 12)
    for t in range(4):
        for k in range(4):
            tr_read(g, 64 + (t * 4 + k) * 4, 11, L_WMOD + k * 4096 + t * 32, 128)
        g("s_waitcnt lgkmcnt(0)")
        for k in range(4):
            mfma(g, 16 + 4 * t, 64 + (t * 4 + k) * 4, 40 + 4 * k, k == 0)
    g(f"s_lshl_b32 {sT0}, s64, 3", f"s_add_u32 {sT0}, {sT0}, {sX}", f"s_lshl_b32 s66, {sT0}, 11", f"s_add_u32 s66, s66, {WS_MODP}",
      f"s_lshl_b32 {sT1}, s65, 9", f"s_add_u32 {sT0}, s66, {sT1}",
      f"v_lshlrev_b32 v8, 6, v{vI}", f"v_lshlrev_b32 v9, 4, v{vG}", "v_add_u32 v8, v8, v9", "s_nop 4")
    for r in range(16):
        tagify(16 + r, 16 + r)
    g(*EX8)
    for t in range(4):
        g(f"buffer_store_dwordx4 {v(16+4*t,4)}, v8, {srd(SRD_WS)}, {sT0} offen offset:{t*128} sc1 ;@modp")
    g("s_mov_b64 exec, -1")
    stamp(g, 1)
    g("s_cmp_lg_u32 s65, 0", f"s_cbranch_scc1 {LB1}", "s_cmp_lt_u32 s64, 2", f"s_cbranch_scc1 {LB1}")
    backoff(g, opt.get("fin_sl", 64))
    g("v_lshlrev_b32 v8, 4, v0")
    poll(g, "p_fin",
         lambda: g(f"buffer_load_dwordx4 v[16:19], v8, {srd(SRD_WS)}, s66 offen sc1",
                   f"buffer_load_dwordx4 v[20:23], v8, {srd(SRD_WS)}, s66 offen offset:1024 sc1"),
         lambda: check_intag(g, range(16, 24), vTAU, 12))
    for e in range(4):
        g(f"v_add_f32 v{16+e}, v{16+e}, v{20+e}")
    swapreduce(g, range(16, 20), "v_add_f32", range(20, 24), "32")
    g("v_cvt_pk_bf16_f32 v20, v16, v17", "v_cvt_pk_bf16_f32 v21, v18, v19",
      "v_lshlrev_b32 v16, 16, v20", "v_and_b32 v17, 0xffff0000, v20", "v_lshlrev_b32 v18, 16, v21", "v_and_b32 v19, 0xffff0000, v21")
    for e in range(4):
        tagify(16 + e, 16 + e)
    g("v_lshrrev_b32 v8, 3, v0", "v_and_b32 v8, 3, v8", "v_lshlrev_b32 v8, 6, v8", "v_lshrrev_b32 v9, 2, v0", "v_and_b32 v9, 1, v9",
      "v_lshlrev_b32 v9, 11, v9", "v_add_u32 v8, v8, v9", "v_and_b32 v9, 3, v0", "v_lshlrev_b32 v9, 4, v9", "v_add_u32 v8, v8, v9",
      f"s_sub_u32 {sT0}, s64, 2", f"s_lshl_b32 {sT0}, {sT0}, 12", f"s_lshl_b32 {sT1}, {sX}, 8", f"s_add_u32 {sT0}, {sT0}, {sT1}",
      f"s_add_u32 {sT0}, {sT0}, {WS_MODF}", "s_mov_b32 exec_hi, 0",
      f"buffer_store_dwordx4 v[16:19], v8, {srd(SRD_WS)}, {sT0} offen sc1 ;@modf", "s_mov_b64 exec, -1")
    g(f"s_branch {LB1}")

    g(f"{LA1}:")
    make_srd(g, SRD_B, 4, 0, 2048)
    g("v_lshlrev_b32 v8, 4, v0")
    g(f"buffer_load_dwordx4 v[12:15], v8, {srd(SRD_B)}, 0 offen", f"buffer_load_dwordx4 v[16:19], v8, {srd(SRD_B)}, 0 offen offset:1024")
    g("v_lshrrev_b32 v5, 2, v0", "v_and_b32 v5, 1, v5",
      "v_lshrrev_b32 v6, 3, v0", "v_and_b32 v6, 3, v6", "v_lshlrev_b32 v6, 4, v6", "v_and_b32 v7, 3, v0", "v_lshlrev_b32 v7, 2, v7",
      "v_add_u32 v6, v6, v7",
      "v_lshlrev_b32 v7, 10, v5", "v_lshlrev_b32 v9, 1, v6", "v_add_u32 v9, v9, v7",
      f"s_lshl_b32 {sT1}, {sJ}, 7", f"buffer_load_dwordx2 v[20:21], v9, {srd(SRD_B)}, {sT1} offen")
    tr_addr(g, 11, 22, vI, vG, 8)
    g("s_waitcnt vmcnt(0)")
    for b in range(2):
        for r in range(4):
            g(f"v_lshlrev_b32 v{24+8*b+2*r}, 16, v{12+4*b+r}", f"v_and_b32 v{25+8*b+2*r}, 0xffff0000, v{12+4*b+r}")
    for b in range(2):
        base = 24 + 8 * b
        g(f"v_add_f32 v{40+b}, v{base}, v{base+1}")
        for e in range(2, 8):
            g(f"v_add_f32 v{40+b}, v{40+b}, v{base+e}")
    allreduce(g, [40, 41], "v_add_f32", [44, 45])
    g(f"v_mul_f32 v40, {hex(f2u(1/512))}, v40", f"v_mul_f32 v41, {hex(f2u(1/512))}, v41")
    for b in range(2):
        base = 24 + 8 * b
        for e in range(8):
            g(f"v_sub_f32 v{base+e}, v{base+e}, v{40+b}")
        g(f"v_mul_f32 v{42+b}, v{base}, v{base}")
        for e in range(1, 8):
            g(f"v_fmac_f32 v{42+b}, v{base+e}, v{base+e}")
    allreduce(g, [42, 43], "v_add_f32", [44, 45])
    for b in range(2):
        g(f"v_mov_b32 v44, {hex(f2u(1e-5))}", f"v_fmac_f32 v44, {hex(f2u(1/512))}, v{42+b}", f"v_rsq_f32 v{42+b}, v44", "s_nop 0")
    g("v_cmp_eq_u32 vcc, 1, v5", "s_nop 1", "v_cndmask_b32 v40, v40, v41, vcc", "v_cndmask_b32 v42, v42, v43, vcc",
      "v_lshlrev_b32 v24, 16, v20", "v_and_b32 v25, 0xffff0000, v20", "v_lshlrev_b32 v26, 16, v21", "v_and_b32 v27, 0xffff0000, v21")
    for e in range(4):
        g(f"v_sub_f32 v{24+e}, v{24+e}, v40", f"v_mul_f32 v{24+e}, v{24+e}, v42")
    tag_ready()
    lds_wait(g, L_CNT + 8, 4, 12)
    for t in range(8):
        for k in range(2):
            tr_read(g, 64 + (t * 2 + k) * 4, 11, L_WQ + k * 8192 + t * 32, 256)
        if t % 2 == 1:
            g("s_waitcnt lgkmcnt(0)")
    g(f"s_lshl_b32 {sT0}, {sJ}, 11", f"s_add_u32 {sT0}, {sT0}, {WS_MODP}", f"s_add_u32 {sT1}, {sT0}, {8*2048}", "v_lshlrev_b32 v9, 4, v0")
    backoff(g, opt.get("saca_sl", 0))
    g("v_and_b32 v10, 31, v0", "v_lshlrev_b32 v10, 7, v10", f"s_lshl_b32 {sT2}, {sX}, 12", f"s_add_u32 {sT2}, {sT2}, {WS_XL}",
      f"s_mul_i32 {sT3}, {sTAU}, 0x00400401", f"v_mov_b32 v7, {sT3}")

    def chk_saca():
        check_intag(g, range(28, 44), vTAU, 12)
        g("v_xor_b32 v13, v52, v7", "v_sub_u32 v56, v53, v7", "v_lshrrev_b32 v14, 4, v56", "v_or3_b32 v12, v12, v13, v14", "v_cmp_ne_u32 vcc, 0, v12")
    poll(g, "p_saca",
         lambda: g(f"buffer_load_dwordx4 v[28:31], v9, {srd(SRD_WS)}, {sT0} offen sc1",
                   f"buffer_load_dwordx4 v[32:35], v9, {srd(SRD_WS)}, {sT0} offen offset:1024 sc1",
                   f"buffer_load_dwordx4 v[36:39], v9, {srd(SRD_WS)}, {sT1} offen sc1",
                   f"buffer_load_dwordx4 v[40:43], v9, {srd(SRD_WS)}, {sT1} offen offset:1024 sc1",
                   f"buffer_load_dwordx4 v[52:55], v10, {srd(SRD_WS)}, {sT2} offen sc1"),
         chk_saca)
    stamp(g, 1)
    g("s_getreg_b32 s64, hwreg(HW_REG_XCC_ID, 0, 4)", "v_cmp_ne_u32 vcc, s64, v56", "s_nop 4", "s_cmp_eq_u64 vcc, 0", "s_cselect_b32 s69, 1, 0")
    if not opt.get("local", True):
        g("s_mov_b32 s69, 0")
    g("v_mov_b32 v12, 0", "v_mov_b32 v13, s69", f"ds_write_b32 v12, v13 offset:{L_CNT + 20}")
    for e in range(4):
        g(f"v_add_f32 v{28+e}, v{28+e}, v{32+e}", f"v_add_f32 v{36+e}, v{36+e}, v{40+e}")
    swapreduce(g, [28, 29, 30, 31, 36, 37, 38, 39], "v_add_f32", range(44, 52), "32")
    g("v_cvt_pk_bf16_f32 v44, v28, v29", "v_cvt_pk_bf16_f32 v45, v30, v31", "v_cvt_pk_bf16_f32 v46, v36, v37", "v_cvt_pk_bf16_f32 v47, v38, v39")
    for e in range(4):
        src_s, src_c = 44 + e // 2, 46 + e // 2
        if e % 2 == 0:
            g(f"v_lshlrev_b32 v{28+e}, 16, v{src_s}", f"v_lshlrev_b32 v{36+e}, 16, v{src_c}")
        else:
            g(f"v_and_b32 v{28+e}, 0xffff0000, v{src_s}", f"v_and_b32 v{36+e}, 0xffff0000, v{src_c}")
    for e in range(4):
        g(f"v_add_f32 v{36+e}, 1.0, v{36+e}", f"v_fma_f32 v{24+e}, v{24+e}, v{36+e}, v{28+e}")
    g("v_cvt_pk_bf16_f32 v24, v24, v25", "v_cvt_pk_bf16_f32 v25, v26, v27",
      "v_lshlrev_b32 v9, 7, v5", "v_lshlrev_b32 v10, 1, v6", "v_add_u32 v9, v9, v10", f"ds_write_b64 v9, v[24:25] offset:{L_ACT2}",
      f"v_and_b32 v10, 1, v{vI}", "v_lshlrev_b32 v10, 7, v10", f"v_lshlrev_b32 v12, 4, v{vG}", "v_add_u32 v10, v10, v12",
      "s_waitcnt lgkmcnt(0)",
      f"ds_read_b128 v[24:27], v10 offset:{L_ACT2}", f"ds_read_b128 v[28:31], v10 offset:{L_ACT2+64}", "s_waitcnt lgkmcnt(0)")
    for k in range(2):
        for t in range(8):
            mfma(g, 128 + 4 * t, 64 + (t * 2 + k) * 4, 24 + 4 * k, k == 0)
    g(f"s_lshl_b32 {sT0}, {sH}, 13", f"s_lshl_b32 {sT1}, {sJ}, 9", f"s_add_u32 s66, {sT0}, {WS_QP}", f"s_add_u32 {sT0}, s66, {sT1}",
      f"v_and_b32 v8, 1, v{vI}", "v_lshlrev_b32 v8, 12, v8", f"v_lshrrev_b32 v9, 1, v{vI}", "v_and_b32 v9, 1, v9", "v_cmp_eq_u32 vcc, 1, v9",
      "v_lshlrev_b32 v9, 6, v9", "v_add_u32 v8, v8, v9", f"v_lshlrev_b32 v9, 4, v{vG}", "v_add_u32 v8, v8, v9", "s_nop 1")
    for tp in range(4):
        for e in range(4):
            g(f"v_cndmask_b32 v{128+8*tp+e}, v{128+8*tp+e}, v{132+8*tp+e}, vcc")
        for e in range(4):
            tagify(128 + 8 * tp + e, 128 + 8 * tp + e)
    g("s_mov_b32 exec_lo, 0x000f000f", "s_mov_b32 exec_hi, 0x000f000f")
    store_sel(g, "s69", *[f"buffer_store_dwordx4 {v(128+8*tp,4)}, v8, {srd(SRD_WS)}, {sT0} offen offset:{tp*128} @SC ;@qp" for tp in range(4)])
    g("s_mov_b64 exec, -1")
    stamp(g, 2)
    backoff(g, opt.get("q_sl", 64))
    g("v_lshlrev_b32 v8, 4, v0", f"s_lshl_b32 {sT1}, {sB}, 12", f"s_add_u32 {sT0}, s66, {sT1}")

    def issq():
        for k in range(4):
            g(f"buffer_load_dwordx4 {v(16+4*k,4)}, v8, {srd(SRD_WS)}, {sT0} offen offset:{k*1024} sc1")
    poll(g, "p_q", issq, lambda: check_intag(g, range(16, 32), vTAU, 12))
    stamp(g, 3)
    for e in range(4):
        g(f"v_add_f32 v{16+e}, v{16+e}, v{20+e}", f"v_add_f32 v{24+e}, v{24+e}, v{28+e}", f"v_add_f32 v{16+e}, v{16+e}, v{24+e}")
    swapreduce(g, range(16, 20), "v_add_f32", range(20, 24), "32")
    g("v_cvt_pk_bf16_f32 v16, v16, v17", "v_cvt_pk_bf16_f32 v17, v18, v19",
      "v_and_b32 v9, 31, v0", "v_lshlrev_b32 v9, 3, v9", f"ds_write_b64 v9, v[16:17] offset:{L_Q}")
    g(f"s_branch {LB1}")

    g(f"{LA2}:")
    tag_ready()
    g(f"s_mul_i32 {sT1}, {sTAU}, 0x00400401", "s_getreg_b32 s64, hwreg(HW_REG_XCC_ID, 0, 4)", f"s_add_u32 s64, s64, {sT1}",
      f"v_mov_b32 v8, {sT1}", "v_mov_b32 v9, s64", f"v_mov_b32 v10, {sT1}", f"v_mov_b32 v11, {sT1}", "v_lshlrev_b32 v12, 4, v0",
      f"s_lshl_b32 {sT0}, {sX}, 5", f"s_add_u32 {sT0}, {sT0}, {sR}", f"s_lshl_b32 {sT0}, {sT0}, 7", f"s_add_u32 {sT0}, {sT0}, {WS_XL}",
      "s_mov_b64 exec, 0xff", f"buffer_store_dwordx4 v[8:11], v12, {srd(SRD_WS)}, {sT0} offen sc1 ;@xl", "s_mov_b64 exec, -1")
    g(f"s_branch {LB1}")

    g(f"{LA3}:")
    tag_ready()

    g(f"{LB1}:", "s_waitcnt lgkmcnt(0)")
    stamp(g, 4)
    g("s_barrier")
    LnoML = g.lab("noml")
    Lni = g.lab("noinit")
    g(f"s_cmp_lg_u32 {sA}, 2", f"s_cbranch_scc1 {Lni}", "v_mov_b32 v8, 0", f"ds_read_b32 v8, v8 offset:{L_CNT + 20}",
      "v_lshlrev_b32 v12, 4, v0", "s_waitcnt lgkmcnt(0)", "v_readfirstlane_b32 s69, v8",
      "v_mov_b32 v8, -1", "v_mov_b32 v9, -1", "v_mov_b32 v10, -1", "v_mov_b32 v11, -1",
      f"s_lshl_b32 {sT0}, {sH}, 3", f"s_add_u32 {sT0}, {sT0}, {sJ}", f"s_lshl_b32 {sT0}, {sT0}, 8", f"s_add_u32 {sT0}, {sT0}, {WS_OS}",
      "s_mov_b64 exec, 0xffff")
    store_sel(g, "s69", f"buffer_store_dwordx4 v[8:11], v12, {srd(SRD_WS)}, {sT0} offen @SC ;@inito")
    g("s_mov_b64 exec, -1", f"{Lni}:")
    g("s_barrier")
    g(f"s_cmp_lg_u32 {sA}, 2", f"s_cbranch_scc1 {LnoML}")
    g("v_mov_b32 v8, 0", f"ds_read_b128 v[12:15], v8 offset:{L_MLW}", f"ds_read_b128 v[16:19], v8 offset:{L_MLW+16}", "s_waitcnt lgkmcnt(0)",
      "v_max3_f32 v20, v12, v14, v16", "v_max_f32 v20, v20, v18")
    for m in (12, 14, 16, 18):
        g(f"v_sub_f32 v{m}, v{m}, v20", f"v_exp_f32 v{m}, v{m}")
    g("s_nop 0", "v_mul_f32 v21, v12, v13", "v_fmac_f32 v21, v14, v15", "v_fmac_f32 v21, v16, v17", "v_fmac_f32 v21, v18, v19",
      f"s_mul_i32 {sT1}, {sTAU}, 0x00400401", f"v_mov_b32 v22, {sT1}", "s_getreg_b32 s64, hwreg(HW_REG_XCC_ID, 0, 4)",
      f"s_add_u32 {sT1}, {sT1}, s64", f"v_mov_b32 v23, {sT1}",
      f"s_lshl_b32 {sT0}, {sH}, 3", f"s_add_u32 {sT0}, {sT0}, {sJ}", f"s_lshl_b32 {sT0}, {sT0}, 7", f"s_add_u32 {sT0}, {sT0}, {WS_ML}",
      "v_lshlrev_b32 v8, 4, v0", "s_waitcnt vmcnt(0)", "s_mov_b64 exec, 0xff")
    store_sel(g, "s69", f"buffer_store_dwordx4 v[20:23], v8, {srd(SRD_WS)}, {sT0} offen @SC ;@ml")
    g("s_mov_b64 exec, -1")
    g(f"{LnoML}:")

    LT3P, LWOP, LT3, LLEAD = g.lab("t3prep"), g.lab("woprep"), g.lab("t3"), g.lab("lead")
    g("v_mov_b32 v8, 0", f"ds_read_b32 v8, v8 offset:{L_CNT + 20}", "s_waitcnt lgkmcnt(0)", "v_readfirstlane_b32 s71, v8")
    lds_wait(g, L_CNT + 24, 4, 12)
    g(f"s_cmp_eq_u32 {sPHI}, 0xff", f"s_cbranch_scc1 {LWOP}")

    g(f"s_mul_i32 {sT0}, {sA}, {128*2752}", f"s_lshl_b32 {sT1}, {sPHI}, 6", f"s_add_u32 s64, {sT0}, {sT1}")
    make_srd(g, SRD_A, 16, "s64", 512 * 1376 * 2)
    g(f"s_lshl_b32 {sT0}, {sPHI}, 15", f"s_lshl_b32 {sT1}, {sA}, 8", f"s_add_u32 s64, {sT0}, {sT1}")
    make_srd(g, SRD_B, 18, "s64", 1376 * 512 * 2)
    g("v_lshrrev_b32 v205, 2, v0", "v_mul_u32_u24 v205, 2752, v205", "v_and_b32 v10, 3, v0", "v_lshlrev_b32 v10, 4, v10",
      "v_add_u32 v205, v205, v10", f"s_lshl_b32 s65, {sA}, 13", f"s_add_u32 s65, s65, {L_KB}", "s_add_u32 s66, s65, 32768",
      f"v_lshlrev_b32 v206, 10, v{vG}", f"v_lshlrev_b32 v11, 4, v{vI}", "v_add_u32 v206, v206, v11")
    vB1, vB2 = 64, 96
    vTR1, vTR2 = 207, 208
    vX3, vGA3, vC3, vGB = 224, 228, 232, 236
    g("v_lshrrev_b32 v5, 5, v0", "v_and_b32 v8, 31, v0",
      f"s_lshl_b32 s68, {sA}, 9", "v_lshlrev_b32 v9, 11, v5", "v_lshlrev_b32 v10, 4, v8", "v_add_u32 v9, v9, v10", "v_add_u32 v9, s68, v9",
      f"s_mov_b32 {sT0}, {WS_MODF}", f"s_mov_b32 {sT1}, {WS_MODF + 4096}", f"s_mov_b32 {sT2}, {WS_MODF + 8192}")
    vXA, vFA = 202, 199
    g(f"v_mov_b32 v{vXA}, v9")
    g("v_lshrrev_b32 v7, 2, v0", "v_and_b32 v7, 1, v7", f"v_lshlrev_b32 v{vFA}, 11, v7", "v_and_b32 v7, 3, v0", "v_lshlrev_b32 v7, 4, v7",
      f"v_add_u32 v{vFA}, v{vFA}, v7", f"s_and_b32 {sT3}, {sPHI}, 31", f"s_lshl_b32 {sT3}, {sT3}, 6", f"v_add_u32 v{vFA}, {sT3}, v{vFA}",
      f"s_mov_b32 s69, {WS_MODF + 3*4096}")
    poll(g, "p_modf",
         lambda: g(f"buffer_load_dwordx4 v[12:15], v9, {srd(SRD_WS)}, {sT0} offen sc1", f"buffer_load_dwordx4 v[16:19], v9, {srd(SRD_WS)}, {sT1} offen sc1",
                   f"buffer_load_dwordx4 v[20:23], v9, {srd(SRD_WS)}, {sT2} offen sc1", f"buffer_load_dwordx4 {v(vGB,4)}, v{vFA}, {srd(SRD_WS)}, s69 offen sc1"),
         lambda: check_intag(g, list(range(12, 24)) + list(range(vGB, vGB + 4)), vTAU, 28))
    g("s_mov_b32 s72, s4", "s_mov_b32 s73, s5", "s_mov_b32 s74, 2048", "s_mov_b32 s75, 0x20000")
    g("v_lshrrev_b32 v10, 1, v9", "buffer_load_dwordx2 v[40:41], v10, s[72:75], 0 offen")
    for e in range(4):
        g(f"v_and_b32 v{vGA3+e}, v{vMSK}, v{12+e}", f"v_and_b32 v{16+e}, v{vMSK}, v{16+e}", f"v_and_b32 v{20+e}, v{vMSK}, v{20+e}",
          f"v_and_b32 v{vGB+e}, v{vMSK}, v{vGB+e}", f"v_add_f32 v{20+e}, 1.0, v{20+e}")
    vZA, vYA, vAA, vRA, vUA, vSA, vGW, vGR, vPA, vSW = 201, 200, 203, 204, 209, 210, 211, 212, 213, 214
    g(f"s_mul_i32 s68, {sA}, 1536", f"s_add_u32 s68, s68, {L_ACT3}", f"v_lshlrev_b32 v{vZA}, 8, v5", "v_lshlrev_b32 v10, 3, v8",
      f"v_add_u32 v{vZA}, v{vZA}, v10", f"v_add_u32 v{vZA}, s68, v{vZA}",
      "v_cvt_pk_bf16_f32 v42, v20, v21", "v_cvt_pk_bf16_f32 v43, v22, v23",
      "v_cvt_pk_bf16_f32 v44, v16, v17", "v_cvt_pk_bf16_f32 v45, v18, v19",
      f"v_lshlrev_b32 v{vC3}, 16, v42", f"v_and_b32 v{vC3+1}, 0xffff0000, v42", f"v_lshlrev_b32 v{vC3+2}, 16, v43", f"v_and_b32 v{vC3+3}, 0xffff0000, v43",
      f"ds_write_b64 v{vZA}, v[42:43] offset:512", f"ds_write_b64 v{vZA}, v[44:45] offset:1024",
      "s_waitcnt vmcnt(0)",
      f"v_lshlrev_b32 v{vX3}, 16, v40", f"v_and_b32 v{vX3+1}, 0xffff0000, v40", f"v_lshlrev_b32 v{vX3+2}, 16, v41", f"v_and_b32 v{vX3+3}, 0xffff0000, v41")
    tr_addr(g, vTR1, 12, vI, vG, 6, "s65")
    tr_addr(g, vTR2, 12, vI, vG, 8, "s66")
    g(f"v_lshrrev_b32 v{vYA}, 2, v8", f"v_lshlrev_b32 v{vYA}, 7, v{vYA}", "v_and_b32 v12, 3, v8", "v_lshlrev_b32 v12, 4, v12",
      f"v_add_u32 v{vYA}, v{vYA}, v12", "v_lshlrev_b32 v12, 6, v5", f"v_add_u32 v{vYA}, v{vYA}, v12",
      f"s_lshl_b32 {sT0}, {sA}, 10", f"v_add_u32 v{vYA}, {sT0}, v{vYA}")
    g(f"v_cmp_gt_u32 vcc, 6, v{vI}", "s_nop 1", f"v_cndmask_b32 v{vAA}, 0, v{vI}, vcc", f"v_lshlrev_b32 v{vAA}, 8, v{vAA}",
      f"v_lshlrev_b32 v12, 4, v{vG}", f"v_add_u32 v{vAA}, v{vAA}, v12", f"v_add_u32 v{vAA}, s68, v{vAA}",
      f"s_lshl_b32 {sT0}, {sA}, 10", f"v_lshlrev_b32 v{vRA}, 4, v0", f"v_add_u32 v{vRA}, {sT0}, v{vRA}")
    g("v_lshrrev_b32 v10, 4, v8", "v_lshlrev_b32 v10, 9, v10", f"v_lshlrev_b32 v11, 4, v{vI}", "v_add_u32 v10, v10, v11",
      "v_lshlrev_b32 v11, 2, v5", f"v_add_u32 v{vUA}, v10, v11", f"v_lshlrev_b32 v{vSA}, 5, v5",
      f"s_lshl_b32 {sT0}, {sA}, 3", f"v_add_u32 v{vSW}, {sT0}, v{vSA}",
      f"s_lshl_b32 {sT0}, {sA}, 7", f"v_lshlrev_b32 v{vGW}, 1, v0", f"v_add_u32 v{vGW}, {sT0}, v{vGW}",
      f"v_and_b32 v14, 1, v{vI}", "v_lshlrev_b32 v14, 6, v14", f"v_lshlrev_b32 v15, 4, v{vG}", "v_add_u32 v14, v14, v15", f"v_add_u32 v{vGR}, {sT0}, v14",
      f"v_lshlrev_b32 v{vPA}, 6, v{vI}", f"v_lshlrev_b32 v9, 4, v{vG}", f"v_add_u32 v{vPA}, v{vPA}, v9",
      f"s_lshl_b32 s68, {sPHI}, 12", f"s_lshl_b32 {sT1}, {sA}, 10", f"s_add_u32 s68, s68, {sT1}", f"s_add_u32 s68, s68, {WS_PS}")

    g(f"{LWOP}:")
    DEFER_WO = opt.get("defer_wo", True)
    vBW, vF, vWO, vWT, vOG, vYP, vOR, vOW = 128, 240, 215, 216, 217, 218, 219, 220
    g(f"s_lshl_b32 s64, {sH}, 17", f"s_lshl_b32 s77, {sA}, 15", "s_add_u32 s64, s64, s77", f"s_lshl_b32 s77, {sJ}, 7", "s_add_u32 s64, s64, s77")
    make_srd(g, 72, 12, "s64", 4096 * 512 * 2)
    g(f"v_lshrrev_b32 v{vWO}, 3, v0", f"v_lshlrev_b32 v{vWO}, 10, v{vWO}", "v_and_b32 v10, 7, v0", "v_lshlrev_b32 v10, 4, v10",
      f"v_add_u32 v{vWO}, v{vWO}, v10", f"s_lshl_b32 s77, {sA}, 12", f"s_add_u32 s77, s77, {L_WQ}")

    def wo_dma():
        if "wo" in SKIP:
            return
        for k in range(4):
            g(f"s_mov_b32 {sT2}, {k*8*1024}", f"s_add_u32 m0, s77, {k*1024}", "s_nop 0",
              f"buffer_load_dwordx4 v{vWO}, s[72:75], {sT2} offen nt lds")

    def w1_dma():
        for t in range(8):
            g(f"s_mov_b32 {sT2}, {t*16*2752}", f"s_add_u32 {sT3}, s65, {t*1024}")
            dma(g, 205, SRD_A, sT2, sT3, "w12")

    W1_EARLY = opt.get("w1_early", True)

    def wo_frags(w1=False):
        if w1 and W1_EARLY and "w12" not in SKIP:
            l1, l2 = g.lab("now1"), g.lab("w1q")
            g(f"s_cmp_eq_u32 {sPHI}, 0xff", f"s_cbranch_scc1 {l1}")
            w1_dma()
            g("s_waitcnt vmcnt(8)", f"s_branch {l2}", f"{l1}:", "s_waitcnt vmcnt(0)", f"{l2}:")
        else:
            g("s_waitcnt vmcnt(0)")
        lds_signal(g, L_CNT + 12, 12)
        lds_wait(g, L_CNT + 12, 4, 12)
        for k in range(4):
            tr_read(g, vBW + 4 * k, vWT, k * 4096, 128)
        g("s_waitcnt lgkmcnt(0)")
    if not DEFER_WO:
        wo_dma()
    g(f"s_lshl_b32 {sT0}, {sH}, 10", f"s_add_u32 {sT0}, {sT0}, {WS_ML}",
      f"v_and_b32 v8, 1, v{vG}", "v_lshlrev_b32 v8, 9, v8", "v_and_b32 v9, 3, v0", "v_lshlrev_b32 v9, 7, v9", "v_add_u32 v8, v8, v9",
      f"s_mul_i32 {sT1}, {sTAU}, 0x00400401", f"v_mov_b32 v5, {sT1}")

    def chk_ml():
        g("v_xor_b32 v16, v14, v5", "v_sub_u32 v17, v15, v5", "v_lshrrev_b32 v18, 4, v17", "v_or_b32 v16, v16, v18", "v_cmp_ne_u32 vcc, 0, v16")
    poll(g, "p_ml", lambda: g(f"buffer_load_dwordx4 v[12:15], v8, {srd(SRD_WS)}, {sT0} offen sc1"), chk_ml)
    g("v_mov_b32 v16, v12", "s_nop 1",
      f"v_max_f32_dpp v16, v16, v16 quad_perm:[1,0,3,2] {DPPF}", "s_nop 1",
      f"v_max_f32_dpp v16, v16, v16 quad_perm:[2,3,0,1] {DPPF}",
      "v_sub_f32 v12, v12, v16", "v_exp_f32 v12, v12", "s_nop 0", "v_mul_f32 v13, v13, v12", "s_nop 1",
      f"v_add_f32_dpp v13, v13, v13 quad_perm:[1,0,3,2] {DPPF}", "s_nop 1",
      f"v_add_f32_dpp v13, v13, v13 quad_perm:[2,3,0,1] {DPPF}",
      "v_rcp_f32 v13, v13", "s_nop 0", "v_mul_f32 v12, v12, v13", "s_nop 1")
    for r in range(4):
        g(f"v_mov_b32_dpp v{vF+r}, v12 quad_perm:[{r},{r},{r},{r}] {DPPF}")
    tr_addr(g, vWT, 12, vI, vG, 7)
    g(f"s_lshl_b32 {sT0}, {sA}, 5", f"s_add_u32 {sT0}, {sT0}, {L_WQ}", f"v_add_u32 v{vWT}, {sT0}, v{vWT}")
    if not DEFER_WO:
        wo_frags()
    g(f"s_lshl_b32 s64, {sH}, 11", f"s_add_u32 s64, s64, {WS_OS}")
    if opt.get("o_coop", True):
        g(f"s_lshl_b32 {sT1}, {sA}, 6", f"s_add_u32 s64, s64, {sT1}")
    g(f"v_and_b32 v{vOG}, 7, v{vI}", f"v_lshlrev_b32 v{vOG}, 8, v{vOG}", f"v_lshlrev_b32 v7, 4, v{vG}", f"v_add_u32 v{vOG}, v{vOG}, v7",
      f"v_and_b32 v{vOR}, 7, v{vI}", f"v_lshlrev_b32 v{vOR}, 4, v{vOR}", f"v_lshlrev_b32 v9, 7, v{vG}", f"v_add_u32 v{vOR}, v{vOR}, v9",
      f"s_lshl_b32 {sT1}, {sA}, 9", f"v_add_u32 v{vOW}, {sT1}, v{vOR}",
      f"v_lshlrev_b32 v{vYP}, 6, v{vG}", f"v_lshlrev_b32 v9, 2, v{vI}", f"v_add_u32 v{vYP}, v{vYP}, v9",
      f"s_lshl_b32 s76, {sX}, 14", f"s_lshl_b32 {sT1}, {sJ}, 11", f"s_add_u32 s76, s76, {sT1}", f"s_add_u32 s76, s76, {WS_YP}",
      f"s_and_b32 {sT1}, {sR}, 3", f"s_lshl_b32 {sT1}, {sT1}, 9", f"s_add_u32 s76, s76, {sT1}", f"s_lshl_b32 {sT1}, {sA}, 7", f"s_add_u32 s76, s76, {sT1}")
    lds_wait(g, L_CNT + 28, opt.get("s3_cnt", 4), 12)
    if DEFER_WO:
        wo_dma()
        stamp(g, 5)
        wo_frags(True)
    stamp(g, 6)

    if opt.get("o_coop", True):
        g("s_mov_b32 exec_lo, 0x00ff00ff", "s_mov_b32 exec_hi, 0x00ff00ff")
        poll(g, "p_o", lambda: g(f"buffer_load_dwordx4 v[16:19], v{vOG}, {srd(SRD_WS)}, s64 offen sc1"),
             lambda: check_sentinel(g, range(16, 20), 12), sleep=opt.get("o_sleep", 0))
        g(f"ds_write_b128 v{vOW}, v[16:19] offset:{L_RED2}")
        lds_signal(g, L_CNT + 16, 12)
        lds_wait(g, L_CNT + 16, 4, 12)
        for k in range(4):
            g(f"ds_read_b128 {v(16+4*k,4)}, v{vOR} offset:{L_RED2 + k*512}")
        g("s_waitcnt lgkmcnt(0)")
    else:
        def isso():
            for k in range(4):
                g(f"buffer_load_dwordx4 {v(16+4*k,4)}, v{vOG}, {srd(SRD_WS)}, s64 offen offset:{k*64} sc1")
        poll(g, "p_o", isso, lambda: check_sentinel(g, range(16, 32), 12))
    stamp(g, 7)
    for k in range(4):
        mfma(g, 32, 16 + 4 * k, vBW + 4 * k, k == 0)
    g("s_mov_b32 exec_hi, 0", "s_nop 6",
      f"v_mul_f32 v32, v32, v{vF}", f"v_fmac_f32 v32, v33, v{vF+1}", f"v_fmac_f32 v32, v34, v{vF+2}", f"v_fmac_f32 v32, v35, v{vF+3}")
    tagify(32, 32)
    store_sel(g, "s71", f"buffer_store_dword v32, v{vYP}, {srd(SRD_WS)}, s76 offen @SC ;@yp")
    g("s_mov_b64 exec, -1")
    g(f"s_cmp_lg_u32 {sPHI}, 0xff", f"s_cbranch_scc1 {LT3}")
    g(f"s_cmp_ge_u32 {sR}, 8", "s_cbranch_scc1 L_exit", f"s_cmp_lg_u32 {sA}, 0", "s_cbranch_scc1 L_exit")
    g(f"s_lshl_b32 s66, {sX}, 14", f"s_lshl_b32 {sT1}, {sR}, 11", f"s_add_u32 s66, s66, {sT1}", f"s_add_u32 s66, s66, {WS_YP}",
      f"s_lshl_b32 s67, {sX}, 12", f"s_lshl_b32 {sT1}, {sR}, 9", f"s_add_u32 s67, s67, {sT1}", f"s_add_u32 s67, s67, {WS_YS}",
      "v_lshlrev_b32 v8, 4, v0")
    poll(g, "p_yp", lambda: g(f"buffer_load_dwordx4 v[16:19], v8, {srd(SRD_WS)}, s66 offen sc1",
                              f"buffer_load_dwordx4 v[20:23], v8, {srd(SRD_WS)}, s66 offen offset:1024 sc1"),
         lambda: check_intag(g, range(16, 24), vTAU, 12))
    stamp(g, 9)
    g("v_pk_add_f32 v[16:17], v[16:17], v[20:21]", "v_pk_add_f32 v[18:19], v[18:19], v[22:23]")
    swapreduce(g, range(16, 20), "v_add_f32", range(20, 24), "32")
    for e in range(4):
        tagify(16 + e, 16 + e)
    g("s_mov_b32 exec_hi, 0", f"buffer_store_dwordx4 v[16:19], v8, {srd(SRD_WS)}, s67 offen sc1 ;@ypub")
    stamp(g, 8)
    end(g)

    g(f"{LT3}:")
    if not (W1_EARLY and DEFER_WO):
        w1_dma()
    for t in range(8):
        g(f"s_mov_b32 {sT2}, {t*4*1024}", f"s_add_u32 {sT3}, s66, {t*1024}")
        dma(g, 206, SRD_B, sT2, sT3, "w12")
    g("s_waitcnt vmcnt(8)" if "w12" not in SKIP else "s_waitcnt vmcnt(0)")
    for tau in range(2):
        for k in range(4):
            tr_read(g, vB1 + (tau * 4 + k) * 4, vTR1, k * 2048 + tau * 32, 64)
    g("s_waitcnt vmcnt(0)")
    for t in range(8):
        tr_read(g, vB2 + 4 * t, vTR2, t * 32, 256)
    g("s_waitcnt lgkmcnt(0)")
    stamp(g, 10 if opt.get("fine") else 6)

    def pk(d, a_, b_):
        g(f"v_pk_add_f32 {v(d,2)}, {v(a_,2)}, {v(b_,2)}")

    def issy():
        for G_ in range(8):
            g(f"s_mov_b32 {sT1}, {WS_YS + G_*4096}", f"buffer_load_dwordx4 {v(16+4*G_,4)}, v{vYA}, {srd(SRD_WS)}, {sT1} offen sc1")
    poll(g, "p_y", issy, lambda: check_intag(g, range(16, 48), vTAU, 12))
    stamp(g, 7)
    for e in (0, 2):
        pk(16 + e, 16 + e, 20 + e); pk(24 + e, 24 + e, 28 + e); pk(32 + e, 32 + e, 36 + e); pk(40 + e, 40 + e, 44 + e)
    for e in (0, 2):
        pk(16 + e, 16 + e, 24 + e); pk(32 + e, 32 + e, 40 + e)
    for e in (0, 2):
        pk(16 + e, 16 + e, 32 + e)
    for e in (0, 2):
        g(f"v_pk_fma_f32 {v(16+e,2)}, {v(16+e,2)}, {v(vGA3+e,2)}, {v(vX3+e,2)}")
    for e in (0, 2):
        g(f"v_pk_mul_f32 {v(24+e,2)}, {v(16+e,2)}, {v(vC3+e,2)}")
    g("v_cvt_pk_bf16_f32 v24, v24, v25", "v_cvt_pk_bf16_f32 v25, v26, v27", f"ds_write_b64 v{vZA}, v[24:25]")
    for k in range(4):
        g(f"ds_read_b128 {v(28+4*k,4)}, v{vAA} offset:{k*64}")
    g(f"ds_write_b128 v{vXA}, v[16:19] offset:{L_X1}",
      "v_pk_add_f32 v[20:21], v[16:17], v[18:19]", "v_mul_f32 v49, v16, v16", "v_add_f32 v48, v20, v21",
      "v_fmac_f32 v49, v17, v17", "v_fmac_f32 v49, v18, v18", "v_fmac_f32 v49, v19, v19")
    rowreduce(g, [48, 49], "v_add_f32")
    g("s_waitcnt lgkmcnt(1)")
    for k in range(4):
        for tau in range(2):
            mfma(g, 16 + 4 * tau, 28 + 4 * k, vB1 + (tau * 4 + k) * 4, k == 0)
    swapreduce(g, [48, 49], "v_add_f32", [50, 51], "16")
    g("s_mov_b32 exec_lo, 1", "s_mov_b32 exec_hi, 1", f"ds_write_b64 v{vSW}, v[48:49] offset:{L_STAT}",
      "s_mov_b32 exec_lo, -1", "s_mov_b32 exec_hi, 0",
      f"ds_write_b128 v{vRA}, v[16:19] offset:{L_RED3}", f"ds_write_b128 v{vRA}, v[20:23] offset:{L_RED3 + 512}",
      "s_mov_b64 exec, -1", "s_waitcnt lgkmcnt(0)", "s_barrier")
    if opt.get("fine"): stamp(g, 2)
    for w in range(4):
        g(f"ds_read_b32 v{12+w}, v{vUA} offset:{L_RED3 + w*1024}", f"ds_read_b32 v{16+w}, v{vUA} offset:{L_RED3 + w*1024 + 8}",
          f"ds_read_b32 v{20+w}, v{vUA} offset:{L_RED3 + w*1024 + 256}")
    g(f"ds_read_b128 v[24:27], v{vSA} offset:{L_STAT}", f"ds_read_b128 v[28:31], v{vSA} offset:{L_STAT + 16}", "s_waitcnt lgkmcnt(0)")
    pk(24, 24, 26); pk(28, 28, 30); pk(12, 12, 14); pk(16, 16, 18); pk(20, 20, 22); pk(24, 24, 28)
    g("v_add_f32 v12, v12, v13", "v_add_f32 v16, v16, v17", "v_add_f32 v20, v20, v21")
    g(f"v_mul_f32 v24, {hex(f2u(1/512))}, v24", f"v_mul_f32 v25, {hex(f2u(1/512))}, v25",
      "v_fma_f32 v25, -v24, v24, v25", f"v_add_f32 v25, {hex(f2u(1e-5))}, v25", "v_rsq_f32 v25, v25",
      "v_fma_f32 v12, -v24, v16, v12", "v_fma_f32 v12, v12, v25, v20")
    silu(g, [12], [13])
    g("v_cvt_pk_bf16_f32 v12, v12, v12", f"ds_write_b16 v{vGW}, v12 offset:{L_ACTG}",
      f"ds_read_b128 v[16:19], v{vGR} offset:{L_ACTG}", "s_waitcnt lgkmcnt(0)")
    if opt.get("fine"): stamp(g, 3)
    for t in range(8):
        mfma(g, 128 + 4 * t, vB2 + 4 * t, 16, True)
    g(*EX8)
    for t in range(8):
        if t == 7:
            g("s_nop 1")
        for e in range(4):
            tagify(128 + 4 * t + e, 128 + 4 * t + e)
        g(f"buffer_store_dwordx4 {v(128+4*t,4)}, v{vPA}, {srd(SRD_WS)}, s68 offen offset:{t*128} sc1 ;@pspub")
    g("s_mov_b64 exec, -1")
    stamp(g, 8)
    g(f"s_cmp_lg_u32 {sA}, 0", "s_cbranch_scc1 L_exit", f"s_cmp_ge_u32 {sPHI}, 32", "s_cbranch_scc1 L_exit")
    g("v_lshrrev_b32 v9, 3, v0", "v_lshlrev_b32 v8, 12, v9", "v_and_b32 v10, 7, v0", "v_lshlrev_b32 v10, 4, v10", "v_add_u32 v8, v8, v10",
      "v_cmp_gt_u32 vcc, 3, v9", f"s_lshl_b32 {sT0}, {sPHI}, 7", f"s_add_u32 {sT0}, {sT0}, {WS_PS}",
      "v_cndmask_b32 v11, v10, v8, vcc", "v_cndmask_b32 v12, 0, 1.0, vcc",
      f"ds_read_b128 v[44:47], v{vFA} offset:{L_X1}", f"v_lshrrev_b32 v48, 1, v{vFA}",
      "s_mov_b32 s72, s24", "s_mov_b32 s73, s25", "s_mov_b32 s74, 2048", "s_mov_b32 s75, 0x20000")

    def issp():
        for k in range(6):
            vv = 11 if k == 5 else 8
            g(f"s_add_u32 {sT1}, {sT0}, {k*8*4096}", f"buffer_load_dwordx4 {v(16+4*k,4)}, v{vv}, {srd(SRD_WS)}, {sT1} offen sc1")
    poll(g, "p_ps", issp, lambda: check_intag(g, range(16, 40), vTAU, 13))
    stamp(g, 9)
    for e in (0, 2):
        pk(16 + e, 16 + e, 20 + e); pk(24 + e, 24 + e, 28 + e)
    for e in range(4):
        g(f"v_fma_f32 v{32+e}, v{36+e}, v12, v{32+e}")
    for e in (0, 2):
        pk(16 + e, 16 + e, 24 + e)
    for e in (0, 2):
        pk(16 + e, 16 + e, 32 + e)
    g("s_nop 0")
    for e in range(4):
        g(f"v_add_f32_dpp v{16+e}, v{16+e}, v{16+e} row_ror:8 {DPPF}")
    swapreduce(g, range(16, 20), "v_add_f32", range(20, 24), "16")
    swapreduce(g, range(16, 20), "v_add_f32", range(20, 24), "32")
    g("s_waitcnt lgkmcnt(0)")
    for e in (0, 2):
        g(f"v_pk_fma_f32 {v(16+e,2)}, {v(16+e,2)}, {v(vGB+e,2)}, {v(44+e,2)}")
    g("v_cvt_pk_bf16_f32 v16, v16, v17", "v_cvt_pk_bf16_f32 v17, v18, v19",
      "s_mov_b64 exec, 0xff", "buffer_store_dwordx2 v[16:17], v48, s[72:75], 0 offen")
    stamp(g, 10)
    dbgmax(g, 4)
    g(f"s_cmp_lg_u32 {sPHI}, 0", "s_cbranch_scc1 L_exit", "s_mov_b64 exec, 1", "s_add_u32 s30, s30, 1", "v_mov_b32 v8, 0", "v_mov_b32 v9, s30",
      f"buffer_store_dword v9, v8, {srd(SRD_WS)}, 0 offen sc1")
    end(g)


def generate(opt=None):
    global STAMPS, SKIP, POLL_LIMIT, DBGT, NL, LDS_SIZE
    opt = dict(opt or {})
    DBGT = opt.get("dbgt", False)
    POLL_LIMIT = opt.get("poll_limit", 400000)
    SKIP = set(opt.get("skip", ()))
    STAMPS = opt.get("stamps", False)
    NL = opt.get("NL", 24)
    LDS_SIZE = L_KB + 4 * NL * 1024
    g = G()
    hdr = open("cdna_kernels/" + NAME + ".s.ref").read().split("\n")
    for line in hdr:
        if line.startswith(";") and "@launch" not in line and "Override launch" not in line and "grid=ceil" not in line:
            g(line)
        elif not line.startswith(";"):
            break
    g(f"; @launch grid=(256,1,1) block=(512,1,1) lds={LDS_SIZE}")
    g('.amdgcn_target "amdgcn-amd-amdhsa--gfx950"', ".text", f".globl {NAME}_kernel", ".p2align 8",
      f".type {NAME}_kernel,@function", f"{NAME}_kernel:")
    stamp(g, 0)
    gen_entry(g, opt)
    if STAMPS:
        for k in range(1, NSTAMP):
            g(f"s_mov_b32 s{80+2*k}, 0")
    dbgmax(g, 0, True)
    dbgmax(g, 1)
    if opt.get("st_ka"):
        stamp(g, 8)
    g("s_cmp_ge_u32 s3, 4", "s_cbranch_scc1 L_aux")
    gen_stream(g, opt)
    g("L_aux:")
    if 'aux' in SKIP:
        g("s_endpgm")
    gen_aux(g, opt)
    g("L_exit:")
    end(g)
    g("L_end:", "s_endpgm")
    g('.section .rodata,"a"', ".p2align 6", f".amdhsa_kernel {NAME}_kernel",
      "  .amdhsa_next_free_vgpr 256", "  .amdhsa_next_free_sgpr 102", "  .amdhsa_accum_offset 256",
      "  .amdhsa_group_segment_fixed_size 0", "  .amdhsa_kernarg_size 104", "  .amdhsa_user_sgpr_count 2",
      "  .amdhsa_user_sgpr_kernarg_segment_ptr 1", "  .amdhsa_system_sgpr_workgroup_id_x 1",
      "  .amdhsa_float_denorm_mode_32 3", ".end_amdhsa_kernel")
    txt = g.text()
    drop = set(opt.get("drop", ()))
    kept = []
    for line in txt.split("\n"):
        if ";@" in line:
            nm = line.split(";@")[1].strip()
            line = line.split(";@")[0].rstrip()
            if nm in drop:
                continue
        kept.append(line)
    return "\n".join(kept)


if __name__ == "__main__":
    out = sys.argv[1] if len(sys.argv) > 1 else "cdna_kernels/" + NAME + ".s"
    opt = eval(sys.argv[2]) if len(sys.argv) > 2 else {}
    open(out, "w").write(generate(opt))
    print("wrote", out)
```

```python
import struct
import sys

NAME = "adaLN_cond__gqa_block_cached__dense_activation_silu__decode"

WS_EPOCH = 0x0
WS_MODP = 0x1000
WS_MODF = 0x19000
WS_ML = 0x20000
WS_QP = 0x30000
WS_OS = 0x70000
WS_XL = 0x28000
WS_YS = 0x80000
WS_PS = 0x98000
WS_YP = 0xD0000
WS_STAMP = 0x100000
WS_SIZE = 0x120000

L_Q = 0x0000
L_MLW = 0x0100
L_CNT = 0x0180
L_RED = 0x0200
L_RED2 = 0x0A00
L_RED3 = 0x1200
L_STAT = 0x2200
L_ACT1 = 0x2300
L_ACT2 = 0x2500
L_ACTG = 0x2600
L_ACT3 = 0x2800
L_X1 = 0x4000
L_WMOD = 0x5000
L_WQ = 0x9000
L_KB = 0xD000
NL = 24
LDS_SIZE = L_KB + 4 * NL * 1024

sX, sR, sH, sJ, sB, sS = "s48", "s49", "s50", "s51", "s52", "s53"
sT0, sT1, sT2, sT3 = "s54", "s55", "s56", "s57"
sA = "s58"
sPHI = "s59"
sM1, sM0 = "s[60:61]", "s[62:63]"
sCNT = "s70"
sTAU = "s31"
SRD_A, SRD_B, SRD_WS = 32, 36, 40
POLL_LIMIT = 400000
TAGMASK = 0x3FF

LOG2E = 1.4426950408889634
CS = (128 ** -0.5) * LOG2E
STAMPS = False
NSTAMP = 11
SKIP = set()


def f2u(x):
    return struct.unpack("<I", struct.pack("<f", x))[0]


class G:
    def __init__(self):
        self.L = []
        self.n = 0

    def __call__(self, *txt):
        for t in txt:
            self.L.extend(t.split("\n"))

    def lab(self, base):
        self.n += 1
        return f"L_{base}_{self.n}"

    def text(self):
        return "\n".join(self.L) + "\n"


def v(a, n=1):
    return f"v{a}" if n == 1 else f"v[{a}:{a+n-1}]"


def srd(n):
    return f"s[{n}:{n+3}]"


def make_srd(g, d, plo, off, total):
    if isinstance(off, int):
        assert off == 0
        g(f"s_mov_b32 s{d}, s{plo}", f"s_mov_b32 s{d+1}, s{plo+1}", f"s_mov_b32 s{d+2}, {total}")
    else:
        g(f"s_add_u32 s{d}, s{plo}, {off}", f"s_addc_u32 s{d+1}, s{plo+1}, 0",
          f"s_sub_u32 s{d+2}, {total}, {off}")
    g(f"s_mov_b32 s{d+3}, 0x20000")


DPPF = "row_mask:0xf bank_mask:0xf"


def rowreduce(g, regs, op):
    for ctl in ("row_ror:8", "row_ror:4", "row_ror:2", "row_ror:1"):
        g("s_nop 1" if len(regs) < 3 else "s_nop 0")
        for r in regs:
            g(f"{op}_dpp v{r}, v{r}, v{r} {ctl} {DPPF}")


def swapreduce(g, regs, op, tmps, which):
    sw = f"v_permlane{which}_swap_b32"
    g("s_nop 0")
    for r, t in zip(regs, tmps):
        g(f"v_mov_b32 v{t}, v{r}")
    g("s_nop 1")
    for r, t in zip(regs, tmps):
        g(f"{sw} v{r}, v{t}")
    g("s_nop 1")
    for r, t in zip(regs, tmps):
        g(f"{op} v{r}, v{r}, v{t}")


def allreduce(g, regs, op, tmps):
    rowreduce(g, regs, op)
    swapreduce(g, regs, op, tmps, "16")
    swapreduce(g, regs, op, tmps, "32")


sDRY = "s71"


def nodry(g):
    lab = g.lab("nd")
    g(f"s_cmp_lg_u32 {sDRY}, 0", f"s_cbranch_scc1 {lab}")
    return lab


def poll(g, name, issue, check, pre=None, dry=False, sleep=0):
    g(f"s_mov_b32 {sCNT}, {sDRY if dry else 0}")
    stages = ([pre] if pre else []) + [(issue, check)]
    dn = g.lab(name + "_done")
    for iss, chk in stages:
        lp = g.lab(name)
        g(f"{lp}:")
        if sleep:
            g(f"s_sleep {sleep}")
        i0 = len(g.L)
        iss()
        for i in range(i0, len(g.L)):
            if g.L[i].startswith("buffer_load"):
                g.L[i] += f" ;@ld_{name}"
        g("s_waitcnt vmcnt(0)")
        chk()
        g(f"s_add_u32 {sCNT}, {sCNT}, 1", f"s_cmp_gt_u32 {sCNT}, {POLL_LIMIT}",
          f"s_cbranch_scc1 {dn}", f"s_cbranch_vccnz {lp}")
    g(f"{dn}:")


def check_intag(g, regs, vtau, tmp):
    regs = list(regs)
    g(f"v_xor_b32 v{tmp}, v{regs[0]}, v{vtau}")
    rest = regs[1:]
    while len(rest) >= 2:
        g(f"v_xor_b32 v{tmp+1}, v{rest[0]}, v{vtau}", f"v_xor_b32 v{tmp+2}, v{rest[1]}, v{vtau}",
          f"v_or3_b32 v{tmp}, v{tmp}, v{tmp+1}, v{tmp+2}")
        rest = rest[2:]
    if rest:
        g(f"v_xor_b32 v{tmp+1}, v{rest[0]}, v{vtau}", f"v_or_b32 v{tmp}, v{tmp}, v{tmp+1}")
    g(f"v_and_b32 v{tmp}, {TAGMASK}, v{tmp}", f"v_cmp_ne_u32 vcc, 0, v{tmp}")


def check_sentinel(g, regs, tmp):
    regs = list(regs)
    g(f"v_max_u32 v{tmp}, v{regs[0]}, v{regs[1]}")
    rest = regs[2:]
    while len(rest) >= 2:
        g(f"v_max3_u32 v{tmp}, v{tmp}, v{rest[0]}, v{rest[1]}")
        rest = rest[2:]
    if rest:
        g(f"v_max_u32 v{tmp}, v{tmp}, v{rest[0]}")
    g(f"v_cmp_eq_u32 vcc, -1, v{tmp}")


def silu(g, xs, ts):
    for x, t in zip(xs, ts):
        g(f"v_mul_f32 v{t}, {hex(f2u(-LOG2E))}, v{x}")
    for t in ts:
        g(f"v_exp_f32 v{t}, v{t}")
    g("s_nop 0")
    for t in ts:
        g(f"v_add_f32 v{t}, 1.0, v{t}")
    for t in ts:
        g(f"v_rcp_f32 v{t}, v{t}")
    g("s_nop 0")
    for x, t in zip(xs, ts):
        g(f"v_mul_f32 v{x}, v{x}, v{t}")


def dma(g, voff, srdn, soff, lds_addr, what="", imm=0):
    if what in SKIP:
        return
    g(f"s_mov_b32 m0, {lds_addr}", "s_nop 0")
    g(f"buffer_load_dwordx4 v{voff}, {srd(srdn)}, {soff} offen nt lds")


def lds_signal(g, off, vtmp):
    g("s_mov_b64 exec, 1", f"v_mov_b32 v{vtmp}, 0", f"v_mov_b32 v{vtmp+1}, 1", f"ds_add_u32 v{vtmp}, v{vtmp+1} offset:{off}", "s_mov_b64 exec, -1")


def lds_wait(g, off, target, vtmp):
    lp, dn = g.lab("lw"), g.lab("lwd")
    g(f"s_mov_b32 {sCNT}, 0", f"v_mov_b32 v{vtmp}, 0", f"{lp}:", f"ds_read_b32 v{vtmp+1}, v{vtmp} offset:{off}", "s_waitcnt lgkmcnt(0)",
      f"v_readfirstlane_b32 s47, v{vtmp+1}", f"s_add_u32 {sCNT}, {sCNT}, 1", f"s_cmp_gt_u32 {sCNT}, {POLL_LIMIT * 4 + 4}", f"s_cbranch_scc1 {dn}",
      f"s_cmp_lt_u32 s47, {target}", f"s_cbranch_scc1 {lp}", f"{dn}:")


def store_sel(g, sflag, *instrs):
    l1, l2 = g.lab("wt"), g.lab("wte")
    g(f"s_cmp_eq_u32 {sflag}, 0", f"s_cbranch_scc1 {l1}")
    for i in instrs:
        g(i.replace(" @SC", ""))
    g(f"s_branch {l2}", f"{l1}:")
    for i in instrs:
        g(i.replace(" @SC", " sc1"))
    g(f"{l2}:")


def stamp(g, k):
    if STAMPS:
        g(f"s_memrealtime s[{80+2*k}:{81+2*k}]")


DBGT = False


def dbgmax(g, slot, invert=False):
    if not DBGT:
        return
    lab = g.lab("dbg")
    if slot < 4:
        g("s_and_b32 s74, s2, 15", "s_or_b32 s74, s74, s3", "s_cmp_lg_u32 s74, 0", f"s_cbranch_scc1 {lab}")
    g("s_memrealtime s[74:75]", "s_waitcnt lgkmcnt(0)")
    if invert:
        g("s_not_b32 s74, s74")
    g("s_mov_b64 s[76:77], exec", "s_mov_b64 exec, 1", "v_mov_b32 v252, s74", f"v_mov_b32 v253, {slot*4 + 32}",
      "global_atomic_umax v253, v252, s[26:27]", "s_mov_b64 exec, s[76:77]", f"{lab}:")


def end(g):
    if STAMPS:
        g("s_mov_b64 exec, -1", "s_waitcnt lgkmcnt(0)")
        for k in range(NSTAMP):
            g(f"v_writelane_b32 v250, s{80+2*k}, {k}")
        g("s_lshl_b32 s72, s2, 3", "s_add_u32 s72, s72, s3", "s_lshl_b32 s72, s72, 6", f"s_add_u32 s72, s72, {WS_STAMP}",
          "s_mov_b32 s76, s28", "s_mov_b32 s77, s29", f"s_mov_b32 s78, {WS_SIZE}", "s_mov_b32 s79, 0x20000",
          "v_lshlrev_b32 v251, 2, v0", f"s_mov_b64 exec, {hex((1 << NSTAMP) - 1)}",
          "buffer_store_dword v250, v251, s[76:79], s72 offen")
    g("s_endpgm")


def tr_addr(g, dst, tmp, vI, vG, rowshift, base=None):
    g(f"v_lshlrev_b32 v{dst}, 3, v{vG}", f"v_lshrrev_b32 v{tmp}, 2, v{vI}", f"v_add_u32 v{dst}, v{dst}, v{tmp}",
      f"v_lshlrev_b32 v{dst}, {rowshift}, v{dst}", f"v_and_b32 v{tmp}, 3, v{vI}", f"v_lshlrev_b32 v{tmp}, 3, v{tmp}",
      f"v_add_u32 v{dst}, v{dst}, v{tmp}")
    if base is not None:
        g(f"v_add_u32 v{dst}, {base}, v{dst}")


def tr_read(g, reg, vaddr, off, rowbytes):
    g(f"ds_read_b64_tr_b16 {v(reg,2)}, v{vaddr} offset:{off}", f"ds_read_b64_tr_b16 {v(reg+2,2)}, v{vaddr} offset:{off + 4*rowbytes}")


def mfma(g, d, a, b, first):
    g(f"v_mfma_f32_16x16x32_bf16 {v(d,4)}, {v(a,4)}, {v(b,4)}, {'0' if first else v(d,4)}")


def backoff(g, n):
    while n > 0:
        g(f"s_sleep {min(n, 127)}")
        n -= min(n, 127)


def gen_entry(g, opt):
    URG = opt.get("urgent_r", 8)
    if opt.get("probe"):
        g("s_memrealtime s[90:91]")
    g("s_cmp_ge_u32 s2, 0x100", "s_cbranch_scc1 L_end",
      "s_load_dwordx16 s[4:19], s[0:1], 0", "s_load_dwordx8 s[20:27], s[0:1], 64", "s_load_dwordx2 s[28:29], s[0:1], 96",
      "v_lshrrev_b32 v1, 6, v0", "v_and_b32 v0, 63, v0", f"s_and_b32 {sX}, s2, 7", "v_readfirstlane_b32 s3, v1",
      f"s_lshr_b32 {sR}, s2, 3", f"s_and_b32 {sT0}, {sR}, 3", f"s_lshl_b32 {sH}, {sX}, 2",
      f"s_add_u32 {sH}, {sH}, {sT0}", f"s_lshr_b32 {sJ}, {sR}, 2", f"s_lshr_b32 {sB}, {sJ}, 2", f"s_and_b32 {sS}, {sJ}, 3")
    g(f"s_lshl_b32 s65, {sB}, 5", f"s_add_u32 s65, s65, {sH}", "s_lshl_b32 s65, s65, 20", f"s_lshl_b32 {sT1}, {sS}, 18", f"s_add_u32 s65, s65, {sT1}",
      f"s_lshl_b32 {sT1}, s3, 12", "v_lshlrev_b32 v1, 4, v0", f"s_mul_i32 s64, s3, {NL*1024}", f"s_add_u32 s64, s64, {L_KB}",
      "v_add_u32 v46, s64, v1", f"v_add_u32 v1, {sT1}, v1")
    g(f"s_lshr_b32 s68, {sR}, 2", f"s_and_b32 s69, {sR}, 3", "s_lshl_b32 s69, s69, 2", "s_add_u32 s69, s69, s3",
      f"s_mul_i32 s69, s69, {32*6144}", "s_lshl_b32 s68, s68, 10", "s_add_u32 s69, s69, s68", f"s_lshl_b32 s68, {sX}, 7", "s_add_u32 s69, s69, s68",
      f"s_cmp_ge_u32 {sR}, 24", "s_cselect_b32 s69, 0, s69",
      "v_lshrrev_b32 v3, 3, v0", "v_mul_u32_u24 v3, 0x1800, v3", "v_and_b32 v4, 7, v0", "v_lshlrev_b32 v4, 4, v4", "v_add_u32 v3, v3, v4",
      "s_lshl_b32 s71, s3, 12", f"s_add_u32 s71, s71, {L_WMOD}")
    g("s_waitcnt lgkmcnt(0)")


def gen_stream(g, opt):
    W = opt.get("W", 6)
    NS = 48
    vOFF, vQ, vM, vD = 1, 2, 6, 10
    vB = [14, 18]
    vS, vT, vX, vSL, vLDS = 22, 26, 42, 48, 46
    NREG_K = 64 - NL
    URG = opt.get("urgent_r", 8)
    W0 = opt.get("W0", W)
    I_WQ, I_LATE = opt.get("i_wq", W0), opt.get("i_late", W0 + 2 * W)

    order = [("K", n) for n in range(NREG_K, 64)] + [("K", n) for n in range(NREG_K)] + [("V", n) for n in range(64)]

    def slot_of(kind, n):
        return vSL + 4 * ((n if kind == "K" else NREG_K + n) % NS)

    def wmod_dma():
        for k in range(4):
            g(f"s_mov_b32 s68, {k * 8 * 6144}", f"s_add_u32 m0, s71, {k*1024}", "s_nop 0")
            if 'p1' not in SKIP:
                g("buffer_load_dwordx4 v3, s[76:79], s68 offen nt lds")

    def wq_dma():
        for k in range(4):
            g(f"s_mov_b32 s68, {k * 4 * 8192}", f"s_add_u32 m0, s67, {k*1024}", "s_nop 0")
            if 'wq' not in SKIP:
                g("buffer_load_dwordx4 v2, s[72:75], s68 offen nt lds")

    g(f"s_add_u32 s{SRD_A}, s6, s65", f"s_addc_u32 s{SRD_A+1}, s7, 0", f"s_mov_b32 s{SRD_A+2}, 0x40000", f"s_mov_b32 s{SRD_A+3}, 0x20000")
    make_srd(g, 76, 22, "s69", 512 * 3072 * 2)
    Lnp = g.lab("nourg")
    g(f"s_cmp_ge_u32 {sR}, {URG}", f"s_cbranch_scc1 {Lnp}")
    wmod_dma()
    g(f"{Lnp}:")

    state = {"K": None, "V": None, "i": 0}
    if STAMPS:
        g("s_memtime s[98:99]")

    def issue_next():
        i = state["i"]
        kind, n = order[i]
        rho, t = n >> 2, n & 3
        sreg, sr = (sT2, SRD_A) if kind == "K" else (sT3, SRD_B)
        if i >= W0:
            g(f"s_waitcnt vmcnt({W-1})")
        if kind == "K" and n >= NREG_K:
            g(f"s_mov_b32 {sreg}, {rho * 16384 + t * 1024}", f"s_add_u32 m0, s64, {(n - NREG_K) * 1024}")
            state[kind] = None
            g("s_nop 0", f"buffer_load_dwordx4 v{vOFF}, {srd(sr)}, {sreg} offen nt lds")
        else:
            if state[kind] != rho:
                g(f"s_mov_b32 {sreg}, {rho * 16384}")
                state[kind] = rho
            g(f"buffer_load_dwordx4 {v(slot_of(kind, n), 4)}, v{vOFF}, {srd(sr)}, {sreg} offen offset:{t*1024} nt")
        state["i"] = i + 1

    def issued_after(kind, n):
        return state["i"] - 1 - order.index((kind, n))

    NBACK = NL + NS
    for i in range(NBACK):
        issue_next()
        if i == W0 - 1:
            g(f"s_add_u32 s{SRD_B}, s8, s65", f"s_addc_u32 s{SRD_B+1}, s9, 0", f"s_mov_b32 s{SRD_B+2}, 0x40000", f"s_mov_b32 s{SRD_B+3}, 0x20000")
            g(f"s_lshl_b32 s66, {sJ}, 19", f"s_lshl_b32 s67, {sH}, 8", "s_add_u32 s66, s66, s67", "s_lshl_b32 s67, s3, 17", "s_add_u32 s66, s66, s67")
            make_srd(g, 72, 10, "s66", 512 * 4096 * 2)
            g("v_lshrrev_b32 v2, 4, v0", "v_lshlrev_b32 v2, 13, v2", "v_and_b32 v4, 15, v0", "v_lshlrev_b32 v4, 4, v4", "v_add_u32 v2, v2, v4",
              "s_lshl_b32 s67, s3, 12", f"s_add_u32 s67, s67, {L_WQ}")
            g("s_barrier")
        if i == W0 and opt.get("st_ka"):
            stamp(g, 5)
        if i == W0:
            lab = g.lab("sigm")
            g(f"s_cmp_ge_u32 {sR}, {URG}", f"s_cbranch_scc1 {lab}")
            lds_signal(g, L_CNT + 4, 4)
            g(f"{lab}:")
        if i == I_WQ:
            wq_dma()
        if i == I_WQ + W:
            lds_signal(g, L_CNT + 8, 4)
        if i == I_LATE:
            lab = g.lab("late")
            g(f"s_cmp_lt_u32 {sR}, {URG}", f"s_cbranch_scc1 {lab}", f"s_cmp_ge_u32 {sR}, 24", f"s_cbranch_scc1 {lab}")
            wmod_dma()
            g(f"{lab}:")
        if i == I_LATE + W:
            lab = g.lab("sigl")
            g(f"s_cmp_lt_u32 {sR}, {URG}", f"s_cbranch_scc1 {lab}")
            lds_signal(g, L_CNT + 4, 4)
            g(f"{lab}:")
    g(f"v_and_b32 v{vX}, 15, v0", f"v_lshrrev_b32 v{vX+1}, 1, v{vX}", f"v_and_b32 v{vX+2}, 1, v{vX}",
      f"v_mov_b32 v{vX+3}, 0xffff", f"v_mov_b32 v{vT}, 0xffff0000",
      f"v_cmp_eq_u32 vcc, 1, v{vX+2}", "s_nop 1", f"v_cndmask_b32 v{vX+3}, v{vX+3}, v{vT}, vcc")
    for r in range(4):
        g(f"v_cmp_eq_u32 vcc, {r}, v{vX+1}", "s_nop 1", f"v_cndmask_b32 v{vM+r}, 0, v{vX+3}, vcc")
    g("s_mov_b32 s60, 0xcccccccc", "s_mov_b32 s61, 0xcccccccc", "s_mov_b32 s62, 0xaaaaaaaa", "s_mov_b32 s63, 0xaaaaaaaa")
    for r in range(4):
        g(f"v_mov_b32 v{vD+r}, 0")
    g(f"v_lshlrev_b32 v{vX}, 4, v{vX}")
    stamp(g, 1)
    g("s_barrier")
    stamp(g, 2)
    dbgmax(g, 2)
    g(f"ds_read_b128 {v(vQ,4)}, v{vX} offset:{L_Q}", "s_waitcnt lgkmcnt(0)")

    def kreg(n):
        if n < NREG_K:
            return slot_of("K", n)
        return vSL + 4 * (16 + (n & 15))

    def dots(ns):
        for r in range(4):
            for n in ns:
                t = vT + (n & 15)
                c = "0" if r == 0 else f"v{t}"
                g(f"v_dot2_f32_bf16 v{t}, v{kreg(n)+r}, v{vQ+r}, {c}")

    def tree(gam):
        g("s_nop 2")
        for n in range(8):
            g(f"v_add_f32_dpp v{vT+n}, v{vT+n}, v{vT+n} row_ror:8 row_mask:0xf bank_mask:0x3")
            g(f"v_add_f32_dpp v{vT+n}, v{vT+n+8}, v{vT+n+8} row_ror:8 row_mask:0xf bank_mask:0xc")
        for n in range(4):
            g(f"v_add_f32_dpp v{vT+n}, v{vT+n}, v{vT+n} row_shl:4 row_mask:0xf bank_mask:0x5")
            g(f"v_add_f32_dpp v{vT+n}, v{vT+n+4}, v{vT+n+4} row_shr:4 row_mask:0xf bank_mask:0xa")
        g("s_nop 0")
        for n in range(4):
            g(f"v_add_f32_dpp v{vT+n}, v{vT+n}, v{vT+n} quad_perm:[2,3,0,1] {DPPF}")
        g(f"v_cndmask_b32 v{vT}, v{vT}, v{vT+2}, {sM1}", f"v_cndmask_b32 v{vT+1}, v{vT+1}, v{vT+3}, {sM1}", "s_nop 1")
        for n in range(2):
            g(f"v_add_f32_dpp v{vT+n}, v{vT+n}, v{vT+n} quad_perm:[1,0,3,2] {DPPF}")
        g(f"v_cndmask_b32 v{vS+gam}, v{vT}, v{vT+1}, {sM0}")

    freed = 0

    def can_issue():
        i = state["i"]
        if i >= len(order):
            return False
        kind, n = order[i]
        return n < NS - NREG_K or (NREG_K + n) % NS < freed

    every = opt.get("burst_every", 2)
    qi = 0
    for gam in range(4):
        ns_all = list(range(16 * gam, 16 * gam + 16))
        for n in ns_all:
            if n >= NREG_K:
                g(f"ds_read_b128 {v(kreg(n),4)}, v{vLDS} offset:{(n - NREG_K) * 1024}")
        for q4 in range(4):
            ns = ns_all[4 * q4: 4 * q4 + 4]
            regn = [n for n in ns if n < NREG_K]
            if regn:
                g(f"s_waitcnt vmcnt({min(63, issued_after('K', regn[-1]))})")
            if any(n >= NREG_K for n in ns):
                g("s_waitcnt lgkmcnt(0)")
            if 'qk' not in SKIP:
                dots(ns)
            if regn:
                freed = min(regn[-1] + 1, 16)
            qi += 1
            if qi % every == 0 and can_issue():
                issue_next()
        if 'qk' not in SKIP:
            tree(gam)
    freed = NS
    stamp(g, 3)
    for _ in range(opt.get("sm_issue0", 0)):
        issue_next()
    g(f"v_max3_f32 v{vX}, v{vS}, v{vS+1}, v{vS+2}", f"v_max_f32 v{vX}, v{vX}, v{vS+3}")
    allreduce(g, [vX], "v_max_f32", [vX + 1])
    g(f"v_mul_f32 v{vX}, {hex(f2u(CS))}, v{vX}", f"s_mov_b32 {sT0}, {hex(f2u(CS))}")
    issue_next()
    for r in range(4):
        g(f"v_fma_f32 v{vS+r}, v{vS+r}, {sT0}, -v{vX}")
    for r in range(4):
        g(f"v_exp_f32 v{vS+r}, v{vS+r}")
    g("s_nop 0")
    g(f"v_add_f32 v{vX+1}, v{vS}, v{vS+1}", f"v_add_f32 v{vX+2}, v{vS+2}, v{vS+3}", f"v_add_f32 v{vX+1}, v{vX+1}, v{vX+2}")
    allreduce(g, [vX + 1], "v_add_f32", [vX + 2])
    g(f"s_lshl_b32 {sT0}, s3, 3", f"v_mov_b32 v{vX+2}, {sT0}", "s_mov_b64 exec, 1",
      f"ds_write_b64 v{vX+2}, {v(vX,2)} offset:{L_MLW}", "s_mov_b64 exec, -1", "s_waitcnt lgkmcnt(0)")
    issue_next()
    g("s_barrier")
    stamp(g, 4)
    g(f"v_mov_b32 v{vX+1}, 0", f"ds_read_b128 {v(vT,4)}, v{vX+1} offset:{L_MLW}",
      f"ds_read_b128 {v(vT+4,4)}, v{vX+1} offset:{L_MLW+16}", "s_waitcnt lgkmcnt(0)",
      f"v_max3_f32 v{vX+1}, v{vT}, v{vT+2}, v{vT+4}", f"v_max_f32 v{vX+1}, v{vX+1}, v{vT+6}",
      f"v_sub_f32 v{vX}, v{vX}, v{vX+1}", f"v_exp_f32 v{vX}, v{vX}", "s_nop 0")
    for r in range(4):
        g(f"v_mul_f32 v{vS+r}, v{vS+r}, v{vX}")
    for r in range(4):
        g(f"v_cvt_pk_bf16_f32 v{vS+r}, v{vS+r}, v{vS+r}")
    vRA, vOA, vOB = vT + 8, vT + 9, vT + 10
    g(f"v_lshrrev_b32 v{vRA}, 4, v0", f"v_lshlrev_b32 v{vRA}, 7, v{vRA}", f"v_and_b32 v{vX+1}, 15, v0",
      f"v_lshlrev_b32 v{vX+1}, 2, v{vX+1}", f"v_add_u32 v{vRA}, v{vRA}, v{vX+1}", f"s_lshl_b32 s66, s3, 9", f"v_add_u32 v{vRA}, s66, v{vRA}",
      f"v_lshlrev_b32 v{vOA}, 5, v0", f"v_lshlrev_b32 v{vOB}, 4, v0",
      f"s_lshl_b32 s66, {sH}, 3", f"s_add_u32 s66, s66, {sJ}", "s_lshl_b32 s66, s66, 8", f"s_add_u32 s66, s66, {WS_OS}",
      f"v_mov_b32 v{vX+1}, 0", f"ds_read_b32 v{vX+1}, v{vX+1} offset:{L_CNT + 20}", "s_waitcnt lgkmcnt(0)", f"v_readfirstlane_b32 s67, v{vX+1}")
    make_srd(g, SRD_WS, 28, 0, WS_SIZE)

    def pv(n):
        if 'pv' in SKIP:
            return
        B = vB[n & 1]
        for r in range(4):
            g(f"v_and_b32_dpp v{B+r}, v{vS+(n>>4)}, v{vM+r} row_newbcast:{n&15} {DPPF}")
        g("s_nop 1")
        mfma(g, vD, slot_of("V", n), B, False)

    nb2b = opt.get("b2b_at", 24)
    nb3 = opt.get("b3_at", 64 - W)
    for n in range(64):
        pos = order.index(("V", n))
        while state["i"] < len(order) and state["i"] <= pos + W - 1:
            issue_next()
        if n == nb2b:
            if not opt.get("st_ka"):
                stamp(g, 8)
            lds_signal(g, L_CNT + 24, vX + 1)
        if n == nb3:
            if not opt.get("st_ka"):
                stamp(g, 5)
            lds_signal(g, L_CNT + 28, vX + 1)
        g(f"s_waitcnt vmcnt({min(63, issued_after('V', n))})")
        pv(n)
        cu = opt.get("catchup", 5)
        if n % cu == cu - 1 and state["i"] < len(order) and state["i"] > pos + W:
            issue_next()
    stamp(g, 6)
    dbgmax(g, 3)
    Lno = g.lab("notlast")
    g(f"v_mov_b32 v{vT}, 0", f"v_mov_b32 v{vT+1}, 1", "s_mov_b32 exec_lo, 0x00ff00ff", "s_mov_b32 exec_hi, 0x00ff00ff", "s_nop 4")
    for r in range(4):
        g(f"ds_write_b32 v{vRA}, v{vD+r} offset:{L_RED + r*32}")
    g("s_mov_b64 exec, 1", f"ds_add_rtn_u32 v{vT+1}, v{vT}, v{vT+1} offset:{L_CNT}", "s_waitcnt lgkmcnt(0)",
      f"v_readfirstlane_b32 {sT2}, v{vT+1}", "s_mov_b64 exec, 0xffff", f"s_cmp_lg_u32 {sT2}, 3", f"s_cbranch_scc1 {Lno}")
    R = vSL
    for w in range(4):
        g(f"ds_read_b128 {v(R+8*w,4)}, v{vOA} offset:{L_RED + w*512}", f"ds_read_b128 {v(R+4+8*w,4)}, v{vOA} offset:{L_RED + w*512 + 16}")
    g("s_waitcnt lgkmcnt(4)")
    for e in range(8):
        g(f"v_add_f32 v{R+e}, v{R+e}, v{R+8+e}")
    g("s_waitcnt lgkmcnt(0)")
    for e in range(8):
        g(f"v_add_f32 v{R+16+e}, v{R+16+e}, v{R+24+e}")
    for e in range(8):
        g(f"v_add_f32 v{R+e}, v{R+e}, v{R+16+e}")
    for r in range(4):
        g(f"v_cvt_pk_bf16_f32 v{R+r}, v{R+2*r}, v{R+2*r+1}")
    store_sel(g, "s67", f"buffer_store_dwordx4 {v(R,4)}, v{vOB}, {srd(SRD_WS)}, s66 offen @SC ;@opub")
    stamp(g, 7)
    g(f"{Lno}:")
    if STAMPS:
        g("s_memtime s[100:101]")
    end(g)


def gen_aux(g, opt):
    vTAU, vI, vG, vMSK = 1, 2, 3, 4
    EX8 = ("s_mov_b32 exec_lo, 0x00030003", "s_mov_b32 exec_hi, 0x00030003")
    SPROT = False

    def tagify(dst, src):
        g(f"v_and_or_b32 v{dst}, v{src}, v{vMSK}, v{vTAU}")

    g(f"s_load_dword s30, s[28:29], {WS_EPOCH}")
    g(f"s_sub_u32 {sA}, s3, 4")
    lab = g.lab("zc")
    g(f"s_cmp_lg_u32 {sA}, 2", f"s_cbranch_scc1 {lab}", "v_mov_b32 v8, 0", "v_mov_b32 v9, 0", "v_mov_b32 v10, 0", "v_mov_b32 v11, 0",
      "s_nop 0")
    g("s_mov_b64 exec, 1", f"ds_write_b128 v8, v[8:11] offset:{L_CNT}", f"ds_write_b128 v8, v[8:11] offset:{L_CNT + 16}", "s_mov_b64 exec, -1", "s_waitcnt lgkmcnt(0)", f"{lab}:", "s_barrier")
    make_srd(g, SRD_WS, 28, 0, WS_SIZE)
    g(f"v_and_b32 v{vI}, 15, v0", f"v_lshrrev_b32 v{vG}, 4, v0", f"v_mov_b32 v{vMSK}, {hex(0xffffffff ^ TAGMASK)}")
    g(f"s_mul_i32 {sPHI}, {sX}, 6", f"s_add_u32 {sPHI}, {sPHI}, {sR}", f"s_sub_u32 {sPHI}, {sPHI}, 24",
      f"s_cmp_lt_u32 {sR}, 24", f"s_cselect_b32 {sPHI}, 0xff, {sPHI}",
      f"s_cmp_ge_u32 {sR}, 30", f"s_cselect_b32 {sPHI}, 0xff, {sPHI}",
      f"s_cmp_ge_u32 {sPHI}, 43", f"s_cselect_b32 {sPHI}, 0xff, {sPHI}")

    def tag_ready():
        g("s_waitcnt lgkmcnt(0)", f"s_add_u32 {sTAU}, s30, 1", f"s_and_b32 {sTAU}, {sTAU}, {TAGMASK}", f"v_mov_b32 v{vTAU}, {sTAU}")

    LA1, LA2, LA3, LB1 = g.lab("a1"), g.lab("a2"), g.lab("a3"), g.lab("aux_b1")
    g(f"s_cmp_eq_u32 {sA}, 1", f"s_cbranch_scc1 {LA1}", f"s_cmp_eq_u32 {sA}, 2", f"s_cbranch_scc1 {LA2}",
      f"s_cmp_eq_u32 {sA}, 3", f"s_cbranch_scc1 {LA3}")

    g(f"s_cmp_ge_u32 {sR}, 24", f"s_cbranch_scc1 {LA3}")
    g(f"s_lshr_b32 s64, {sR}, 2", f"s_and_b32 s65, {sR}, 3")
    make_srd(g, SRD_B, 20, 0, 2048)
    g(f"v_and_b32 v5, 1, v{vG}", "v_lshlrev_b32 v8, 10, v5", f"v_lshlrev_b32 v9, 4, v{vI}", "v_add_u32 v8, v8, v9",
      f"s_lshl_b32 {sT1}, s65, 8", f"buffer_load_dwordx4 v[12:15], v8, {srd(SRD_B)}, {sT1} offen")
    g("v_lshlrev_b32 v8, 8, v5", "v_add_u32 v8, v8, v9")
    g(f"v_and_b32 v10, 1, v{vI}", "v_lshlrev_b32 v10, 8, v10", f"v_lshlrev_b32 v11, 4, v{vG}", "v_add_u32 v10, v10, v11")
    tr_addr(g, 11, 16, vI, vG, 7)
    g("s_waitcnt vmcnt(0)")
    for r in range(4):
        g(f"v_lshlrev_b32 v{20+2*r}, 16, v{12+r}", f"v_and_b32 v{21+2*r}, 0xffff0000, v{12+r}")
    silu(g, range(20, 28), range(28, 36))
    for r in range(4):
        g(f"v_cvt_pk_bf16_f32 v{12+r}, v{20+2*r}, v{21+2*r}")
    g(f"ds_write_b128 v8, v[12:15] offset:{L_ACT1}")
    tag_ready()
    for k in range(4):
        g(f"ds_read_b128 {v(40+4*k,4)}, v10 offset:{L_ACT1 + k*64}")
    g("s_waitcnt lgkmcnt(0)")
    lds_wait(g, L_CNT + 4, 4, 12)
    for t in range(4):
        for k in range(4):
            tr_read(g, 64 + (t * 4 + k) * 4, 11, L_WMOD + k * 4096 + t * 32, 128)
        g("s_waitcnt lgkmcnt(0)")
        for k in range(4):
            mfma(g, 16 + 4 * t, 64 + (t * 4 + k) * 4, 40 + 4 * k, k == 0)
    g(f"s_lshl_b32 {sT0}, s64, 3", f"s_add_u32 {sT0}, {sT0}, {sX}", f"s_lshl_b32 s66, {sT0}, 11", f"s_add_u32 s66, s66, {WS_MODP}",
      f"s_lshl_b32 {sT1}, s65, 9", f"s_add_u32 {sT0}, s66, {sT1}",
      f"v_lshlrev_b32 v8, 6, v{vI}", f"v_lshlrev_b32 v9, 4, v{vG}", "v_add_u32 v8, v8, v9", "s_nop 4")
    for r in range(16):
        tagify(16 + r, 16 + r)
    g(*EX8)
    for t in range(4):
        g(f"buffer_store_dwordx4 {v(16+4*t,4)}, v8, {srd(SRD_WS)}, {sT0} offen offset:{t*128} sc1 ;@modp")
    g("s_mov_b64 exec, -1")
    stamp(g, 1)
    g("s_cmp_lg_u32 s65, 0", f"s_cbranch_scc1 {LB1}", "s_cmp_lt_u32 s64, 2", f"s_cbranch_scc1 {LB1}")
    backoff(g, opt.get("fin_sl", 64))
    g("v_lshlrev_b32 v8, 4, v0")
    poll(g, "p_fin",
         lambda: g(f"buffer_load_dwordx4 v[16:19], v8, {srd(SRD_WS)}, s66 offen sc1",
                   f"buffer_load_dwordx4 v[20:23], v8, {srd(SRD_WS)}, s66 offen offset:1024 sc1"),
         lambda: check_intag(g, range(16, 24), vTAU, 12))
    for e in range(4):
        g(f"v_add_f32 v{16+e}, v{16+e}, v{20+e}")
    swapreduce(g, range(16, 20), "v_add_f32", range(20, 24), "32")
    g("v_cvt_pk_bf16_f32 v20, v16, v17", "v_cvt_pk_bf16_f32 v21, v18, v19",
      "v_lshlrev_b32 v16, 16, v20", "v_and_b32 v17, 0xffff0000, v20", "v_lshlrev_b32 v18, 16, v21", "v_and_b32 v19, 0xffff0000, v21")
    for e in range(4):
        tagify(16 + e, 16 + e)
    g("v_lshrrev_b32 v8, 3, v0", "v_and_b32 v8, 3, v8", "v_lshlrev_b32 v8, 6, v8", "v_lshrrev_b32 v9, 2, v0", "v_and_b32 v9, 1, v9",
      "v_lshlrev_b32 v9, 11, v9", "v_add_u32 v8, v8, v9", "v_and_b32 v9, 3, v0", "v_lshlrev_b32 v9, 4, v9", "v_add_u32 v8, v8, v9",
      f"s_sub_u32 {sT0}, s64, 2", f"s_lshl_b32 {sT0}, {sT0}, 12", f"s_lshl_b32 {sT1}, {sX}, 8", f"s_add_u32 {sT0}, {sT0}, {sT1}",
      f"s_add_u32 {sT0}, {sT0}, {WS_MODF}", "s_mov_b32 exec_hi, 0",
      f"buffer_store_dwordx4 v[16:19], v8, {srd(SRD_WS)}, {sT0} offen sc1 ;@modf", "s_mov_b64 exec, -1")
    g(f"s_branch {LB1}")

    g(f"{LA1}:")
    make_srd(g, SRD_B, 4, 0, 2048)
    g("v_lshlrev_b32 v8, 4, v0")
    g(f"buffer_load_dwordx4 v[12:15], v8, {srd(SRD_B)}, 0 offen", f"buffer_load_dwordx4 v[16:19], v8, {srd(SRD_B)}, 0 offen offset:1024")
    g("v_lshrrev_b32 v5, 2, v0", "v_and_b32 v5, 1, v5",
      "v_lshrrev_b32 v6, 3, v0", "v_and_b32 v6, 3, v6", "v_lshlrev_b32 v6, 4, v6", "v_and_b32 v7, 3, v0", "v_lshlrev_b32 v7, 2, v7",
      "v_add_u32 v6, v6, v7",
      "v_lshlrev_b32 v7, 10, v5", "v_lshlrev_b32 v9, 1, v6", "v_add_u32 v9, v9, v7",
      f"s_lshl_b32 {sT1}, {sJ}, 7", f"buffer_load_dwordx2 v[20:21], v9, {srd(SRD_B)}, {sT1} offen")
    tr_addr(g, 11, 22, vI, vG, 8)
    g("s_waitcnt vmcnt(0)")
    for b in range(2):
        for r in range(4):
            g(f"v_lshlrev_b32 v{24+8*b+2*r}, 16, v{12+4*b+r}", f"v_and_b32 v{25+8*b+2*r}, 0xffff0000, v{12+4*b+r}")
    for b in range(2):
        base = 24 + 8 * b
        g(f"v_add_f32 v{40+b}, v{base}, v{base+1}")
        for e in range(2, 8):
            g(f"v_add_f32 v{40+b}, v{40+b}, v{base+e}")
    allreduce(g, [40, 41], "v_add_f32", [44, 45])
    g(f"v_mul_f32 v40, {hex(f2u(1/512))}, v40", f"v_mul_f32 v41, {hex(f2u(1/512))}, v41")
    for b in range(2):
        base = 24 + 8 * b
        for e in range(8):
            g(f"v_sub_f32 v{base+e}, v{base+e}, v{40+b}")
        g(f"v_mul_f32 v{42+b}, v{base}, v{base}")
        for e in range(1, 8):
            g(f"v_fmac_f32 v{42+b}, v{base+e}, v{base+e}")
    allreduce(g, [42, 43], "v_add_f32", [44, 45])
    for b in range(2):
        g(f"v_mov_b32 v44, {hex(f2u(1e-5))}", f"v_fmac_f32 v44, {hex(f2u(1/512))}, v{42+b}", f"v_rsq_f32 v{42+b}, v44", "s_nop 0")
    g("v_cmp_eq_u32 vcc, 1, v5", "s_nop 1", "v_cndmask_b32 v40, v40, v41, vcc", "v_cndmask_b32 v42, v42, v43, vcc",
      "v_lshlrev_b32 v24, 16, v20", "v_and_b32 v25, 0xffff0000, v20", "v_lshlrev_b32 v26, 16, v21", "v_and_b32 v27, 0xffff0000, v21")
    for e in range(4):
        g(f"v_sub_f32 v{24+e}, v{24+e}, v40", f"v_mul_f32 v{24+e}, v{24+e}, v42")
    tag_ready()
    lds_wait(g, L_CNT + 8, 4, 12)
    for t in range(8):
        for k in range(2):
            tr_read(g, 64 + (t * 2 + k) * 4, 11, L_WQ + k * 8192 + t * 32, 256)
        if t % 2 == 1:
            g("s_waitcnt lgkmcnt(0)")
    g(f"s_lshl_b32 {sT0}, {sJ}, 11", f"s_add_u32 {sT0}, {sT0}, {WS_MODP}", f"s_add_u32 {sT1}, {sT0}, {8*2048}", "v_lshlrev_b32 v9, 4, v0")
    backoff(g, opt.get("saca_sl", 0))
    g("v_and_b32 v10, 31, v0", "v_lshlrev_b32 v10, 7, v10", f"s_lshl_b32 {sT2}, {sX}, 12", f"s_add_u32 {sT2}, {sT2}, {WS_XL}",
      f"s_mul_i32 {sT3}, {sTAU}, 0x00400401", f"v_mov_b32 v7, {sT3}")

    def chk_saca():
        check_intag(g, range(28, 44), vTAU, 12)
        g("v_xor_b32 v13, v52, v7", "v_sub_u32 v56, v53, v7", "v_lshrrev_b32 v14, 4, v56", "v_or3_b32 v12, v12, v13, v14", "v_cmp_ne_u32 vcc, 0, v12")
    poll(g, "p_saca",
         lambda: g(f"buffer_load_dwordx4 v[28:31], v9, {srd(SRD_WS)}, {sT0} offen sc1",
                   f"buffer_load_dwordx4 v[32:35], v9, {srd(SRD_WS)}, {sT0} offen offset:1024 sc1",
                   f"buffer_load_dwordx4 v[36:39], v9, {srd(SRD_WS)}, {sT1} offen sc1",
                   f"buffer_load_dwordx4 v[40:43], v9, {srd(SRD_WS)}, {sT1} offen offset:1024 sc1",
                   f"buffer_load_dwordx4 v[52:55], v10, {srd(SRD_WS)}, {sT2} offen sc1"),
         chk_saca)
    stamp(g, 1)
    g("s_getreg_b32 s64, hwreg(HW_REG_XCC_ID, 0, 4)", "v_cmp_ne_u32 vcc, s64, v56", "s_nop 4", "s_cmp_eq_u64 vcc, 0", "s_cselect_b32 s69, 1, 0")
    if not opt.get("local", True):
        g("s_mov_b32 s69, 0")
    g("v_mov_b32 v12, 0", "v_mov_b32 v13, s69", f"ds_write_b32 v12, v13 offset:{L_CNT + 20}")
    for e in range(4):
        g(f"v_add_f32 v{28+e}, v{28+e}, v{32+e}", f"v_add_f32 v{36+e}, v{36+e}, v{40+e}")
    swapreduce(g, [28, 29, 30, 31, 36, 37, 38, 39], "v_add_f32", range(44, 52), "32")
    g("v_cvt_pk_bf16_f32 v44, v28, v29", "v_cvt_pk_bf16_f32 v45, v30, v31", "v_cvt_pk_bf16_f32 v46, v36, v37", "v_cvt_pk_bf16_f32 v47, v38, v39")
    for e in range(4):
        src_s, src_c = 44 + e // 2, 46 + e // 2
        if e % 2 == 0:
            g(f"v_lshlrev_b32 v{28+e}, 16, v{src_s}", f"v_lshlrev_b32 v{36+e}, 16, v{src_c}")
        else:
            g(f"v_and_b32 v{28+e}, 0xffff0000, v{src_s}", f"v_and_b32 v{36+e}, 0xffff0000, v{src_c}")
    for e in range(4):
        g(f"v_add_f32 v{36+e}, 1.0, v{36+e}", f"v_fma_f32 v{24+e}, v{24+e}, v{36+e}, v{28+e}")
    g("v_cvt_pk_bf16_f32 v24, v24, v25", "v_cvt_pk_bf16_f32 v25, v26, v27",
      "v_lshlrev_b32 v9, 7, v5", "v_lshlrev_b32 v10, 1, v6", "v_add_u32 v9, v9, v10", f"ds_write_b64 v9, v[24:25] offset:{L_ACT2}",
      f"v_and_b32 v10, 1, v{vI}", "v_lshlrev_b32 v10, 7, v10", f"v_lshlrev_b32 v12, 4, v{vG}", "v_add_u32 v10, v10, v12",
      "s_waitcnt lgkmcnt(0)",
      f"ds_read_b128 v[24:27], v10 offset:{L_ACT2}", f"ds_read_b128 v[28:31], v10 offset:{L_ACT2+64}", "s_waitcnt lgkmcnt(0)")
    for k in range(2):
        for t in range(8):
            mfma(g, 128 + 4 * t, 64 + (t * 2 + k) * 4, 24 + 4 * k, k == 0)
    g(f"s_lshl_b32 {sT0}, {sH}, 13", f"s_lshl_b32 {sT1}, {sJ}, 9", f"s_add_u32 s66, {sT0}, {WS_QP}", f"s_add_u32 {sT0}, s66, {sT1}",
      f"v_and_b32 v8, 1, v{vI}", "v_lshlrev_b32 v8, 12, v8", f"v_lshrrev_b32 v9, 1, v{vI}", "v_and_b32 v9, 1, v9", "v_cmp_eq_u32 vcc, 1, v9",
      "v_lshlrev_b32 v9, 6, v9", "v_add_u32 v8, v8, v9", f"v_lshlrev_b32 v9, 4, v{vG}", "v_add_u32 v8, v8, v9", "s_nop 1")
    for tp in range(4):
        for e in range(4):
            g(f"v_cndmask_b32 v{128+8*tp+e}, v{128+8*tp+e}, v{132+8*tp+e}, vcc")
        for e in range(4):
            tagify(128 + 8 * tp + e, 128 + 8 * tp + e)
    g("s_mov_b32 exec_lo, 0x000f000f", "s_mov_b32 exec_hi, 0x000f000f")
    store_sel(g, "s69", *[f"buffer_store_dwordx4 {v(128+8*tp,4)}, v8, {srd(SRD_WS)}, {sT0} offen offset:{tp*128} @SC ;@qp" for tp in range(4)])
    g("s_mov_b64 exec, -1")
    stamp(g, 2)
    backoff(g, opt.get("q_sl", 64))
    g("v_lshlrev_b32 v8, 4, v0", f"s_lshl_b32 {sT1}, {sB}, 12", f"s_add_u32 {sT0}, s66, {sT1}")

    def issq():
        for k in range(4):
            g(f"buffer_load_dwordx4 {v(16+4*k,4)}, v8, {srd(SRD_WS)}, {sT0} offen offset:{k*1024} sc1")
    poll(g, "p_q", issq, lambda: check_intag(g, range(16, 32), vTAU, 12))
    stamp(g, 3)
    for e in range(4):
        g(f"v_add_f32 v{16+e}, v{16+e}, v{20+e}", f"v_add_f32 v{24+e}, v{24+e}, v{28+e}", f"v_add_f32 v{16+e}, v{16+e}, v{24+e}")
    swapreduce(g, range(16, 20), "v_add_f32", range(20, 24), "32")
    g("v_cvt_pk_bf16_f32 v16, v16, v17", "v_cvt_pk_bf16_f32 v17, v18, v19",
      "v_and_b32 v9, 31, v0", "v_lshlrev_b32 v9, 3, v9", f"ds_write_b64 v9, v[16:17] offset:{L_Q}")
    g(f"s_branch {LB1}")

    g(f"{LA2}:")
    tag_ready()
    g(f"s_mul_i32 {sT1}, {sTAU}, 0x00400401", "s_getreg_b32 s64, hwreg(HW_REG_XCC_ID, 0, 4)", f"s_add_u32 s64, s64, {sT1}",
      f"v_mov_b32 v8, {sT1}", "v_mov_b32 v9, s64", f"v_mov_b32 v10, {sT1}", f"v_mov_b32 v11, {sT1}", "v_lshlrev_b32 v12, 4, v0",
      f"s_lshl_b32 {sT0}, {sX}, 5", f"s_add_u32 {sT0}, {sT0}, {sR}", f"s_lshl_b32 {sT0}, {sT0}, 7", f"s_add_u32 {sT0}, {sT0}, {WS_XL}",
      "s_mov_b64 exec, 0xff", f"buffer_store_dwordx4 v[8:11], v12, {srd(SRD_WS)}, {sT0} offen sc1 ;@xl", "s_mov_b64 exec, -1")
    g(f"s_branch {LB1}")

    g(f"{LA3}:")
    tag_ready()

    g(f"{LB1}:", "s_waitcnt lgkmcnt(0)")
    stamp(g, 4)
    g("s_barrier")
    if opt.get("probe") == "b1":
        g("s_memrealtime s[92:93]")
    LnoML = g.lab("noml")
    Lni = g.lab("noinit")
    g(f"s_cmp_lg_u32 {sA}, 2", f"s_cbranch_scc1 {Lni}", "v_mov_b32 v8, 0", f"ds_read_b32 v8, v8 offset:{L_CNT + 20}",
      "v_lshlrev_b32 v12, 4, v0", "s_waitcnt lgkmcnt(0)", "v_readfirstlane_b32 s69, v8",
      "v_mov_b32 v8, -1", "v_mov_b32 v9, -1", "v_mov_b32 v10, -1", "v_mov_b32 v11, -1",
      f"s_lshl_b32 {sT0}, {sH}, 3", f"s_add_u32 {sT0}, {sT0}, {sJ}", f"s_lshl_b32 {sT0}, {sT0}, 8", f"s_add_u32 {sT0}, {sT0}, {WS_OS}",
      "s_mov_b64 exec, 0xffff")
    store_sel(g, "s69", f"buffer_store_dwordx4 v[8:11], v12, {srd(SRD_WS)}, {sT0} offen @SC ;@inito")
    g("s_mov_b64 exec, -1", f"{Lni}:")
    g("s_barrier")
    g(f"s_cmp_lg_u32 {sA}, 2", f"s_cbranch_scc1 {LnoML}")
    g("v_mov_b32 v8, 0", f"ds_read_b128 v[12:15], v8 offset:{L_MLW}", f"ds_read_b128 v[16:19], v8 offset:{L_MLW+16}", "s_waitcnt lgkmcnt(0)",
      "v_max3_f32 v20, v12, v14, v16", "v_max_f32 v20, v20, v18")
    for m in (12, 14, 16, 18):
        g(f"v_sub_f32 v{m}, v{m}, v20", f"v_exp_f32 v{m}, v{m}")
    g("s_nop 0", "v_mul_f32 v21, v12, v13", "v_fmac_f32 v21, v14, v15", "v_fmac_f32 v21, v16, v17", "v_fmac_f32 v21, v18, v19",
      f"s_mul_i32 {sT1}, {sTAU}, 0x00400401", f"v_mov_b32 v22, {sT1}", "s_getreg_b32 s64, hwreg(HW_REG_XCC_ID, 0, 4)",
      f"s_add_u32 {sT1}, {sT1}, s64", f"v_mov_b32 v23, {sT1}",
      f"s_lshl_b32 {sT0}, {sH}, 3", f"s_add_u32 {sT0}, {sT0}, {sJ}", f"s_lshl_b32 {sT0}, {sT0}, 7", f"s_add_u32 {sT0}, {sT0}, {WS_ML}",
      "v_lshlrev_b32 v8, 4, v0", "s_waitcnt vmcnt(0)", "s_mov_b64 exec, 0xff")
    store_sel(g, "s69", f"buffer_store_dwordx4 v[20:23], v8, {srd(SRD_WS)}, {sT0} offen @SC ;@ml")
    g("s_mov_b64 exec, -1")
    g(f"{LnoML}:")

    LT3P, LWOP, LT3, LLEAD = g.lab("t3prep"), g.lab("woprep"), g.lab("t3"), g.lab("lead")
    g("v_mov_b32 v8, 0", f"ds_read_b32 v8, v8 offset:{L_CNT + 20}", "s_waitcnt lgkmcnt(0)", "v_readfirstlane_b32 s71, v8")
    lds_wait(g, L_CNT + 24, 4, 12)
    g(f"s_cmp_eq_u32 {sPHI}, 0xff", f"s_cbranch_scc1 {LWOP}")

    g(f"s_mul_i32 {sT0}, {sA}, {128*2752}", f"s_lshl_b32 {sT1}, {sPHI}, 6", f"s_add_u32 s64, {sT0}, {sT1}")
    make_srd(g, SRD_A, 16, "s64", 512 * 1376 * 2)
    g(f"s_lshl_b32 {sT0}, {sPHI}, 15", f"s_lshl_b32 {sT1}, {sA}, 8", f"s_add_u32 s64, {sT0}, {sT1}")
    make_srd(g, SRD_B, 18, "s64", 1376 * 512 * 2)
    g("v_lshrrev_b32 v205, 2, v0", "v_mul_u32_u24 v205, 2752, v205", "v_and_b32 v10, 3, v0", "v_lshlrev_b32 v10, 4, v10",
      "v_add_u32 v205, v205, v10", f"s_lshl_b32 s65, {sA}, 13", f"s_add_u32 s65, s65, {L_KB}", "s_add_u32 s66, s65, 32768",
      f"v_lshlrev_b32 v206, 10, v{vG}", f"v_lshlrev_b32 v11, 4, v{vI}", "v_add_u32 v206, v206, v11")
    vB1, vB2 = 64, 96
    vTR1, vTR2 = 207, 208
    vX3, vGA3, vC3, vGB = 224, 228, 232, 236
    g("v_lshrrev_b32 v5, 5, v0", "v_and_b32 v8, 31, v0",
      f"s_lshl_b32 s68, {sA}, 9", "v_lshlrev_b32 v9, 11, v5", "v_lshlrev_b32 v10, 4, v8", "v_add_u32 v9, v9, v10", "v_add_u32 v9, s68, v9",
      f"s_mov_b32 {sT0}, {WS_MODF}", f"s_mov_b32 {sT1}, {WS_MODF + 4096}", f"s_mov_b32 {sT2}, {WS_MODF + 8192}")
    vXA, vFA = 202, 199
    g(f"v_mov_b32 v{vXA}, v9")
    g("v_lshrrev_b32 v7, 2, v0", "v_and_b32 v7, 1, v7", f"v_lshlrev_b32 v{vFA}, 11, v7", "v_and_b32 v7, 3, v0", "v_lshlrev_b32 v7, 4, v7",
      f"v_add_u32 v{vFA}, v{vFA}, v7", f"s_and_b32 {sT3}, {sPHI}, 31", f"s_lshl_b32 {sT3}, {sT3}, 6", f"v_add_u32 v{vFA}, {sT3}, v{vFA}",
      f"s_mov_b32 s69, {WS_MODF + 3*4096}")
    poll(g, "p_modf",
         lambda: g(f"buffer_load_dwordx4 v[12:15], v9, {srd(SRD_WS)}, {sT0} offen sc1", f"buffer_load_dwordx4 v[16:19], v9, {srd(SRD_WS)}, {sT1} offen sc1",
                   f"buffer_load_dwordx4 v[20:23], v9, {srd(SRD_WS)}, {sT2} offen sc1", f"buffer_load_dwordx4 {v(vGB,4)}, v{vFA}, {srd(SRD_WS)}, s69 offen sc1"),
         lambda: check_intag(g, list(range(12, 24)) + list(range(vGB, vGB + 4)), vTAU, 28))
    g("s_mov_b32 s72, s4", "s_mov_b32 s73, s5", "s_mov_b32 s74, 2048", "s_mov_b32 s75, 0x20000")
    g("v_lshrrev_b32 v10, 1, v9", "buffer_load_dwordx2 v[40:41], v10, s[72:75], 0 offen")
    for e in range(4):
        g(f"v_and_b32 v{vGA3+e}, v{vMSK}, v{12+e}", f"v_and_b32 v{16+e}, v{vMSK}, v{16+e}", f"v_and_b32 v{20+e}, v{vMSK}, v{20+e}",
          f"v_and_b32 v{vGB+e}, v{vMSK}, v{vGB+e}", f"v_add_f32 v{20+e}, 1.0, v{20+e}")
    vZA, vYA, vAA, vRA, vUA, vSA, vGW, vGR, vPA, vSW = 201, 200, 203, 204, 209, 210, 211, 212, 213, 214
    g(f"s_mul_i32 s68, {sA}, 1536", f"s_add_u32 s68, s68, {L_ACT3}", f"v_lshlrev_b32 v{vZA}, 8, v5", "v_lshlrev_b32 v10, 3, v8",
      f"v_add_u32 v{vZA}, v{vZA}, v10", f"v_add_u32 v{vZA}, s68, v{vZA}",
      "v_cvt_pk_bf16_f32 v42, v20, v21", "v_cvt_pk_bf16_f32 v43, v22, v23",
      "v_cvt_pk_bf16_f32 v44, v16, v17", "v_cvt_pk_bf16_f32 v45, v18, v19",
      f"v_lshlrev_b32 v{vC3}, 16, v42", f"v_and_b32 v{vC3+1}, 0xffff0000, v42", f"v_lshlrev_b32 v{vC3+2}, 16, v43", f"v_and_b32 v{vC3+3}, 0xffff0000, v43",
      f"ds_write_b64 v{vZA}, v[42:43] offset:512", f"ds_write_b64 v{vZA}, v[44:45] offset:1024",
      "s_waitcnt vmcnt(0)",
      f"v_lshlrev_b32 v{vX3}, 16, v40", f"v_and_b32 v{vX3+1}, 0xffff0000, v40", f"v_lshlrev_b32 v{vX3+2}, 16, v41", f"v_and_b32 v{vX3+3}, 0xffff0000, v41")
    tr_addr(g, vTR1, 12, vI, vG, 6, "s65")
    tr_addr(g, vTR2, 12, vI, vG, 8, "s66")
    g(f"v_lshrrev_b32 v{vYA}, 2, v8", f"v_lshlrev_b32 v{vYA}, 7, v{vYA}", "v_and_b32 v12, 3, v8", "v_lshlrev_b32 v12, 4, v12",
      f"v_add_u32 v{vYA}, v{vYA}, v12", "v_lshlrev_b32 v12, 6, v5", f"v_add_u32 v{vYA}, v{vYA}, v12",
      f"s_lshl_b32 {sT0}, {sA}, 10", f"v_add_u32 v{vYA}, {sT0}, v{vYA}")
    g(f"v_cmp_gt_u32 vcc, 6, v{vI}", "s_nop 1", f"v_cndmask_b32 v{vAA}, 0, v{vI}, vcc", f"v_lshlrev_b32 v{vAA}, 8, v{vAA}",
      f"v_lshlrev_b32 v12, 4, v{vG}", f"v_add_u32 v{vAA}, v{vAA}, v12", f"v_add_u32 v{vAA}, s68, v{vAA}",
      f"s_lshl_b32 {sT0}, {sA}, 10", f"v_lshlrev_b32 v{vRA}, 4, v0", f"v_add_u32 v{vRA}, {sT0}, v{vRA}")
    g("v_lshrrev_b32 v10, 4, v8", "v_lshlrev_b32 v10, 9, v10", f"v_lshlrev_b32 v11, 4, v{vI}", "v_add_u32 v10, v10, v11",
      "v_lshlrev_b32 v11, 2, v5", f"v_add_u32 v{vUA}, v10, v11", f"v_lshlrev_b32 v{vSA}, 5, v5",
      f"s_lshl_b32 {sT0}, {sA}, 3", f"v_add_u32 v{vSW}, {sT0}, v{vSA}",
      f"s_lshl_b32 {sT0}, {sA}, 7", f"v_lshlrev_b32 v{vGW}, 1, v0", f"v_add_u32 v{vGW}, {sT0}, v{vGW}",
      f"v_and_b32 v14, 1, v{vI}", "v_lshlrev_b32 v14, 6, v14", f"v_lshlrev_b32 v15, 4, v{vG}", "v_add_u32 v14, v14, v15", f"v_add_u32 v{vGR}, {sT0}, v14",
      f"v_lshlrev_b32 v{vPA}, 6, v{vI}", f"v_lshlrev_b32 v9, 4, v{vG}", f"v_add_u32 v{vPA}, v{vPA}, v9",
      f"s_lshl_b32 s68, {sPHI}, 12", f"s_lshl_b32 {sT1}, {sA}, 10", f"s_add_u32 s68, s68, {sT1}", f"s_add_u32 s68, s68, {WS_PS}")

    g(f"{LWOP}:")
    DEFER_WO = opt.get("defer_wo", True)
    vBW, vF, vWO, vWT, vOG, vYP, vOR, vOW = 128, 240, 215, 216, 217, 218, 219, 220
    g(f"s_lshl_b32 s64, {sH}, 17", f"s_lshl_b32 s77, {sA}, 15", "s_add_u32 s64, s64, s77", f"s_lshl_b32 s77, {sJ}, 7", "s_add_u32 s64, s64, s77")
    make_srd(g, 72, 12, "s64", 4096 * 512 * 2)
    g(f"v_lshrrev_b32 v{vWO}, 3, v0", f"v_lshlrev_b32 v{vWO}, 10, v{vWO}", "v_and_b32 v10, 7, v0", "v_lshlrev_b32 v10, 4, v10",
      f"v_add_u32 v{vWO}, v{vWO}, v10", f"s_lshl_b32 s77, {sA}, 12", f"s_add_u32 s77, s77, {L_WQ}")

    def wo_dma():
        if "wo" in SKIP:
            return
        for k in range(4):
            g(f"s_mov_b32 {sT2}, {k*8*1024}", f"s_add_u32 m0, s77, {k*1024}", "s_nop 0",
              f"buffer_load_dwordx4 v{vWO}, s[72:75], {sT2} offen nt lds")

    def w1_dma():
        for t in range(8):
            g(f"s_mov_b32 {sT2}, {t*16*2752}", f"s_add_u32 {sT3}, s65, {t*1024}")
            dma(g, 205, SRD_A, sT2, sT3, "w12")

    W1_EARLY = opt.get("w1_early", True)

    def wo_frags(w1=False):
        if w1 and W1_EARLY and "w12" not in SKIP:
            l1, l2 = g.lab("now1"), g.lab("w1q")
            g(f"s_cmp_eq_u32 {sPHI}, 0xff", f"s_cbranch_scc1 {l1}")
            w1_dma()
            g("s_waitcnt vmcnt(8)", f"s_branch {l2}", f"{l1}:", "s_waitcnt vmcnt(0)", f"{l2}:")
        else:
            g("s_waitcnt vmcnt(0)")
        lds_signal(g, L_CNT + 12, 12)
        lds_wait(g, L_CNT + 12, 4, 12)
        for k in range(4):
            tr_read(g, vBW + 4 * k, vWT, k * 4096, 128)
        g("s_waitcnt lgkmcnt(0)")
    if not DEFER_WO:
        wo_dma()
    g(f"s_lshl_b32 {sT0}, {sH}, 10", f"s_add_u32 {sT0}, {sT0}, {WS_ML}",
      f"v_and_b32 v8, 1, v{vG}", "v_lshlrev_b32 v8, 9, v8", "v_and_b32 v9, 3, v0", "v_lshlrev_b32 v9, 7, v9", "v_add_u32 v8, v8, v9",
      f"s_mul_i32 {sT1}, {sTAU}, 0x00400401", f"v_mov_b32 v5, {sT1}")

    def chk_ml():
        g("v_xor_b32 v16, v14, v5", "v_sub_u32 v17, v15, v5", "v_lshrrev_b32 v18, 4, v17", "v_or_b32 v16, v16, v18", "v_cmp_ne_u32 vcc, 0, v16")
    poll(g, "p_ml", lambda: g(f"buffer_load_dwordx4 v[12:15], v8, {srd(SRD_WS)}, {sT0} offen sc1"), chk_ml)
    g("v_mov_b32 v16, v12", "s_nop 1",
      f"v_max_f32_dpp v16, v16, v16 quad_perm:[1,0,3,2] {DPPF}", "s_nop 1",
      f"v_max_f32_dpp v16, v16, v16 quad_perm:[2,3,0,1] {DPPF}",
      "v_sub_f32 v12, v12, v16", "v_exp_f32 v12, v12", "s_nop 0", "v_mul_f32 v13, v13, v12", "s_nop 1",
      f"v_add_f32_dpp v13, v13, v13 quad_perm:[1,0,3,2] {DPPF}", "s_nop 1",
      f"v_add_f32_dpp v13, v13, v13 quad_perm:[2,3,0,1] {DPPF}",
      "v_rcp_f32 v13, v13", "s_nop 0", "v_mul_f32 v12, v12, v13", "s_nop 1")
    for r in range(4):
        g(f"v_mov_b32_dpp v{vF+r}, v12 quad_perm:[{r},{r},{r},{r}] {DPPF}")
    tr_addr(g, vWT, 12, vI, vG, 7)
    g(f"s_lshl_b32 {sT0}, {sA}, 5", f"s_add_u32 {sT0}, {sT0}, {L_WQ}", f"v_add_u32 v{vWT}, {sT0}, v{vWT}")
    if not DEFER_WO:
        wo_frags()
    g(f"s_lshl_b32 s64, {sH}, 11", f"s_add_u32 s64, s64, {WS_OS}")
    if opt.get("o_coop", True):
        g(f"s_lshl_b32 {sT1}, {sA}, 6", f"s_add_u32 s64, s64, {sT1}")
    g(f"v_and_b32 v{vOG}, 7, v{vI}", f"v_lshlrev_b32 v{vOG}, 8, v{vOG}", f"v_lshlrev_b32 v7, 4, v{vG}", f"v_add_u32 v{vOG}, v{vOG}, v7",
      f"v_and_b32 v{vOR}, 7, v{vI}", f"v_lshlrev_b32 v{vOR}, 4, v{vOR}", f"v_lshlrev_b32 v9, 7, v{vG}", f"v_add_u32 v{vOR}, v{vOR}, v9",
      f"s_lshl_b32 {sT1}, {sA}, 9", f"v_add_u32 v{vOW}, {sT1}, v{vOR}",
      f"v_lshlrev_b32 v{vYP}, 6, v{vG}", f"v_lshlrev_b32 v9, 2, v{vI}", f"v_add_u32 v{vYP}, v{vYP}, v9",
      f"s_lshl_b32 s76, {sX}, 14", f"s_lshl_b32 {sT1}, {sJ}, 11", f"s_add_u32 s76, s76, {sT1}", f"s_add_u32 s76, s76, {WS_YP}",
      f"s_and_b32 {sT1}, {sR}, 3", f"s_lshl_b32 {sT1}, {sT1}, 9", f"s_add_u32 s76, s76, {sT1}", f"s_lshl_b32 {sT1}, {sA}, 7", f"s_add_u32 s76, s76, {sT1}")
    lds_wait(g, L_CNT + 28, opt.get("s3_cnt", 4), 12)
    if DEFER_WO:
        wo_dma()
        stamp(g, 5)
        wo_frags(True)
    stamp(g, 6)

    if opt.get("o_coop", True):
        g("s_mov_b32 exec_lo, 0x00ff00ff", "s_mov_b32 exec_hi, 0x00ff00ff")
        poll(g, "p_o", lambda: g(f"buffer_load_dwordx4 v[16:19], v{vOG}, {srd(SRD_WS)}, s64 offen sc1"),
             lambda: check_sentinel(g, range(16, 20), 12), sleep=opt.get("o_sleep", 0))
        g(f"ds_write_b128 v{vOW}, v[16:19] offset:{L_RED2}")
        lds_signal(g, L_CNT + 16, 12)
        lds_wait(g, L_CNT + 16, 4, 12)
        for k in range(4):
            g(f"ds_read_b128 {v(16+4*k,4)}, v{vOR} offset:{L_RED2 + k*512}")
        g("s_waitcnt lgkmcnt(0)")
    else:
        def isso():
            for k in range(4):
                g(f"buffer_load_dwordx4 {v(16+4*k,4)}, v{vOG}, {srd(SRD_WS)}, s64 offen offset:{k*64} sc1")
        poll(g, "p_o", isso, lambda: check_sentinel(g, range(16, 32), 12))
    stamp(g, 7)
    for k in range(4):
        mfma(g, 32, 16 + 4 * k, vBW + 4 * k, k == 0)
    g("s_mov_b32 exec_hi, 0", "s_nop 6",
      f"v_mul_f32 v32, v32, v{vF}", f"v_fmac_f32 v32, v33, v{vF+1}", f"v_fmac_f32 v32, v34, v{vF+2}", f"v_fmac_f32 v32, v35, v{vF+3}")
    tagify(32, 32)
    store_sel(g, "s71", f"buffer_store_dword v32, v{vYP}, {srd(SRD_WS)}, s76 offen @SC ;@yp")
    g("s_mov_b64 exec, -1")
    g(f"s_cmp_lg_u32 {sPHI}, 0xff", f"s_cbranch_scc1 {LT3}")
    g(f"s_cmp_ge_u32 {sR}, 8", "s_cbranch_scc1 L_exit", f"s_cmp_lg_u32 {sA}, 0", "s_cbranch_scc1 L_exit")
    g(f"s_lshl_b32 s66, {sX}, 14", f"s_lshl_b32 {sT1}, {sR}, 11", f"s_add_u32 s66, s66, {sT1}", f"s_add_u32 s66, s66, {WS_YP}",
      f"s_lshl_b32 s67, {sX}, 12", f"s_lshl_b32 {sT1}, {sR}, 9", f"s_add_u32 s67, s67, {sT1}", f"s_add_u32 s67, s67, {WS_YS}",
      "v_lshlrev_b32 v8, 4, v0")
    poll(g, "p_yp", lambda: g(f"buffer_load_dwordx4 v[16:19], v8, {srd(SRD_WS)}, s66 offen sc1",
                              f"buffer_load_dwordx4 v[20:23], v8, {srd(SRD_WS)}, s66 offen offset:1024 sc1"),
         lambda: check_intag(g, range(16, 24), vTAU, 12))
    stamp(g, 9)
    g("v_pk_add_f32 v[16:17], v[16:17], v[20:21]", "v_pk_add_f32 v[18:19], v[18:19], v[22:23]")
    swapreduce(g, range(16, 20), "v_add_f32", range(20, 24), "32")
    for e in range(4):
        tagify(16 + e, 16 + e)
    g("s_mov_b32 exec_hi, 0", f"buffer_store_dwordx4 v[16:19], v8, {srd(SRD_WS)}, s67 offen sc1 ;@ypub")
    stamp(g, 8)
    end(g)

    g(f"{LT3}:")
    if not (W1_EARLY and DEFER_WO):
        w1_dma()
    for t in range(8):
        g(f"s_mov_b32 {sT2}, {t*4*1024}", f"s_add_u32 {sT3}, s66, {t*1024}")
        dma(g, 206, SRD_B, sT2, sT3, "w12")
    g("s_waitcnt vmcnt(8)" if "w12" not in SKIP else "s_waitcnt vmcnt(0)")
    for tau in range(2):
        for k in range(4):
            tr_read(g, vB1 + (tau * 4 + k) * 4, vTR1, k * 2048 + tau * 32, 64)
    g("s_waitcnt vmcnt(0)")
    for t in range(8):
        tr_read(g, vB2 + 4 * t, vTR2, t * 32, 256)
    g("s_waitcnt lgkmcnt(0)")
    stamp(g, 10 if opt.get("fine") else 6)

    def pk(d, a_, b_):
        g(f"v_pk_add_f32 {v(d,2)}, {v(a_,2)}, {v(b_,2)}")

    def issy():
        for G_ in range(8):
            g(f"s_mov_b32 {sT1}, {WS_YS + G_*4096}", f"buffer_load_dwordx4 {v(16+4*G_,4)}, v{vYA}, {srd(SRD_WS)}, {sT1} offen sc1")
    poll(g, "p_y", issy, lambda: check_intag(g, range(16, 48), vTAU, 12))
    stamp(g, 7)
    if opt.get("probe") == "ygot":
        g("s_memrealtime s[92:93]")
    for e in (0, 2):
        pk(16 + e, 16 + e, 20 + e); pk(24 + e, 24 + e, 28 + e); pk(32 + e, 32 + e, 36 + e); pk(40 + e, 40 + e, 44 + e)
    for e in (0, 2):
        pk(16 + e, 16 + e, 24 + e); pk(32 + e, 32 + e, 40 + e)
    for e in (0, 2):
        pk(16 + e, 16 + e, 32 + e)
    for e in (0, 2):
        g(f"v_pk_fma_f32 {v(16+e,2)}, {v(16+e,2)}, {v(vGA3+e,2)}, {v(vX3+e,2)}")
    for e in (0, 2):
        g(f"v_pk_mul_f32 {v(24+e,2)}, {v(16+e,2)}, {v(vC3+e,2)}")
    g("v_cvt_pk_bf16_f32 v24, v24, v25", "v_cvt_pk_bf16_f32 v25, v26, v27", f"ds_write_b64 v{vZA}, v[24:25]")
    for k in range(4):
        g(f"ds_read_b128 {v(28+4*k,4)}, v{vAA} offset:{k*64}")
    g(f"ds_write_b128 v{vXA}, v[16:19] offset:{L_X1}",
      "v_pk_add_f32 v[20:21], v[16:17], v[18:19]", "v_mul_f32 v49, v16, v16", "v_add_f32 v48, v20, v21",
      "v_fmac_f32 v49, v17, v17", "v_fmac_f32 v49, v18, v18", "v_fmac_f32 v49, v19, v19")
    rowreduce(g, [48, 49], "v_add_f32")
    g("s_waitcnt lgkmcnt(1)")
    for k in range(4):
        for tau in range(2):
            mfma(g, 16 + 4 * tau, 28 + 4 * k, vB1 + (tau * 4 + k) * 4, k == 0)
    swapreduce(g, [48, 49], "v_add_f32", [50, 51], "16")
    g("s_mov_b32 exec_lo, 1", "s_mov_b32 exec_hi, 1", f"ds_write_b64 v{vSW}, v[48:49] offset:{L_STAT}",
      "s_mov_b32 exec_lo, -1", "s_mov_b32 exec_hi, 0",
      f"ds_write_b128 v{vRA}, v[16:19] offset:{L_RED3}", f"ds_write_b128 v{vRA}, v[20:23] offset:{L_RED3 + 512}",
      "s_mov_b64 exec, -1", "s_waitcnt lgkmcnt(0)", "s_barrier")
    if opt.get("fine"): stamp(g, 2)
    for w in range(4):
        g(f"ds_read_b32 v{12+w}, v{vUA} offset:{L_RED3 + w*1024}", f"ds_read_b32 v{16+w}, v{vUA} offset:{L_RED3 + w*1024 + 8}",
          f"ds_read_b32 v{20+w}, v{vUA} offset:{L_RED3 + w*1024 + 256}")
    g(f"ds_read_b128 v[24:27], v{vSA} offset:{L_STAT}", f"ds_read_b128 v[28:31], v{vSA} offset:{L_STAT + 16}", "s_waitcnt lgkmcnt(0)")
    pk(24, 24, 26); pk(28, 28, 30); pk(12, 12, 14); pk(16, 16, 18); pk(20, 20, 22); pk(24, 24, 28)
    g("v_add_f32 v12, v12, v13", "v_add_f32 v16, v16, v17", "v_add_f32 v20, v20, v21")
    g(f"v_mul_f32 v24, {hex(f2u(1/512))}, v24", f"v_mul_f32 v25, {hex(f2u(1/512))}, v25",
      "v_fma_f32 v25, -v24, v24, v25", f"v_add_f32 v25, {hex(f2u(1e-5))}, v25", "v_rsq_f32 v25, v25",
      "v_fma_f32 v12, -v24, v16, v12", "v_fma_f32 v12, v12, v25, v20")
    silu(g, [12], [13])
    g("v_cvt_pk_bf16_f32 v12, v12, v12", f"ds_write_b16 v{vGW}, v12 offset:{L_ACTG}",
      f"ds_read_b128 v[16:19], v{vGR} offset:{L_ACTG}", "s_waitcnt lgkmcnt(0)")
    if opt.get("fine"): stamp(g, 3)
    for t in range(8):
        mfma(g, 128 + 4 * t, vB2 + 4 * t, 16, True)
    g(*EX8)
    for t in range(8):
        if t == 7:
            g("s_nop 1")
        for e in range(4):
            tagify(128 + 4 * t + e, 128 + 4 * t + e)
        g(f"buffer_store_dwordx4 {v(128+4*t,4)}, v{vPA}, {srd(SRD_WS)}, s68 offen offset:{t*128} sc1 ;@pspub")
    g("s_mov_b64 exec, -1")
    stamp(g, 8)
    g(f"s_cmp_lg_u32 {sA}, 0", "s_cbranch_scc1 L_exit", f"s_cmp_ge_u32 {sPHI}, 32", "s_cbranch_scc1 L_exit")
    g("v_lshrrev_b32 v9, 3, v0", "v_lshlrev_b32 v8, 12, v9", "v_and_b32 v10, 7, v0", "v_lshlrev_b32 v10, 4, v10", "v_add_u32 v8, v8, v10",
      "v_cmp_gt_u32 vcc, 3, v9", f"s_lshl_b32 {sT0}, {sPHI}, 7", f"s_add_u32 {sT0}, {sT0}, {WS_PS}",
      "v_cndmask_b32 v11, v10, v8, vcc", "v_cndmask_b32 v12, 0, 1.0, vcc",
      f"ds_read_b128 v[44:47], v{vFA} offset:{L_X1}", f"v_lshrrev_b32 v48, 1, v{vFA}",
      "s_mov_b32 s72, s24", "s_mov_b32 s73, s25", "s_mov_b32 s74, 2048", "s_mov_b32 s75, 0x20000")

    def issp():
        for k in range(6):
            vv = 11 if k == 5 else 8
            g(f"s_add_u32 {sT1}, {sT0}, {k*8*4096}", f"buffer_load_dwordx4 {v(16+4*k,4)}, v{vv}, {srd(SRD_WS)}, {sT1} offen sc1")
    poll(g, "p_ps", issp, lambda: check_intag(g, range(16, 40), vTAU, 13))
    stamp(g, 9)
    for e in (0, 2):
        pk(16 + e, 16 + e, 20 + e); pk(24 + e, 24 + e, 28 + e)
    for e in range(4):
        g(f"v_fma_f32 v{32+e}, v{36+e}, v12, v{32+e}")
    for e in (0, 2):
        pk(16 + e, 16 + e, 24 + e)
    for e in (0, 2):
        pk(16 + e, 16 + e, 32 + e)
    g("s_nop 0")
    for e in range(4):
        g(f"v_add_f32_dpp v{16+e}, v{16+e}, v{16+e} row_ror:8 {DPPF}")
    swapreduce(g, range(16, 20), "v_add_f32", range(20, 24), "16")
    swapreduce(g, range(16, 20), "v_add_f32", range(20, 24), "32")
    g("s_waitcnt lgkmcnt(0)")
    for e in (0, 2):
        g(f"v_pk_fma_f32 {v(16+e,2)}, {v(16+e,2)}, {v(vGB+e,2)}, {v(44+e,2)}")
    g("v_cvt_pk_bf16_f32 v16, v16, v17", "v_cvt_pk_bf16_f32 v17, v18, v19",
      "s_mov_b64 exec, 0xff", "buffer_store_dwordx2 v[16:17], v48, s[72:75], 0 offen")
    stamp(g, 10)
    dbgmax(g, 4)
    if opt.get("probe"):
        lp = g.lab("probe")
        g(f"s_cmp_lg_u32 {sPHI}, 0", "s_cbranch_scc1 L_exit", "s_memrealtime s[94:95]", "s_waitcnt lgkmcnt(0)")
        if opt["probe"] == "total":
            g("s_mov_b32 s92, s94")
        if opt["probe"] == "zero":
            g("s_mov_b32 s92, s90")
        g("s_sub_u32 s92, s92, s90", "s_min_u32 s92, s92, 10000", "s_add_u32 s92, s92, s94",
          f"{lp}:", "s_memrealtime s[96:97]", "s_waitcnt lgkmcnt(0)", "s_sub_u32 s96, s96, s92", "s_cmp_lt_i32 s96, 0", f"s_cbranch_scc1 {lp}")
    g(f"s_cmp_lg_u32 {sPHI}, 0", "s_cbranch_scc1 L_exit", "s_mov_b64 exec, 1", "s_add_u32 s30, s30, 1", "v_mov_b32 v8, 0", "v_mov_b32 v9, s30",
      f"buffer_store_dword v9, v8, {srd(SRD_WS)}, 0 offen sc1")
    end(g)


def generate(opt=None):
    global STAMPS, SKIP, POLL_LIMIT, DBGT, NL, LDS_SIZE
    opt = dict(opt or {})
    DBGT = opt.get("dbgt", False)
    POLL_LIMIT = opt.get("poll_limit", 400000)
    SKIP = set(opt.get("skip", ()))
    STAMPS = opt.get("stamps", False)
    NL = opt.get("NL", 24)
    LDS_SIZE = L_KB + 4 * NL * 1024
    g = G()
    hdr = open("cdna_kernels/" + NAME + ".s.ref").read().split("\n")
    for line in hdr:
        if line.startswith(";") and "@launch" not in line and "Override launch" not in line and "grid=ceil" not in line:
            g(line)
        elif not line.startswith(";"):
            break
    g(f"; @launch grid=(256,1,1) block=(512,1,1) lds={LDS_SIZE}")
    g('.amdgcn_target "amdgcn-amd-amdhsa--gfx950"', ".text", f".globl {NAME}_kernel", ".p2align 8",
      f".type {NAME}_kernel,@function", f"{NAME}_kernel:")
    stamp(g, 0)
    gen_entry(g, opt)
    if STAMPS:
        for k in range(1, NSTAMP):
            g(f"s_mov_b32 s{80+2*k}, 0")
    dbgmax(g, 0, True)
    dbgmax(g, 1)
    if opt.get("st_ka"):
        stamp(g, 8)
    g("s_cmp_ge_u32 s3, 4", "s_cbranch_scc1 L_aux")
    gen_stream(g, opt)
    g("L_aux:")
    if 'aux' in SKIP:
        g("s_endpgm")
    gen_aux(g, opt)
    g("L_exit:")
    end(g)
    g("L_end:", "s_endpgm")
    g('.section .rodata,"a"', ".p2align 6", f".amdhsa_kernel {NAME}_kernel",
      "  .amdhsa_next_free_vgpr 256", "  .amdhsa_next_free_sgpr 102", "  .amdhsa_accum_offset 256",
      "  .amdhsa_group_segment_fixed_size 0", "  .amdhsa_kernarg_size 104", "  .amdhsa_user_sgpr_count 2",
      "  .amdhsa_user_sgpr_kernarg_segment_ptr 1", "  .amdhsa_system_sgpr_workgroup_id_x 1",
      "  .amdhsa_float_denorm_mode_32 3", ".end_amdhsa_kernel")
    txt = g.text()
    drop = set(opt.get("drop", ()))
    kept = []
    for line in txt.split("\n"):
        if ";@" in line:
            nm = line.split(";@")[1].strip()
            line = line.split(";@")[0].rstrip()
            if nm in drop:
                continue
        kept.append(line)
    return "\n".join(kept)


if __name__ == "__main__":
    out = sys.argv[1] if len(sys.argv) > 1 else "cdna_kernels/" + NAME + ".s"
    opt = eval(sys.argv[2]) if len(sys.argv) > 2 else {}
    open(out, "w").write(generate(opt))
    print("wrote", out)
```

```python
import struct
import sys

NAME = "adaLN_cond__gqa_block_cached__dense_activation_silu__decode"

WS_EPOCH = 0x0
WS_MODP = 0x1000
WS_MODF = 0x19000
WS_ML = 0x20000
WS_QP = 0x30000
WS_OS = 0x70000
WS_XL = 0x28000
WS_YS = 0x80000
WS_PS = 0x98000
WS_YP = 0xD0000
WS_STAMP = 0x100000
WS_SIZE = 0x120000

L_Q = 0x0000
L_MLW = 0x0100
L_CNT = 0x0180
L_RED = 0x0200
L_RED2 = 0x0A00
L_RED3 = 0x1200
L_STAT = 0x2200
L_ACT1 = 0x2300
L_ACT2 = 0x2500
L_ACTG = 0x2600
L_ACT3 = 0x2800
L_X1 = 0x4000
L_WMOD = 0x5000
L_WQ = 0x9000
L_KB = 0xD000
NL = 24
LDS_SIZE = L_KB + 4 * NL * 1024

sX, sR, sH, sJ, sB, sS = "s48", "s49", "s50", "s51", "s52", "s53"
sT0, sT1, sT2, sT3 = "s54", "s55", "s56", "s57"
sA = "s58"
sPHI = "s59"
sM1, sM0 = "s[60:61]", "s[62:63]"
sCNT = "s70"
sTAU = "s31"
SRD_A, SRD_B, SRD_WS = 32, 36, 40
POLL_LIMIT = 400000
TAGMASK = 0x3FF

LOG2E = 1.4426950408889634
CS = (128 ** -0.5) * LOG2E
STAMPS = False
NSTAMP = 11
SKIP = set()


def f2u(x):
    return struct.unpack("<I", struct.pack("<f", x))[0]


class G:
    def __init__(self):
        self.L = []
        self.n = 0

    def __call__(self, *txt):
        for t in txt:
            self.L.extend(t.split("\n"))

    def lab(self, base):
        self.n += 1
        return f"L_{base}_{self.n}"

    def text(self):
        return "\n".join(self.L) + "\n"


def v(a, n=1):
    return f"v{a}" if n == 1 else f"v[{a}:{a+n-1}]"


def srd(n):
    return f"s[{n}:{n+3}]"


def make_srd(g, d, plo, off, total):
    if isinstance(off, int):
        assert off == 0
        g(f"s_mov_b32 s{d}, s{plo}", f"s_mov_b32 s{d+1}, s{plo+1}", f"s_mov_b32 s{d+2}, {total}")
    else:
        g(f"s_add_u32 s{d}, s{plo}, {off}", f"s_addc_u32 s{d+1}, s{plo+1}, 0",
          f"s_sub_u32 s{d+2}, {total}, {off}")
    g(f"s_mov_b32 s{d+3}, 0x20000")


DPPF = "row_mask:0xf bank_mask:0xf"


def rowreduce(g, regs, op):
    for ctl in ("row_ror:8", "row_ror:4", "row_ror:2", "row_ror:1"):
        g("s_nop 1" if len(regs) < 3 else "s_nop 0")
        for r in regs:
            g(f"{op}_dpp v{r}, v{r}, v{r} {ctl} {DPPF}")


def swapreduce(g, regs, op, tmps, which):
    sw = f"v_permlane{which}_swap_b32"
    g("s_nop 0")
    for r, t in zip(regs, tmps):
        g(f"v_mov_b32 v{t}, v{r}")
    g("s_nop 1")
    for r, t in zip(regs, tmps):
        g(f"{sw} v{r}, v{t}")
    g("s_nop 1")
    for r, t in zip(regs, tmps):
        g(f"{op} v{r}, v{r}, v{t}")


def allreduce(g, regs, op, tmps):
    rowreduce(g, regs, op)
    swapreduce(g, regs, op, tmps, "16")
    swapreduce(g, regs, op, tmps, "32")


sDRY = "s71"


def nodry(g):
    lab = g.lab("nd")
    g(f"s_cmp_lg_u32 {sDRY}, 0", f"s_cbranch_scc1 {lab}")
    return lab


def poll(g, name, issue, check, pre=None, dry=False, sleep=0):
    g(f"s_mov_b32 {sCNT}, {sDRY if dry else 0}")
    stages = ([pre] if pre else []) + [(issue, check)]
    dn = g.lab(name + "_done")
    for iss, chk in stages:
        lp = g.lab(name)
        g(f"{lp}:")
        if sleep:
            g(f"s_sleep {sleep}")
        i0 = len(g.L)
        iss()
        for i in range(i0, len(g.L)):
            if g.L[i].startswith("buffer_load"):
                g.L[i] += f" ;@ld_{name}"
        g("s_waitcnt vmcnt(0)")
        chk()
        g(f"s_add_u32 {sCNT}, {sCNT}, 1", f"s_cmp_gt_u32 {sCNT}, {POLL_LIMIT}",
          f"s_cbranch_scc1 {dn}", f"s_cbranch_vccnz {lp}")
    g(f"{dn}:")


def intag_part(g, regs, vtau, tmp, first):
    regs = list(regs)
    if first:
        g(f"v_xor_b32 v{tmp}, v{regs[0]}, v{vtau}")
        regs = regs[1:]
    while len(regs) >= 2:
        g(f"v_xor_b32 v{tmp+1}, v{regs[0]}, v{vtau}", f"v_xor_b32 v{tmp+2}, v{regs[1]}, v{vtau}",
          f"v_or3_b32 v{tmp}, v{tmp}, v{tmp+1}, v{tmp+2}")
        regs = regs[2:]
    if regs:
        g(f"v_xor_b32 v{tmp+1}, v{regs[0]}, v{vtau}", f"v_or_b32 v{tmp}, v{tmp}, v{tmp+1}")
    if not first:
        g(f"v_and_b32 v{tmp}, {TAGMASK}, v{tmp}", f"v_cmp_ne_u32 vcc, 0, v{tmp}")


def poll2(g, name, issue, nlate, check1, check2):
    lp, dn = g.lab(name), g.lab(name + "_done")
    g(f"s_mov_b32 {sCNT}, 0", f"{lp}:")
    i0 = len(g.L)
    issue()
    for i in range(i0, len(g.L)):
        if g.L[i].startswith("buffer_load"):
            g.L[i] += f" ;@ld_{name}"
    g(f"s_waitcnt vmcnt({nlate})")
    check1()
    g("s_waitcnt vmcnt(0)")
    check2()
    g(f"s_add_u32 {sCNT}, {sCNT}, 1", f"s_cmp_gt_u32 {sCNT}, {POLL_LIMIT}", f"s_cbranch_scc1 {dn}", f"s_cbranch_vccnz {lp}", f"{dn}:")


def check_intag(g, regs, vtau, tmp):
    regs = list(regs)
    g(f"v_xor_b32 v{tmp}, v{regs[0]}, v{vtau}")
    rest = regs[1:]
    while len(rest) >= 2:
        g(f"v_xor_b32 v{tmp+1}, v{rest[0]}, v{vtau}", f"v_xor_b32 v{tmp+2}, v{rest[1]}, v{vtau}",
          f"v_or3_b32 v{tmp}, v{tmp}, v{tmp+1}, v{tmp+2}")
        rest = rest[2:]
    if rest:
        g(f"v_xor_b32 v{tmp+1}, v{rest[0]}, v{vtau}", f"v_or_b32 v{tmp}, v{tmp}, v{tmp+1}")
    g(f"v_and_b32 v{tmp}, {TAGMASK}, v{tmp}", f"v_cmp_ne_u32 vcc, 0, v{tmp}")


def check_sentinel(g, regs, tmp):
    regs = list(regs)
    g(f"v_max_u32 v{tmp}, v{regs[0]}, v{regs[1]}")
    rest = regs[2:]
    while len(rest) >= 2:
        g(f"v_max3_u32 v{tmp}, v{tmp}, v{rest[0]}, v{rest[1]}")
        rest = rest[2:]
    if rest:
        g(f"v_max_u32 v{tmp}, v{tmp}, v{rest[0]}")
    g(f"v_cmp_eq_u32 vcc, -1, v{tmp}")


def silu(g, xs, ts):
    for x, t in zip(xs, ts):
        g(f"v_mul_f32 v{t}, {hex(f2u(-LOG2E))}, v{x}")
    for t in ts:
        g(f"v_exp_f32 v{t}, v{t}")
    g("s_nop 0")
    for t in ts:
        g(f"v_add_f32 v{t}, 1.0, v{t}")
    for t in ts:
        g(f"v_rcp_f32 v{t}, v{t}")
    g("s_nop 0")
    for x, t in zip(xs, ts):
        g(f"v_mul_f32 v{x}, v{x}, v{t}")


def dma(g, voff, srdn, soff, lds_addr, what="", imm=0):
    if what in SKIP:
        return
    g(f"s_mov_b32 m0, {lds_addr}", "s_nop 0")
    g(f"buffer_load_dwordx4 v{voff}, {srd(srdn)}, {soff} offen nt lds")


def lds_signal(g, off, vtmp):
    g("s_mov_b64 exec, 1", f"v_mov_b32 v{vtmp}, 0", f"v_mov_b32 v{vtmp+1}, 1", f"ds_add_u32 v{vtmp}, v{vtmp+1} offset:{off}", "s_mov_b64 exec, -1")


def lds_wait(g, off, target, vtmp):
    lp, dn = g.lab("lw"), g.lab("lwd")
    g(f"s_mov_b32 {sCNT}, 0", f"v_mov_b32 v{vtmp}, 0", f"{lp}:", f"ds_read_b32 v{vtmp+1}, v{vtmp} offset:{off}", "s_waitcnt lgkmcnt(0)",
      f"v_readfirstlane_b32 s47, v{vtmp+1}", f"s_add_u32 {sCNT}, {sCNT}, 1", f"s_cmp_gt_u32 {sCNT}, {POLL_LIMIT * 4 + 4}", f"s_cbranch_scc1 {dn}",
      f"s_cmp_lt_u32 s47, {target}", f"s_cbranch_scc1 {lp}", f"{dn}:")


def store_sel(g, sflag, *instrs):
    l1, l2 = g.lab("wt"), g.lab("wte")
    g(f"s_cmp_eq_u32 {sflag}, 0", f"s_cbranch_scc1 {l1}")
    for i in instrs:
        g(i.replace(" @SC", ""))
    g(f"s_branch {l2}", f"{l1}:")
    for i in instrs:
        g(i.replace(" @SC", " sc1"))
    g(f"{l2}:")


def stamp(g, k):
    if STAMPS:
        g(f"s_memrealtime s[{80+2*k}:{81+2*k}]")


DBGT = False


def dbgmax(g, slot, invert=False):
    if not DBGT:
        return
    lab = g.lab("dbg")
    if slot < 4:
        g("s_and_b32 s74, s2, 15", "s_or_b32 s74, s74, s3", "s_cmp_lg_u32 s74, 0", f"s_cbranch_scc1 {lab}")
    g("s_memrealtime s[74:75]", "s_waitcnt lgkmcnt(0)")
    if invert:
        g("s_not_b32 s74, s74")
    g("s_mov_b64 s[76:77], exec", "s_mov_b64 exec, 1", "v_mov_b32 v252, s74", f"v_mov_b32 v253, {slot*4 + 32}",
      "global_atomic_umax v253, v252, s[26:27]", "s_mov_b64 exec, s[76:77]", f"{lab}:")


def end(g):
    if STAMPS:
        g("s_mov_b64 exec, -1", "s_waitcnt lgkmcnt(0)")
        for k in range(NSTAMP):
            g(f"v_writelane_b32 v250, s{80+2*k}, {k}")
        g("s_lshl_b32 s72, s2, 3", "s_add_u32 s72, s72, s3", "s_lshl_b32 s72, s72, 6", f"s_add_u32 s72, s72, {WS_STAMP}",
          "s_mov_b32 s76, s28", "s_mov_b32 s77, s29", f"s_mov_b32 s78, {WS_SIZE}", "s_mov_b32 s79, 0x20000",
          "v_lshlrev_b32 v251, 2, v0", f"s_mov_b64 exec, {hex((1 << NSTAMP) - 1)}",
          "buffer_store_dword v250, v251, s[76:79], s72 offen")
    g("s_endpgm")


def tr_addr(g, dst, tmp, vI, vG, rowshift, base=None):
    g(f"v_lshlrev_b32 v{dst}, 3, v{vG}", f"v_lshrrev_b32 v{tmp}, 2, v{vI}", f"v_add_u32 v{dst}, v{dst}, v{tmp}",
      f"v_lshlrev_b32 v{dst}, {rowshift}, v{dst}", f"v_and_b32 v{tmp}, 3, v{vI}", f"v_lshlrev_b32 v{tmp}, 3, v{tmp}",
      f"v_add_u32 v{dst}, v{dst}, v{tmp}")
    if base is not None:
        g(f"v_add_u32 v{dst}, {base}, v{dst}")


def tr_read(g, reg, vaddr, off, rowbytes):
    g(f"ds_read_b64_tr_b16 {v(reg,2)}, v{vaddr} offset:{off}", f"ds_read_b64_tr_b16 {v(reg+2,2)}, v{vaddr} offset:{off + 4*rowbytes}")


def mfma(g, d, a, b, first):
    g(f"v_mfma_f32_16x16x32_bf16 {v(d,4)}, {v(a,4)}, {v(b,4)}, {'0' if first else v(d,4)}")


def backoff(g, n):
    while n > 0:
        g(f"s_sleep {min(n, 127)}")
        n -= min(n, 127)


def gen_entry(g, opt):
    URG = opt.get("urgent_r", 8)
    if opt.get("probe"):
        g("s_memrealtime s[90:91]")
    g("s_cmp_ge_u32 s2, 0x100", "s_cbranch_scc1 L_end",
      "s_load_dwordx16 s[4:19], s[0:1], 0", "s_load_dwordx8 s[20:27], s[0:1], 64", "s_load_dwordx2 s[28:29], s[0:1], 96",
      "v_lshrrev_b32 v1, 6, v0", "v_and_b32 v0, 63, v0", f"s_and_b32 {sX}, s2, 7", "v_readfirstlane_b32 s3, v1",
      f"s_lshr_b32 {sR}, s2, 3", f"s_and_b32 {sT0}, {sR}, 3", f"s_lshl_b32 {sH}, {sX}, 2",
      f"s_add_u32 {sH}, {sH}, {sT0}", f"s_lshr_b32 {sJ}, {sR}, 2", f"s_lshr_b32 {sB}, {sJ}, 2", f"s_and_b32 {sS}, {sJ}, 3")
    g(f"s_lshl_b32 s65, {sB}, 5", f"s_add_u32 s65, s65, {sH}", "s_lshl_b32 s65, s65, 20", f"s_lshl_b32 {sT1}, {sS}, 18", f"s_add_u32 s65, s65, {sT1}",
      f"s_lshl_b32 {sT1}, s3, 12", "v_lshlrev_b32 v1, 4, v0", f"s_mul_i32 s64, s3, {NL*1024}", f"s_add_u32 s64, s64, {L_KB}",
      "v_add_u32 v46, s64, v1", f"v_add_u32 v1, {sT1}, v1")
    g(f"s_lshr_b32 s68, {sR}, 2", f"s_and_b32 s69, {sR}, 3", "s_lshl_b32 s69, s69, 2", "s_add_u32 s69, s69, s3",
      f"s_mul_i32 s69, s69, {32*6144}", "s_lshl_b32 s68, s68, 10", "s_add_u32 s69, s69, s68", f"s_lshl_b32 s68, {sX}, 7", "s_add_u32 s69, s69, s68",
      f"s_cmp_ge_u32 {sR}, 24", "s_cselect_b32 s69, 0, s69",
      "v_lshrrev_b32 v3, 3, v0", "v_mul_u32_u24 v3, 0x1800, v3", "v_and_b32 v4, 7, v0", "v_lshlrev_b32 v4, 4, v4", "v_add_u32 v3, v3, v4",
      "s_lshl_b32 s71, s3, 12", f"s_add_u32 s71, s71, {L_WMOD}")
    g("s_waitcnt lgkmcnt(0)")


def gen_stream(g, opt):
    W = opt.get("W", 7)
    NS = 48
    vOFF, vQ, vM, vD = 1, 2, 6, 10
    vB = [14, 18]
    vS, vT, vX, vSL, vLDS = 22, 26, 42, 48, 46
    NREG_K = 64 - NL
    URG = opt.get("urgent_r", 8)
    W0 = opt.get("W0", W)
    I_WQ, I_LATE = opt.get("i_wq", W0), opt.get("i_late", W0 + 2 * W)

    order = [("K", n) for n in range(NREG_K, 64)] + [("K", n) for n in range(NREG_K)] + [("V", n) for n in range(64)]

    def slot_of(kind, n):
        return vSL + 4 * ((n if kind == "K" else NREG_K + n) % NS)

    def wmod_dma():
        for k in range(4):
            g(f"s_mov_b32 s68, {k * 8 * 6144}", f"s_add_u32 m0, s71, {k*1024}", "s_nop 0")
            if 'p1' not in SKIP:
                g("buffer_load_dwordx4 v3, s[76:79], s68 offen nt lds")

    def wq_dma():
        for k in range(4):
            g(f"s_mov_b32 s68, {k * 4 * 8192}", f"s_add_u32 m0, s67, {k*1024}", "s_nop 0")
            if 'wq' not in SKIP:
                g("buffer_load_dwordx4 v2, s[72:75], s68 offen nt lds")

    g(f"s_add_u32 s{SRD_A}, s6, s65", f"s_addc_u32 s{SRD_A+1}, s7, 0", f"s_mov_b32 s{SRD_A+2}, 0x40000", f"s_mov_b32 s{SRD_A+3}, 0x20000")
    make_srd(g, 76, 22, "s69", 512 * 3072 * 2)
    Lnp = g.lab("nourg")
    g(f"s_cmp_ge_u32 {sR}, {URG}", f"s_cbranch_scc1 {Lnp}")
    wmod_dma()
    g(f"{Lnp}:")

    if opt.get("rot") == 1:
        g(f"s_add_u32 s46, {sR}, {sX}", "s_mul_i32 s46, s46, 5")
    elif opt.get("rot") == 2:
        g(f"s_mul_i32 s46, {sX}, 2", f"s_lshr_b32 s45, {sR}, 4", "s_add_u32 s46, s46, s45")
    elif opt.get("rot") == 3:
        g(f"s_mov_b32 s46, {sR}")
    state = {"K": None, "V": None, "i": 0}
    if STAMPS:
        g("s_memtime s[98:99]")

    def issue_next():
        i = state["i"]
        kind, n = order[i]
        rho, t = n >> 2, n & 3
        sreg, sr = (sT2, SRD_A) if kind == "K" else (sT3, SRD_B)
        if i >= W0:
            g(f"s_waitcnt vmcnt({W-1})")
        ROT = opt.get("rot")

        def set_soff(extra):
            if ROT:
                g(f"s_add_u32 {sreg}, s46, {rho}", f"s_and_b32 {sreg}, {sreg}, 15", f"s_lshl_b32 {sreg}, {sreg}, 14")
                if extra:
                    g(f"s_add_u32 {sreg}, {sreg}, {extra}")
            else:
                g(f"s_mov_b32 {sreg}, {rho * 16384 + extra}")
        if kind == "K" and n >= NREG_K:
            set_soff(t * 1024)
            g(f"s_add_u32 m0, s64, {(n - NREG_K) * 1024}")
            state[kind] = None
            g("s_nop 0", f"buffer_load_dwordx4 v{vOFF}, {srd(sr)}, {sreg} offen nt lds")
        else:
            if state[kind] != rho:
                set_soff(0)
                state[kind] = rho
            g(f"buffer_load_dwordx4 {v(slot_of(kind, n), 4)}, v{vOFF}, {srd(sr)}, {sreg} offen offset:{t*1024} nt")
        state["i"] = i + 1

    def issued_after(kind, n):
        return state["i"] - 1 - order.index((kind, n))

    NBACK = NL + NS
    for i in range(NBACK):
        issue_next()
        if i == W0 - 1:
            g(f"s_add_u32 s{SRD_B}, s8, s65", f"s_addc_u32 s{SRD_B+1}, s9, 0", f"s_mov_b32 s{SRD_B+2}, 0x40000", f"s_mov_b32 s{SRD_B+3}, 0x20000")
            g(f"s_lshl_b32 s66, {sJ}, 19", f"s_lshl_b32 s67, {sH}, 8", "s_add_u32 s66, s66, s67", "s_lshl_b32 s67, s3, 17", "s_add_u32 s66, s66, s67")
            make_srd(g, 72, 10, "s66", 512 * 4096 * 2)
            g("v_lshrrev_b32 v2, 4, v0", "v_lshlrev_b32 v2, 13, v2", "v_and_b32 v4, 15, v0", "v_lshlrev_b32 v4, 4, v4", "v_add_u32 v2, v2, v4",
              "s_lshl_b32 s67, s3, 12", f"s_add_u32 s67, s67, {L_WQ}")
            g("s_barrier")
        if i == W0 and opt.get("st_ka"):
            stamp(g, 5)
        if i == W0:
            lab = g.lab("sigm")
            g(f"s_cmp_ge_u32 {sR}, {URG}", f"s_cbranch_scc1 {lab}")
            lds_signal(g, L_CNT + 4, 4)
            g(f"{lab}:")
        if i == I_WQ:
            wq_dma()
        if i == I_WQ + W:
            lds_signal(g, L_CNT + 8, 4)
        if i == I_LATE:
            lab = g.lab("late")
            g(f"s_cmp_lt_u32 {sR}, {URG}", f"s_cbranch_scc1 {lab}", f"s_cmp_ge_u32 {sR}, 24", f"s_cbranch_scc1 {lab}")
            wmod_dma()
            g(f"{lab}:")
        if i == I_LATE + W:
            lab = g.lab("sigl")
            g(f"s_cmp_lt_u32 {sR}, {URG}", f"s_cbranch_scc1 {lab}")
            lds_signal(g, L_CNT + 4, 4)
            g(f"{lab}:")
    g(f"v_and_b32 v{vX}, 15, v0", f"v_lshrrev_b32 v{vX+1}, 1, v{vX}", f"v_and_b32 v{vX+2}, 1, v{vX}",
      f"v_mov_b32 v{vX+3}, 0xffff", f"v_mov_b32 v{vT}, 0xffff0000",
      f"v_cmp_eq_u32 vcc, 1, v{vX+2}", "s_nop 1", f"v_cndmask_b32 v{vX+3}, v{vX+3}, v{vT}, vcc")
    for r in range(4):
        g(f"v_cmp_eq_u32 vcc, {r}, v{vX+1}", "s_nop 1", f"v_cndmask_b32 v{vM+r}, 0, v{vX+3}, vcc")
    g("s_mov_b32 s60, 0xcccccccc", "s_mov_b32 s61, 0xcccccccc", "s_mov_b32 s62, 0xaaaaaaaa", "s_mov_b32 s63, 0xaaaaaaaa")
    for r in range(4):
        g(f"v_mov_b32 v{vD+r}, 0")
    g(f"v_lshlrev_b32 v{vX}, 4, v{vX}")
    stamp(g, 1)
    g("s_barrier")
    stamp(g, 2)
    dbgmax(g, 2)
    g(f"ds_read_b128 {v(vQ,4)}, v{vX} offset:{L_Q}", "s_waitcnt lgkmcnt(0)")

    def kreg(n):
        if n < NREG_K:
            return slot_of("K", n)
        return vSL + 4 * (16 + (n & 15))

    def dots(ns):
        for r in range(4):
            for n in ns:
                t = vT + (n & 15)
                c = "0" if r == 0 else f"v{t}"
                g(f"v_dot2_f32_bf16 v{t}, v{kreg(n)+r}, v{vQ+r}, {c}")

    def tree(gam):
        g("s_nop 2")
        for n in range(8):
            g(f"v_add_f32_dpp v{vT+n}, v{vT+n}, v{vT+n} row_ror:8 row_mask:0xf bank_mask:0x3")
            g(f"v_add_f32_dpp v{vT+n}, v{vT+n+8}, v{vT+n+8} row_ror:8 row_mask:0xf bank_mask:0xc")
        for n in range(4):
            g(f"v_add_f32_dpp v{vT+n}, v{vT+n}, v{vT+n} row_shl:4 row_mask:0xf bank_mask:0x5")
            g(f"v_add_f32_dpp v{vT+n}, v{vT+n+4}, v{vT+n+4} row_shr:4 row_mask:0xf bank_mask:0xa")
        g("s_nop 0")
        for n in range(4):
            g(f"v_add_f32_dpp v{vT+n}, v{vT+n}, v{vT+n} quad_perm:[2,3,0,1] {DPPF}")
        g(f"v_cndmask_b32 v{vT}, v{vT}, v{vT+2}, {sM1}", f"v_cndmask_b32 v{vT+1}, v{vT+1}, v{vT+3}, {sM1}", "s_nop 1")
        for n in range(2):
            g(f"v_add_f32_dpp v{vT+n}, v{vT+n}, v{vT+n} quad_perm:[1,0,3,2] {DPPF}")
        g(f"v_cndmask_b32 v{vS+gam}, v{vT}, v{vT+1}, {sM0}")

    freed = 0

    def can_issue():
        i = state["i"]
        if i >= len(order):
            return False
        kind, n = order[i]
        return n < NS - NREG_K or (NREG_K + n) % NS < freed

    every = opt.get("burst_every", 2)
    qi = 0
    for gam in range(4):
        ns_all = list(range(16 * gam, 16 * gam + 16))
        for n in ns_all:
            if n >= NREG_K:
                g(f"ds_read_b128 {v(kreg(n),4)}, v{vLDS} offset:{(n - NREG_K) * 1024}")
        for q4 in range(4):
            ns = ns_all[4 * q4: 4 * q4 + 4]
            regn = [n for n in ns if n < NREG_K]
            if regn:
                g(f"s_waitcnt vmcnt({min(63, issued_after('K', regn[-1]))})")
            if any(n >= NREG_K for n in ns):
                g("s_waitcnt lgkmcnt(0)")
            if 'qk' not in SKIP:
                dots(ns)
            if regn:
                freed = min(regn[-1] + 1, 16)
            qi += 1
            if qi % every == 0 and can_issue():
                issue_next()
        if 'qk' not in SKIP:
            tree(gam)
    freed = NS
    stamp(g, 3)
    for _ in range(opt.get("sm_issue0", 0)):
        issue_next()
    g(f"v_max3_f32 v{vX}, v{vS}, v{vS+1}, v{vS+2}", f"v_max_f32 v{vX}, v{vX}, v{vS+3}")
    allreduce(g, [vX], "v_max_f32", [vX + 1])
    g(f"v_mul_f32 v{vX}, {hex(f2u(CS))}, v{vX}", f"s_mov_b32 {sT0}, {hex(f2u(CS))}")
    issue_next()
    for r in range(4):
        g(f"v_fma_f32 v{vS+r}, v{vS+r}, {sT0}, -v{vX}")
    for r in range(4):
        g(f"v_exp_f32 v{vS+r}, v{vS+r}")
    g("s_nop 0")
    g(f"v_add_f32 v{vX+1}, v{vS}, v{vS+1}", f"v_add_f32 v{vX+2}, v{vS+2}, v{vS+3}", f"v_add_f32 v{vX+1}, v{vX+1}, v{vX+2}")
    allreduce(g, [vX + 1], "v_add_f32", [vX + 2])
    g(f"s_lshl_b32 {sT0}, s3, 3", f"v_mov_b32 v{vX+2}, {sT0}", "s_mov_b64 exec, 1",
      f"ds_write_b64 v{vX+2}, {v(vX,2)} offset:{L_MLW}", "s_mov_b64 exec, -1", "s_waitcnt lgkmcnt(0)")
    issue_next()
    g("s_barrier")
    stamp(g, 4)
    g(f"v_mov_b32 v{vX+1}, 0", f"ds_read_b128 {v(vT,4)}, v{vX+1} offset:{L_MLW}",
      f"ds_read_b128 {v(vT+4,4)}, v{vX+1} offset:{L_MLW+16}", "s_waitcnt lgkmcnt(0)",
      f"v_max3_f32 v{vX+1}, v{vT}, v{vT+2}, v{vT+4}", f"v_max_f32 v{vX+1}, v{vX+1}, v{vT+6}",
      f"v_sub_f32 v{vX}, v{vX}, v{vX+1}", f"v_exp_f32 v{vX}, v{vX}", "s_nop 0")
    for r in range(4):
        g(f"v_mul_f32 v{vS+r}, v{vS+r}, v{vX}")
    for r in range(4):
        g(f"v_cvt_pk_bf16_f32 v{vS+r}, v{vS+r}, v{vS+r}")
    vRA, vOA, vOB = vT + 8, vT + 9, vT + 10
    g(f"v_lshrrev_b32 v{vRA}, 4, v0", f"v_lshlrev_b32 v{vRA}, 7, v{vRA}", f"v_and_b32 v{vX+1}, 15, v0",
      f"v_lshlrev_b32 v{vX+1}, 2, v{vX+1}", f"v_add_u32 v{vRA}, v{vRA}, v{vX+1}", f"s_lshl_b32 s66, s3, 9", f"v_add_u32 v{vRA}, s66, v{vRA}",
      f"v_lshlrev_b32 v{vOA}, 5, v0", f"v_lshlrev_b32 v{vOB}, 4, v0",
      f"s_lshl_b32 s66, {sH}, 3", f"s_add_u32 s66, s66, {sJ}", "s_lshl_b32 s66, s66, 8", f"s_add_u32 s66, s66, {WS_OS}",
      f"v_mov_b32 v{vX+1}, 0", f"ds_read_b32 v{vX+1}, v{vX+1} offset:{L_CNT + 20}", "s_waitcnt lgkmcnt(0)", f"v_readfirstlane_b32 s67, v{vX+1}")
    make_srd(g, SRD_WS, 28, 0, WS_SIZE)

    def pv(n):
        if 'pv' in SKIP:
            return
        B = vB[n & 1]
        for r in range(4):
            g(f"v_and_b32_dpp v{B+r}, v{vS+(n>>4)}, v{vM+r} row_newbcast:{n&15} {DPPF}")
        g("s_nop 1")
        mfma(g, vD, slot_of("V", n), B, False)

    nb2b = opt.get("b2b_at", 24)
    nb3 = opt.get("b3_at", 64 - W)
    for n in range(64):
        pos = order.index(("V", n))
        while state["i"] < len(order) and state["i"] <= pos + W - 1:
            issue_next()
        if n == nb2b:
            if not opt.get("st_ka"):
                stamp(g, 8)
            lds_signal(g, L_CNT + 24, vX + 1)
        if n == nb3:
            if not opt.get("st_ka"):
                stamp(g, 5)
            lds_signal(g, L_CNT + 28, vX + 1)
        g(f"s_waitcnt vmcnt({min(63, issued_after('V', n))})")
        pv(n)
        cu = opt.get("catchup", 5)
        if n % cu == cu - 1 and state["i"] < len(order) and state["i"] > pos + W:
            issue_next()
    stamp(g, 6)
    dbgmax(g, 3)
    Lno = g.lab("notlast")
    g(f"v_mov_b32 v{vT}, 0", f"v_mov_b32 v{vT+1}, 1", "s_mov_b32 exec_lo, 0x00ff00ff", "s_mov_b32 exec_hi, 0x00ff00ff", "s_nop 4")
    for r in range(4):
        g(f"ds_write_b32 v{vRA}, v{vD+r} offset:{L_RED + r*32}")
    g("s_mov_b64 exec, 1", f"ds_add_rtn_u32 v{vT+1}, v{vT}, v{vT+1} offset:{L_CNT}", "s_waitcnt lgkmcnt(0)",
      f"v_readfirstlane_b32 {sT2}, v{vT+1}", "s_mov_b64 exec, 0xffff", f"s_cmp_lg_u32 {sT2}, 3", f"s_cbranch_scc1 {Lno}")
    R = vSL
    for w in range(4):
        g(f"ds_read_b128 {v(R+8*w,4)}, v{vOA} offset:{L_RED + w*512}", f"ds_read_b128 {v(R+4+8*w,4)}, v{vOA} offset:{L_RED + w*512 + 16}")
    g("s_waitcnt lgkmcnt(4)")
    for e in range(0, 8, 2):
        g(f"v_pk_add_f32 {v(R+e,2)}, {v(R+e,2)}, {v(R+8+e,2)}")
    g("s_waitcnt lgkmcnt(0)")
    for e in range(0, 8, 2):
        g(f"v_pk_add_f32 {v(R+16+e,2)}, {v(R+16+e,2)}, {v(R+24+e,2)}")
    for e in range(0, 8, 2):
        g(f"v_pk_add_f32 {v(R+e,2)}, {v(R+e,2)}, {v(R+16+e,2)}")
    for r in range(4):
        g(f"v_cvt_pk_bf16_f32 v{R+r}, v{R+2*r}, v{R+2*r+1}")
    store_sel(g, "s67", f"buffer_store_dwordx4 {v(R,4)}, v{vOB}, {srd(SRD_WS)}, s66 offen @SC ;@opub")
    stamp(g, 7)
    g(f"{Lno}:")
    if STAMPS:
        g("s_memtime s[100:101]")
    end(g)


def gen_aux(g, opt):
    vTAU, vI, vG, vMSK = 1, 2, 3, 4
    EX8 = ("s_mov_b32 exec_lo, 0x00030003", "s_mov_b32 exec_hi, 0x00030003")
    SPROT = False

    def tagify(dst, src):
        g(f"v_and_or_b32 v{dst}, v{src}, v{vMSK}, v{vTAU}")

    g(f"s_load_dword s30, s[28:29], {WS_EPOCH}")
    g(f"s_sub_u32 {sA}, s3, 4")
    lab = g.lab("zc")
    g(f"s_cmp_lg_u32 {sA}, 2", f"s_cbranch_scc1 {lab}", "v_mov_b32 v8, 0", "v_mov_b32 v9, 0", "v_mov_b32 v10, 0", "v_mov_b32 v11, 0",
      "s_nop 0")
    g("s_mov_b64 exec, 1", f"ds_write_b128 v8, v[8:11] offset:{L_CNT}", f"ds_write_b128 v8, v[8:11] offset:{L_CNT + 16}", "s_mov_b64 exec, -1", "s_waitcnt lgkmcnt(0)", f"{lab}:", "s_barrier")
    make_srd(g, SRD_WS, 28, 0, WS_SIZE)
    g(f"v_and_b32 v{vI}, 15, v0", f"v_lshrrev_b32 v{vG}, 4, v0", f"v_mov_b32 v{vMSK}, {hex(0xffffffff ^ TAGMASK)}")
    g(f"s_mul_i32 {sPHI}, {sX}, 6", f"s_add_u32 {sPHI}, {sPHI}, {sR}", f"s_sub_u32 {sPHI}, {sPHI}, 24",
      f"s_cmp_lt_u32 {sR}, 24", f"s_cselect_b32 {sPHI}, 0xff, {sPHI}",
      f"s_cmp_ge_u32 {sR}, 30", f"s_cselect_b32 {sPHI}, 0xff, {sPHI}",
      f"s_cmp_ge_u32 {sPHI}, 43", f"s_cselect_b32 {sPHI}, 0xff, {sPHI}")

    def tag_ready():
        g("s_waitcnt lgkmcnt(0)", f"s_add_u32 {sTAU}, s30, 1", f"s_and_b32 {sTAU}, {sTAU}, {TAGMASK}", f"v_mov_b32 v{vTAU}, {sTAU}")

    LA1, LA2, LA3, LB1 = g.lab("a1"), g.lab("a2"), g.lab("a3"), g.lab("aux_b1")
    g(f"s_cmp_eq_u32 {sA}, 1", f"s_cbranch_scc1 {LA1}", f"s_cmp_eq_u32 {sA}, 2", f"s_cbranch_scc1 {LA2}",
      f"s_cmp_eq_u32 {sA}, 3", f"s_cbranch_scc1 {LA3}")

    g(f"s_cmp_ge_u32 {sR}, 24", f"s_cbranch_scc1 {LA3}")
    g(f"s_lshr_b32 s64, {sR}, 2", f"s_and_b32 s65, {sR}, 3")
    make_srd(g, SRD_B, 20, 0, 2048)
    g(f"v_and_b32 v5, 1, v{vG}", "v_lshlrev_b32 v8, 10, v5", f"v_lshlrev_b32 v9, 4, v{vI}", "v_add_u32 v8, v8, v9",
      f"s_lshl_b32 {sT1}, s65, 8", f"buffer_load_dwordx4 v[12:15], v8, {srd(SRD_B)}, {sT1} offen")
    g("v_lshlrev_b32 v8, 8, v5", "v_add_u32 v8, v8, v9")
    g(f"v_and_b32 v10, 1, v{vI}", "v_lshlrev_b32 v10, 8, v10", f"v_lshlrev_b32 v11, 4, v{vG}", "v_add_u32 v10, v10, v11")
    tr_addr(g, 11, 16, vI, vG, 7)
    g("s_waitcnt vmcnt(0)")
    for r in range(4):
        g(f"v_lshlrev_b32 v{20+2*r}, 16, v{12+r}", f"v_and_b32 v{21+2*r}, 0xffff0000, v{12+r}")
    silu(g, range(20, 28), range(28, 36))
    for r in range(4):
        g(f"v_cvt_pk_bf16_f32 v{12+r}, v{20+2*r}, v{21+2*r}")
    g(f"ds_write_b128 v8, v[12:15] offset:{L_ACT1}")
    tag_ready()
    for k in range(4):
        g(f"ds_read_b128 {v(40+4*k,4)}, v10 offset:{L_ACT1 + k*64}")
    g("s_waitcnt lgkmcnt(0)")
    lds_wait(g, L_CNT + 4, 4, 12)
    for t in range(4):
        for k in range(4):
            tr_read(g, 64 + (t * 4 + k) * 4, 11, L_WMOD + k * 4096 + t * 32, 128)
        g("s_waitcnt lgkmcnt(0)")
        for k in range(4):
            mfma(g, 16 + 4 * t, 64 + (t * 4 + k) * 4, 40 + 4 * k, k == 0)
    g(f"s_lshl_b32 {sT0}, s64, 3", f"s_add_u32 {sT0}, {sT0}, {sX}", f"s_lshl_b32 s66, {sT0}, 11", f"s_add_u32 s66, s66, {WS_MODP}",
      f"s_lshl_b32 {sT1}, s65, 9", f"s_add_u32 {sT0}, s66, {sT1}",
      f"v_lshlrev_b32 v8, 6, v{vI}", f"v_lshlrev_b32 v9, 4, v{vG}", "v_add_u32 v8, v8, v9", "s_nop 4")
    for r in range(16):
        tagify(16 + r, 16 + r)
    g(*EX8)
    for t in range(4):
        g(f"buffer_store_dwordx4 {v(16+4*t,4)}, v8, {srd(SRD_WS)}, {sT0} offen offset:{t*128} sc1 ;@modp")
    g("s_mov_b64 exec, -1")
    stamp(g, 1)
    g("s_cmp_lg_u32 s65, 0", f"s_cbranch_scc1 {LB1}", "s_cmp_lt_u32 s64, 2", f"s_cbranch_scc1 {LB1}")
    backoff(g, opt.get("fin_sl", 64))
    g("v_lshlrev_b32 v8, 4, v0")
    poll(g, "p_fin",
         lambda: g(f"buffer_load_dwordx4 v[16:19], v8, {srd(SRD_WS)}, s66 offen sc1",
                   f"buffer_load_dwordx4 v[20:23], v8, {srd(SRD_WS)}, s66 offen offset:1024 sc1"),
         lambda: check_intag(g, range(16, 24), vTAU, 12))
    for e in range(4):
        g(f"v_add_f32 v{16+e}, v{16+e}, v{20+e}")
    swapreduce(g, range(16, 20), "v_add_f32", range(20, 24), "32")
    g("v_cvt_pk_bf16_f32 v20, v16, v17", "v_cvt_pk_bf16_f32 v21, v18, v19",
      "v_lshlrev_b32 v16, 16, v20", "v_and_b32 v17, 0xffff0000, v20", "v_lshlrev_b32 v18, 16, v21", "v_and_b32 v19, 0xffff0000, v21")
    for e in range(4):
        tagify(16 + e, 16 + e)
    g("v_lshrrev_b32 v8, 3, v0", "v_and_b32 v8, 3, v8", "v_lshlrev_b32 v8, 6, v8", "v_lshrrev_b32 v9, 2, v0", "v_and_b32 v9, 1, v9",
      "v_lshlrev_b32 v9, 11, v9", "v_add_u32 v8, v8, v9", "v_and_b32 v9, 3, v0", "v_lshlrev_b32 v9, 4, v9", "v_add_u32 v8, v8, v9",
      f"s_sub_u32 {sT0}, s64, 2", f"s_lshl_b32 {sT0}, {sT0}, 12", f"s_lshl_b32 {sT1}, {sX}, 8", f"s_add_u32 {sT0}, {sT0}, {sT1}",
      f"s_add_u32 {sT0}, {sT0}, {WS_MODF}", "s_mov_b32 exec_hi, 0",
      f"buffer_store_dwordx4 v[16:19], v8, {srd(SRD_WS)}, {sT0} offen sc1 ;@modf", "s_mov_b64 exec, -1")
    g(f"s_branch {LB1}")

    g(f"{LA1}:")
    make_srd(g, SRD_B, 4, 0, 2048)
    g("v_lshlrev_b32 v8, 4, v0")
    g(f"buffer_load_dwordx4 v[12:15], v8, {srd(SRD_B)}, 0 offen", f"buffer_load_dwordx4 v[16:19], v8, {srd(SRD_B)}, 0 offen offset:1024")
    g("v_lshrrev_b32 v5, 2, v0", "v_and_b32 v5, 1, v5",
      "v_lshrrev_b32 v6, 3, v0", "v_and_b32 v6, 3, v6", "v_lshlrev_b32 v6, 4, v6", "v_and_b32 v7, 3, v0", "v_lshlrev_b32 v7, 2, v7",
      "v_add_u32 v6, v6, v7",
      "v_lshlrev_b32 v7, 10, v5", "v_lshlrev_b32 v9, 1, v6", "v_add_u32 v9, v9, v7",
      f"s_lshl_b32 {sT1}, {sJ}, 7", f"buffer_load_dwordx2 v[20:21], v9, {srd(SRD_B)}, {sT1} offen")
    tr_addr(g, 11, 22, vI, vG, 8)
    g("s_waitcnt vmcnt(0)")
    for b in range(2):
        for r in range(4):
            g(f"v_lshlrev_b32 v{24+8*b+2*r}, 16, v{12+4*b+r}", f"v_and_b32 v{25+8*b+2*r}, 0xffff0000, v{12+4*b+r}")
    for b in range(2):
        base = 24 + 8 * b
        g(f"v_add_f32 v{40+b}, v{base}, v{base+1}")
        for e in range(2, 8):
            g(f"v_add_f32 v{40+b}, v{40+b}, v{base+e}")
    allreduce(g, [40, 41], "v_add_f32", [44, 45])
    g(f"v_mul_f32 v40, {hex(f2u(1/512))}, v40", f"v_mul_f32 v41, {hex(f2u(1/512))}, v41")
    for b in range(2):
        base = 24 + 8 * b
        for e in range(8):
            g(f"v_sub_f32 v{base+e}, v{base+e}, v{40+b}")
        g(f"v_mul_f32 v{42+b}, v{base}, v{base}")
        for e in range(1, 8):
            g(f"v_fmac_f32 v{42+b}, v{base+e}, v{base+e}")
    allreduce(g, [42, 43], "v_add_f32", [44, 45])
    for b in range(2):
        g(f"v_mov_b32 v44, {hex(f2u(1e-5))}", f"v_fmac_f32 v44, {hex(f2u(1/512))}, v{42+b}", f"v_rsq_f32 v{42+b}, v44", "s_nop 0")
    g("v_cmp_eq_u32 vcc, 1, v5", "s_nop 1", "v_cndmask_b32 v40, v40, v41, vcc", "v_cndmask_b32 v42, v42, v43, vcc",
      "v_lshlrev_b32 v24, 16, v20", "v_and_b32 v25, 0xffff0000, v20", "v_lshlrev_b32 v26, 16, v21", "v_and_b32 v27, 0xffff0000, v21")
    for e in range(4):
        g(f"v_sub_f32 v{24+e}, v{24+e}, v40", f"v_mul_f32 v{24+e}, v{24+e}, v42")
    tag_ready()
    lds_wait(g, L_CNT + 8, 4, 12)
    for t in range(8):
        for k in range(2):
            tr_read(g, 64 + (t * 2 + k) * 4, 11, L_WQ + k * 8192 + t * 32, 256)
        if t % 2 == 1:
            g("s_waitcnt lgkmcnt(0)")
    g(f"s_lshl_b32 {sT0}, {sJ}, 11", f"s_add_u32 {sT0}, {sT0}, {WS_MODP}", f"s_add_u32 {sT1}, {sT0}, {8*2048}", "v_lshlrev_b32 v9, 4, v0")
    backoff(g, opt.get("saca_sl", 0))
    g("v_and_b32 v10, 31, v0", "v_lshlrev_b32 v10, 7, v10", f"s_lshl_b32 {sT2}, {sX}, 12", f"s_add_u32 {sT2}, {sT2}, {WS_XL}",
      f"s_mul_i32 {sT3}, {sTAU}, 0x00400401", f"v_mov_b32 v7, {sT3}")

    def chk_saca():
        check_intag(g, range(28, 44), vTAU, 12)
        g("v_xor_b32 v13, v52, v7", "v_sub_u32 v56, v53, v7", "v_lshrrev_b32 v14, 4, v56", "v_or3_b32 v12, v12, v13, v14", "v_cmp_ne_u32 vcc, 0, v12")
    poll(g, "p_saca",
         lambda: g(f"buffer_load_dwordx4 v[28:31], v9, {srd(SRD_WS)}, {sT0} offen sc1",
                   f"buffer_load_dwordx4 v[32:35], v9, {srd(SRD_WS)}, {sT0} offen offset:1024 sc1",
                   f"buffer_load_dwordx4 v[36:39], v9, {srd(SRD_WS)}, {sT1} offen sc1",
                   f"buffer_load_dwordx4 v[40:43], v9, {srd(SRD_WS)}, {sT1} offen offset:1024 sc1",
                   f"buffer_load_dwordx4 v[52:55], v10, {srd(SRD_WS)}, {sT2} offen sc1"),
         chk_saca)
    stamp(g, 1)
    g("s_getreg_b32 s64, hwreg(HW_REG_XCC_ID, 0, 4)", "v_cmp_ne_u32 vcc, s64, v56", "s_nop 4", "s_cmp_eq_u64 vcc, 0", "s_cselect_b32 s69, 1, 0")
    if not opt.get("local", True):
        g("s_mov_b32 s69, 0")
    g("v_mov_b32 v12, 0", "v_mov_b32 v13, s69", f"ds_write_b32 v12, v13 offset:{L_CNT + 20}")
    for e in range(4):
        g(f"v_add_f32 v{28+e}, v{28+e}, v{32+e}", f"v_add_f32 v{36+e}, v{36+e}, v{40+e}")
    swapreduce(g, [28, 29, 30, 31, 36, 37, 38, 39], "v_add_f32", range(44, 52), "32")
    g("v_cvt_pk_bf16_f32 v44, v28, v29", "v_cvt_pk_bf16_f32 v45, v30, v31", "v_cvt_pk_bf16_f32 v46, v36, v37", "v_cvt_pk_bf16_f32 v47, v38, v39")
    for e in range(4):
        src_s, src_c = 44 + e // 2, 46 + e // 2
        if e % 2 == 0:
            g(f"v_lshlrev_b32 v{28+e}, 16, v{src_s}", f"v_lshlrev_b32 v{36+e}, 16, v{src_c}")
        else:
            g(f"v_and_b32 v{28+e}, 0xffff0000, v{src_s}", f"v_and_b32 v{36+e}, 0xffff0000, v{src_c}")
    for e in range(4):
        g(f"v_add_f32 v{36+e}, 1.0, v{36+e}", f"v_fma_f32 v{24+e}, v{24+e}, v{36+e}, v{28+e}")
    g("v_cvt_pk_bf16_f32 v24, v24, v25", "v_cvt_pk_bf16_f32 v25, v26, v27",
      "v_lshlrev_b32 v9, 7, v5", "v_lshlrev_b32 v10, 1, v6", "v_add_u32 v9, v9, v10", f"ds_write_b64 v9, v[24:25] offset:{L_ACT2}",
      f"v_and_b32 v10, 1, v{vI}", "v_lshlrev_b32 v10, 7, v10", f"v_lshlrev_b32 v12, 4, v{vG}", "v_add_u32 v10, v10, v12",
      "s_waitcnt lgkmcnt(0)",
      f"ds_read_b128 v[24:27], v10 offset:{L_ACT2}", f"ds_read_b128 v[28:31], v10 offset:{L_ACT2+64}", "s_waitcnt lgkmcnt(0)")
    for k in range(2):
        for t in range(8):
            mfma(g, 128 + 4 * t, 64 + (t * 2 + k) * 4, 24 + 4 * k, k == 0)
    g(f"s_lshl_b32 {sT0}, {sH}, 13", f"s_lshl_b32 {sT1}, {sJ}, 9", f"s_add_u32 s66, {sT0}, {WS_QP}", f"s_add_u32 {sT0}, s66, {sT1}",
      f"v_and_b32 v8, 1, v{vI}", "v_lshlrev_b32 v8, 12, v8", f"v_lshrrev_b32 v9, 1, v{vI}", "v_and_b32 v9, 1, v9", "v_cmp_eq_u32 vcc, 1, v9",
      "v_lshlrev_b32 v9, 6, v9", "v_add_u32 v8, v8, v9", f"v_lshlrev_b32 v9, 4, v{vG}", "v_add_u32 v8, v8, v9", "s_nop 1")
    for tp in range(4):
        for e in range(4):
            g(f"v_cndmask_b32 v{128+8*tp+e}, v{128+8*tp+e}, v{132+8*tp+e}, vcc")
        for e in range(4):
            tagify(128 + 8 * tp + e, 128 + 8 * tp + e)
    g("s_mov_b32 exec_lo, 0x000f000f", "s_mov_b32 exec_hi, 0x000f000f")
    store_sel(g, "s69", *[f"buffer_store_dwordx4 {v(128+8*tp,4)}, v8, {srd(SRD_WS)}, {sT0} offen offset:{tp*128} @SC ;@qp" for tp in range(4)])
    g("s_mov_b64 exec, -1")
    stamp(g, 2)
    backoff(g, opt.get("q_sl", 64))
    g("v_lshlrev_b32 v8, 4, v0", f"s_lshl_b32 {sT1}, {sB}, 12", f"s_add_u32 {sT0}, s66, {sT1}")

    def issq():
        for k in range(4):
            g(f"buffer_load_dwordx4 {v(16+4*k,4)}, v8, {srd(SRD_WS)}, {sT0} offen offset:{k*1024} sc1")
    poll(g, "p_q", issq, lambda: check_intag(g, range(16, 32), vTAU, 12))
    stamp(g, 3)
    for e in range(4):
        g(f"v_add_f32 v{16+e}, v{16+e}, v{20+e}", f"v_add_f32 v{24+e}, v{24+e}, v{28+e}", f"v_add_f32 v{16+e}, v{16+e}, v{24+e}")
    swapreduce(g, range(16, 20), "v_add_f32", range(20, 24), "32")
    g("v_cvt_pk_bf16_f32 v16, v16, v17", "v_cvt_pk_bf16_f32 v17, v18, v19",
      "v_and_b32 v9, 31, v0", "v_lshlrev_b32 v9, 3, v9", f"ds_write_b64 v9, v[16:17] offset:{L_Q}")
    g(f"s_branch {LB1}")

    g(f"{LA2}:")
    tag_ready()
    g(f"s_mul_i32 {sT1}, {sTAU}, 0x00400401", "s_getreg_b32 s64, hwreg(HW_REG_XCC_ID, 0, 4)", f"s_add_u32 s64, s64, {sT1}",
      f"v_mov_b32 v8, {sT1}", "v_mov_b32 v9, s64", f"v_mov_b32 v10, {sT1}", f"v_mov_b32 v11, {sT1}", "v_lshlrev_b32 v12, 4, v0",
      f"s_lshl_b32 {sT0}, {sX}, 5", f"s_add_u32 {sT0}, {sT0}, {sR}", f"s_lshl_b32 {sT0}, {sT0}, 7", f"s_add_u32 {sT0}, {sT0}, {WS_XL}",
      "s_mov_b64 exec, 0xff", f"buffer_store_dwordx4 v[8:11], v12, {srd(SRD_WS)}, {sT0} offen sc1 ;@xl", "s_mov_b64 exec, -1")
    g(f"s_branch {LB1}")

    g(f"{LA3}:")
    tag_ready()

    g(f"{LB1}:", "s_waitcnt lgkmcnt(0)")
    stamp(g, 4)
    g("s_barrier")
    if opt.get("probe") == "b1":
        g("s_memrealtime s[92:93]")
    LnoML = g.lab("noml")
    Lni = g.lab("noinit")
    g(f"s_cmp_lg_u32 {sA}, 2", f"s_cbranch_scc1 {Lni}", "v_mov_b32 v8, 0", f"ds_read_b32 v8, v8 offset:{L_CNT + 20}",
      "v_lshlrev_b32 v12, 4, v0", "s_waitcnt lgkmcnt(0)", "v_readfirstlane_b32 s69, v8",
      "v_mov_b32 v8, -1", "v_mov_b32 v9, -1", "v_mov_b32 v10, -1", "v_mov_b32 v11, -1",
      f"s_lshl_b32 {sT0}, {sH}, 3", f"s_add_u32 {sT0}, {sT0}, {sJ}", f"s_lshl_b32 {sT0}, {sT0}, 8", f"s_add_u32 {sT0}, {sT0}, {WS_OS}",
      "s_mov_b64 exec, 0xffff")
    store_sel(g, "s69", f"buffer_store_dwordx4 v[8:11], v12, {srd(SRD_WS)}, {sT0} offen @SC ;@inito")
    g("s_mov_b64 exec, -1", f"{Lni}:")
    g("s_barrier")
    g(f"s_cmp_lg_u32 {sA}, 2", f"s_cbranch_scc1 {LnoML}")
    g("v_mov_b32 v8, 0", f"ds_read_b128 v[12:15], v8 offset:{L_MLW}", f"ds_read_b128 v[16:19], v8 offset:{L_MLW+16}", "s_waitcnt lgkmcnt(0)",
      "v_max3_f32 v20, v12, v14, v16", "v_max_f32 v20, v20, v18")
    for m in (12, 14, 16, 18):
        g(f"v_sub_f32 v{m}, v{m}, v20", f"v_exp_f32 v{m}, v{m}")
    g("s_nop 0", "v_mul_f32 v21, v12, v13", "v_fmac_f32 v21, v14, v15", "v_fmac_f32 v21, v16, v17", "v_fmac_f32 v21, v18, v19",
      f"s_mul_i32 {sT1}, {sTAU}, 0x00400401", f"v_mov_b32 v22, {sT1}", "s_getreg_b32 s64, hwreg(HW_REG_XCC_ID, 0, 4)",
      f"s_add_u32 {sT1}, {sT1}, s64", f"v_mov_b32 v23, {sT1}",
      f"s_lshl_b32 {sT0}, {sH}, 3", f"s_add_u32 {sT0}, {sT0}, {sJ}", f"s_lshl_b32 {sT0}, {sT0}, 7", f"s_add_u32 {sT0}, {sT0}, {WS_ML}",
      "v_lshlrev_b32 v8, 4, v0", "s_waitcnt vmcnt(0)", "s_mov_b64 exec, 0xff")
    store_sel(g, "s69", f"buffer_store_dwordx4 v[20:23], v8, {srd(SRD_WS)}, {sT0} offen @SC ;@ml")
    g("s_mov_b64 exec, -1")
    g(f"{LnoML}:")

    LT3P, LWOP, LT3, LLEAD = g.lab("t3prep"), g.lab("woprep"), g.lab("t3"), g.lab("lead")
    g("v_mov_b32 v8, 0", f"ds_read_b32 v8, v8 offset:{L_CNT + 20}", "s_waitcnt lgkmcnt(0)", "v_readfirstlane_b32 s71, v8")
    g(f"s_cmp_eq_u32 {sPHI}, 0xff", f"s_cselect_b32 s67, 0, {sPHI}")
    g(f"s_mul_i32 {sT0}, {sA}, {128*2752}", f"s_lshl_b32 {sT1}, s67, 6", f"s_add_u32 s64, {sT0}, {sT1}")
    make_srd(g, SRD_A, 16, "s64", 512 * 1376 * 2)
    g(f"s_lshl_b32 {sT0}, s67, 15", f"s_lshl_b32 {sT1}, {sA}, 8", f"s_add_u32 s64, {sT0}, {sT1}")
    make_srd(g, SRD_B, 18, "s64", 1376 * 512 * 2)
    g("v_lshrrev_b32 v205, 2, v0", "v_mul_u32_u24 v205, 2752, v205", "v_and_b32 v10, 3, v0", "v_lshlrev_b32 v10, 4, v10",
      "v_add_u32 v205, v205, v10", f"s_lshl_b32 s65, {sA}, 13", f"s_add_u32 s65, s65, {L_KB}", "s_add_u32 s66, s65, 32768",
      f"v_lshlrev_b32 v206, 10, v{vG}", f"v_lshlrev_b32 v11, 4, v{vI}", "v_add_u32 v206, v206, v11",
      "v_mov_b32 v199, 0", "v_mov_b32 v200, 0", "v_mov_b32 v213, 0", "s_mov_b32 s68, 0")
    lds_wait(g, L_CNT + 24, 4, 12)
    g(f"s_cmp_eq_u32 {sPHI}, 0xff", f"s_cbranch_scc1 {LWOP}")

    vB1, vB2 = 64, 96
    vTR1, vTR2 = 207, 208
    vX3, vGA3, vC3, vGB = 224, 228, 232, 236
    g("v_lshrrev_b32 v5, 5, v0", "v_and_b32 v8, 31, v0",
      f"s_lshl_b32 s68, {sA}, 9", "v_lshlrev_b32 v9, 11, v5", "v_lshlrev_b32 v10, 4, v8", "v_add_u32 v9, v9, v10", "v_add_u32 v9, s68, v9",
      f"s_mov_b32 {sT0}, {WS_MODF}", f"s_mov_b32 {sT1}, {WS_MODF + 4096}", f"s_mov_b32 {sT2}, {WS_MODF + 8192}")
    vXA, vFA = 202, 199
    g(f"v_mov_b32 v{vXA}, v9")
    g("v_lshrrev_b32 v7, 2, v0", "v_and_b32 v7, 1, v7", f"v_lshlrev_b32 v{vFA}, 11, v7", "v_and_b32 v7, 3, v0", "v_lshlrev_b32 v7, 4, v7",
      f"v_add_u32 v{vFA}, v{vFA}, v7", f"s_and_b32 {sT3}, {sPHI}, 31", f"s_lshl_b32 {sT3}, {sT3}, 6", f"v_add_u32 v{vFA}, {sT3}, v{vFA}",
      f"s_mov_b32 s69, {WS_MODF + 3*4096}")
    poll(g, "p_modf",
         lambda: g(f"buffer_load_dwordx4 v[12:15], v9, {srd(SRD_WS)}, {sT0} offen sc1", f"buffer_load_dwordx4 v[16:19], v9, {srd(SRD_WS)}, {sT1} offen sc1",
                   f"buffer_load_dwordx4 v[20:23], v9, {srd(SRD_WS)}, {sT2} offen sc1", f"buffer_load_dwordx4 {v(vGB,4)}, v{vFA}, {srd(SRD_WS)}, s69 offen sc1"),
         lambda: check_intag(g, list(range(12, 24)) + list(range(vGB, vGB + 4)), vTAU, 28))
    g("s_mov_b32 s72, s4", "s_mov_b32 s73, s5", "s_mov_b32 s74, 2048", "s_mov_b32 s75, 0x20000")
    g("v_lshrrev_b32 v10, 1, v9", "buffer_load_dwordx2 v[40:41], v10, s[72:75], 0 offen")
    for e in range(4):
        g(f"v_and_b32 v{vGA3+e}, v{vMSK}, v{12+e}", f"v_and_b32 v{16+e}, v{vMSK}, v{16+e}", f"v_and_b32 v{20+e}, v{vMSK}, v{20+e}",
          f"v_and_b32 v{vGB+e}, v{vMSK}, v{vGB+e}", f"v_add_f32 v{20+e}, 1.0, v{20+e}")
    vZA, vYA, vAA, vRA, vUA, vSA, vGW, vGR, vPA, vSW = 201, 200, 203, 204, 209, 210, 211, 212, 213, 214
    g(f"s_mul_i32 s68, {sA}, 1536", f"s_add_u32 s68, s68, {L_ACT3}", f"v_lshlrev_b32 v{vZA}, 8, v5", "v_lshlrev_b32 v10, 3, v8",
      f"v_add_u32 v{vZA}, v{vZA}, v10", f"v_add_u32 v{vZA}, s68, v{vZA}",
      "v_cvt_pk_bf16_f32 v42, v20, v21", "v_cvt_pk_bf16_f32 v43, v22, v23",
      "v_cvt_pk_bf16_f32 v44, v16, v17", "v_cvt_pk_bf16_f32 v45, v18, v19",
      f"v_lshlrev_b32 v{vC3}, 16, v42", f"v_and_b32 v{vC3+1}, 0xffff0000, v42", f"v_lshlrev_b32 v{vC3+2}, 16, v43", f"v_and_b32 v{vC3+3}, 0xffff0000, v43",
      f"ds_write_b64 v{vZA}, v[42:43] offset:512", f"ds_write_b64 v{vZA}, v[44:45] offset:1024",
      "s_waitcnt vmcnt(0)",
      f"v_lshlrev_b32 v{vX3}, 16, v40", f"v_and_b32 v{vX3+1}, 0xffff0000, v40", f"v_lshlrev_b32 v{vX3+2}, 16, v41", f"v_and_b32 v{vX3+3}, 0xffff0000, v41")
    tr_addr(g, vTR1, 12, vI, vG, 6, "s65")
    tr_addr(g, vTR2, 12, vI, vG, 8, "s66")
    g(f"v_lshrrev_b32 v{vYA}, 2, v8", f"v_lshlrev_b32 v{vYA}, 7, v{vYA}", "v_and_b32 v12, 3, v8", "v_lshlrev_b32 v12, 4, v12",
      f"v_add_u32 v{vYA}, v{vYA}, v12", "v_lshlrev_b32 v12, 6, v5", f"v_add_u32 v{vYA}, v{vYA}, v12",
      f"s_lshl_b32 {sT0}, {sA}, 10", f"v_add_u32 v{vYA}, {sT0}, v{vYA}")
    g(f"v_cmp_gt_u32 vcc, 6, v{vI}", "s_nop 1", f"v_cndmask_b32 v{vAA}, 0, v{vI}, vcc", f"v_lshlrev_b32 v{vAA}, 8, v{vAA}",
      f"v_lshlrev_b32 v12, 4, v{vG}", f"v_add_u32 v{vAA}, v{vAA}, v12", f"v_add_u32 v{vAA}, s68, v{vAA}",
      f"s_lshl_b32 {sT0}, {sA}, 10", f"v_lshlrev_b32 v{vRA}, 4, v0", f"v_add_u32 v{vRA}, {sT0}, v{vRA}")
    g("v_lshrrev_b32 v10, 4, v8", "v_lshlrev_b32 v10, 9, v10", f"v_lshlrev_b32 v11, 4, v{vI}", "v_add_u32 v10, v10, v11",
      "v_lshlrev_b32 v11, 2, v5", f"v_add_u32 v{vUA}, v10, v11", f"v_lshlrev_b32 v{vSA}, 5, v5",
      f"s_lshl_b32 {sT0}, {sA}, 3", f"v_add_u32 v{vSW}, {sT0}, v{vSA}",
      f"s_lshl_b32 {sT0}, {sA}, 7", f"v_lshlrev_b32 v{vGW}, 1, v0", f"v_add_u32 v{vGW}, {sT0}, v{vGW}",
      f"v_and_b32 v14, 1, v{vI}", "v_lshlrev_b32 v14, 6, v14", f"v_lshlrev_b32 v15, 4, v{vG}", "v_add_u32 v14, v14, v15", f"v_add_u32 v{vGR}, {sT0}, v14",
      f"v_lshlrev_b32 v{vPA}, 6, v{vI}", f"v_lshlrev_b32 v9, 4, v{vG}", f"v_add_u32 v{vPA}, v{vPA}, v9",
      f"s_lshl_b32 s68, {sPHI}, 12", f"s_lshl_b32 {sT1}, {sA}, 10", f"s_add_u32 s68, s68, {sT1}", f"s_add_u32 s68, s68, {WS_PS}")

    g(f"{LWOP}:")
    DEFER_WO = opt.get("defer_wo", True)
    vBW, vF, vWO, vWT, vOG, vYP, vOR, vOW = 128, 240, 215, 216, 217, 218, 219, 220
    g(f"s_lshl_b32 s64, {sH}, 17", f"s_lshl_b32 s77, {sA}, 15", "s_add_u32 s64, s64, s77", f"s_lshl_b32 s77, {sJ}, 7", "s_add_u32 s64, s64, s77")
    make_srd(g, 72, 12, "s64", 4096 * 512 * 2)
    g(f"v_lshrrev_b32 v{vWO}, 3, v0", f"v_lshlrev_b32 v{vWO}, 10, v{vWO}", "v_and_b32 v10, 7, v0", "v_lshlrev_b32 v10, 4, v10",
      f"v_add_u32 v{vWO}, v{vWO}, v10", f"s_lshl_b32 s77, {sA}, 12", f"s_add_u32 s77, s77, {L_WQ}")

    def wo_dma():
        if "wo" in SKIP:
            return
        for k in range(4):
            g(f"s_mov_b32 {sT2}, {k*8*1024}", f"s_add_u32 m0, s77, {k*1024}", "s_nop 0",
              f"buffer_load_dwordx4 v{vWO}, s[72:75], {sT2} offen nt lds")

    def w1_dma():
        for t in range(8):
            g(f"s_mov_b32 {sT2}, {t*16*2752}", f"s_add_u32 {sT3}, s65, {t*1024}")
            dma(g, 205, SRD_A, sT2, sT3, "w12")

    W1_EARLY = opt.get("w1_early", True)

    def wo_frags(w1=False):
        if w1 and W1_EARLY and "w12" not in SKIP:
            l1, l2 = g.lab("now1"), g.lab("w1q")
            g(f"s_cmp_eq_u32 {sPHI}, 0xff", f"s_cbranch_scc1 {l1}")
            w1_dma()
            g("s_waitcnt vmcnt(8)", f"s_branch {l2}", f"{l1}:", "s_waitcnt vmcnt(0)", f"{l2}:")
        else:
            g("s_waitcnt vmcnt(0)")
        lds_signal(g, L_CNT + 12, 12)
        lds_wait(g, L_CNT + 12, 4, 12)
        for k in range(4):
            tr_read(g, vBW + 4 * k, vWT, k * 4096, 128)
        g("s_waitcnt lgkmcnt(0)")
    if not DEFER_WO:
        wo_dma()
    g(f"s_lshl_b32 {sT0}, {sH}, 10", f"s_add_u32 {sT0}, {sT0}, {WS_ML}",
      f"v_and_b32 v8, 1, v{vG}", "v_lshlrev_b32 v8, 9, v8", "v_and_b32 v9, 3, v0", "v_lshlrev_b32 v9, 7, v9", "v_add_u32 v8, v8, v9",
      f"s_mul_i32 {sT1}, {sTAU}, 0x00400401", f"v_mov_b32 v5, {sT1}")

    def chk_ml():
        g("v_xor_b32 v16, v14, v5", "v_sub_u32 v17, v15, v5", "v_lshrrev_b32 v18, 4, v17", "v_or_b32 v16, v16, v18", "v_cmp_ne_u32 vcc, 0, v16")
    poll(g, "p_ml", lambda: g(f"buffer_load_dwordx4 v[12:15], v8, {srd(SRD_WS)}, {sT0} offen sc1"), chk_ml)
    g("v_mov_b32 v16, v12", "s_nop 1",
      f"v_max_f32_dpp v16, v16, v16 quad_perm:[1,0,3,2] {DPPF}", "s_nop 1",
      f"v_max_f32_dpp v16, v16, v16 quad_perm:[2,3,0,1] {DPPF}",
      "v_sub_f32 v12, v12, v16", "v_exp_f32 v12, v12", "s_nop 0", "v_mul_f32 v13, v13, v12", "s_nop 1",
      f"v_add_f32_dpp v13, v13, v13 quad_perm:[1,0,3,2] {DPPF}", "s_nop 1",
      f"v_add_f32_dpp v13, v13, v13 quad_perm:[2,3,0,1] {DPPF}",
      "v_rcp_f32 v13, v13", "s_nop 0", "v_mul_f32 v12, v12, v13", "s_nop 1")
    for r in range(4):
        g(f"v_mov_b32_dpp v{vF+r}, v12 quad_perm:[{r},{r},{r},{r}] {DPPF}")
    tr_addr(g, vWT, 12, vI, vG, 7)
    g(f"s_lshl_b32 {sT0}, {sA}, 5", f"s_add_u32 {sT0}, {sT0}, {L_WQ}", f"v_add_u32 v{vWT}, {sT0}, v{vWT}")
    if not DEFER_WO:
        wo_frags()
    g(f"s_lshl_b32 s64, {sH}, 11", f"s_add_u32 s64, s64, {WS_OS}")
    if opt.get("o_coop", True):
        g(f"s_lshl_b32 {sT1}, {sA}, 6", f"s_add_u32 s64, s64, {sT1}")
    g(f"v_and_b32 v{vOG}, 7, v{vI}", f"v_lshlrev_b32 v{vOG}, 8, v{vOG}", f"v_lshlrev_b32 v7, 4, v{vG}", f"v_add_u32 v{vOG}, v{vOG}, v7",
      f"v_and_b32 v{vOR}, 7, v{vI}", f"v_lshlrev_b32 v{vOR}, 4, v{vOR}", f"v_lshlrev_b32 v9, 7, v{vG}", f"v_add_u32 v{vOR}, v{vOR}, v9",
      f"s_lshl_b32 {sT1}, {sA}, 9", f"v_add_u32 v{vOW}, {sT1}, v{vOR}",
      f"v_lshlrev_b32 v{vYP}, 6, v{vG}", f"v_lshlrev_b32 v9, 2, v{vI}", f"v_add_u32 v{vYP}, v{vYP}, v9",
      f"s_lshl_b32 s76, {sX}, 14", f"s_lshl_b32 {sT1}, {sJ}, 11", f"s_add_u32 s76, s76, {sT1}", f"s_add_u32 s76, s76, {WS_YP}",
      f"s_and_b32 {sT1}, {sR}, 3", f"s_lshl_b32 {sT1}, {sT1}, 9", f"s_add_u32 s76, s76, {sT1}", f"s_lshl_b32 {sT1}, {sA}, 7", f"s_add_u32 s76, s76, {sT1}")
    lds_wait(g, L_CNT + 28, opt.get("s3_cnt", 4), 12)
    if DEFER_WO:
        wo_dma()
        stamp(g, 5)
        wo_frags(True)
    stamp(g, 6)

    if opt.get("o_coop", True):
        g("s_mov_b32 exec_lo, 0x00ff00ff", "s_mov_b32 exec_hi, 0x00ff00ff")
        poll(g, "p_o", lambda: g(f"buffer_load_dwordx4 v[16:19], v{vOG}, {srd(SRD_WS)}, s64 offen sc1"),
             lambda: check_sentinel(g, range(16, 20), 12), sleep=opt.get("o_sleep", 0))
        g(f"ds_write_b128 v{vOW}, v[16:19] offset:{L_RED2}")
        lds_signal(g, L_CNT + 16, 12)
        lds_wait(g, L_CNT + 16, 4, 12)
        for k in range(4):
            g(f"ds_read_b128 {v(16+4*k,4)}, v{vOR} offset:{L_RED2 + k*512}")
        g("s_waitcnt lgkmcnt(0)")
    else:
        def isso():
            for k in range(4):
                g(f"buffer_load_dwordx4 {v(16+4*k,4)}, v{vOG}, {srd(SRD_WS)}, s64 offen offset:{k*64} sc1")
        poll(g, "p_o", isso, lambda: check_sentinel(g, range(16, 32), 12))
    stamp(g, 7)
    for k in range(4):
        mfma(g, 32, 16 + 4 * k, vBW + 4 * k, k == 0)
    g("s_mov_b32 exec_hi, 0", "s_nop 6",
      f"v_mul_f32 v32, v32, v{vF}", f"v_fmac_f32 v32, v33, v{vF+1}", f"v_fmac_f32 v32, v34, v{vF+2}", f"v_fmac_f32 v32, v35, v{vF+3}")
    tagify(32, 32)
    store_sel(g, "s71", f"buffer_store_dword v32, v{vYP}, {srd(SRD_WS)}, s76 offen @SC ;@yp")
    g("s_mov_b64 exec, -1")
    g(f"s_cmp_lg_u32 {sPHI}, 0xff", f"s_cbranch_scc1 {LT3}")
    g(f"s_cmp_ge_u32 {sR}, 8", "s_cbranch_scc1 L_exit", f"s_cmp_lg_u32 {sA}, 0", "s_cbranch_scc1 L_exit")
    g(f"s_lshl_b32 s66, {sX}, 14", f"s_lshl_b32 {sT1}, {sR}, 11", f"s_add_u32 s66, s66, {sT1}", f"s_add_u32 s66, s66, {WS_YP}",
      f"s_lshl_b32 s67, {sX}, 12", f"s_lshl_b32 {sT1}, {sR}, 9", f"s_add_u32 s67, s67, {sT1}", f"s_add_u32 s67, s67, {WS_YS}",
      "v_lshlrev_b32 v8, 4, v0")
    poll(g, "p_yp", lambda: g(f"buffer_load_dwordx4 v[16:19], v8, {srd(SRD_WS)}, s66 offen sc1",
                              f"buffer_load_dwordx4 v[20:23], v8, {srd(SRD_WS)}, s66 offen offset:1024 sc1"),
         lambda: check_intag(g, range(16, 24), vTAU, 12))
    stamp(g, 9)
    g("v_pk_add_f32 v[16:17], v[16:17], v[20:21]", "v_pk_add_f32 v[18:19], v[18:19], v[22:23]")
    swapreduce(g, range(16, 20), "v_add_f32", range(20, 24), "32")
    for e in range(4):
        tagify(16 + e, 16 + e)
    g("s_mov_b32 exec_hi, 0", f"buffer_store_dwordx4 v[16:19], v8, {srd(SRD_WS)}, s67 offen sc1 ;@ypub")
    stamp(g, 8)
    end(g)

    g(f"{LT3}:")
    if not (W1_EARLY and DEFER_WO):
        w1_dma()
    for t in range(8):
        g(f"s_mov_b32 {sT2}, {t*4*1024}", f"s_add_u32 {sT3}, s66, {t*1024}")
        dma(g, 206, SRD_B, sT2, sT3, "w12")
    g("s_waitcnt vmcnt(8)" if "w12" not in SKIP else "s_waitcnt vmcnt(0)")
    for tau in range(2):
        for k in range(4):
            tr_read(g, vB1 + (tau * 4 + k) * 4, vTR1, k * 2048 + tau * 32, 64)
    if not opt.get("w2late", False):
        g("s_waitcnt vmcnt(0)")
        for t in range(8):
            tr_read(g, vB2 + 4 * t, vTR2, t * 32, 256)
    g("s_waitcnt lgkmcnt(0)")
    stamp(g, 10 if opt.get("fine") else 6)

    def pk(d, a_, b_):
        g(f"v_pk_add_f32 {v(d,2)}, {v(a_,2)}, {v(b_,2)}")

    def issy():
        for G_ in range(8):
            g(f"s_mov_b32 {sT1}, {WS_YS + G_*4096}", f"buffer_load_dwordx4 {v(16+4*G_,4)}, v{vYA}, {srd(SRD_WS)}, {sT1} offen sc1")
    if opt.get("split", True):
        poll2(g, "p_y", issy, 4, lambda: intag_part(g, range(16, 32), vTAU, 12, True), lambda: intag_part(g, range(32, 48), vTAU, 12, False))
    else:
        poll(g, "p_y", issy, lambda: check_intag(g, range(16, 48), vTAU, 12))
    stamp(g, 7)
    if opt.get("probe") == "ygot":
        g("s_memrealtime s[92:93]")
    lab = g.lab("noep")
    g(f"s_or_b32 {sT0}, {sPHI}, {sA}", f"s_cmp_lg_u32 {sT0}, 0", f"s_cbranch_scc1 {lab}", "s_add_u32 s30, s30, 1",
      "v_mov_b32 v12, 0", "v_mov_b32 v13, s30", "s_mov_b64 exec, 1", f"buffer_store_dword v13, v12, {srd(SRD_WS)}, 0 offen",
      "s_mov_b64 exec, -1", f"{lab}:")
    for e in (0, 2):
        pk(16 + e, 16 + e, 20 + e); pk(24 + e, 24 + e, 28 + e); pk(32 + e, 32 + e, 36 + e); pk(40 + e, 40 + e, 44 + e)
    for e in (0, 2):
        pk(16 + e, 16 + e, 24 + e); pk(32 + e, 32 + e, 40 + e)
    for e in (0, 2):
        pk(16 + e, 16 + e, 32 + e)
    for e in (0, 2):
        g(f"v_pk_fma_f32 {v(16+e,2)}, {v(16+e,2)}, {v(vGA3+e,2)}, {v(vX3+e,2)}")
    for e in (0, 2):
        g(f"v_pk_mul_f32 {v(24+e,2)}, {v(16+e,2)}, {v(vC3+e,2)}")
    g("v_cvt_pk_bf16_f32 v24, v24, v25", "v_cvt_pk_bf16_f32 v25, v26, v27", f"ds_write_b64 v{vZA}, v[24:25]")
    for k in range(4):
        g(f"ds_read_b128 {v(28+4*k,4)}, v{vAA} offset:{k*64}")
    g(f"ds_write_b128 v{vXA}, v[16:19] offset:{L_X1}",
      "v_pk_add_f32 v[20:21], v[16:17], v[18:19]", "v_mul_f32 v49, v16, v16", "v_add_f32 v48, v20, v21",
      "v_fmac_f32 v49, v17, v17", "v_fmac_f32 v49, v18, v18", "v_fmac_f32 v49, v19, v19")
    rowreduce(g, [48, 49], "v_add_f32")
    g("s_waitcnt lgkmcnt(1)")
    for k in range(4):
        for tau in range(2):
            mfma(g, 16 + 4 * tau, 28 + 4 * k, vB1 + (tau * 4 + k) * 4, k == 0)
    if opt.get("w2late", False):
        for t in range(8):
            tr_read(g, vB2 + 4 * t, vTR2, t * 32, 256)
    swapreduce(g, [48, 49], "v_add_f32", [50, 51], "16")
    g("s_mov_b32 exec_lo, 1", "s_mov_b32 exec_hi, 1", f"ds_write_b64 v{vSW}, v[48:49] offset:{L_STAT}",
      "s_mov_b32 exec_lo, -1", "s_mov_b32 exec_hi, 0",
      f"ds_write_b128 v{vRA}, v[16:19] offset:{L_RED3}", f"ds_write_b128 v{vRA}, v[20:23] offset:{L_RED3 + 512}",
      "s_mov_b64 exec, -1", "s_waitcnt lgkmcnt(0)", "s_barrier")
    if opt.get("fine"): stamp(g, 2)
    for w in range(4):
        g(f"ds_read_b32 v{12+w}, v{vUA} offset:{L_RED3 + w*1024}", f"ds_read_b32 v{16+w}, v{vUA} offset:{L_RED3 + w*1024 + 8}",
          f"ds_read_b32 v{20+w}, v{vUA} offset:{L_RED3 + w*1024 + 256}")
    g(f"ds_read_b128 v[24:27], v{vSA} offset:{L_STAT}", f"ds_read_b128 v[28:31], v{vSA} offset:{L_STAT + 16}", "s_waitcnt lgkmcnt(0)")
    pk(24, 24, 26); pk(28, 28, 30); pk(12, 12, 14); pk(16, 16, 18); pk(20, 20, 22); pk(24, 24, 28)
    g("v_add_f32 v12, v12, v13", "v_add_f32 v16, v16, v17", "v_add_f32 v20, v20, v21")
    g(f"v_mul_f32 v24, {hex(f2u(1/512))}, v24", f"v_mul_f32 v25, {hex(f2u(1/512))}, v25",
      "v_fma_f32 v25, -v24, v24, v25", f"v_add_f32 v25, {hex(f2u(1e-5))}, v25", "v_rsq_f32 v25, v25",
      "v_fma_f32 v12, -v24, v16, v12", "v_fma_f32 v12, v12, v25, v20")
    silu(g, [12], [13])
    g("v_cvt_pk_bf16_f32 v12, v12, v12", f"ds_write_b16 v{vGW}, v12 offset:{L_ACTG}",
      f"ds_read_b128 v[16:19], v{vGR} offset:{L_ACTG}", "s_waitcnt lgkmcnt(0)")
    if opt.get("fine"): stamp(g, 3)
    for t in range(8):
        mfma(g, 128 + 4 * t, vB2 + 4 * t, 16, True)
    if opt.get("ps1", False):
        g("s_mov_b32 s60, 0xcccccccc", "s_mov_b32 s61, 0xcccccccc", "s_mov_b32 s62, 0xf0f0f0f0", "s_mov_b32 s63, 0xf0f0f0f0",
          "s_mov_b32 s78, 0xff00ff00", "s_mov_b32 s79, 0xff00ff00")
        for tp in range(4):
            for e in range(4):
                g(f"v_cndmask_b32 v{128+8*tp+e}, v{128+8*tp+e}, v{132+8*tp+e}, s[60:61]")
        for tp in range(2):
            for e in range(4):
                g(f"v_cndmask_b32 v{128+16*tp+e}, v{128+16*tp+e}, v{136+16*tp+e}, s[62:63]")
        for e in range(4):
            g(f"v_cndmask_b32 v{128+e}, v{128+e}, v{144+e}, s[78:79]")
        for e in range(4):
            tagify(128 + e, 128 + e)
        g(f"buffer_store_dwordx4 v[128:131], v{vPA}, {srd(SRD_WS)}, s68 offen sc1 ;@pspub")
    else:
        g(*EX8)
        for t in range(8):
            if t == 7:
                g("s_nop 1")
            for e in range(4):
                tagify(128 + 4 * t + e, 128 + 4 * t + e)
            g(f"buffer_store_dwordx4 {v(128+4*t,4)}, v{vPA}, {srd(SRD_WS)}, s68 offen offset:{t*128} sc1 ;@pspub")
    g("s_mov_b64 exec, -1")
    stamp(g, 8)
    g(f"s_cmp_lg_u32 {sA}, 0", "s_cbranch_scc1 L_exit", f"s_cmp_ge_u32 {sPHI}, 32", "s_cbranch_scc1 L_exit")
    g("v_lshrrev_b32 v9, 3, v0", "v_lshlrev_b32 v8, 12, v9", "v_and_b32 v10, 7, v0", "v_lshlrev_b32 v10, 4, v10", "v_add_u32 v8, v8, v10",
      "v_cmp_gt_u32 vcc, 3, v9", f"s_lshl_b32 {sT0}, {sPHI}, 7", f"s_add_u32 {sT0}, {sT0}, {WS_PS}",
      "v_cndmask_b32 v11, v10, v8, vcc", "v_cndmask_b32 v12, 0, 1.0, vcc",
      f"ds_read_b128 v[44:47], v{vFA} offset:{L_X1}", f"v_lshrrev_b32 v48, 1, v{vFA}",
      "s_mov_b32 s72, s24", "s_mov_b32 s73, s25", "s_mov_b32 s74, 2048", "s_mov_b32 s75, 0x20000")

    def issp():
        for k in range(6):
            vv = 11 if k == 5 else 8
            g(f"s_add_u32 {sT1}, {sT0}, {k*8*4096}", f"buffer_load_dwordx4 {v(16+4*k,4)}, v{vv}, {srd(SRD_WS)}, {sT1} offen sc1")
    if opt.get("split", True):
        poll2(g, "p_ps", issp, 3, lambda: intag_part(g, range(16, 28), vTAU, 13, True), lambda: intag_part(g, range(28, 40), vTAU, 13, False))
    else:
        poll(g, "p_ps", issp, lambda: check_intag(g, range(16, 40), vTAU, 13))
    stamp(g, 9)
    for e in (0, 2):
        pk(16 + e, 16 + e, 20 + e); pk(24 + e, 24 + e, 28 + e)
    for e in range(4):
        g(f"v_fma_f32 v{32+e}, v{36+e}, v12, v{32+e}")
    for e in (0, 2):
        pk(16 + e, 16 + e, 24 + e)
    for e in (0, 2):
        pk(16 + e, 16 + e, 32 + e)
    g("s_nop 0")
    for e in range(4):
        g(f"v_add_f32_dpp v{16+e}, v{16+e}, v{16+e} row_ror:8 {DPPF}")
    swapreduce(g, range(16, 20), "v_add_f32", range(20, 24), "16")
    swapreduce(g, range(16, 20), "v_add_f32", range(20, 24), "32")
    g("s_waitcnt lgkmcnt(0)")
    for e in (0, 2):
        g(f"v_pk_fma_f32 {v(16+e,2)}, {v(16+e,2)}, {v(vGB+e,2)}, {v(44+e,2)}")
    g("v_cvt_pk_bf16_f32 v16, v16, v17", "v_cvt_pk_bf16_f32 v17, v18, v19",
      "s_mov_b64 exec, 0xff", "buffer_store_dwordx2 v[16:17], v48, s[72:75], 0 offen")
    stamp(g, 10)
    dbgmax(g, 4)
    if opt.get("probe"):
        lp = g.lab("probe")
        g(f"s_cmp_lg_u32 {sPHI}, 0", "s_cbranch_scc1 L_exit", "s_memrealtime s[94:95]", "s_waitcnt lgkmcnt(0)")
        if opt["probe"] == "total":
            g("s_mov_b32 s92, s94")
        if opt["probe"] == "zero":
            g("s_mov_b32 s92, s90")
        if opt["probe"] == "loc":
            g("s_mul_i32 s92, s71, 800", "s_add_u32 s92, s92, s90")
        g("s_sub_u32 s92, s92, s90", "s_min_u32 s92, s92, 10000", "s_add_u32 s92, s92, s94",
          f"{lp}:", "s_memrealtime s[96:97]", "s_waitcnt lgkmcnt(0)", "s_sub_u32 s96, s96, s92", "s_cmp_lt_i32 s96, 0", f"s_cbranch_scc1 {lp}")
    end(g)


def generate(opt=None):
    global STAMPS, SKIP, POLL_LIMIT, DBGT, NL, LDS_SIZE
    opt = dict(opt or {})
    DBGT = opt.get("dbgt", False)
    POLL_LIMIT = opt.get("poll_limit", 400000)
    SKIP = set(opt.get("skip", ()))
    STAMPS = opt.get("stamps", False)
    NL = opt.get("NL", 24)
    LDS_SIZE = L_KB + 4 * NL * 1024
    g = G()
    hdr = open("cdna_kernels/" + NAME + ".s.ref").read().split("\n")
    for line in hdr:
        if line.startswith(";") and "@launch" not in line and "Override launch" not in line and "grid=ceil" not in line:
            g(line)
        elif not line.startswith(";"):
            break
    g(f"; @launch grid=(256,1,1) block=(512,1,1) lds={LDS_SIZE}")
    g('.amdgcn_target "amdgcn-amd-amdhsa--gfx950"', ".text", f".globl {NAME}_kernel", ".p2align 8",
      f".type {NAME}_kernel,@function", f"{NAME}_kernel:")
    stamp(g, 0)
    gen_entry(g, opt)
    if STAMPS:
        for k in range(1, NSTAMP):
            g(f"s_mov_b32 s{80+2*k}, 0")
    dbgmax(g, 0, True)
    dbgmax(g, 1)
    if opt.get("st_ka"):
        stamp(g, 8)
    g("s_cmp_ge_u32 s3, 4", "s_cbranch_scc1 L_aux")
    gen_stream(g, opt)
    g("L_aux:")
    if 'aux' in SKIP:
        g("s_endpgm")
    gen_aux(g, opt)
    g("L_exit:")
    end(g)
    g("L_end:", "s_endpgm")
    g('.section .rodata,"a"', ".p2align 6", f".amdhsa_kernel {NAME}_kernel",
      "  .amdhsa_next_free_vgpr 256", "  .amdhsa_next_free_sgpr 102", "  .amdhsa_accum_offset 256",
      "  .amdhsa_group_segment_fixed_size 0", "  .amdhsa_kernarg_size 104", "  .amdhsa_user_sgpr_count 2",
      "  .amdhsa_user_sgpr_kernarg_segment_ptr 1", "  .amdhsa_system_sgpr_workgroup_id_x 1",
      "  .amdhsa_float_denorm_mode_32 3", ".end_amdhsa_kernel")
    txt = g.text()
    drop = set(opt.get("drop", ()))
    kept = []
    for line in txt.split("\n"):
        if ";@" in line:
            nm = line.split(";@")[1].strip()
            line = line.split(";@")[0].rstrip()
            if nm in drop:
                continue
        kept.append(line)
    return "\n".join(kept)


if __name__ == "__main__":
    out = sys.argv[1] if len(sys.argv) > 1 else "cdna_kernels/" + NAME + ".s"
    opt = eval(sys.argv[2]) if len(sys.argv) > 2 else {}
    open(out, "w").write(generate(opt))
    print("wrote", out)
```

```python
import struct
import sys

NAME = "adaLN_cond__gqa_block_cached__dense_activation_silu__decode"

WS_EPOCH = 0x0
WS_MODP = 0x1000
WS_MODF = 0x19000
WS_ML = 0x20000
WS_QP = 0x30000
WS_OS = 0x70000
WS_XL = 0x28000
WS_YS = 0x80000
WS_PS = 0x98000
WS_YP = 0xD0000
WS_STAMP = 0x100000
WS_SIZE = 0x120000

L_Q = 0x0000
L_MLW = 0x0100
L_CNT = 0x0180
L_RED = 0x0200
L_RED2 = 0x0A00
L_RED3 = 0x1200
L_STAT = 0x2200
L_ACT1 = 0x2300
L_ACT2 = 0x2500
L_ACTG = 0x2600
L_ACT3 = 0x2800
L_X1 = 0x4000
L_WMOD = 0x5000
L_WQ = 0x9000
L_KB = 0xD000
NL = 24
LDS_SIZE = L_KB + 4 * NL * 1024

sX, sR, sH, sJ, sB, sS = "s48", "s49", "s50", "s51", "s52", "s53"
sT0, sT1, sT2, sT3 = "s54", "s55", "s56", "s57"
sA = "s58"
sPHI = "s59"
sM1, sM0 = "s[60:61]", "s[62:63]"
sCNT = "s70"
sTAU = "s31"
SRD_A, SRD_B, SRD_WS = 32, 36, 40
POLL_LIMIT = 400000
TAGMASK = 0x3FF

LOG2E = 1.4426950408889634
CS = (128 ** -0.5) * LOG2E
STAMPS = False
NSTAMP = 11
SKIP = set()


def f2u(x):
    return struct.unpack("<I", struct.pack("<f", x))[0]


class G:
    def __init__(self):
        self.L = []
        self.n = 0

    def __call__(self, *txt):
        for t in txt:
            self.L.extend(t.split("\n"))

    def lab(self, base):
        self.n += 1
        return f"L_{base}_{self.n}"

    def text(self):
        return "\n".join(self.L) + "\n"


def v(a, n=1):
    return f"v{a}" if n == 1 else f"v[{a}:{a+n-1}]"


def srd(n):
    return f"s[{n}:{n+3}]"


def make_srd(g, d, plo, off, total):
    if isinstance(off, int):
        assert off == 0
        g(f"s_mov_b32 s{d}, s{plo}", f"s_mov_b32 s{d+1}, s{plo+1}", f"s_mov_b32 s{d+2}, {total}")
    else:
        g(f"s_add_u32 s{d}, s{plo}, {off}", f"s_addc_u32 s{d+1}, s{plo+1}, 0",
          f"s_sub_u32 s{d+2}, {total}, {off}")
    g(f"s_mov_b32 s{d+3}, 0x20000")


DPPF = "row_mask:0xf bank_mask:0xf"


def rowreduce(g, regs, op):
    for ctl in ("row_ror:8", "row_ror:4", "row_ror:2", "row_ror:1"):
        g("s_nop 1" if len(regs) < 3 else "s_nop 0")
        for r in regs:
            g(f"{op}_dpp v{r}, v{r}, v{r} {ctl} {DPPF}")


def swapreduce(g, regs, op, tmps, which):
    sw = f"v_permlane{which}_swap_b32"
    g("s_nop 0")
    for r, t in zip(regs, tmps):
        g(f"v_mov_b32 v{t}, v{r}")
    g("s_nop 1")
    for r, t in zip(regs, tmps):
        g(f"{sw} v{r}, v{t}")
    g("s_nop 1")
    for r, t in zip(regs, tmps):
        g(f"{op} v{r}, v{r}, v{t}")


def allreduce(g, regs, op, tmps):
    rowreduce(g, regs, op)
    swapreduce(g, regs, op, tmps, "16")
    swapreduce(g, regs, op, tmps, "32")


sDRY = "s71"


def nodry(g):
    lab = g.lab("nd")
    g(f"s_cmp_lg_u32 {sDRY}, 0", f"s_cbranch_scc1 {lab}")
    return lab


def poll(g, name, issue, check, pre=None, dry=False, sleep=0):
    g(f"s_mov_b32 {sCNT}, {sDRY if dry else 0}")
    stages = ([pre] if pre else []) + [(issue, check)]
    dn = g.lab(name + "_done")
    for iss, chk in stages:
        lp = g.lab(name)
        g(f"{lp}:")
        if sleep:
            g(f"s_sleep {sleep}")
        i0 = len(g.L)
        iss()
        for i in range(i0, len(g.L)):
            if g.L[i].startswith("buffer_load"):
                g.L[i] += f" ;@ld_{name}"
        g("s_waitcnt vmcnt(0)")
        chk()
        g(f"s_add_u32 {sCNT}, {sCNT}, 1", f"s_cmp_gt_u32 {sCNT}, {POLL_LIMIT}",
          f"s_cbranch_scc1 {dn}", f"s_cbranch_vccnz {lp}")
    g(f"{dn}:")


def intag_part(g, regs, vtau, tmp, first):
    regs = list(regs)
    if first:
        g(f"v_xor_b32 v{tmp}, v{regs[0]}, v{vtau}")
        regs = regs[1:]
    while len(regs) >= 2:
        g(f"v_xor_b32 v{tmp+1}, v{regs[0]}, v{vtau}", f"v_xor_b32 v{tmp+2}, v{regs[1]}, v{vtau}",
          f"v_or3_b32 v{tmp}, v{tmp}, v{tmp+1}, v{tmp+2}")
        regs = regs[2:]
    if regs:
        g(f"v_xor_b32 v{tmp+1}, v{regs[0]}, v{vtau}", f"v_or_b32 v{tmp}, v{tmp}, v{tmp+1}")
    if not first:
        g(f"v_and_b32 v{tmp}, {TAGMASK}, v{tmp}", f"v_cmp_ne_u32 vcc, 0, v{tmp}")


def poll2(g, name, issue, nlate, check1, check2):
    lp, dn = g.lab(name), g.lab(name + "_done")
    g(f"s_mov_b32 {sCNT}, 0", f"{lp}:")
    i0 = len(g.L)
    issue()
    for i in range(i0, len(g.L)):
        if g.L[i].startswith("buffer_load"):
            g.L[i] += f" ;@ld_{name}"
    g(f"s_waitcnt vmcnt({nlate})")
    check1()
    g("s_waitcnt vmcnt(0)")
    check2()
    g(f"s_add_u32 {sCNT}, {sCNT}, 1", f"s_cmp_gt_u32 {sCNT}, {POLL_LIMIT}", f"s_cbranch_scc1 {dn}", f"s_cbranch_vccnz {lp}", f"{dn}:")


def check_intag(g, regs, vtau, tmp):
    regs = list(regs)
    g(f"v_xor_b32 v{tmp}, v{regs[0]}, v{vtau}")
    rest = regs[1:]
    while len(rest) >= 2:
        g(f"v_xor_b32 v{tmp+1}, v{rest[0]}, v{vtau}", f"v_xor_b32 v{tmp+2}, v{rest[1]}, v{vtau}",
          f"v_or3_b32 v{tmp}, v{tmp}, v{tmp+1}, v{tmp+2}")
        rest = rest[2:]
    if rest:
        g(f"v_xor_b32 v{tmp+1}, v{rest[0]}, v{vtau}", f"v_or_b32 v{tmp}, v{tmp}, v{tmp+1}")
    g(f"v_and_b32 v{tmp}, {TAGMASK}, v{tmp}", f"v_cmp_ne_u32 vcc, 0, v{tmp}")


def check_sentinel(g, regs, tmp):
    regs = list(regs)
    g(f"v_max_u32 v{tmp}, v{regs[0]}, v{regs[1]}")
    rest = regs[2:]
    while len(rest) >= 2:
        g(f"v_max3_u32 v{tmp}, v{tmp}, v{rest[0]}, v{rest[1]}")
        rest = rest[2:]
    if rest:
        g(f"v_max_u32 v{tmp}, v{tmp}, v{rest[0]}")
    g(f"v_cmp_eq_u32 vcc, -1, v{tmp}")


def silu(g, xs, ts):
    for x, t in zip(xs, ts):
        g(f"v_mul_f32 v{t}, {hex(f2u(-LOG2E))}, v{x}")
    for t in ts:
        g(f"v_exp_f32 v{t}, v{t}")
    g("s_nop 0")
    for t in ts:
        g(f"v_add_f32 v{t}, 1.0, v{t}")
    for t in ts:
        g(f"v_rcp_f32 v{t}, v{t}")
    g("s_nop 0")
    for x, t in zip(xs, ts):
        g(f"v_mul_f32 v{x}, v{x}, v{t}")


def dma(g, voff, srdn, soff, lds_addr, what="", imm=0):
    if what in SKIP:
        return
    g(f"s_mov_b32 m0, {lds_addr}", "s_nop 0")
    g(f"buffer_load_dwordx4 v{voff}, {srd(srdn)}, {soff} offen nt lds")


def lds_signal(g, off, vtmp):
    g("s_mov_b64 exec, 1", f"v_mov_b32 v{vtmp}, 0", f"v_mov_b32 v{vtmp+1}, 1", f"ds_add_u32 v{vtmp}, v{vtmp+1} offset:{off}", "s_mov_b64 exec, -1")


def lds_wait(g, off, target, vtmp):
    lp, dn = g.lab("lw"), g.lab("lwd")
    g(f"s_mov_b32 {sCNT}, 0", f"v_mov_b32 v{vtmp}, 0", f"{lp}:", f"ds_read_b32 v{vtmp+1}, v{vtmp} offset:{off}", "s_waitcnt lgkmcnt(0)",
      f"v_readfirstlane_b32 s47, v{vtmp+1}", f"s_add_u32 {sCNT}, {sCNT}, 1", f"s_cmp_gt_u32 {sCNT}, {POLL_LIMIT * 4 + 4}", f"s_cbranch_scc1 {dn}",
      f"s_cmp_lt_u32 s47, {target}", f"s_cbranch_scc1 {lp}", f"{dn}:")


def store_sel(g, sflag, *instrs):
    l1, l2 = g.lab("wt"), g.lab("wte")
    g(f"s_cmp_eq_u32 {sflag}, 0", f"s_cbranch_scc1 {l1}")
    for i in instrs:
        g(i.replace(" @SC", ""))
    g(f"s_branch {l2}", f"{l1}:")
    for i in instrs:
        g(i.replace(" @SC", " sc1"))
    g(f"{l2}:")


def stamp(g, k):
    if STAMPS:
        g(f"s_memrealtime s[{80+2*k}:{81+2*k}]")


DBGT = False


def dbgmax(g, slot, invert=False):
    if not DBGT:
        return
    lab = g.lab("dbg")
    if slot < 4:
        g("s_and_b32 s74, s2, 15", "s_or_b32 s74, s74, s3", "s_cmp_lg_u32 s74, 0", f"s_cbranch_scc1 {lab}")
    g("s_memrealtime s[74:75]", "s_waitcnt lgkmcnt(0)")
    if invert:
        g("s_not_b32 s74, s74")
    g("s_mov_b64 s[76:77], exec", "s_mov_b64 exec, 1", "v_mov_b32 v252, s74", f"v_mov_b32 v253, {slot*4 + 32}",
      "global_atomic_umax v253, v252, s[26:27]", "s_mov_b64 exec, s[76:77]", f"{lab}:")


def end(g):
    if STAMPS:
        g("s_mov_b64 exec, -1", "s_waitcnt lgkmcnt(0)")
        for k in range(NSTAMP):
            g(f"v_writelane_b32 v250, s{80+2*k}, {k}")
        g("s_lshl_b32 s72, s2, 3", "s_add_u32 s72, s72, s3", "s_lshl_b32 s72, s72, 6", f"s_add_u32 s72, s72, {WS_STAMP}",
          "s_mov_b32 s76, s28", "s_mov_b32 s77, s29", f"s_mov_b32 s78, {WS_SIZE}", "s_mov_b32 s79, 0x20000",
          "v_lshlrev_b32 v251, 2, v0", f"s_mov_b64 exec, {hex((1 << NSTAMP) - 1)}",
          "buffer_store_dword v250, v251, s[76:79], s72 offen")
    g("s_endpgm")


def tr_addr(g, dst, tmp, vI, vG, rowshift, base=None):
    g(f"v_lshlrev_b32 v{dst}, 3, v{vG}", f"v_lshrrev_b32 v{tmp}, 2, v{vI}", f"v_add_u32 v{dst}, v{dst}, v{tmp}",
      f"v_lshlrev_b32 v{dst}, {rowshift}, v{dst}", f"v_and_b32 v{tmp}, 3, v{vI}", f"v_lshlrev_b32 v{tmp}, 3, v{tmp}",
      f"v_add_u32 v{dst}, v{dst}, v{tmp}")
    if base is not None:
        g(f"v_add_u32 v{dst}, {base}, v{dst}")


def tr_read(g, reg, vaddr, off, rowbytes):
    g(f"ds_read_b64_tr_b16 {v(reg,2)}, v{vaddr} offset:{off}", f"ds_read_b64_tr_b16 {v(reg+2,2)}, v{vaddr} offset:{off + 4*rowbytes}")


def mfma(g, d, a, b, first):
    g(f"v_mfma_f32_16x16x32_bf16 {v(d,4)}, {v(a,4)}, {v(b,4)}, {'0' if first else v(d,4)}")


def backoff(g, n):
    while n > 0:
        g(f"s_sleep {min(n, 127)}")
        n -= min(n, 127)


def ids(g):
    g(f"s_and_b32 {sT0}, {sR}, 3", f"s_lshl_b32 {sH}, {sX}, 2", f"s_add_u32 {sH}, {sH}, {sT0}",
      f"s_lshr_b32 {sJ}, {sR}, 2", f"s_lshr_b32 {sB}, {sJ}, 2", f"s_and_b32 {sS}, {sJ}, 3")


def gen_entry(g, opt):
    if opt.get("probe"):
        g("s_memrealtime s[90:91]")
    g("s_cmp_ge_u32 s2, 0x100", "s_cbranch_scc1 L_end",
      "s_load_dwordx16 s[4:19], s[0:1], 0", "s_load_dwordx8 s[20:27], s[0:1], 64", "s_load_dwordx2 s[28:29], s[0:1], 96",
      "v_lshrrev_b32 v1, 6, v0", "v_and_b32 v0, 63, v0", f"s_and_b32 {sX}, s2, 7", "v_readfirstlane_b32 s3, v1", f"s_lshr_b32 {sR}, s2, 3")
    g(f"s_lshr_b32 s65, {sR}, 4", "s_lshl_b32 s65, s65, 3", f"s_add_u32 s65, s65, {sX}", "s_lshl_b32 s65, s65, 2",
      f"s_and_b32 {sT1}, {sR}, 3", f"s_add_u32 s65, s65, {sT1}", "s_lshl_b32 s65, s65, 2", f"s_bfe_u32 {sT1}, {sR}, 0x20002",
      f"s_add_u32 s65, s65, {sT1}", "s_lshl_b32 s65, s65, 18",
      f"s_lshl_b32 {sT1}, s3, 12", "v_lshlrev_b32 v46, 4, v0", f"s_mul_i32 s64, s3, {NL*1024}", f"v_add_u32 v1, {sT1}, v46",
      f"s_add_u32 s64, s64, {L_KB}", "s_waitcnt lgkmcnt(0)")


def gen_stream(g, opt):
    W = opt.get("W", 7)
    NS = 48
    vOFF, vQ, vM, vD = 1, 2, 6, 10
    vB = [14, 18]
    vS, vT, vX, vSL, vLDS = 22, 26, 42, 48, 46
    NREG_K = 64 - NL
    URG = opt.get("urgent_r", 8)
    W0 = opt.get("W0", W)
    I_WQ, I_LATE = opt.get("i_wq", 14), opt.get("i_late", 40)

    order = [("K", n) for n in range(NREG_K, 64)] + [("K", n) for n in range(NREG_K)] + [("V", n) for n in range(64)]

    def slot_of(kind, n):
        return vSL + 4 * ((n if kind == "K" else NREG_K + n) % NS)

    def wmod_dma():
        for k in range(4):
            g(f"s_mov_b32 s68, {k * 8 * 6144}", f"s_add_u32 m0, s71, {k*1024}", "s_nop 0")
            if 'p1' not in SKIP:
                g("buffer_load_dwordx4 v3, s[76:79], s68 offen nt lds")

    def wq_dma():
        for k in range(4):
            g(f"s_mov_b32 s68, {k * 4 * 8192}", f"s_add_u32 m0, s67, {k*1024}", "s_nop 0")
            if 'wq' not in SKIP:
                g("buffer_load_dwordx4 v2, s[72:75], s68 offen nt lds")

    g(f"s_add_u32 s{SRD_A}, s6, s65", f"s_addc_u32 s{SRD_A+1}, s7, 0", f"s_mov_b32 s{SRD_A+2}, 0x40000", f"s_mov_b32 s{SRD_A+3}, 0x20000")
    FIRST = opt.get("wmod_first", False)

    def wmod_setup():
        ids(g)
        g("v_add_u32 v46, s64, v46")
        g(f"s_lshr_b32 s68, {sR}, 2", f"s_and_b32 s69, {sR}, 3", "s_lshl_b32 s69, s69, 2", "s_add_u32 s69, s69, s3",
          f"s_mul_i32 s69, s69, {32*6144}", "s_lshl_b32 s68, s68, 10", "s_add_u32 s69, s69, s68", f"s_lshl_b32 s68, {sX}, 7", "s_add_u32 s69, s69, s68",
          f"s_cmp_ge_u32 {sR}, 24", "s_cselect_b32 s69, 0, s69",
          "v_lshrrev_b32 v3, 3, v0", "v_mul_u32_u24 v3, 0x1800, v3", "v_and_b32 v4, 7, v0", "v_lshlrev_b32 v4, 4, v4", "v_add_u32 v3, v3, v4",
          "s_lshl_b32 s71, s3, 12", f"s_add_u32 s71, s71, {L_WMOD}")
        make_srd(g, 76, 22, "s69", 512 * 3072 * 2)
        Lnp = g.lab("nourg")
        g(f"s_cmp_ge_u32 {sR}, {URG}", f"s_cbranch_scc1 {Lnp}")
        wmod_dma()
        g(f"{Lnp}:")
    if FIRST:
        wmod_setup()

    if opt.get("rot") == 1:
        g(f"s_add_u32 s46, {sR}, {sX}", "s_mul_i32 s46, s46, 5")
    elif opt.get("rot") == 2:
        g(f"s_mul_i32 s46, {sX}, 2", f"s_lshr_b32 s45, {sR}, 4", "s_add_u32 s46, s46, s45")
    elif opt.get("rot") == 3:
        g(f"s_mov_b32 s46, {sR}")
    state = {"K": None, "V": None, "i": 0}
    if STAMPS:
        g("s_memtime s[98:99]")

    def issue_next():
        i = state["i"]
        kind, n = order[i]
        rho, t = n >> 2, n & 3
        sreg, sr = (sT2, SRD_A) if kind == "K" else (sT3, SRD_B)
        if i >= W0:
            g(f"s_waitcnt vmcnt({W-1})")
        ROT = opt.get("rot")

        def set_soff(extra):
            if ROT:
                g(f"s_add_u32 {sreg}, s46, {rho}", f"s_and_b32 {sreg}, {sreg}, 15", f"s_lshl_b32 {sreg}, {sreg}, 14")
                if extra:
                    g(f"s_add_u32 {sreg}, {sreg}, {extra}")
            else:
                g(f"s_mov_b32 {sreg}, {rho * 16384 + extra}")
        if kind == "K" and n >= NREG_K:
            set_soff(t * 1024)
            g(f"s_add_u32 m0, s64, {(n - NREG_K) * 1024}")
            state[kind] = None
            g("s_nop 0", f"buffer_load_dwordx4 v{vOFF}, {srd(sr)}, {sreg} offen nt lds")
        else:
            if state[kind] != rho:
                set_soff(0)
                state[kind] = rho
            g(f"buffer_load_dwordx4 {v(slot_of(kind, n), 4)}, v{vOFF}, {srd(sr)}, {sreg} offen offset:{t*1024} nt")
        state["i"] = i + 1

    def issued_after(kind, n):
        return state["i"] - 1 - order.index((kind, n))

    NBACK = NL + NS
    for i in range(NBACK):
        issue_next()
        if i == W0 - 1:
            if not FIRST:
                wmod_setup()
            g(f"s_add_u32 s{SRD_B}, s8, s65", f"s_addc_u32 s{SRD_B+1}, s9, 0", f"s_mov_b32 s{SRD_B+2}, 0x40000", f"s_mov_b32 s{SRD_B+3}, 0x20000")
            g(f"s_lshl_b32 s66, {sJ}, 19", f"s_lshl_b32 s67, {sH}, 8", "s_add_u32 s66, s66, s67", "s_lshl_b32 s67, s3, 17", "s_add_u32 s66, s66, s67")
            make_srd(g, 72, 10, "s66", 512 * 4096 * 2)
            g("v_lshrrev_b32 v2, 4, v0", "v_lshlrev_b32 v2, 13, v2", "v_and_b32 v4, 15, v0", "v_lshlrev_b32 v4, 4, v4", "v_add_u32 v2, v2, v4",
              "s_lshl_b32 s67, s3, 12", f"s_add_u32 s67, s67, {L_WQ}")
            g("s_barrier")
        if i == W0 and opt.get("st_ka"):
            stamp(g, 5)
        if i == (W0 if FIRST else W0 - 1 + W):
            lab = g.lab("sigm")
            g(f"s_cmp_ge_u32 {sR}, {URG}", f"s_cbranch_scc1 {lab}")
            lds_signal(g, L_CNT + 4, 4)
            g(f"{lab}:")
        if i == I_WQ:
            wq_dma()
        if i == I_WQ + W:
            lds_signal(g, L_CNT + 8, 4)
        if i == I_LATE:
            lab = g.lab("late")
            g(f"s_cmp_lt_u32 {sR}, {URG}", f"s_cbranch_scc1 {lab}", f"s_cmp_ge_u32 {sR}, 24", f"s_cbranch_scc1 {lab}")
            wmod_dma()
            g(f"{lab}:")
        if i == I_LATE + W:
            lab = g.lab("sigl")
            g(f"s_cmp_lt_u32 {sR}, {URG}", f"s_cbranch_scc1 {lab}")
            lds_signal(g, L_CNT + 4, 4)
            g(f"{lab}:")
    g(f"v_and_b32 v{vX}, 15, v0", f"v_lshrrev_b32 v{vX+1}, 1, v{vX}", f"v_and_b32 v{vX+2}, 1, v{vX}",
      f"v_mov_b32 v{vX+3}, 0xffff", f"v_mov_b32 v{vT}, 0xffff0000",
      f"v_cmp_eq_u32 vcc, 1, v{vX+2}", "s_nop 1", f"v_cndmask_b32 v{vX+3}, v{vX+3}, v{vT}, vcc")
    for r in range(4):
        g(f"v_cmp_eq_u32 vcc, {r}, v{vX+1}", "s_nop 1", f"v_cndmask_b32 v{vM+r}, 0, v{vX+3}, vcc")
    g("s_mov_b32 s60, 0xcccccccc", "s_mov_b32 s61, 0xcccccccc", "s_mov_b32 s62, 0xaaaaaaaa", "s_mov_b32 s63, 0xaaaaaaaa")
    for r in range(4):
        g(f"v_mov_b32 v{vD+r}, 0")
    g(f"v_lshlrev_b32 v{vX}, 4, v{vX}")
    stamp(g, 1)
    g("s_barrier")
    stamp(g, 2)
    dbgmax(g, 2)
    g(f"ds_read_b128 {v(vQ,4)}, v{vX} offset:{L_Q}", "s_waitcnt lgkmcnt(0)")

    def kreg(n):
        if n < NREG_K:
            return slot_of("K", n)
        return vSL + 4 * (16 + (n & 15))

    def dots(ns):
        for r in range(4):
            for n in ns:
                t = vT + (n & 15)
                c = "0" if r == 0 else f"v{t}"
                g(f"v_dot2_f32_bf16 v{t}, v{kreg(n)+r}, v{vQ+r}, {c}")

    def tree(gam):
        g("s_nop 2")
        for n in range(8):
            g(f"v_add_f32_dpp v{vT+n}, v{vT+n}, v{vT+n} row_ror:8 row_mask:0xf bank_mask:0x3")
            g(f"v_add_f32_dpp v{vT+n}, v{vT+n+8}, v{vT+n+8} row_ror:8 row_mask:0xf bank_mask:0xc")
        for n in range(4):
            g(f"v_add_f32_dpp v{vT+n}, v{vT+n}, v{vT+n} row_shl:4 row_mask:0xf bank_mask:0x5")
            g(f"v_add_f32_dpp v{vT+n}, v{vT+n+4}, v{vT+n+4} row_shr:4 row_mask:0xf bank_mask:0xa")
        g("s_nop 0")
        for n in range(4):
            g(f"v_add_f32_dpp v{vT+n}, v{vT+n}, v{vT+n} quad_perm:[2,3,0,1] {DPPF}")
        g(f"v_cndmask_b32 v{vT}, v{vT}, v{vT+2}, {sM1}", f"v_cndmask_b32 v{vT+1}, v{vT+1}, v{vT+3}, {sM1}", "s_nop 1")
        for n in range(2):
            g(f"v_add_f32_dpp v{vT+n}, v{vT+n}, v{vT+n} quad_perm:[1,0,3,2] {DPPF}")
        g(f"v_cndmask_b32 v{vS+gam}, v{vT}, v{vT+1}, {sM0}")

    freed = 0

    def can_issue():
        i = state["i"]
        if i >= len(order):
            return False
        kind, n = order[i]
        return n < NS - NREG_K or (NREG_K + n) % NS < freed

    every = opt.get("burst_every", 2)
    qi = 0
    for gam in range(4):
        ns_all = list(range(16 * gam, 16 * gam + 16))
        for n in ns_all:
            if n >= NREG_K:
                g(f"ds_read_b128 {v(kreg(n),4)}, v{vLDS} offset:{(n - NREG_K) * 1024}")
        for q4 in range(4):
            ns = ns_all[4 * q4: 4 * q4 + 4]
            regn = [n for n in ns if n < NREG_K]
            if regn:
                g(f"s_waitcnt vmcnt({min(63, issued_after('K', regn[-1]))})")
            if any(n >= NREG_K for n in ns):
                g("s_waitcnt lgkmcnt(0)")
            if 'qk' not in SKIP:
                dots(ns)
            if regn:
                freed = min(regn[-1] + 1, 16)
            qi += 1
            if qi % every == 0 and can_issue():
                issue_next()
        if 'qk' not in SKIP:
            tree(gam)
    freed = NS
    stamp(g, 3)
    for _ in range(opt.get("sm_issue0", 0)):
        issue_next()
    g(f"v_max3_f32 v{vX}, v{vS}, v{vS+1}, v{vS+2}", f"v_max_f32 v{vX}, v{vX}, v{vS+3}")
    allreduce(g, [vX], "v_max_f32", [vX + 1])
    g(f"v_mul_f32 v{vX}, {hex(f2u(CS))}, v{vX}", f"s_mov_b32 {sT0}, {hex(f2u(CS))}")
    issue_next()
    for r in range(4):
        g(f"v_fma_f32 v{vS+r}, v{vS+r}, {sT0}, -v{vX}")
    for r in range(4):
        g(f"v_exp_f32 v{vS+r}, v{vS+r}")
    g("s_nop 0")
    g(f"v_add_f32 v{vX+1}, v{vS}, v{vS+1}", f"v_add_f32 v{vX+2}, v{vS+2}, v{vS+3}", f"v_add_f32 v{vX+1}, v{vX+1}, v{vX+2}")
    allreduce(g, [vX + 1], "v_add_f32", [vX + 2])
    g(f"s_lshl_b32 {sT0}, s3, 3", f"v_mov_b32 v{vX+2}, {sT0}", "s_mov_b64 exec, 1",
      f"ds_write_b64 v{vX+2}, {v(vX,2)} offset:{L_MLW}", "s_mov_b64 exec, -1", "s_waitcnt lgkmcnt(0)")
    issue_next()
    g("s_barrier")
    stamp(g, 4)
    g(f"v_mov_b32 v{vX+1}, 0", f"ds_read_b128 {v(vT,4)}, v{vX+1} offset:{L_MLW}",
      f"ds_read_b128 {v(vT+4,4)}, v{vX+1} offset:{L_MLW+16}", "s_waitcnt lgkmcnt(0)",
      f"v_max3_f32 v{vX+1}, v{vT}, v{vT+2}, v{vT+4}", f"v_max_f32 v{vX+1}, v{vX+1}, v{vT+6}",
      f"v_sub_f32 v{vX}, v{vX}, v{vX+1}", f"v_exp_f32 v{vX}, v{vX}", "s_nop 0")
    for r in range(4):
        g(f"v_mul_f32 v{vS+r}, v{vS+r}, v{vX}")
    for r in range(4):
        g(f"v_cvt_pk_bf16_f32 v{vS+r}, v{vS+r}, v{vS+r}")
    vRA, vOA, vOB = vT + 8, vT + 9, vT + 10
    g(f"v_lshrrev_b32 v{vRA}, 4, v0", f"v_lshlrev_b32 v{vRA}, 7, v{vRA}", f"v_and_b32 v{vX+1}, 15, v0",
      f"v_lshlrev_b32 v{vX+1}, 2, v{vX+1}", f"v_add_u32 v{vRA}, v{vRA}, v{vX+1}", f"s_lshl_b32 s66, s3, 9", f"v_add_u32 v{vRA}, s66, v{vRA}",
      f"v_lshlrev_b32 v{vOA}, 5, v0", f"v_lshlrev_b32 v{vOB}, 4, v0",
      f"s_lshl_b32 s66, {sH}, 3", f"s_add_u32 s66, s66, {sJ}", "s_lshl_b32 s66, s66, 8", f"s_add_u32 s66, s66, {WS_OS}",
      f"v_mov_b32 v{vX+1}, 0", f"ds_read_b32 v{vX+1}, v{vX+1} offset:{L_CNT + 20}", "s_waitcnt lgkmcnt(0)", f"v_readfirstlane_b32 s67, v{vX+1}")
    make_srd(g, SRD_WS, 28, 0, WS_SIZE)

    def pv(n):
        if 'pv' in SKIP:
            return
        B = vB[n & 1]
        for r in range(4):
            g(f"v_and_b32_dpp v{B+r}, v{vS+(n>>4)}, v{vM+r} row_newbcast:{n&15} {DPPF}")
        g("s_nop 1")
        mfma(g, vD, slot_of("V", n), B, False)

    nb2b = opt.get("b2b_at", 24)
    nb3 = opt.get("b3_at", 64 - W)
    for n in range(64):
        pos = order.index(("V", n))
        while state["i"] < len(order) and state["i"] <= pos + W - 1:
            issue_next()
        if n == nb2b:
            if not opt.get("st_ka"):
                stamp(g, 8)
            lds_signal(g, L_CNT + 24, vX + 1)
        if n == nb3:
            if not opt.get("st_ka"):
                stamp(g, 5)
            lds_signal(g, L_CNT + 28, vX + 1)
        g(f"s_waitcnt vmcnt({min(63, issued_after('V', n))})")
        pv(n)
        cu = opt.get("catchup", 5)
        if n % cu == cu - 1 and state["i"] < len(order) and state["i"] > pos + W:
            issue_next()
    stamp(g, 6)
    dbgmax(g, 3)
    Lno = g.lab("notlast")
    g(f"v_mov_b32 v{vT}, 0", f"v_mov_b32 v{vT+1}, 1", "s_mov_b32 exec_lo, 0x00ff00ff", "s_mov_b32 exec_hi, 0x00ff00ff", "s_nop 4")
    for r in range(4):
        g(f"ds_write_b32 v{vRA}, v{vD+r} offset:{L_RED + r*32}")
    g("s_mov_b64 exec, 1", f"ds_add_rtn_u32 v{vT+1}, v{vT}, v{vT+1} offset:{L_CNT}", "s_waitcnt lgkmcnt(0)",
      f"v_readfirstlane_b32 {sT2}, v{vT+1}", "s_mov_b64 exec, 0xffff", f"s_cmp_lg_u32 {sT2}, 3", f"s_cbranch_scc1 {Lno}")
    R = vSL
    for w in range(4):
        g(f"ds_read_b128 {v(R+8*w,4)}, v{vOA} offset:{L_RED + w*512}", f"ds_read_b128 {v(R+4+8*w,4)}, v{vOA} offset:{L_RED + w*512 + 16}")
    g("s_waitcnt lgkmcnt(4)")
    for e in range(0, 8, 2):
        g(f"v_pk_add_f32 {v(R+e,2)}, {v(R+e,2)}, {v(R+8+e,2)}")
    g("s_waitcnt lgkmcnt(0)")
    for e in range(0, 8, 2):
        g(f"v_pk_add_f32 {v(R+16+e,2)}, {v(R+16+e,2)}, {v(R+24+e,2)}")
    for e in range(0, 8, 2):
        g(f"v_pk_add_f32 {v(R+e,2)}, {v(R+e,2)}, {v(R+16+e,2)}")
    for r in range(4):
        g(f"v_cvt_pk_bf16_f32 v{R+r}, v{R+2*r}, v{R+2*r+1}")
    store_sel(g, "s67", f"buffer_store_dwordx4 {v(R,4)}, v{vOB}, {srd(SRD_WS)}, s66 offen @SC ;@opub")
    stamp(g, 7)
    g(f"{Lno}:")
    if STAMPS:
        g("s_memtime s[100:101]")
    end(g)


def gen_aux(g, opt):
    vTAU, vI, vG, vMSK = 1, 2, 3, 4
    EX8 = ("s_mov_b32 exec_lo, 0x00030003", "s_mov_b32 exec_hi, 0x00030003")
    SPROT = False

    def tagify(dst, src):
        g(f"v_and_or_b32 v{dst}, v{src}, v{vMSK}, v{vTAU}")

    g(f"s_load_dword s30, s[28:29], {WS_EPOCH}")
    ids(g)
    g(f"s_sub_u32 {sA}, s3, 4")
    if opt.get("codepf", 0):
        Lnp = g.lab("nopf")
        g(f"s_cmp_lg_u32 {sA}, 3", f"s_cbranch_scc1 {Lnp}", f"s_cmp_ge_u32 {sR}, {opt['codepf']}", f"s_cbranch_scc1 {Lnp}")
        g("s_getpc_b64 s[64:65]", "L_pc:", "s_sub_u32 s64, s64, (L_pc - " + NAME + "_kernel)", "s_subb_u32 s65, s65, 0",
          "v_lshlrev_b32 v8, 7, v0", "s_mov_b32 s66, (L_end - " + NAME + "_kernel)")
        for k in range(3):
            g("v_min_u32 v9, s66, v8", f"global_load_dword v{12+k}, v9, s[64:65]", "v_add_u32 v8, 0x2000, v8")
        g(f"{Lnp}:")
    lab = g.lab("zc")
    g(f"s_cmp_lg_u32 {sA}, 2", f"s_cbranch_scc1 {lab}", "v_mov_b32 v8, 0", "v_mov_b32 v9, 0", "v_mov_b32 v10, 0", "v_mov_b32 v11, 0",
      "s_nop 0")
    g("s_mov_b64 exec, 1", f"ds_write_b128 v8, v[8:11] offset:{L_CNT}", f"ds_write_b128 v8, v[8:11] offset:{L_CNT + 16}", "s_mov_b64 exec, -1", "s_waitcnt lgkmcnt(0)", f"{lab}:", "s_barrier")
    make_srd(g, SRD_WS, 28, 0, WS_SIZE)
    g(f"v_and_b32 v{vI}, 15, v0", f"v_lshrrev_b32 v{vG}, 4, v0", f"v_mov_b32 v{vMSK}, {hex(0xffffffff ^ TAGMASK)}")
    g(f"s_mul_i32 {sPHI}, {sX}, 6", f"s_add_u32 {sPHI}, {sPHI}, {sR}", f"s_sub_u32 {sPHI}, {sPHI}, 24",
      f"s_cmp_lt_u32 {sR}, 24", f"s_cselect_b32 {sPHI}, 0xff, {sPHI}",
      f"s_cmp_ge_u32 {sR}, 30", f"s_cselect_b32 {sPHI}, 0xff, {sPHI}",
      f"s_cmp_ge_u32 {sPHI}, 43", f"s_cselect_b32 {sPHI}, 0xff, {sPHI}")

    def tag_ready():
        g("s_waitcnt lgkmcnt(0)", f"s_add_u32 {sTAU}, s30, 1", f"s_and_b32 {sTAU}, {sTAU}, {TAGMASK}", f"v_mov_b32 v{vTAU}, {sTAU}")

    LA1, LA2, LA3, LB1 = g.lab("a1"), g.lab("a2"), g.lab("a3"), g.lab("aux_b1")
    g(f"s_cmp_eq_u32 {sA}, 1", f"s_cbranch_scc1 {LA1}", f"s_cmp_eq_u32 {sA}, 2", f"s_cbranch_scc1 {LA2}",
      f"s_cmp_eq_u32 {sA}, 3", f"s_cbranch_scc1 {LA3}")

    g(f"s_cmp_ge_u32 {sR}, 24", f"s_cbranch_scc1 {LA3}")
    g(f"s_lshr_b32 s64, {sR}, 2", f"s_and_b32 s65, {sR}, 3")
    make_srd(g, SRD_B, 20, 0, 2048)
    g(f"v_and_b32 v5, 1, v{vG}", "v_lshlrev_b32 v8, 10, v5", f"v_lshlrev_b32 v9, 4, v{vI}", "v_add_u32 v8, v8, v9",
      f"s_lshl_b32 {sT1}, s65, 8", f"buffer_load_dwordx4 v[12:15], v8, {srd(SRD_B)}, {sT1} offen")
    g("v_lshlrev_b32 v8, 8, v5", "v_add_u32 v8, v8, v9")
    g(f"v_and_b32 v10, 1, v{vI}", "v_lshlrev_b32 v10, 8, v10", f"v_lshlrev_b32 v11, 4, v{vG}", "v_add_u32 v10, v10, v11")
    tr_addr(g, 11, 16, vI, vG, 7)
    g("s_waitcnt vmcnt(0)")
    for r in range(4):
        g(f"v_lshlrev_b32 v{20+2*r}, 16, v{12+r}", f"v_and_b32 v{21+2*r}, 0xffff0000, v{12+r}")
    silu(g, range(20, 28), range(28, 36))
    for r in range(4):
        g(f"v_cvt_pk_bf16_f32 v{12+r}, v{20+2*r}, v{21+2*r}")
    g(f"ds_write_b128 v8, v[12:15] offset:{L_ACT1}")
    tag_ready()
    for k in range(4):
        g(f"ds_read_b128 {v(40+4*k,4)}, v10 offset:{L_ACT1 + k*64}")
    g("s_waitcnt lgkmcnt(0)")
    lds_wait(g, L_CNT + 4, 4, 12)
    for t in range(4):
        for k in range(4):
            tr_read(g, 64 + (t * 4 + k) * 4, 11, L_WMOD + k * 4096 + t * 32, 128)
        g("s_waitcnt lgkmcnt(0)")
        for k in range(4):
            mfma(g, 16 + 4 * t, 64 + (t * 4 + k) * 4, 40 + 4 * k, k == 0)
    g(f"s_lshl_b32 {sT0}, s64, 3", f"s_add_u32 {sT0}, {sT0}, {sX}", f"s_lshl_b32 s66, {sT0}, 11", f"s_add_u32 s66, s66, {WS_MODP}",
      f"s_lshl_b32 {sT1}, s65, 9", f"s_add_u32 {sT0}, s66, {sT1}",
      f"v_lshlrev_b32 v8, 6, v{vI}", f"v_lshlrev_b32 v9, 4, v{vG}", "v_add_u32 v8, v8, v9", "s_nop 4")
    for r in range(16):
        tagify(16 + r, 16 + r)
    g(*EX8)
    for t in range(4):
        g(f"buffer_store_dwordx4 {v(16+4*t,4)}, v8, {srd(SRD_WS)}, {sT0} offen offset:{t*128} sc1 ;@modp")
    g("s_mov_b64 exec, -1")
    stamp(g, 1)
    g(f"s_branch {LB1}")

    g(f"{LA1}:")
    make_srd(g, SRD_B, 4, 0, 2048)
    g("v_lshlrev_b32 v8, 4, v0")
    g(f"buffer_load_dwordx4 v[12:15], v8, {srd(SRD_B)}, 0 offen", f"buffer_load_dwordx4 v[16:19], v8, {srd(SRD_B)}, 0 offen offset:1024")
    g("v_lshrrev_b32 v5, 2, v0", "v_and_b32 v5, 1, v5",
      "v_lshrrev_b32 v6, 3, v0", "v_and_b32 v6, 3, v6", "v_lshlrev_b32 v6, 4, v6", "v_and_b32 v7, 3, v0", "v_lshlrev_b32 v7, 2, v7",
      "v_add_u32 v6, v6, v7",
      "v_lshlrev_b32 v7, 10, v5", "v_lshlrev_b32 v9, 1, v6", "v_add_u32 v9, v9, v7",
      f"s_lshl_b32 {sT1}, {sJ}, 7", f"buffer_load_dwordx2 v[20:21], v9, {srd(SRD_B)}, {sT1} offen")
    tr_addr(g, 11, 22, vI, vG, 8)
    g("s_waitcnt vmcnt(0)")
    for b in range(2):
        for r in range(4):
            g(f"v_lshlrev_b32 v{24+8*b+2*r}, 16, v{12+4*b+r}", f"v_and_b32 v{25+8*b+2*r}, 0xffff0000, v{12+4*b+r}")
    for b in range(2):
        base = 24 + 8 * b
        g(f"v_add_f32 v{40+b}, v{base}, v{base+1}")
        for e in range(2, 8):
            g(f"v_add_f32 v{40+b}, v{40+b}, v{base+e}")
    allreduce(g, [40, 41], "v_add_f32", [44, 45])
    g(f"v_mul_f32 v40, {hex(f2u(1/512))}, v40", f"v_mul_f32 v41, {hex(f2u(1/512))}, v41")
    for b in range(2):
        base = 24 + 8 * b
        for e in range(8):
            g(f"v_sub_f32 v{base+e}, v{base+e}, v{40+b}")
        g(f"v_mul_f32 v{42+b}, v{base}, v{base}")
        for e in range(1, 8):
            g(f"v_fmac_f32 v{42+b}, v{base+e}, v{base+e}")
    allreduce(g, [42, 43], "v_add_f32", [44, 45])
    for b in range(2):
        g(f"v_mov_b32 v44, {hex(f2u(1e-5))}", f"v_fmac_f32 v44, {hex(f2u(1/512))}, v{42+b}", f"v_rsq_f32 v{42+b}, v44", "s_nop 0")
    g("v_cmp_eq_u32 vcc, 1, v5", "s_nop 1", "v_cndmask_b32 v40, v40, v41, vcc", "v_cndmask_b32 v42, v42, v43, vcc",
      "v_lshlrev_b32 v24, 16, v20", "v_and_b32 v25, 0xffff0000, v20", "v_lshlrev_b32 v26, 16, v21", "v_and_b32 v27, 0xffff0000, v21")
    for e in range(4):
        g(f"v_sub_f32 v{24+e}, v{24+e}, v40", f"v_mul_f32 v{24+e}, v{24+e}, v42")
    tag_ready()
    lds_wait(g, L_CNT + 8, 4, 12)
    for t in range(8):
        for k in range(2):
            tr_read(g, 64 + (t * 2 + k) * 4, 11, L_WQ + k * 8192 + t * 32, 256)
        if t % 2 == 1:
            g("s_waitcnt lgkmcnt(0)")
    g(f"s_lshl_b32 {sT0}, {sJ}, 11", f"s_add_u32 {sT0}, {sT0}, {WS_MODP}", f"s_add_u32 {sT1}, {sT0}, {8*2048}", "v_lshlrev_b32 v9, 4, v0")
    backoff(g, opt.get("saca_sl", 0))
    g("v_and_b32 v10, 31, v0", "v_lshlrev_b32 v10, 7, v10", f"s_lshl_b32 {sT2}, {sX}, 12", f"s_add_u32 {sT2}, {sT2}, {WS_XL}",
      f"s_mul_i32 {sT3}, {sTAU}, 0x00400401", f"v_mov_b32 v7, {sT3}")

    def chk_saca():
        check_intag(g, range(28, 44), vTAU, 12)
        g("v_xor_b32 v13, v52, v7", "v_sub_u32 v56, v53, v7", "v_lshrrev_b32 v14, 4, v56", "v_or3_b32 v12, v12, v13, v14", "v_cmp_ne_u32 vcc, 0, v12")
    poll(g, "p_saca",
         lambda: g(f"buffer_load_dwordx4 v[28:31], v9, {srd(SRD_WS)}, {sT0} offen sc1",
                   f"buffer_load_dwordx4 v[32:35], v9, {srd(SRD_WS)}, {sT0} offen offset:1024 sc1",
                   f"buffer_load_dwordx4 v[36:39], v9, {srd(SRD_WS)}, {sT1} offen sc1",
                   f"buffer_load_dwordx4 v[40:43], v9, {srd(SRD_WS)}, {sT1} offen offset:1024 sc1",
                   f"buffer_load_dwordx4 v[52:55], v10, {srd(SRD_WS)}, {sT2} offen sc1"),
         chk_saca)
    stamp(g, 1)
    g("s_getreg_b32 s64, hwreg(HW_REG_XCC_ID, 0, 4)", "v_cmp_ne_u32 vcc, s64, v56", "s_nop 4", "s_cmp_eq_u64 vcc, 0", "s_cselect_b32 s69, 1, 0")
    if not opt.get("local", True):
        g("s_mov_b32 s69, 0")
    g("v_mov_b32 v12, 0", "v_mov_b32 v13, s69", f"ds_write_b32 v12, v13 offset:{L_CNT + 20}")
    for e in range(4):
        g(f"v_add_f32 v{28+e}, v{28+e}, v{32+e}", f"v_add_f32 v{36+e}, v{36+e}, v{40+e}")
    swapreduce(g, [28, 29, 30, 31, 36, 37, 38, 39], "v_add_f32", range(44, 52), "32")
    g("v_cvt_pk_bf16_f32 v44, v28, v29", "v_cvt_pk_bf16_f32 v45, v30, v31", "v_cvt_pk_bf16_f32 v46, v36, v37", "v_cvt_pk_bf16_f32 v47, v38, v39")
    for e in range(4):
        src_s, src_c = 44 + e // 2, 46 + e // 2
        if e % 2 == 0:
            g(f"v_lshlrev_b32 v{28+e}, 16, v{src_s}", f"v_lshlrev_b32 v{36+e}, 16, v{src_c}")
        else:
            g(f"v_and_b32 v{28+e}, 0xffff0000, v{src_s}", f"v_and_b32 v{36+e}, 0xffff0000, v{src_c}")
    for e in range(4):
        g(f"v_add_f32 v{36+e}, 1.0, v{36+e}", f"v_fma_f32 v{24+e}, v{24+e}, v{36+e}, v{28+e}")
    g("v_cvt_pk_bf16_f32 v24, v24, v25", "v_cvt_pk_bf16_f32 v25, v26, v27",
      "v_lshlrev_b32 v9, 7, v5", "v_lshlrev_b32 v10, 1, v6", "v_add_u32 v9, v9, v10", f"ds_write_b64 v9, v[24:25] offset:{L_ACT2}",
      f"v_and_b32 v10, 1, v{vI}", "v_lshlrev_b32 v10, 7, v10", f"v_lshlrev_b32 v12, 4, v{vG}", "v_add_u32 v10, v10, v12",
      "s_waitcnt lgkmcnt(0)",
      f"ds_read_b128 v[24:27], v10 offset:{L_ACT2}", f"ds_read_b128 v[28:31], v10 offset:{L_ACT2+64}", "s_waitcnt lgkmcnt(0)")
    for k in range(2):
        for t in range(8):
            mfma(g, 128 + 4 * t, 64 + (t * 2 + k) * 4, 24 + 4 * k, k == 0)
    g(f"s_lshl_b32 {sT0}, {sH}, 13", f"s_lshl_b32 {sT1}, {sJ}, 9", f"s_add_u32 s66, {sT0}, {WS_QP}", f"s_add_u32 {sT0}, s66, {sT1}",
      f"v_and_b32 v8, 1, v{vI}", "v_lshlrev_b32 v8, 12, v8", f"v_lshrrev_b32 v9, 1, v{vI}", "v_and_b32 v9, 1, v9", "v_cmp_eq_u32 vcc, 1, v9",
      "v_lshlrev_b32 v9, 6, v9", "v_add_u32 v8, v8, v9", f"v_lshlrev_b32 v9, 4, v{vG}", "v_add_u32 v8, v8, v9", "s_nop 1")
    for tp in range(4):
        for e in range(4):
            g(f"v_cndmask_b32 v{128+8*tp+e}, v{128+8*tp+e}, v{132+8*tp+e}, vcc")
        for e in range(4):
            tagify(128 + 8 * tp + e, 128 + 8 * tp + e)
    g("s_mov_b32 exec_lo, 0x000f000f", "s_mov_b32 exec_hi, 0x000f000f")
    store_sel(g, "s69", *[f"buffer_store_dwordx4 {v(128+8*tp,4)}, v8, {srd(SRD_WS)}, {sT0} offen offset:{tp*128} @SC ;@qp" for tp in range(4)])
    g("s_mov_b64 exec, -1")
    stamp(g, 2)
    backoff(g, opt.get("q_sl", 48))
    g("v_lshlrev_b32 v8, 4, v0", f"s_lshl_b32 {sT1}, {sB}, 12", f"s_add_u32 {sT0}, s66, {sT1}")

    def issq():
        for k in range(4):
            g(f"buffer_load_dwordx4 {v(16+4*k,4)}, v8, {srd(SRD_WS)}, {sT0} offen offset:{k*1024} sc1")
    poll(g, "p_q", issq, lambda: check_intag(g, range(16, 32), vTAU, 12))
    stamp(g, 3)
    for e in range(4):
        g(f"v_add_f32 v{16+e}, v{16+e}, v{20+e}", f"v_add_f32 v{24+e}, v{24+e}, v{28+e}", f"v_add_f32 v{16+e}, v{16+e}, v{24+e}")
    swapreduce(g, range(16, 20), "v_add_f32", range(20, 24), "32")
    g("v_cvt_pk_bf16_f32 v16, v16, v17", "v_cvt_pk_bf16_f32 v17, v18, v19",
      "v_and_b32 v9, 31, v0", "v_lshlrev_b32 v9, 3, v9", f"ds_write_b64 v9, v[16:17] offset:{L_Q}")
    g(f"s_branch {LB1}")

    g(f"{LA2}:")
    tag_ready()
    g(f"s_mul_i32 {sT1}, {sTAU}, 0x00400401", "s_getreg_b32 s64, hwreg(HW_REG_XCC_ID, 0, 4)", f"s_add_u32 s64, s64, {sT1}",
      f"v_mov_b32 v8, {sT1}", "v_mov_b32 v9, s64", f"v_mov_b32 v10, {sT1}", f"v_mov_b32 v11, {sT1}", "v_lshlrev_b32 v12, 4, v0",
      f"s_lshl_b32 {sT0}, {sX}, 5", f"s_add_u32 {sT0}, {sT0}, {sR}", f"s_lshl_b32 {sT0}, {sT0}, 7", f"s_add_u32 {sT0}, {sT0}, {WS_XL}",
      "s_mov_b64 exec, 0xff", f"buffer_store_dwordx4 v[8:11], v12, {srd(SRD_WS)}, {sT0} offen sc1 ;@xl", "s_mov_b64 exec, -1")
    g(f"s_branch {LB1}")

    g(f"{LA3}:")
    tag_ready()

    g(f"{LB1}:", "s_waitcnt lgkmcnt(0)")
    stamp(g, 4)
    g("s_barrier")
    if opt.get("probe") == "b1":
        g("s_memrealtime s[92:93]")
    LnoML = g.lab("noml")
    Lni = g.lab("noinit")
    g(f"s_cmp_lg_u32 {sA}, 2", f"s_cbranch_scc1 {Lni}", "v_mov_b32 v8, 0", f"ds_read_b32 v8, v8 offset:{L_CNT + 20}",
      "v_lshlrev_b32 v12, 4, v0", "s_waitcnt lgkmcnt(0)", "v_readfirstlane_b32 s69, v8",
      "v_mov_b32 v8, -1", "v_mov_b32 v9, -1", "v_mov_b32 v10, -1", "v_mov_b32 v11, -1",
      f"s_lshl_b32 {sT0}, {sH}, 3", f"s_add_u32 {sT0}, {sT0}, {sJ}", f"s_lshl_b32 {sT0}, {sT0}, 8", f"s_add_u32 {sT0}, {sT0}, {WS_OS}",
      "s_mov_b64 exec, 0xffff")
    store_sel(g, "s69", f"buffer_store_dwordx4 v[8:11], v12, {srd(SRD_WS)}, {sT0} offen @SC ;@inito")
    g("s_mov_b64 exec, -1", f"{Lni}:")
    g("s_barrier")
    g(f"s_cmp_lg_u32 {sA}, 2", f"s_cbranch_scc1 {LnoML}")
    g("v_mov_b32 v8, 0", f"ds_read_b128 v[12:15], v8 offset:{L_MLW}", f"ds_read_b128 v[16:19], v8 offset:{L_MLW+16}", "s_waitcnt lgkmcnt(0)",
      "v_max3_f32 v20, v12, v14, v16", "v_max_f32 v20, v20, v18")
    for m in (12, 14, 16, 18):
        g(f"v_sub_f32 v{m}, v{m}, v20", f"v_exp_f32 v{m}, v{m}")
    g("s_nop 0", "v_mul_f32 v21, v12, v13", "v_fmac_f32 v21, v14, v15", "v_fmac_f32 v21, v16, v17", "v_fmac_f32 v21, v18, v19",
      f"s_mul_i32 {sT1}, {sTAU}, 0x00400401", f"v_mov_b32 v22, {sT1}", "s_getreg_b32 s64, hwreg(HW_REG_XCC_ID, 0, 4)",
      f"s_add_u32 {sT1}, {sT1}, s64", f"v_mov_b32 v23, {sT1}",
      f"s_lshl_b32 {sT0}, {sH}, 3", f"s_add_u32 {sT0}, {sT0}, {sJ}", f"s_lshl_b32 {sT0}, {sT0}, 7", f"s_add_u32 {sT0}, {sT0}, {WS_ML}",
      "v_lshlrev_b32 v8, 4, v0", "s_waitcnt vmcnt(0)", "s_mov_b64 exec, 0xff")
    store_sel(g, "s69", f"buffer_store_dwordx4 v[20:23], v8, {srd(SRD_WS)}, {sT0} offen @SC ;@ml")
    g("s_mov_b64 exec, -1")
    g(f"{LnoML}:")

    Lnf = g.lab("nofin")
    g(f"s_cmp_lg_u32 {sA}, 0", f"s_cbranch_scc1 {Lnf}", f"s_sub_u32 {sT1}, {sR}, 8",
      f"s_and_b32 {sT0}, {sR}, 3", f"s_cmp_lg_u32 {sT0}, 0", f"s_cbranch_scc1 {Lnf}", f"s_cmp_ge_u32 {sT1}, 16", f"s_cbranch_scc1 {Lnf}",
      f"s_lshr_b32 s64, {sR}, 2", f"s_lshl_b32 {sT0}, s64, 3", f"s_add_u32 {sT0}, {sT0}, {sX}", f"s_lshl_b32 s66, {sT0}, 11", f"s_add_u32 s66, s66, {WS_MODP}",
      "v_lshlrev_b32 v8, 4, v0")
    poll(g, "p_fin",
         lambda: g(f"buffer_load_dwordx4 v[16:19], v8, {srd(SRD_WS)}, s66 offen sc1",
                   f"buffer_load_dwordx4 v[20:23], v8, {srd(SRD_WS)}, s66 offen offset:1024 sc1"),
         lambda: check_intag(g, range(16, 24), vTAU, 12))
    for e in range(4):
        g(f"v_add_f32 v{16+e}, v{16+e}, v{20+e}")
    swapreduce(g, range(16, 20), "v_add_f32", range(20, 24), "32")
    g("v_cvt_pk_bf16_f32 v20, v16, v17", "v_cvt_pk_bf16_f32 v21, v18, v19",
      "v_lshlrev_b32 v16, 16, v20", "v_and_b32 v17, 0xffff0000, v20", "v_lshlrev_b32 v18, 16, v21", "v_and_b32 v19, 0xffff0000, v21")
    for e in range(4):
        tagify(16 + e, 16 + e)
    g("v_lshrrev_b32 v8, 3, v0", "v_and_b32 v8, 3, v8", "v_lshlrev_b32 v8, 6, v8", "v_lshrrev_b32 v9, 2, v0", "v_and_b32 v9, 1, v9",
      "v_lshlrev_b32 v9, 11, v9", "v_add_u32 v8, v8, v9", "v_and_b32 v9, 3, v0", "v_lshlrev_b32 v9, 4, v9", "v_add_u32 v8, v8, v9",
      f"s_sub_u32 {sT0}, s64, 2", f"s_lshl_b32 {sT0}, {sT0}, 12", f"s_lshl_b32 {sT1}, {sX}, 8", f"s_add_u32 {sT0}, {sT0}, {sT1}",
      f"s_add_u32 {sT0}, {sT0}, {WS_MODF}", "s_mov_b32 exec_hi, 0",
      f"buffer_store_dwordx4 v[16:19], v8, {srd(SRD_WS)}, {sT0} offen sc1 ;@modf", "s_mov_b64 exec, -1", f"{Lnf}:")

    LT3P, LWOP, LT3, LLEAD = g.lab("t3prep"), g.lab("woprep"), g.lab("t3"), g.lab("lead")
    g("v_mov_b32 v8, 0", f"ds_read_b32 v8, v8 offset:{L_CNT + 20}", "s_waitcnt lgkmcnt(0)", "v_readfirstlane_b32 s71, v8")
    g(f"s_cmp_eq_u32 {sPHI}, 0xff", f"s_cselect_b32 s67, 0, {sPHI}")
    g(f"s_mul_i32 {sT0}, {sA}, {128*2752}", f"s_lshl_b32 {sT1}, s67, 6", f"s_add_u32 s64, {sT0}, {sT1}")
    make_srd(g, SRD_A, 16, "s64", 512 * 1376 * 2)
    g(f"s_lshl_b32 {sT0}, s67, 15", f"s_lshl_b32 {sT1}, {sA}, 8", f"s_add_u32 s64, {sT0}, {sT1}")
    make_srd(g, SRD_B, 18, "s64", 1376 * 512 * 2)
    g("v_lshrrev_b32 v205, 2, v0", "v_mul_u32_u24 v205, 2752, v205", "v_and_b32 v10, 3, v0", "v_lshlrev_b32 v10, 4, v10",
      "v_add_u32 v205, v205, v10", f"s_lshl_b32 s65, {sA}, 13", f"s_add_u32 s65, s65, {L_KB}", "s_add_u32 s66, s65, 32768",
      f"v_lshlrev_b32 v206, 10, v{vG}", f"v_lshlrev_b32 v11, 4, v{vI}", "v_add_u32 v206, v206, v11",
      "v_mov_b32 v199, 0", "v_mov_b32 v200, 0", "v_mov_b32 v213, 0", "s_mov_b32 s68, 0")
    lds_wait(g, L_CNT + 24, 4, 12)
    g(f"s_cmp_eq_u32 {sPHI}, 0xff", f"s_cbranch_scc1 {LWOP}")

    vB1, vB2 = 64, 96
    vTR1, vTR2 = 207, 208
    vX3, vGA3, vC3, vGB = 224, 228, 232, 236
    g("v_lshrrev_b32 v5, 5, v0", "v_and_b32 v8, 31, v0",
      f"s_lshl_b32 s68, {sA}, 9", "v_lshlrev_b32 v9, 11, v5", "v_lshlrev_b32 v10, 4, v8", "v_add_u32 v9, v9, v10", "v_add_u32 v9, s68, v9",
      f"s_mov_b32 {sT0}, {WS_MODF}", f"s_mov_b32 {sT1}, {WS_MODF + 4096}", f"s_mov_b32 {sT2}, {WS_MODF + 8192}")
    vXA, vFA = 202, 199
    g(f"v_mov_b32 v{vXA}, v9")
    g("v_lshrrev_b32 v7, 2, v0", "v_and_b32 v7, 1, v7", f"v_lshlrev_b32 v{vFA}, 11, v7", "v_and_b32 v7, 3, v0", "v_lshlrev_b32 v7, 4, v7",
      f"v_add_u32 v{vFA}, v{vFA}, v7", f"s_and_b32 {sT3}, {sPHI}, 31", f"s_lshl_b32 {sT3}, {sT3}, 6", f"v_add_u32 v{vFA}, {sT3}, v{vFA}",
      f"s_mov_b32 s69, {WS_MODF + 3*4096}")
    poll(g, "p_modf",
         lambda: g(f"buffer_load_dwordx4 v[12:15], v9, {srd(SRD_WS)}, {sT0} offen sc1", f"buffer_load_dwordx4 v[16:19], v9, {srd(SRD_WS)}, {sT1} offen sc1",
                   f"buffer_load_dwordx4 v[20:23], v9, {srd(SRD_WS)}, {sT2} offen sc1", f"buffer_load_dwordx4 {v(vGB,4)}, v{vFA}, {srd(SRD_WS)}, s69 offen sc1"),
         lambda: check_intag(g, list(range(12, 24)) + list(range(vGB, vGB + 4)), vTAU, 28))
    g("s_mov_b32 s72, s4", "s_mov_b32 s73, s5", "s_mov_b32 s74, 2048", "s_mov_b32 s75, 0x20000")
    g("v_lshrrev_b32 v10, 1, v9", "buffer_load_dwordx2 v[40:41], v10, s[72:75], 0 offen")
    for e in range(4):
        g(f"v_and_b32 v{vGA3+e}, v{vMSK}, v{12+e}", f"v_and_b32 v{16+e}, v{vMSK}, v{16+e}", f"v_and_b32 v{20+e}, v{vMSK}, v{20+e}",
          f"v_and_b32 v{vGB+e}, v{vMSK}, v{vGB+e}", f"v_add_f32 v{20+e}, 1.0, v{20+e}")
    vZA, vYA, vAA, vRA, vUA, vSA, vGW, vGR, vPA, vSW = 201, 200, 203, 204, 209, 210, 211, 212, 213, 214
    g(f"s_mul_i32 s68, {sA}, 1536", f"s_add_u32 s68, s68, {L_ACT3}", f"v_lshlrev_b32 v{vZA}, 8, v5", "v_lshlrev_b32 v10, 3, v8",
      f"v_add_u32 v{vZA}, v{vZA}, v10", f"v_add_u32 v{vZA}, s68, v{vZA}",
      "v_cvt_pk_bf16_f32 v42, v20, v21", "v_cvt_pk_bf16_f32 v43, v22, v23",
      "v_cvt_pk_bf16_f32 v44, v16, v17", "v_cvt_pk_bf16_f32 v45, v18, v19",
      f"v_lshlrev_b32 v{vC3}, 16, v42", f"v_and_b32 v{vC3+1}, 0xffff0000, v42", f"v_lshlrev_b32 v{vC3+2}, 16, v43", f"v_and_b32 v{vC3+3}, 0xffff0000, v43",
      f"ds_write_b64 v{vZA}, v[42:43] offset:512", f"ds_write_b64 v{vZA}, v[44:45] offset:1024",
      "s_waitcnt vmcnt(0)",
      f"v_lshlrev_b32 v{vX3}, 16, v40", f"v_and_b32 v{vX3+1}, 0xffff0000, v40", f"v_lshlrev_b32 v{vX3+2}, 16, v41", f"v_and_b32 v{vX3+3}, 0xffff0000, v41")
    tr_addr(g, vTR1, 12, vI, vG, 6, "s65")
    HALF = opt.get("w1_half", True) and "w12" not in SKIP
    vTR0 = 198
    if HALF:
        g(f"s_lshl_b32 s78, {sA}, 12", f"s_add_u32 s78, s78, {L_WMOD}")
        tr_addr(g, vTR0, 12, vI, vG, 6, "s78")
        for t in range(4):
            if t >= 2:
                g("s_waitcnt vmcnt(1)")
            g(f"s_mov_b32 {sT2}, {t*16*2752}", f"s_add_u32 {sT3}, s78, {t*1024}")
            dma(g, 205, SRD_A, sT2, sT3, "w12")
    tr_addr(g, vTR2, 12, vI, vG, 8, "s66")
    g(f"v_lshrrev_b32 v{vYA}, 2, v8", f"v_lshlrev_b32 v{vYA}, 7, v{vYA}", "v_and_b32 v12, 3, v8", "v_lshlrev_b32 v12, 4, v12",
      f"v_add_u32 v{vYA}, v{vYA}, v12", "v_lshlrev_b32 v12, 6, v5", f"v_add_u32 v{vYA}, v{vYA}, v12",
      f"s_lshl_b32 {sT0}, {sA}, 10", f"v_add_u32 v{vYA}, {sT0}, v{vYA}")
    g(f"v_cmp_gt_u32 vcc, 6, v{vI}", "s_nop 1", f"v_cndmask_b32 v{vAA}, 0, v{vI}, vcc", f"v_lshlrev_b32 v{vAA}, 8, v{vAA}",
      f"v_lshlrev_b32 v12, 4, v{vG}", f"v_add_u32 v{vAA}, v{vAA}, v12", f"v_add_u32 v{vAA}, s68, v{vAA}",
      f"s_lshl_b32 {sT0}, {sA}, 10", f"v_lshlrev_b32 v{vRA}, 4, v0", f"v_add_u32 v{vRA}, {sT0}, v{vRA}")
    g("v_lshrrev_b32 v10, 4, v8", "v_lshlrev_b32 v10, 9, v10", f"v_lshlrev_b32 v11, 4, v{vI}", "v_add_u32 v10, v10, v11",
      "v_lshlrev_b32 v11, 2, v5", f"v_add_u32 v{vUA}, v10, v11", f"v_lshlrev_b32 v{vSA}, 5, v5",
      f"s_lshl_b32 {sT0}, {sA}, 3", f"v_add_u32 v{vSW}, {sT0}, v{vSA}",
      f"s_lshl_b32 {sT0}, {sA}, 7", f"v_lshlrev_b32 v{vGW}, 1, v0", f"v_add_u32 v{vGW}, {sT0}, v{vGW}",
      f"v_and_b32 v14, 1, v{vI}", "v_lshlrev_b32 v14, 6, v14", f"v_lshlrev_b32 v15, 4, v{vG}", "v_add_u32 v14, v14, v15", f"v_add_u32 v{vGR}, {sT0}, v14",
      f"v_lshlrev_b32 v{vPA}, 6, v{vI}", f"v_lshlrev_b32 v9, 4, v{vG}", f"v_add_u32 v{vPA}, v{vPA}, v9",
      f"s_lshl_b32 s68, {sPHI}, 12", f"s_lshl_b32 {sT1}, {sA}, 10", f"s_add_u32 s68, s68, {sT1}", f"s_add_u32 s68, s68, {WS_PS}")

    g(f"{LWOP}:")
    DEFER_WO = opt.get("defer_wo", True)
    vBW, vF, vWO, vWT, vOG, vYP, vOR, vOW = 128, 240, 215, 216, 217, 218, 219, 220
    g(f"s_lshl_b32 s64, {sH}, 17", f"s_lshl_b32 s77, {sA}, 15", "s_add_u32 s64, s64, s77", f"s_lshl_b32 s77, {sJ}, 7", "s_add_u32 s64, s64, s77")
    make_srd(g, 72, 12, "s64", 4096 * 512 * 2)
    g(f"v_lshrrev_b32 v{vWO}, 3, v0", f"v_lshlrev_b32 v{vWO}, 10, v{vWO}", "v_and_b32 v10, 7, v0", "v_lshlrev_b32 v10, 4, v10",
      f"v_add_u32 v{vWO}, v{vWO}, v10", f"s_lshl_b32 s77, {sA}, 12", f"s_add_u32 s77, s77, {L_WQ}")

    def wo_dma():
        if "wo" in SKIP:
            return
        for k in range(4):
            g(f"s_mov_b32 {sT2}, {k*8*1024}", f"s_add_u32 m0, s77, {k*1024}", "s_nop 0",
              f"buffer_load_dwordx4 v{vWO}, s[72:75], {sT2} offen nt lds")

    def w1_dma():
        for t in range(4 if HALF else 0, 8):
            g(f"s_mov_b32 {sT2}, {t*16*2752}", f"s_add_u32 {sT3}, s65, {t*1024}")
            dma(g, 205, SRD_A, sT2, sT3, "w12")

    W1_EARLY = opt.get("w1_early", True)

    def wo_frags(w1=False):
        if w1 and W1_EARLY and "w12" not in SKIP:
            l1, l2 = g.lab("now1"), g.lab("w1q")
            g(f"s_cmp_eq_u32 {sPHI}, 0xff", f"s_cbranch_scc1 {l1}")
            w1_dma()
            g(f"s_waitcnt vmcnt({4 if HALF else 8})", f"s_branch {l2}", f"{l1}:", "s_waitcnt vmcnt(0)", f"{l2}:")
        else:
            g("s_waitcnt vmcnt(0)")
        lds_signal(g, L_CNT + 12, 12)
        lds_wait(g, L_CNT + 12, 4, 12)
        for k in range(4):
            tr_read(g, vBW + 4 * k, vWT, k * 4096, 128)
        g("s_waitcnt lgkmcnt(0)")
    if not DEFER_WO:
        wo_dma()
    g(f"s_lshl_b32 {sT0}, {sH}, 10", f"s_add_u32 {sT0}, {sT0}, {WS_ML}",
      f"v_and_b32 v8, 1, v{vG}", "v_lshlrev_b32 v8, 9, v8", "v_and_b32 v9, 3, v0", "v_lshlrev_b32 v9, 7, v9", "v_add_u32 v8, v8, v9",
      f"s_mul_i32 {sT1}, {sTAU}, 0x00400401", f"v_mov_b32 v5, {sT1}")

    def chk_ml():
        g("v_xor_b32 v16, v14, v5", "v_sub_u32 v17, v15, v5", "v_lshrrev_b32 v18, 4, v17", "v_or_b32 v16, v16, v18", "v_cmp_ne_u32 vcc, 0, v16")
    poll(g, "p_ml", lambda: g(f"buffer_load_dwordx4 v[12:15], v8, {srd(SRD_WS)}, {sT0} offen sc1"), chk_ml)
    g("v_mov_b32 v16, v12", "s_nop 1",
      f"v_max_f32_dpp v16, v16, v16 quad_perm:[1,0,3,2] {DPPF}", "s_nop 1",
      f"v_max_f32_dpp v16, v16, v16 quad_perm:[2,3,0,1] {DPPF}",
      "v_sub_f32 v12, v12, v16", "v_exp_f32 v12, v12", "s_nop 0", "v_mul_f32 v13, v13, v12", "s_nop 1",
      f"v_add_f32_dpp v13, v13, v13 quad_perm:[1,0,3,2] {DPPF}", "s_nop 1",
      f"v_add_f32_dpp v13, v13, v13 quad_perm:[2,3,0,1] {DPPF}",
      "v_rcp_f32 v13, v13", "s_nop 0", "v_mul_f32 v12, v12, v13", "s_nop 1")
    for r in range(4):
        g(f"v_mov_b32_dpp v{vF+r}, v12 quad_perm:[{r},{r},{r},{r}] {DPPF}")
    tr_addr(g, vWT, 12, vI, vG, 7)
    g(f"s_lshl_b32 {sT0}, {sA}, 5", f"s_add_u32 {sT0}, {sT0}, {L_WQ}", f"v_add_u32 v{vWT}, {sT0}, v{vWT}")
    if not DEFER_WO:
        wo_frags()
    g(f"s_lshl_b32 s64, {sH}, 11", f"s_add_u32 s64, s64, {WS_OS}")
    if opt.get("o_coop", True):
        g(f"s_lshl_b32 {sT1}, {sA}, 6", f"s_add_u32 s64, s64, {sT1}")
    g(f"v_and_b32 v{vOG}, 7, v{vI}", f"v_lshlrev_b32 v{vOG}, 8, v{vOG}", f"v_lshlrev_b32 v7, 4, v{vG}", f"v_add_u32 v{vOG}, v{vOG}, v7",
      f"v_and_b32 v{vOR}, 7, v{vI}", f"v_lshlrev_b32 v{vOR}, 4, v{vOR}", f"v_lshlrev_b32 v9, 7, v{vG}", f"v_add_u32 v{vOR}, v{vOR}, v9",
      f"s_lshl_b32 {sT1}, {sA}, 9", f"v_add_u32 v{vOW}, {sT1}, v{vOR}",
      f"v_lshlrev_b32 v{vYP}, 6, v{vG}", f"v_lshlrev_b32 v9, 2, v{vI}", f"v_add_u32 v{vYP}, v{vYP}, v9",
      f"s_lshl_b32 s76, {sX}, 14", f"s_lshl_b32 {sT1}, {sJ}, 11", f"s_add_u32 s76, s76, {sT1}", f"s_add_u32 s76, s76, {WS_YP}",
      f"s_and_b32 {sT1}, {sR}, 3", f"s_lshl_b32 {sT1}, {sT1}, 9", f"s_add_u32 s76, s76, {sT1}", f"s_lshl_b32 {sT1}, {sA}, 7", f"s_add_u32 s76, s76, {sT1}")
    lds_wait(g, L_CNT + 28, opt.get("s3_cnt", 4), 12)
    if DEFER_WO:
        wo_dma()
        stamp(g, 5)
        wo_frags(True)
    stamp(g, 6)

    if opt.get("o_coop", True):
        g("s_mov_b32 exec_lo, 0x00ff00ff", "s_mov_b32 exec_hi, 0x00ff00ff")
        poll(g, "p_o", lambda: g(f"buffer_load_dwordx4 v[16:19], v{vOG}, {srd(SRD_WS)}, s64 offen sc1"),
             lambda: check_sentinel(g, range(16, 20), 12), sleep=opt.get("o_sleep", 0))
        g(f"ds_write_b128 v{vOW}, v[16:19] offset:{L_RED2}")
        lds_signal(g, L_CNT + 16, 12)
        lds_wait(g, L_CNT + 16, 4, 12)
        for k in range(4):
            g(f"ds_read_b128 {v(16+4*k,4)}, v{vOR} offset:{L_RED2 + k*512}")
        g("s_waitcnt lgkmcnt(0)")
    else:
        def isso():
            for k in range(4):
                g(f"buffer_load_dwordx4 {v(16+4*k,4)}, v{vOG}, {srd(SRD_WS)}, s64 offen offset:{k*64} sc1")
        poll(g, "p_o", isso, lambda: check_sentinel(g, range(16, 32), 12))
    stamp(g, 7)
    for k in range(4):
        mfma(g, 32, 16 + 4 * k, vBW + 4 * k, k == 0)
    g("s_mov_b32 exec_hi, 0", "s_nop 6",
      f"v_mul_f32 v32, v32, v{vF}", f"v_fmac_f32 v32, v33, v{vF+1}", f"v_fmac_f32 v32, v34, v{vF+2}", f"v_fmac_f32 v32, v35, v{vF+3}")
    tagify(32, 32)
    store_sel(g, "s71", f"buffer_store_dword v32, v{vYP}, {srd(SRD_WS)}, s76 offen @SC ;@yp")
    g("s_mov_b64 exec, -1")
    g(f"s_cmp_lg_u32 {sPHI}, 0xff", f"s_cbranch_scc1 {LT3}")
    g(f"s_cmp_ge_u32 {sR}, 8", "s_cbranch_scc1 L_exit", f"s_cmp_lg_u32 {sA}, 0", "s_cbranch_scc1 L_exit")
    g(f"s_lshl_b32 s66, {sX}, 14", f"s_lshl_b32 {sT1}, {sR}, 11", f"s_add_u32 s66, s66, {sT1}", f"s_add_u32 s66, s66, {WS_YP}",
      f"s_lshl_b32 s67, {sX}, 12", f"s_lshl_b32 {sT1}, {sR}, 9", f"s_add_u32 s67, s67, {sT1}", f"s_add_u32 s67, s67, {WS_YS}",
      "v_lshlrev_b32 v8, 4, v0")
    poll(g, "p_yp", lambda: g(f"buffer_load_dwordx4 v[16:19], v8, {srd(SRD_WS)}, s66 offen sc1",
                              f"buffer_load_dwordx4 v[20:23], v8, {srd(SRD_WS)}, s66 offen offset:1024 sc1"),
         lambda: check_intag(g, range(16, 24), vTAU, 12))
    stamp(g, 9)
    g("v_pk_add_f32 v[16:17], v[16:17], v[20:21]", "v_pk_add_f32 v[18:19], v[18:19], v[22:23]")
    swapreduce(g, range(16, 20), "v_add_f32", range(20, 24), "32")
    for e in range(4):
        tagify(16 + e, 16 + e)
    g("s_mov_b32 exec_hi, 0", f"buffer_store_dwordx4 v[16:19], v8, {srd(SRD_WS)}, s67 offen sc1 ;@ypub")
    stamp(g, 8)
    end(g)

    g(f"{LT3}:")
    if not (W1_EARLY and DEFER_WO):
        w1_dma()
    for t in range(8):
        g(f"s_mov_b32 {sT2}, {t*4*1024}", f"s_add_u32 {sT3}, s66, {t*1024}")
        dma(g, 206, SRD_B, sT2, sT3, "w12")
    g("s_waitcnt vmcnt(8)" if "w12" not in SKIP else "s_waitcnt vmcnt(0)")
    for tau in range(2):
        for k in range(4):
            tr_read(g, vB1 + (tau * 4 + k) * 4, vTR0 if HALF and k < 2 else vTR1, k * 2048 + tau * 32, 64)
    if not opt.get("w2late", False):
        g("s_waitcnt vmcnt(0)")
        for t in range(8):
            tr_read(g, vB2 + 4 * t, vTR2, t * 32, 256)
    g("s_waitcnt lgkmcnt(0)")
    stamp(g, 10 if opt.get("fine") else 6)

    def pk(d, a_, b_):
        g(f"v_pk_add_f32 {v(d,2)}, {v(a_,2)}, {v(b_,2)}")

    def issy():
        for G_ in range(8):
            g(f"s_mov_b32 {sT1}, {WS_YS + G_*4096}", f"buffer_load_dwordx4 {v(16+4*G_,4)}, v{vYA}, {srd(SRD_WS)}, {sT1} offen sc1")
    if opt.get("split", True):
        poll2(g, "p_y", issy, 4, lambda: intag_part(g, range(16, 32), vTAU, 12, True), lambda: intag_part(g, range(32, 48), vTAU, 12, False))
    else:
        poll(g, "p_y", issy, lambda: check_intag(g, range(16, 48), vTAU, 12))
    stamp(g, 7)
    if opt.get("probe") == "ygot":
        g("s_memrealtime s[92:93]")
    lab = g.lab("noep")
    g(f"s_or_b32 {sT0}, {sPHI}, {sA}", f"s_cmp_lg_u32 {sT0}, 0", f"s_cbranch_scc1 {lab}", "s_add_u32 s30, s30, 1",
      "v_mov_b32 v12, 0", "v_mov_b32 v13, s30", "s_mov_b64 exec, 1", f"buffer_store_dword v13, v12, {srd(SRD_WS)}, 0 offen",
      "s_mov_b64 exec, -1", f"{lab}:")
    for e in (0, 2):
        pk(16 + e, 16 + e, 20 + e); pk(24 + e, 24 + e, 28 + e); pk(32 + e, 32 + e, 36 + e); pk(40 + e, 40 + e, 44 + e)
    for e in (0, 2):
        pk(16 + e, 16 + e, 24 + e); pk(32 + e, 32 + e, 40 + e)
    for e in (0, 2):
        pk(16 + e, 16 + e, 32 + e)
    for e in (0, 2):
        g(f"v_pk_fma_f32 {v(16+e,2)}, {v(16+e,2)}, {v(vGA3+e,2)}, {v(vX3+e,2)}")
    for e in (0, 2):
        g(f"v_pk_mul_f32 {v(24+e,2)}, {v(16+e,2)}, {v(vC3+e,2)}")
    g("v_cvt_pk_bf16_f32 v24, v24, v25", "v_cvt_pk_bf16_f32 v25, v26, v27", f"ds_write_b64 v{vZA}, v[24:25]")
    for k in range(4):
        g(f"ds_read_b128 {v(28+4*k,4)}, v{vAA} offset:{k*64}")
    g(f"ds_write_b128 v{vXA}, v[16:19] offset:{L_X1}",
      "v_pk_add_f32 v[20:21], v[16:17], v[18:19]", "v_mul_f32 v49, v16, v16", "v_add_f32 v48, v20, v21",
      "v_fmac_f32 v49, v17, v17", "v_fmac_f32 v49, v18, v18", "v_fmac_f32 v49, v19, v19")
    rowreduce(g, [48, 49], "v_add_f32")
    g("s_waitcnt lgkmcnt(1)")
    for k in range(4):
        for tau in range(2):
            mfma(g, 16 + 4 * tau, 28 + 4 * k, vB1 + (tau * 4 + k) * 4, k == 0)
    if opt.get("w2late", False):
        for t in range(8):
            tr_read(g, vB2 + 4 * t, vTR2, t * 32, 256)
    swapreduce(g, [48, 49], "v_add_f32", [50, 51], "16")
    g("s_mov_b32 exec_lo, 1", "s_mov_b32 exec_hi, 1", f"ds_write_b64 v{vSW}, v[48:49] offset:{L_STAT}",
      "s_mov_b32 exec_lo, -1", "s_mov_b32 exec_hi, 0",
      f"ds_write_b128 v{vRA}, v[16:19] offset:{L_RED3}", f"ds_write_b128 v{vRA}, v[20:23] offset:{L_RED3 + 512}",
      "s_mov_b64 exec, -1", "s_waitcnt lgkmcnt(0)", "s_barrier")
    if opt.get("fine"): stamp(g, 2)
    for w in range(4):
        g(f"ds_read_b32 v{12+w}, v{vUA} offset:{L_RED3 + w*1024}", f"ds_read_b32 v{16+w}, v{vUA} offset:{L_RED3 + w*1024 + 8}",
          f"ds_read_b32 v{20+w}, v{vUA} offset:{L_RED3 + w*1024 + 256}")
    g(f"ds_read_b128 v[24:27], v{vSA} offset:{L_STAT}", f"ds_read_b128 v[28:31], v{vSA} offset:{L_STAT + 16}", "s_waitcnt lgkmcnt(0)")
    pk(24, 24, 26); pk(28, 28, 30); pk(12, 12, 14); pk(16, 16, 18); pk(20, 20, 22); pk(24, 24, 28)
    g("v_add_f32 v12, v12, v13", "v_add_f32 v16, v16, v17", "v_add_f32 v20, v20, v21")
    g(f"v_mul_f32 v24, {hex(f2u(1/512))}, v24", f"v_mul_f32 v25, {hex(f2u(1/512))}, v25",
      "v_fma_f32 v25, -v24, v24, v25", f"v_add_f32 v25, {hex(f2u(1e-5))}, v25", "v_rsq_f32 v25, v25",
      "v_fma_f32 v12, -v24, v16, v12", "v_fma_f32 v12, v12, v25, v20")
    silu(g, [12], [13])
    g("v_cvt_pk_bf16_f32 v12, v12, v12", f"ds_write_b16 v{vGW}, v12 offset:{L_ACTG}",
      f"ds_read_b128 v[16:19], v{vGR} offset:{L_ACTG}", "s_waitcnt lgkmcnt(0)")
    if opt.get("fine"): stamp(g, 3)
    for t in range(8):
        mfma(g, 128 + 4 * t, vB2 + 4 * t, 16, True)
    if opt.get("ps1", False):
        g("s_mov_b32 s60, 0xcccccccc", "s_mov_b32 s61, 0xcccccccc", "s_mov_b32 s62, 0xf0f0f0f0", "s_mov_b32 s63, 0xf0f0f0f0",
          "s_mov_b32 s78, 0xff00ff00", "s_mov_b32 s79, 0xff00ff00")
        for tp in range(4):
            for e in range(4):
                g(f"v_cndmask_b32 v{128+8*tp+e}, v{128+8*tp+e}, v{132+8*tp+e}, s[60:61]")
        for tp in range(2):
            for e in range(4):
                g(f"v_cndmask_b32 v{128+16*tp+e}, v{128+16*tp+e}, v{136+16*tp+e}, s[62:63]")
        for e in range(4):
            g(f"v_cndmask_b32 v{128+e}, v{128+e}, v{144+e}, s[78:79]")
        for e in range(4):
            tagify(128 + e, 128 + e)
        g(f"buffer_store_dwordx4 v[128:131], v{vPA}, {srd(SRD_WS)}, s68 offen sc1 ;@pspub")
    else:
        g(*EX8)
        for t in range(8):
            if t == 7:
                g("s_nop 1")
            for e in range(4):
                tagify(128 + 4 * t + e, 128 + 4 * t + e)
            g(f"buffer_store_dwordx4 {v(128+4*t,4)}, v{vPA}, {srd(SRD_WS)}, s68 offen offset:{t*128} sc1 ;@pspub")
    g("s_mov_b64 exec, -1")
    stamp(g, 8)
    g(f"s_cmp_lg_u32 {sA}, 0", "s_cbranch_scc1 L_exit", f"s_cmp_ge_u32 {sPHI}, 32", "s_cbranch_scc1 L_exit")
    g("v_lshrrev_b32 v9, 3, v0", "v_lshlrev_b32 v8, 12, v9", "v_and_b32 v10, 7, v0", "v_lshlrev_b32 v10, 4, v10", "v_add_u32 v8, v8, v10",
      "v_cmp_gt_u32 vcc, 3, v9", f"s_lshl_b32 {sT0}, {sPHI}, 7", f"s_add_u32 {sT0}, {sT0}, {WS_PS}",
      "v_cndmask_b32 v11, v10, v8, vcc", "v_cndmask_b32 v12, 0, 1.0, vcc",
      f"ds_read_b128 v[44:47], v{vFA} offset:{L_X1}", f"v_lshrrev_b32 v48, 1, v{vFA}",
      "s_mov_b32 s72, s24", "s_mov_b32 s73, s25", "s_mov_b32 s74, 2048", "s_mov_b32 s75, 0x20000")

    def issp():
        for k in range(6):
            vv = 11 if k == 5 else 8
            g(f"s_add_u32 {sT1}, {sT0}, {k*8*4096}", f"buffer_load_dwordx4 {v(16+4*k,4)}, v{vv}, {srd(SRD_WS)}, {sT1} offen sc1")
    if opt.get("split", True):
        poll2(g, "p_ps", issp, 3, lambda: intag_part(g, range(16, 28), vTAU, 13, True), lambda: intag_part(g, range(28, 40), vTAU, 13, False))
    else:
        poll(g, "p_ps", issp, lambda: check_intag(g, range(16, 40), vTAU, 13))
    stamp(g, 9)
    for e in (0, 2):
        pk(16 + e, 16 + e, 20 + e); pk(24 + e, 24 + e, 28 + e)
    for e in range(4):
        g(f"v_fma_f32 v{32+e}, v{36+e}, v12, v{32+e}")
    for e in (0, 2):
        pk(16 + e, 16 + e, 24 + e)
    for e in (0, 2):
        pk(16 + e, 16 + e, 32 + e)
    g("s_nop 0")
    for e in range(4):
        g(f"v_add_f32_dpp v{16+e}, v{16+e}, v{16+e} row_ror:8 {DPPF}")
    swapreduce(g, range(16, 20), "v_add_f32", range(20, 24), "16")
    swapreduce(g, range(16, 20), "v_add_f32", range(20, 24), "32")
    g("s_waitcnt lgkmcnt(0)")
    for e in (0, 2):
        g(f"v_pk_fma_f32 {v(16+e,2)}, {v(16+e,2)}, {v(vGB+e,2)}, {v(44+e,2)}")
    g("v_cvt_pk_bf16_f32 v16, v16, v17", "v_cvt_pk_bf16_f32 v17, v18, v19",
      "s_mov_b64 exec, 0xff", "buffer_store_dwordx2 v[16:17], v48, s[72:75], 0 offen")
    stamp(g, 10)
    dbgmax(g, 4)
    if opt.get("probe"):
        lp = g.lab("probe")
        g(f"s_cmp_lg_u32 {sPHI}, 0", "s_cbranch_scc1 L_exit", "s_memrealtime s[94:95]", "s_waitcnt lgkmcnt(0)")
        if opt["probe"] == "total":
            g("s_mov_b32 s92, s94")
        if opt["probe"] == "zero":
            g("s_mov_b32 s92, s90")
        if opt["probe"] == "loc":
            g("s_mul_i32 s92, s71, 800", "s_add_u32 s92, s92, s90")
        g("s_sub_u32 s92, s92, s90", "s_min_u32 s92, s92, 10000", "s_add_u32 s92, s92, s94",
          f"{lp}:", "s_memrealtime s[96:97]", "s_waitcnt lgkmcnt(0)", "s_sub_u32 s96, s96, s92", "s_cmp_lt_i32 s96, 0", f"s_cbranch_scc1 {lp}")
    end(g)


def generate(opt=None):
    global STAMPS, SKIP, POLL_LIMIT, DBGT, NL, LDS_SIZE
    opt = dict(opt or {})
    DBGT = opt.get("dbgt", False)
    POLL_LIMIT = opt.get("poll_limit", 400000)
    SKIP = set(opt.get("skip", ()))
    STAMPS = opt.get("stamps", False)
    NL = opt.get("NL", 24)
    LDS_SIZE = L_KB + 4 * NL * 1024
    g = G()
    hdr = open("cdna_kernels/" + NAME + ".s.ref").read().split("\n")
    for line in hdr:
        if line.startswith(";") and "@launch" not in line and "Override launch" not in line and "grid=ceil" not in line:
            g(line)
        elif not line.startswith(";"):
            break
    g(f"; @launch grid=(256,1,1) block=(512,1,1) lds={LDS_SIZE}")
    g('.amdgcn_target "amdgcn-amd-amdhsa--gfx950"', ".text", f".globl {NAME}_kernel", ".p2align 8",
      f".type {NAME}_kernel,@function", f"{NAME}_kernel:")
    stamp(g, 0)
    gen_entry(g, opt)
    if STAMPS:
        for k in range(1, NSTAMP):
            g(f"s_mov_b32 s{80+2*k}, 0")
    dbgmax(g, 0, True)
    dbgmax(g, 1)
    if opt.get("st_ka"):
        stamp(g, 8)
    g("s_cmp_ge_u32 s3, 4", "s_cbranch_scc1 L_aux")
    gen_stream(g, opt)
    g("L_aux:")
    if 'aux' in SKIP:
        g("s_endpgm")
    gen_aux(g, opt)
    g("L_exit:")
    end(g)
    g("L_end:", "s_endpgm")
    g('.section .rodata,"a"', ".p2align 6", f".amdhsa_kernel {NAME}_kernel",
      "  .amdhsa_next_free_vgpr 256", "  .amdhsa_next_free_sgpr 102", "  .amdhsa_accum_offset 256",
      "  .amdhsa_group_segment_fixed_size 0", "  .amdhsa_kernarg_size 104", "  .amdhsa_user_sgpr_count 2",
      "  .amdhsa_user_sgpr_kernarg_segment_ptr 1", "  .amdhsa_system_sgpr_workgroup_id_x 1",
      "  .amdhsa_float_denorm_mode_32 3", ".end_amdhsa_kernel")
    txt = g.text()
    drop = set(opt.get("drop", ()))
    kept = []
    for line in txt.split("\n"):
        if ";@" in line:
            nm = line.split(";@")[1].strip()
            line = line.split(";@")[0].rstrip()
            if nm in drop:
                continue
        kept.append(line)
    return "\n".join(kept)


if __name__ == "__main__":
    out = sys.argv[1] if len(sys.argv) > 1 else "cdna_kernels/" + NAME + ".s"
    opt = eval(sys.argv[2]) if len(sys.argv) > 2 else {}
    open(out, "w").write(generate(opt))
    print("wrote", out)
```

```python
import struct
import sys

NAME = "adaLN_cond__gqa_block_cached__dense_activation_silu__decode"

WS_EPOCH = 0x0
WS_MODP = 0x1000
WS_MODF = 0x19000
WS_ML = 0x20000
WS_QP = 0x30000
WS_OS = 0x70000
WS_XL = 0x28000
WS_YS = 0x80000
WS_PS = 0x98000
WS_YP = 0xD0000
WS_STAMP = 0x100000
WS_SIZE = 0x120000

L_Q = 0x0000
L_MLW = 0x0100
L_CNT = 0x0180
L_RED = 0x0200
L_RED2 = 0x0A00
L_RED3 = 0x1200
L_STAT = 0x2200
L_ACT1 = 0x2300
L_ACT2 = 0x2500
L_ACTG = 0x2600
L_ACT3 = 0x2800
L_X1 = 0x4000
L_WMOD = 0x5000
L_WQ = 0x9000
L_KB = 0xD000
NL = 24
LDS_SIZE = L_KB + 4 * NL * 1024

sX, sR, sH, sJ, sB, sS = "s48", "s49", "s50", "s51", "s52", "s53"
sT0, sT1, sT2, sT3 = "s54", "s55", "s56", "s57"
sA = "s58"
sPHI = "s59"
sM1, sM0 = "s[60:61]", "s[62:63]"
sCNT = "s70"
sTAU = "s31"
SRD_A, SRD_B, SRD_WS = 32, 36, 40
POLL_LIMIT = 400000
TAGMASK = 0x3FF

LOG2E = 1.4426950408889634
CS = (128 ** -0.5) * LOG2E
STAMPS = False
NSTAMP = 11
SKIP = set()


def f2u(x):
    return struct.unpack("<I", struct.pack("<f", x))[0]


class G:
    def __init__(self):
        self.L = []
        self.n = 0

    def __call__(self, *txt):
        for t in txt:
            self.L.extend(t.split("\n"))

    def lab(self, base):
        self.n += 1
        return f"L_{base}_{self.n}"

    def text(self):
        return "\n".join(self.L) + "\n"


def v(a, n=1):
    return f"v{a}" if n == 1 else f"v[{a}:{a+n-1}]"


def srd(n):
    return f"s[{n}:{n+3}]"


def make_srd(g, d, plo, off, total):
    if isinstance(off, int):
        assert off == 0
        g(f"s_mov_b32 s{d}, s{plo}", f"s_mov_b32 s{d+1}, s{plo+1}", f"s_mov_b32 s{d+2}, {total}")
    else:
        g(f"s_add_u32 s{d}, s{plo}, {off}", f"s_addc_u32 s{d+1}, s{plo+1}, 0",
          f"s_sub_u32 s{d+2}, {total}, {off}")
    g(f"s_mov_b32 s{d+3}, 0x20000")


DPPF = "row_mask:0xf bank_mask:0xf"


def rowreduce(g, regs, op):
    for ctl in ("row_ror:8", "row_ror:4", "row_ror:2", "row_ror:1"):
        g("s_nop 1" if len(regs) < 3 else "s_nop 0")
        for r in regs:
            g(f"{op}_dpp v{r}, v{r}, v{r} {ctl} {DPPF}")


def swapreduce(g, regs, op, tmps, which):
    sw = f"v_permlane{which}_swap_b32"
    g("s_nop 0")
    for r, t in zip(regs, tmps):
        g(f"v_mov_b32 v{t}, v{r}")
    g("s_nop 1")
    for r, t in zip(regs, tmps):
        g(f"{sw} v{r}, v{t}")
    g("s_nop 1")
    for r, t in zip(regs, tmps):
        g(f"{op} v{r}, v{r}, v{t}")


def allreduce(g, regs, op, tmps):
    rowreduce(g, regs, op)
    swapreduce(g, regs, op, tmps, "16")
    swapreduce(g, regs, op, tmps, "32")


sDRY = "s71"


def nodry(g):
    lab = g.lab("nd")
    g(f"s_cmp_lg_u32 {sDRY}, 0", f"s_cbranch_scc1 {lab}")
    return lab


def poll(g, name, issue, check, pre=None, dry=False, sleep=0):
    g(f"s_mov_b32 {sCNT}, {sDRY if dry else 0}")
    stages = ([pre] if pre else []) + [(issue, check)]
    dn = g.lab(name + "_done")
    for iss, chk in stages:
        lp = g.lab(name)
        g(f"{lp}:")
        if sleep:
            g(f"s_sleep {sleep}")
        i0 = len(g.L)
        iss()
        for i in range(i0, len(g.L)):
            if g.L[i].startswith("buffer_load"):
                g.L[i] += f" ;@ld_{name}"
        g("s_waitcnt vmcnt(0)")
        chk()
        g(f"s_add_u32 {sCNT}, {sCNT}, 1", f"s_cmp_gt_u32 {sCNT}, {POLL_LIMIT}",
          f"s_cbranch_scc1 {dn}", f"s_cbranch_vccnz {lp}")
    g(f"{dn}:")


def intag_part(g, regs, vtau, tmp, first, last=None):
    regs = list(regs)
    last = (not first) if last is None else last
    for r in regs:
        g(f"v_xor_b32 v{r}, v{r}, v{vtau}")
    if first:
        g(f"v_or_b32 v{tmp}, v{regs[0]}, v{regs[1]}")
        regs = regs[2:]
    while len(regs) >= 2:
        g(f"v_or3_b32 v{tmp}, v{tmp}, v{regs[0]}, v{regs[1]}")
        regs = regs[2:]
    if regs:
        g(f"v_or_b32 v{tmp}, v{tmp}, v{regs[0]}")
    if last:
        g(f"v_and_b32 v{tmp}, {TAGMASK}, v{tmp}", f"v_cmp_ne_u32 vcc, 0, v{tmp}")


def poll2(g, name, issue, nlate, check1, check2):
    lp, dn = g.lab(name), g.lab(name + "_done")
    g(f"s_mov_b32 {sCNT}, 0", f"{lp}:")
    i0 = len(g.L)
    issue()
    for i in range(i0, len(g.L)):
        if g.L[i].startswith("buffer_load"):
            g.L[i] += f" ;@ld_{name}"
    g(f"s_waitcnt vmcnt({nlate})")
    check1()
    g("s_waitcnt vmcnt(0)")
    check2()
    g(f"s_add_u32 {sCNT}, {sCNT}, 1", f"s_cmp_gt_u32 {sCNT}, {POLL_LIMIT}", f"s_cbranch_scc1 {dn}", f"s_cbranch_vccnz {lp}", f"{dn}:")


def check_intag(g, regs, vtau, tmp):
    intag_part(g, regs, vtau, tmp, True, True)


def check_sentinel(g, regs, tmp):
    regs = list(regs)
    g(f"v_max_u32 v{tmp}, v{regs[0]}, v{regs[1]}")
    rest = regs[2:]
    while len(rest) >= 2:
        g(f"v_max3_u32 v{tmp}, v{tmp}, v{rest[0]}, v{rest[1]}")
        rest = rest[2:]
    if rest:
        g(f"v_max_u32 v{tmp}, v{tmp}, v{rest[0]}")
    g(f"v_cmp_eq_u32 vcc, -1, v{tmp}")


def silu(g, xs, ts):
    for x, t in zip(xs, ts):
        g(f"v_mul_f32 v{t}, {hex(f2u(-LOG2E))}, v{x}")
    for t in ts:
        g(f"v_exp_f32 v{t}, v{t}")
    g("s_nop 0")
    for t in ts:
        g(f"v_add_f32 v{t}, 1.0, v{t}")
    for t in ts:
        g(f"v_rcp_f32 v{t}, v{t}")
    g("s_nop 0")
    for x, t in zip(xs, ts):
        g(f"v_mul_f32 v{x}, v{x}, v{t}")


def dma(g, voff, srdn, soff, lds_addr, what="", imm=0):
    if what in SKIP:
        return
    g(f"s_mov_b32 m0, {lds_addr}", "s_nop 0")
    g(f"buffer_load_dwordx4 v{voff}, {srd(srdn)}, {soff} offen nt lds")


def lds_signal(g, off, vtmp):
    g("s_mov_b64 exec, 1", f"v_mov_b32 v{vtmp}, 0", f"v_mov_b32 v{vtmp+1}, 1", f"ds_add_u32 v{vtmp}, v{vtmp+1} offset:{off}", "s_mov_b64 exec, -1")


def lds_wait(g, off, target, vtmp):
    lp, dn = g.lab("lw"), g.lab("lwd")
    g(f"s_mov_b32 {sCNT}, 0", f"v_mov_b32 v{vtmp}, 0", f"{lp}:", f"ds_read_b32 v{vtmp+1}, v{vtmp} offset:{off}", "s_waitcnt lgkmcnt(0)",
      f"v_readfirstlane_b32 s47, v{vtmp+1}", f"s_add_u32 {sCNT}, {sCNT}, 1", f"s_cmp_gt_u32 {sCNT}, {POLL_LIMIT * 4 + 4}", f"s_cbranch_scc1 {dn}",
      f"s_cmp_lt_u32 s47, {target}", f"s_cbranch_scc1 {lp}", f"{dn}:")


def store_sel(g, sflag, *instrs):
    l1, l2 = g.lab("wt"), g.lab("wte")
    g(f"s_cmp_eq_u32 {sflag}, 0", f"s_cbranch_scc1 {l1}")
    for i in instrs:
        g(i.replace(" @SC", ""))
    g(f"s_branch {l2}", f"{l1}:")
    for i in instrs:
        g(i.replace(" @SC", " sc1"))
    g(f"{l2}:")


def stamp(g, k):
    if STAMPS:
        g(f"s_memrealtime s[{80+2*k}:{81+2*k}]")


DBGT = False


def dbgmax(g, slot, invert=False):
    if not DBGT:
        return
    lab = g.lab("dbg")
    if slot < 4:
        g("s_and_b32 s74, s2, 15", "s_or_b32 s74, s74, s3", "s_cmp_lg_u32 s74, 0", f"s_cbranch_scc1 {lab}")
    g("s_memrealtime s[74:75]", "s_waitcnt lgkmcnt(0)")
    if invert:
        g("s_not_b32 s74, s74")
    g("s_mov_b64 s[76:77], exec", "s_mov_b64 exec, 1", "v_mov_b32 v252, s74", f"v_mov_b32 v253, {slot*4 + 32}",
      "global_atomic_umax v253, v252, s[26:27]", "s_mov_b64 exec, s[76:77]", f"{lab}:")


def end(g):
    if STAMPS:
        g("s_mov_b64 exec, -1", "s_waitcnt lgkmcnt(0)")
        for k in range(NSTAMP):
            g(f"v_writelane_b32 v250, s{80+2*k}, {k}")
        g("s_lshl_b32 s72, s2, 3", "s_add_u32 s72, s72, s3", "s_lshl_b32 s72, s72, 6", f"s_add_u32 s72, s72, {WS_STAMP}",
          "s_mov_b32 s76, s28", "s_mov_b32 s77, s29", f"s_mov_b32 s78, {WS_SIZE}", "s_mov_b32 s79, 0x20000",
          "v_lshlrev_b32 v251, 2, v0", f"s_mov_b64 exec, {hex((1 << NSTAMP) - 1)}",
          "buffer_store_dword v250, v251, s[76:79], s72 offen")
    g("s_endpgm")


def tr_addr(g, dst, tmp, vI, vG, rowshift, base=None):
    g(f"v_lshlrev_b32 v{dst}, 3, v{vG}", f"v_lshrrev_b32 v{tmp}, 2, v{vI}", f"v_add_u32 v{dst}, v{dst}, v{tmp}",
      f"v_lshlrev_b32 v{dst}, {rowshift}, v{dst}", f"v_and_b32 v{tmp}, 3, v{vI}", f"v_lshlrev_b32 v{tmp}, 3, v{tmp}",
      f"v_add_u32 v{dst}, v{dst}, v{tmp}")
    if base is not None:
        g(f"v_add_u32 v{dst}, {base}, v{dst}")


def tr_read(g, reg, vaddr, off, rowbytes):
    g(f"ds_read_b64_tr_b16 {v(reg,2)}, v{vaddr} offset:{off}", f"ds_read_b64_tr_b16 {v(reg+2,2)}, v{vaddr} offset:{off + 4*rowbytes}")


def mfma(g, d, a, b, first):
    g(f"v_mfma_f32_16x16x32_bf16 {v(d,4)}, {v(a,4)}, {v(b,4)}, {'0' if first else v(d,4)}")


def backoff(g, n):
    while n > 0:
        g(f"s_sleep {min(n, 127)}")
        n -= min(n, 127)


def ids(g):
    g(f"s_and_b32 {sT0}, {sR}, 3", f"s_lshl_b32 {sH}, {sX}, 2", f"s_add_u32 {sH}, {sH}, {sT0}",
      f"s_lshr_b32 {sJ}, {sR}, 2", f"s_lshr_b32 {sB}, {sJ}, 2", f"s_and_b32 {sS}, {sJ}, 3")


def gen_entry(g, opt):
    if opt.get("probe"):
        g("s_memrealtime s[90:91]")
    g("s_cmp_ge_u32 s2, 0x100", "s_cbranch_scc1 L_end",
      "s_load_dwordx16 s[4:19], s[0:1], 0", "s_load_dwordx8 s[20:27], s[0:1], 64", "s_load_dwordx2 s[28:29], s[0:1], 96",
      "v_lshrrev_b32 v1, 6, v0", "v_and_b32 v0, 63, v0", f"s_and_b32 {sX}, s2, 7", "v_readfirstlane_b32 s3, v1", f"s_lshr_b32 {sR}, s2, 3")
    g(f"s_lshr_b32 s65, {sR}, 4", "s_lshl_b32 s65, s65, 3", f"s_add_u32 s65, s65, {sX}", "s_lshl_b32 s65, s65, 2",
      f"s_and_b32 {sT1}, {sR}, 3", f"s_add_u32 s65, s65, {sT1}", "s_lshl_b32 s65, s65, 2", f"s_bfe_u32 {sT1}, {sR}, 0x20002",
      f"s_add_u32 s65, s65, {sT1}", "s_lshl_b32 s65, s65, 18",
      f"s_lshl_b32 {sT1}, s3, 12", "v_lshlrev_b32 v46, 4, v0", f"s_mul_i32 s64, s3, {NL*1024}", f"v_add_u32 v1, {sT1}, v46",
      f"s_add_u32 s64, s64, {L_KB}", "s_waitcnt lgkmcnt(0)")


def gen_stream(g, opt):
    W = opt.get("W", 7)
    NS = 48
    vOFF, vQ, vM, vD = 1, 2, 6, 10
    vB = [14, 18]
    vS, vT, vX, vSL, vLDS = 22, 26, 42, 48, 46
    NREG_K = 64 - NL
    URG = opt.get("urgent_r", 8)
    WV = opt.get("WV", 6)
    W0 = opt.get("W0", W)
    I_WQ, I_LATE = opt.get("i_wq", 14), opt.get("i_late", 40)

    order = [("K", n) for n in range(NREG_K, 64)] + [("K", n) for n in range(NREG_K)] + [("V", n) for n in range(64)]

    def slot_of(kind, n):
        return vSL + 4 * ((n if kind == "K" else NREG_K + n) % NS)

    def wmod_dma():
        for k in range(4):
            g(f"s_mov_b32 s68, {k * 8 * 6144}", f"s_add_u32 m0, s71, {k*1024}", "s_nop 0")
            if 'p1' not in SKIP:
                g("buffer_load_dwordx4 v3, s[76:79], s68 offen nt lds")

    def wq_dma():
        for k in range(4):
            g(f"s_mov_b32 s68, {k * 4 * 8192}", f"s_add_u32 m0, s67, {k*1024}", "s_nop 0")
            if 'wq' not in SKIP:
                g("buffer_load_dwordx4 v2, s[72:75], s68 offen nt lds")

    g("; ---- stream waves: K backlog (LDS first, then register slots), weight blocks for the helpers")
    g(f"s_add_u32 s{SRD_A}, s6, s65", f"s_addc_u32 s{SRD_A+1}, s7, 0", f"s_mov_b32 s{SRD_A+2}, 0x40000", f"s_mov_b32 s{SRD_A+3}, 0x20000")
    FIRST = opt.get("wmod_first", False)

    def wmod_setup():
        ids(g)
        g("v_add_u32 v46, s64, v46")
        g(f"s_lshr_b32 s68, {sR}, 2", f"s_and_b32 s69, {sR}, 3", "s_lshl_b32 s69, s69, 2", "s_add_u32 s69, s69, s3",
          f"s_mul_i32 s69, s69, {32*6144}", "s_lshl_b32 s68, s68, 10", "s_add_u32 s69, s69, s68", f"s_lshl_b32 s68, {sX}, 7", "s_add_u32 s69, s69, s68",
          f"s_cmp_ge_u32 {sR}, 24", "s_cselect_b32 s69, 0, s69",
          "v_lshrrev_b32 v3, 3, v0", "v_mul_u32_u24 v3, 0x1800, v3", "v_and_b32 v4, 7, v0", "v_lshlrev_b32 v4, 4, v4", "v_add_u32 v3, v3, v4",
          "s_lshl_b32 s71, s3, 12", f"s_add_u32 s71, s71, {L_WMOD}")
        make_srd(g, 76, 22, "s69", 512 * 3072 * 2)
        Lnp = g.lab("nourg")
        g(f"s_cmp_ge_u32 {sR}, {URG}", f"s_cbranch_scc1 {Lnp}")
        wmod_dma()
        g(f"{Lnp}:")
    if FIRST:
        wmod_setup()

    if opt.get("rot") == 1:
        g(f"s_add_u32 s46, {sR}, {sX}", "s_mul_i32 s46, s46, 5")
    elif opt.get("rot") == 2:
        g(f"s_mul_i32 s46, {sX}, 2", f"s_lshr_b32 s45, {sR}, 4", "s_add_u32 s46, s46, s45")
    elif opt.get("rot") == 3:
        g(f"s_mov_b32 s46, {sR}")
    state = {"K": None, "V": None, "i": 0}
    if STAMPS:
        g("s_memtime s[98:99]")

    def issue_next():
        i = state["i"]
        kind, n = order[i]
        rho, t = n >> 2, n & 3
        sreg, sr = (sT2, SRD_A) if kind == "K" else (sT3, SRD_B)
        if i >= W0:
            g(f"s_waitcnt vmcnt({(WV if i >= NL + NS else W) - 1})")
        ROT = opt.get("rot")

        def set_soff(extra):
            if ROT:
                g(f"s_add_u32 {sreg}, s46, {rho}", f"s_and_b32 {sreg}, {sreg}, 15", f"s_lshl_b32 {sreg}, {sreg}, 14")
                if extra:
                    g(f"s_add_u32 {sreg}, {sreg}, {extra}")
            else:
                g(f"s_mov_b32 {sreg}, {rho * 16384 + extra}")
        if kind == "K" and n >= NREG_K:
            set_soff(t * 1024)
            g(f"s_add_u32 m0, s64, {(n - NREG_K) * 1024}")
            state[kind] = None
            g("s_nop 0", f"buffer_load_dwordx4 v{vOFF}, {srd(sr)}, {sreg} offen nt lds")
        else:
            if state[kind] != rho:
                set_soff(0)
                state[kind] = rho
            g(f"buffer_load_dwordx4 {v(slot_of(kind, n), 4)}, v{vOFF}, {srd(sr)}, {sreg} offen offset:{t*1024} nt")
        state["i"] = i + 1

    def issued_after(kind, n):
        return state["i"] - 1 - order.index((kind, n))

    NBACK = NL + NS
    for i in range(NBACK):
        issue_next()
        if i == W0 - 1:
            if not FIRST:
                wmod_setup()
            g(f"s_add_u32 s{SRD_B}, s8, s65", f"s_addc_u32 s{SRD_B+1}, s9, 0", f"s_mov_b32 s{SRD_B+2}, 0x40000", f"s_mov_b32 s{SRD_B+3}, 0x20000")
            g(f"s_lshl_b32 s66, {sJ}, 19", f"s_lshl_b32 s67, {sH}, 8", "s_add_u32 s66, s66, s67", "s_lshl_b32 s67, s3, 17", "s_add_u32 s66, s66, s67")
            make_srd(g, 72, 10, "s66", 512 * 4096 * 2)
            g("v_lshrrev_b32 v2, 4, v0", "v_lshlrev_b32 v2, 13, v2", "v_and_b32 v4, 15, v0", "v_lshlrev_b32 v4, 4, v4", "v_add_u32 v2, v2, v4",
              "s_lshl_b32 s67, s3, 12", f"s_add_u32 s67, s67, {L_WQ}")
            g("s_barrier")
        if i == W0 and opt.get("st_ka"):
            stamp(g, 5)
        if i == (W0 if FIRST else W0 - 1 + W):
            lab = g.lab("sigm")
            g(f"s_cmp_ge_u32 {sR}, {URG}", f"s_cbranch_scc1 {lab}")
            lds_signal(g, L_CNT + 4, 4)
            g(f"{lab}:")
        if i == I_WQ:
            wq_dma()
        if i == I_WQ + W:
            lds_signal(g, L_CNT + 8, 4)
        if opt.get("i_q", 48) and i == opt.get("i_q", 48):
            lds_signal(g, L_CNT + 32, 4)
        if i == I_LATE:
            lab = g.lab("late")
            g(f"s_cmp_lt_u32 {sR}, {URG}", f"s_cbranch_scc1 {lab}", f"s_cmp_ge_u32 {sR}, 24", f"s_cbranch_scc1 {lab}")
            wmod_dma()
            g(f"{lab}:")
        if i == I_LATE + W:
            lab = g.lab("sigl")
            g(f"s_cmp_lt_u32 {sR}, {URG}", f"s_cbranch_scc1 {lab}")
            lds_signal(g, L_CNT + 4, 4)
            g(f"{lab}:")
    g(f"v_and_b32 v{vX}, 15, v0", f"v_lshrrev_b32 v{vX+1}, 1, v{vX}", f"v_and_b32 v{vX+2}, 1, v{vX}",
      f"v_mov_b32 v{vX+3}, 0xffff", f"v_mov_b32 v{vT}, 0xffff0000",
      f"v_cmp_eq_u32 vcc, 1, v{vX+2}", "s_nop 1", f"v_cndmask_b32 v{vX+3}, v{vX+3}, v{vT}, vcc")
    for r in range(4):
        g(f"v_cmp_eq_u32 vcc, {r}, v{vX+1}", "s_nop 1", f"v_cndmask_b32 v{vM+r}, 0, v{vX+3}, vcc")
    g("s_mov_b32 s60, 0xcccccccc", "s_mov_b32 s61, 0xcccccccc", "s_mov_b32 s62, 0xaaaaaaaa", "s_mov_b32 s63, 0xaaaaaaaa")
    for r in range(4):
        g(f"v_mov_b32 v{vD+r}, 0")
    g(f"v_lshlrev_b32 v{vX}, 4, v{vX}")
    stamp(g, 1)
    g("s_barrier")
    stamp(g, 2)
    dbgmax(g, 2)
    g(f"ds_read_b128 {v(vQ,4)}, v{vX} offset:{L_Q}", "s_waitcnt lgkmcnt(0)")

    def kreg(n):
        if n < NREG_K:
            return slot_of("K", n)
        return vSL + 4 * (16 + (n & 15))

    def dots(ns):
        for r in range(4):
            for n in ns:
                t = vT + (n & 15)
                c = "0" if r == 0 else f"v{t}"
                g(f"v_dot2_f32_bf16 v{t}, v{kreg(n)+r}, v{vQ+r}, {c}")

    def tree(gam):
        g("s_nop 2")
        for n in range(8):
            g(f"v_add_f32_dpp v{vT+n}, v{vT+n}, v{vT+n} row_ror:8 row_mask:0xf bank_mask:0x3")
            g(f"v_add_f32_dpp v{vT+n}, v{vT+n+8}, v{vT+n+8} row_ror:8 row_mask:0xf bank_mask:0xc")
        for n in range(4):
            g(f"v_add_f32_dpp v{vT+n}, v{vT+n}, v{vT+n} row_shl:4 row_mask:0xf bank_mask:0x5")
            g(f"v_add_f32_dpp v{vT+n}, v{vT+n+4}, v{vT+n+4} row_shr:4 row_mask:0xf bank_mask:0xa")
        g("s_nop 0")
        for n in range(4):
            g(f"v_add_f32_dpp v{vT+n}, v{vT+n}, v{vT+n} quad_perm:[2,3,0,1] {DPPF}")
        g(f"v_cndmask_b32 v{vT}, v{vT}, v{vT+2}, {sM1}", f"v_cndmask_b32 v{vT+1}, v{vT+1}, v{vT+3}, {sM1}", "s_nop 1")
        for n in range(2):
            g(f"v_add_f32_dpp v{vT+n}, v{vT+n}, v{vT+n} quad_perm:[1,0,3,2] {DPPF}")
        g(f"v_cndmask_b32 v{vS+gam}, v{vT}, v{vT+1}, {sM0}")

    freed = 0

    def can_issue():
        i = state["i"]
        if i >= len(order):
            return False
        kind, n = order[i]
        return n < NS - NREG_K or (NREG_K + n) % NS < freed

    every = opt.get("burst_every", 2)
    qi = 0
    for gam in range(4):
        ns_all = list(range(16 * gam, 16 * gam + 16))
        for n in ns_all:
            if n >= NREG_K:
                g(f"ds_read_b128 {v(kreg(n),4)}, v{vLDS} offset:{(n - NREG_K) * 1024}")
        for q4 in range(4):
            ns = ns_all[4 * q4: 4 * q4 + 4]
            regn = [n for n in ns if n < NREG_K]
            if regn:
                g(f"s_waitcnt vmcnt({min(63, issued_after('K', regn[-1]))})")
            if any(n >= NREG_K for n in ns):
                g("s_waitcnt lgkmcnt(0)")
            if 'qk' not in SKIP:
                dots(ns)
            if regn:
                freed = min(regn[-1] + 1, 16)
            qi += 1
            if qi % every == 0 and can_issue():
                issue_next()
        if 'qk' not in SKIP:
            tree(gam)
    freed = NS
    stamp(g, 3)
    for _ in range(opt.get("sm_issue0", 0)):
        issue_next()
    g(f"v_max3_f32 v{vX}, v{vS}, v{vS+1}, v{vS+2}", f"v_max_f32 v{vX}, v{vX}, v{vS+3}")
    allreduce(g, [vX], "v_max_f32", [vX + 1])
    g(f"v_mul_f32 v{vX}, {hex(f2u(CS))}, v{vX}", f"s_mov_b32 {sT0}, {hex(f2u(CS))}")
    issue_next()
    for r in range(4):
        g(f"v_fma_f32 v{vS+r}, v{vS+r}, {sT0}, -v{vX}")
    for r in range(4):
        g(f"v_exp_f32 v{vS+r}, v{vS+r}")
    g("s_nop 0")
    g(f"v_add_f32 v{vX+1}, v{vS}, v{vS+1}", f"v_add_f32 v{vX+2}, v{vS+2}, v{vS+3}", f"v_add_f32 v{vX+1}, v{vX+1}, v{vX+2}")
    allreduce(g, [vX + 1], "v_add_f32", [vX + 2])
    g(f"s_lshl_b32 {sT0}, s3, 3", f"v_mov_b32 v{vX+2}, {sT0}", "s_mov_b64 exec, 1",
      f"ds_write_b64 v{vX+2}, {v(vX,2)} offset:{L_MLW}", "s_mov_b64 exec, -1", "s_waitcnt lgkmcnt(0)")
    issue_next()
    g("s_barrier")
    stamp(g, 4)
    g(f"v_mov_b32 v{vX+1}, 0", f"ds_read_b128 {v(vT,4)}, v{vX+1} offset:{L_MLW}",
      f"ds_read_b128 {v(vT+4,4)}, v{vX+1} offset:{L_MLW+16}", "s_waitcnt lgkmcnt(0)",
      f"v_max3_f32 v{vX+1}, v{vT}, v{vT+2}, v{vT+4}", f"v_max_f32 v{vX+1}, v{vX+1}, v{vT+6}",
      f"v_sub_f32 v{vX}, v{vX}, v{vX+1}", f"v_exp_f32 v{vX}, v{vX}", "s_nop 0")
    for r in range(4):
        g(f"v_mul_f32 v{vS+r}, v{vS+r}, v{vX}")
    for r in range(4):
        g(f"v_cvt_pk_bf16_f32 v{vS+r}, v{vS+r}, v{vS+r}")
    vRA, vOA, vOB = vT + 8, vT + 9, vT + 10
    g(f"v_lshrrev_b32 v{vRA}, 4, v0", f"v_lshlrev_b32 v{vRA}, 7, v{vRA}", f"v_and_b32 v{vX+1}, 15, v0",
      f"v_lshlrev_b32 v{vX+1}, 2, v{vX+1}", f"v_add_u32 v{vRA}, v{vRA}, v{vX+1}", f"s_lshl_b32 s66, s3, 9", f"v_add_u32 v{vRA}, s66, v{vRA}",
      f"v_lshlrev_b32 v{vOA}, 5, v0", f"v_lshlrev_b32 v{vOB}, 4, v0",
      f"s_lshl_b32 s66, {sH}, 3", f"s_add_u32 s66, s66, {sJ}", "s_lshl_b32 s66, s66, 8", f"s_add_u32 s66, s66, {WS_OS}",
      f"v_mov_b32 v{vX+1}, 0", f"ds_read_b32 v{vX+1}, v{vX+1} offset:{L_CNT + 20}", "s_waitcnt lgkmcnt(0)", f"v_readfirstlane_b32 s67, v{vX+1}")
    make_srd(g, SRD_WS, 28, 0, WS_SIZE)

    def pv(n):
        if 'pv' in SKIP:
            return
        B = vB[n & 1]
        for r in range(4):
            g(f"v_and_b32_dpp v{B+r}, v{vS+(n>>4)}, v{vM+r} row_newbcast:{n&15} {DPPF}")
        g("s_nop 1")
        mfma(g, vD, slot_of("V", n), B, False)

    nb2b = opt.get("b2b_at", 24)
    nb3 = opt.get("b3_at", 64 - WV)
    for n in range(64):
        pos = order.index(("V", n))
        while state["i"] < len(order) and state["i"] <= pos + WV - 1:
            issue_next()
        if n == nb2b:
            if not opt.get("st_ka"):
                stamp(g, 8)
            lds_signal(g, L_CNT + 24, vX + 1)
        if n == nb3:
            if not opt.get("st_ka"):
                stamp(g, 5)
            lds_signal(g, L_CNT + 28, vX + 1)
        g(f"s_waitcnt vmcnt({min(63, issued_after('V', n))})")
        pv(n)
        cu = opt.get("catchup", 5)
        if n % cu == cu - 1 and state["i"] < len(order) and state["i"] > pos + WV:
            issue_next()
    stamp(g, 6)
    dbgmax(g, 3)
    Lno = g.lab("notlast")
    g(f"v_mov_b32 v{vT}, 0", f"v_mov_b32 v{vT+1}, 1", "s_mov_b32 exec_lo, 0x00ff00ff", "s_mov_b32 exec_hi, 0x00ff00ff", "s_nop 4")
    for r in range(4):
        g(f"ds_write_b32 v{vRA}, v{vD+r} offset:{L_RED + r*32}")
    g("s_mov_b64 exec, 1", f"ds_add_rtn_u32 v{vT+1}, v{vT}, v{vT+1} offset:{L_CNT}", "s_waitcnt lgkmcnt(0)",
      f"v_readfirstlane_b32 {sT2}, v{vT+1}", "s_mov_b64 exec, 0xffff", f"s_cmp_lg_u32 {sT2}, 3", f"s_cbranch_scc1 {Lno}")
    R = vSL
    for w in range(4):
        g(f"ds_read_b128 {v(R+8*w,4)}, v{vOA} offset:{L_RED + w*512}", f"ds_read_b128 {v(R+4+8*w,4)}, v{vOA} offset:{L_RED + w*512 + 16}")
    g("s_waitcnt lgkmcnt(4)")
    for e in range(0, 8, 2):
        g(f"v_pk_add_f32 {v(R+e,2)}, {v(R+e,2)}, {v(R+8+e,2)}")
    g("s_waitcnt lgkmcnt(0)")
    for e in range(0, 8, 2):
        g(f"v_pk_add_f32 {v(R+16+e,2)}, {v(R+16+e,2)}, {v(R+24+e,2)}")
    for e in range(0, 8, 2):
        g(f"v_pk_add_f32 {v(R+e,2)}, {v(R+e,2)}, {v(R+16+e,2)}")
    for r in range(4):
        g(f"v_cvt_pk_bf16_f32 v{R+r}, v{R+2*r}, v{R+2*r+1}")
    store_sel(g, "s67", f"buffer_store_dwordx4 {v(R,4)}, v{vOB}, {srd(SRD_WS)}, s66 offen @SC ;@opub")
    stamp(g, 7)
    g(f"{Lno}:")
    if STAMPS:
        g("s_memtime s[100:101]")
    end(g)


def gen_aux(g, opt):
    vTAU, vI, vG, vMSK = 1, 2, 3, 4
    EX8 = ("s_mov_b32 exec_lo, 0x00030003", "s_mov_b32 exec_hi, 0x00030003")
    SPROT = False

    def tagify(dst, src, rnd=False):
        if rnd:
            g(f"v_add_u32 v{dst}, 0x200, v{src}")
            src = dst
        g(f"v_and_or_b32 v{dst}, v{src}, v{vMSK}, v{vTAU}")

    g(f"s_load_dword s30, s[28:29], {WS_EPOCH}")
    ids(g)
    g(f"s_sub_u32 {sA}, s3, 4")
    if opt.get("codepf", 0):
        Lnp = g.lab("nopf")
        g(f"s_cmp_lg_u32 {sA}, 3", f"s_cbranch_scc1 {Lnp}", f"s_cmp_ge_u32 {sR}, {opt['codepf']}", f"s_cbranch_scc1 {Lnp}")
        g("s_getpc_b64 s[64:65]", "L_pc:", "s_sub_u32 s64, s64, (L_pc - " + NAME + "_kernel)", "s_subb_u32 s65, s65, 0",
          "v_lshlrev_b32 v8, 7, v0", "s_mov_b32 s66, (L_end - " + NAME + "_kernel)")
        for k in range(3):
            g("v_min_u32 v9, s66, v8", f"global_load_dword v{12+k}, v9, s[64:65]", "v_add_u32 v8, 0x2000, v8")
        g(f"{Lnp}:")
    lab = g.lab("zc")
    g(f"s_cmp_lg_u32 {sA}, 2", f"s_cbranch_scc1 {lab}", "v_mov_b32 v8, 0", "v_mov_b32 v9, 0", "v_mov_b32 v10, 0", "v_mov_b32 v11, 0",
      "s_nop 0")
    g("s_mov_b64 exec, 1", f"ds_write_b128 v8, v[8:11] offset:{L_CNT}", f"ds_write_b128 v8, v[8:11] offset:{L_CNT + 16}",
      f"ds_write_b128 v8, v[8:11] offset:{L_CNT + 32}", "s_mov_b64 exec, -1", "s_waitcnt lgkmcnt(0)", f"{lab}:", "s_barrier")
    make_srd(g, SRD_WS, 28, 0, WS_SIZE)
    g(f"v_and_b32 v{vI}, 15, v0", f"v_lshrrev_b32 v{vG}, 4, v0", f"v_mov_b32 v{vMSK}, {hex(0xffffffff ^ TAGMASK)}")
    g(f"s_mul_i32 {sPHI}, {sX}, 6", f"s_add_u32 {sPHI}, {sPHI}, {sR}", f"s_sub_u32 {sPHI}, {sPHI}, 24",
      f"s_cmp_lt_u32 {sR}, 24", f"s_cselect_b32 {sPHI}, 0xff, {sPHI}",
      f"s_cmp_ge_u32 {sR}, 30", f"s_cselect_b32 {sPHI}, 0xff, {sPHI}",
      f"s_cmp_ge_u32 {sPHI}, 43", f"s_cselect_b32 {sPHI}, 0xff, {sPHI}")

    def tag_ready():
        g("s_waitcnt lgkmcnt(0)", f"s_add_u32 {sTAU}, s30, 1", f"s_and_b32 {sTAU}, {sTAU}, {TAGMASK}", f"v_mov_b32 v{vTAU}, {sTAU}")

    LA1, LA2, LA3, LB1 = g.lab("a1"), g.lab("a2"), g.lab("a3"), g.lab("aux_b1")
    g(f"s_cmp_eq_u32 {sA}, 1", f"s_cbranch_scc1 {LA1}", f"s_cmp_eq_u32 {sA}, 2", f"s_cbranch_scc1 {LA2}",
      f"s_cmp_eq_u32 {sA}, 3", f"s_cbranch_scc1 {LA3}")

    g(f"s_cmp_ge_u32 {sR}, 24", f"s_cbranch_scc1 {LA3}")
    g(f"s_lshr_b32 s64, {sR}, 2", f"s_and_b32 s65, {sR}, 3")
    make_srd(g, SRD_B, 20, 0, 2048)
    g(f"v_and_b32 v5, 1, v{vG}", "v_lshlrev_b32 v8, 10, v5", f"v_lshlrev_b32 v9, 4, v{vI}", "v_add_u32 v8, v8, v9",
      f"s_lshl_b32 {sT1}, s65, 8", f"buffer_load_dwordx4 v[12:15], v8, {srd(SRD_B)}, {sT1} offen")
    g("v_lshlrev_b32 v8, 8, v5", "v_add_u32 v8, v8, v9")
    g(f"v_and_b32 v10, 1, v{vI}", "v_lshlrev_b32 v10, 8, v10", f"v_lshlrev_b32 v11, 4, v{vG}", "v_add_u32 v10, v10, v11")
    tr_addr(g, 11, 16, vI, vG, 7)
    g("s_waitcnt vmcnt(0)")
    for r in range(4):
        g(f"v_lshlrev_b32 v{20+2*r}, 16, v{12+r}", f"v_and_b32 v{21+2*r}, 0xffff0000, v{12+r}")
    silu(g, range(20, 28), range(28, 36))
    for r in range(4):
        g(f"v_cvt_pk_bf16_f32 v{12+r}, v{20+2*r}, v{21+2*r}")
    g(f"ds_write_b128 v8, v[12:15] offset:{L_ACT1}")
    tag_ready()
    for k in range(4):
        g(f"ds_read_b128 {v(40+4*k,4)}, v10 offset:{L_ACT1 + k*64}")
    g("s_waitcnt lgkmcnt(0)")
    lds_wait(g, L_CNT + 4, 4, 12)
    for t in range(4):
        for k in range(4):
            tr_read(g, 64 + (t * 4 + k) * 4, 11, L_WMOD + k * 4096 + t * 32, 128)
        g("s_waitcnt lgkmcnt(0)")
        for k in range(4):
            mfma(g, 16 + 4 * t, 64 + (t * 4 + k) * 4, 40 + 4 * k, k == 0)
    g(f"s_lshl_b32 {sT0}, s64, 3", f"s_add_u32 {sT0}, {sT0}, {sX}", f"s_lshl_b32 s66, {sT0}, 11", f"s_add_u32 s66, s66, {WS_MODP}",
      f"s_lshl_b32 {sT1}, s65, 9", f"s_add_u32 {sT0}, s66, {sT1}",
      f"v_lshlrev_b32 v8, 6, v{vI}", f"v_lshlrev_b32 v9, 4, v{vG}", "v_add_u32 v8, v8, v9", "s_nop 4")
    for r in range(16):
        tagify(16 + r, 16 + r, True)
    g(*EX8)
    for t in range(4):
        g(f"buffer_store_dwordx4 {v(16+4*t,4)}, v8, {srd(SRD_WS)}, {sT0} offen offset:{t*128} sc1 ;@modp")
    g("s_mov_b64 exec, -1")
    stamp(g, 1)
    g(f"s_branch {LB1}")

    g(f"{LA1}:")
    make_srd(g, SRD_B, 4, 0, 2048)
    g("v_lshlrev_b32 v8, 4, v0")
    g(f"buffer_load_dwordx4 v[12:15], v8, {srd(SRD_B)}, 0 offen", f"buffer_load_dwordx4 v[16:19], v8, {srd(SRD_B)}, 0 offen offset:1024")
    g("v_lshrrev_b32 v5, 2, v0", "v_and_b32 v5, 1, v5",
      "v_lshrrev_b32 v6, 3, v0", "v_and_b32 v6, 3, v6", "v_lshlrev_b32 v6, 4, v6", "v_and_b32 v7, 3, v0", "v_lshlrev_b32 v7, 2, v7",
      "v_add_u32 v6, v6, v7",
      "v_lshlrev_b32 v7, 10, v5", "v_lshlrev_b32 v9, 1, v6", "v_add_u32 v9, v9, v7",
      f"s_lshl_b32 {sT1}, {sJ}, 7", f"buffer_load_dwordx2 v[20:21], v9, {srd(SRD_B)}, {sT1} offen")
    tr_addr(g, 11, 22, vI, vG, 8)
    g("s_waitcnt vmcnt(0)")
    for b in range(2):
        for r in range(4):
            g(f"v_lshlrev_b32 v{24+8*b+2*r}, 16, v{12+4*b+r}", f"v_and_b32 v{25+8*b+2*r}, 0xffff0000, v{12+4*b+r}")
    for b in range(2):
        base = 24 + 8 * b
        g(f"v_add_f32 v{40+b}, v{base}, v{base+1}")
        for e in range(2, 8):
            g(f"v_add_f32 v{40+b}, v{40+b}, v{base+e}")
    allreduce(g, [40, 41], "v_add_f32", [44, 45])
    g(f"v_mul_f32 v40, {hex(f2u(1/512))}, v40", f"v_mul_f32 v41, {hex(f2u(1/512))}, v41")
    for b in range(2):
        base = 24 + 8 * b
        for e in range(8):
            g(f"v_sub_f32 v{base+e}, v{base+e}, v{40+b}")
        g(f"v_mul_f32 v{42+b}, v{base}, v{base}")
        for e in range(1, 8):
            g(f"v_fmac_f32 v{42+b}, v{base+e}, v{base+e}")
    allreduce(g, [42, 43], "v_add_f32", [44, 45])
    for b in range(2):
        g(f"v_mov_b32 v44, {hex(f2u(1e-5))}", f"v_fmac_f32 v44, {hex(f2u(1/512))}, v{42+b}", f"v_rsq_f32 v{42+b}, v44", "s_nop 0")
    g("v_cmp_eq_u32 vcc, 1, v5", "s_nop 1", "v_cndmask_b32 v40, v40, v41, vcc", "v_cndmask_b32 v42, v42, v43, vcc",
      "v_lshlrev_b32 v24, 16, v20", "v_and_b32 v25, 0xffff0000, v20", "v_lshlrev_b32 v26, 16, v21", "v_and_b32 v27, 0xffff0000, v21")
    for e in range(4):
        g(f"v_sub_f32 v{24+e}, v{24+e}, v40", f"v_mul_f32 v{24+e}, v{24+e}, v42")
    tag_ready()
    lds_wait(g, L_CNT + 8, 4, 12)
    for t in range(8):
        for k in range(2):
            tr_read(g, 64 + (t * 2 + k) * 4, 11, L_WQ + k * 8192 + t * 32, 256)
        if t % 2 == 1:
            g("s_waitcnt lgkmcnt(0)")
    g(f"s_lshl_b32 {sT0}, {sJ}, 11", f"s_add_u32 {sT0}, {sT0}, {WS_MODP}", f"s_add_u32 {sT1}, {sT0}, {8*2048}", "v_lshlrev_b32 v9, 4, v0")
    backoff(g, opt.get("saca_sl", 0))
    g("v_and_b32 v10, 31, v0", "v_lshlrev_b32 v10, 7, v10", f"s_lshl_b32 {sT2}, {sX}, 12", f"s_add_u32 {sT2}, {sT2}, {WS_XL}",
      f"s_mul_i32 {sT3}, {sTAU}, 0x00400401", f"v_mov_b32 v7, {sT3}")

    def chk_saca():
        check_intag(g, range(28, 44), vTAU, 12)
        g("v_xor_b32 v13, v52, v7", "v_sub_u32 v56, v53, v7", "v_lshrrev_b32 v14, 4, v56", "v_or3_b32 v12, v12, v13, v14", "v_cmp_ne_u32 vcc, 0, v12")
    poll(g, "p_saca",
         lambda: g(f"buffer_load_dwordx4 v[28:31], v9, {srd(SRD_WS)}, {sT0} offen sc1",
                   f"buffer_load_dwordx4 v[32:35], v9, {srd(SRD_WS)}, {sT0} offen offset:1024 sc1",
                   f"buffer_load_dwordx4 v[36:39], v9, {srd(SRD_WS)}, {sT1} offen sc1",
                   f"buffer_load_dwordx4 v[40:43], v9, {srd(SRD_WS)}, {sT1} offen offset:1024 sc1",
                   f"buffer_load_dwordx4 v[52:55], v10, {srd(SRD_WS)}, {sT2} offen sc1"),
         chk_saca)
    stamp(g, 1)
    g("s_getreg_b32 s64, hwreg(HW_REG_XCC_ID, 0, 4)", "v_cmp_ne_u32 vcc, s64, v56", "s_nop 4", "s_cmp_eq_u64 vcc, 0", "s_cselect_b32 s69, 1, 0")
    if not opt.get("local", True):
        g("s_mov_b32 s69, 0")
    g("v_mov_b32 v12, 0", "v_mov_b32 v13, s69", f"ds_write_b32 v12, v13 offset:{L_CNT + 20}")
    for e in range(4):
        g(f"v_add_f32 v{28+e}, v{28+e}, v{32+e}", f"v_add_f32 v{36+e}, v{36+e}, v{40+e}")
    swapreduce(g, [28, 29, 30, 31, 36, 37, 38, 39], "v_add_f32", range(44, 52), "32")
    g("v_cvt_pk_bf16_f32 v44, v28, v29", "v_cvt_pk_bf16_f32 v45, v30, v31", "v_cvt_pk_bf16_f32 v46, v36, v37", "v_cvt_pk_bf16_f32 v47, v38, v39")
    for e in range(4):
        src_s, src_c = 44 + e // 2, 46 + e // 2
        if e % 2 == 0:
            g(f"v_lshlrev_b32 v{28+e}, 16, v{src_s}", f"v_lshlrev_b32 v{36+e}, 16, v{src_c}")
        else:
            g(f"v_and_b32 v{28+e}, 0xffff0000, v{src_s}", f"v_and_b32 v{36+e}, 0xffff0000, v{src_c}")
    for e in range(4):
        g(f"v_add_f32 v{36+e}, 1.0, v{36+e}", f"v_fma_f32 v{24+e}, v{24+e}, v{36+e}, v{28+e}")
    g("v_cvt_pk_bf16_f32 v24, v24, v25", "v_cvt_pk_bf16_f32 v25, v26, v27",
      "v_lshlrev_b32 v9, 7, v5", "v_lshlrev_b32 v10, 1, v6", "v_add_u32 v9, v9, v10", f"ds_write_b64 v9, v[24:25] offset:{L_ACT2}",
      f"v_and_b32 v10, 1, v{vI}", "v_lshlrev_b32 v10, 7, v10", f"v_lshlrev_b32 v12, 4, v{vG}", "v_add_u32 v10, v10, v12",
      "s_waitcnt lgkmcnt(0)",
      f"ds_read_b128 v[24:27], v10 offset:{L_ACT2}", f"ds_read_b128 v[28:31], v10 offset:{L_ACT2+64}", "s_waitcnt lgkmcnt(0)")
    for k in range(2):
        for t in range(8):
            mfma(g, 128 + 4 * t, 64 + (t * 2 + k) * 4, 24 + 4 * k, k == 0)
    g(f"s_lshl_b32 {sT0}, {sH}, 13", f"s_lshl_b32 {sT1}, {sJ}, 9", f"s_add_u32 s66, {sT0}, {WS_QP}", f"s_add_u32 {sT0}, s66, {sT1}",
      f"v_and_b32 v8, 1, v{vI}", "v_lshlrev_b32 v8, 12, v8", f"v_lshrrev_b32 v9, 1, v{vI}", "v_and_b32 v9, 1, v9", "v_cmp_eq_u32 vcc, 1, v9",
      "v_lshlrev_b32 v9, 6, v9", "v_add_u32 v8, v8, v9", f"v_lshlrev_b32 v9, 4, v{vG}", "v_add_u32 v8, v8, v9", "s_nop 1")
    for tp in range(4):
        for e in range(4):
            g(f"v_cndmask_b32 v{128+8*tp+e}, v{128+8*tp+e}, v{132+8*tp+e}, vcc")
        for e in range(4):
            tagify(128 + 8 * tp + e, 128 + 8 * tp + e, True)
    g("s_mov_b32 exec_lo, 0x000f000f", "s_mov_b32 exec_hi, 0x000f000f")
    store_sel(g, "s69", *[f"buffer_store_dwordx4 {v(128+8*tp,4)}, v8, {srd(SRD_WS)}, {sT0} offen offset:{tp*128} @SC ;@qp" for tp in range(4)])
    g("s_mov_b64 exec, -1")
    stamp(g, 2)
    backoff(g, opt.get("q_sl", 0))
    if opt.get("i_q", 48):
        lds_wait(g, L_CNT + 32, 4, 12)
    g("v_lshlrev_b32 v8, 4, v0", f"s_lshl_b32 {sT1}, {sB}, 12", f"s_add_u32 {sT0}, s66, {sT1}")

    def issq():
        for k in range(4):
            g(f"buffer_load_dwordx4 {v(16+4*k,4)}, v8, {srd(SRD_WS)}, {sT0} offen offset:{k*1024} sc1")
    poll(g, "p_q", issq, lambda: check_intag(g, range(16, 32), vTAU, 12))
    stamp(g, 3)
    for e in range(4):
        g(f"v_add_f32 v{16+e}, v{16+e}, v{20+e}", f"v_add_f32 v{24+e}, v{24+e}, v{28+e}", f"v_add_f32 v{16+e}, v{16+e}, v{24+e}")
    swapreduce(g, range(16, 20), "v_add_f32", range(20, 24), "32")
    g("v_cvt_pk_bf16_f32 v16, v16, v17", "v_cvt_pk_bf16_f32 v17, v18, v19",
      "v_and_b32 v9, 31, v0", "v_lshlrev_b32 v9, 3, v9", f"ds_write_b64 v9, v[16:17] offset:{L_Q}")
    g(f"s_branch {LB1}")

    g(f"{LA2}:")
    tag_ready()
    g(f"s_mul_i32 {sT1}, {sTAU}, 0x00400401", "s_getreg_b32 s64, hwreg(HW_REG_XCC_ID, 0, 4)", f"s_add_u32 s64, s64, {sT1}",
      f"v_mov_b32 v8, {sT1}", "v_mov_b32 v9, s64", f"v_mov_b32 v10, {sT1}", f"v_mov_b32 v11, {sT1}", "v_lshlrev_b32 v12, 4, v0",
      f"s_lshl_b32 {sT0}, {sX}, 5", f"s_add_u32 {sT0}, {sT0}, {sR}", f"s_lshl_b32 {sT0}, {sT0}, 7", f"s_add_u32 {sT0}, {sT0}, {WS_XL}",
      "s_mov_b64 exec, 0xff", f"buffer_store_dwordx4 v[8:11], v12, {srd(SRD_WS)}, {sT0} offen sc1 ;@xl", "s_mov_b64 exec, -1")
    g(f"s_branch {LB1}")

    g(f"{LA3}:")
    tag_ready()

    g(f"{LB1}:", "s_waitcnt lgkmcnt(0)")
    stamp(g, 4)
    g("s_barrier")
    if opt.get("probe") == "b1":
        g("s_memrealtime s[92:93]")
    LnoML = g.lab("noml")
    Lni = g.lab("noinit")
    g(f"s_cmp_lg_u32 {sA}, 2", f"s_cbranch_scc1 {Lni}", "v_mov_b32 v8, 0", f"ds_read_b32 v8, v8 offset:{L_CNT + 20}",
      "v_lshlrev_b32 v12, 4, v0", "s_waitcnt lgkmcnt(0)", "v_readfirstlane_b32 s69, v8",
      "v_mov_b32 v8, -1", "v_mov_b32 v9, -1", "v_mov_b32 v10, -1", "v_mov_b32 v11, -1",
      f"s_lshl_b32 {sT0}, {sH}, 3", f"s_add_u32 {sT0}, {sT0}, {sJ}", f"s_lshl_b32 {sT0}, {sT0}, 8", f"s_add_u32 {sT0}, {sT0}, {WS_OS}",
      "s_mov_b64 exec, 0xffff")
    store_sel(g, "s69", f"buffer_store_dwordx4 v[8:11], v12, {srd(SRD_WS)}, {sT0} offen @SC ;@inito")
    g("s_mov_b64 exec, -1", f"{Lni}:")
    g("s_barrier")
    g(f"s_cmp_lg_u32 {sA}, 2", f"s_cbranch_scc1 {LnoML}")
    g("v_mov_b32 v8, 0", f"ds_read_b128 v[12:15], v8 offset:{L_MLW}", f"ds_read_b128 v[16:19], v8 offset:{L_MLW+16}", "s_waitcnt lgkmcnt(0)",
      "v_max3_f32 v20, v12, v14, v16", "v_max_f32 v20, v20, v18")
    for m in (12, 14, 16, 18):
        g(f"v_sub_f32 v{m}, v{m}, v20", f"v_exp_f32 v{m}, v{m}")
    g("s_nop 0", "v_mul_f32 v21, v12, v13", "v_fmac_f32 v21, v14, v15", "v_fmac_f32 v21, v16, v17", "v_fmac_f32 v21, v18, v19",
      f"s_mul_i32 {sT1}, {sTAU}, 0x00400401", f"v_mov_b32 v22, {sT1}", "s_getreg_b32 s64, hwreg(HW_REG_XCC_ID, 0, 4)",
      f"s_add_u32 {sT1}, {sT1}, s64", f"v_mov_b32 v23, {sT1}",
      f"s_lshl_b32 {sT0}, {sH}, 3", f"s_add_u32 {sT0}, {sT0}, {sJ}", f"s_lshl_b32 {sT0}, {sT0}, 7", f"s_add_u32 {sT0}, {sT0}, {WS_ML}",
      "v_lshlrev_b32 v8, 4, v0", "s_waitcnt vmcnt(0)", "s_mov_b64 exec, 0xff")
    store_sel(g, "s69", f"buffer_store_dwordx4 v[20:23], v8, {srd(SRD_WS)}, {sT0} offen @SC ;@ml")
    g("s_mov_b64 exec, -1")
    g(f"{LnoML}:")

    Lnf = g.lab("nofin")
    g(f"s_cmp_lg_u32 {sA}, 0", f"s_cbranch_scc1 {Lnf}", f"s_sub_u32 {sT1}, {sR}, 8",
      f"s_and_b32 {sT0}, {sR}, 3", f"s_cmp_lg_u32 {sT0}, 0", f"s_cbranch_scc1 {Lnf}", f"s_cmp_ge_u32 {sT1}, 16", f"s_cbranch_scc1 {Lnf}",
      f"s_lshr_b32 s64, {sR}, 2", f"s_lshl_b32 {sT0}, s64, 3", f"s_add_u32 {sT0}, {sT0}, {sX}", f"s_lshl_b32 s66, {sT0}, 11", f"s_add_u32 s66, s66, {WS_MODP}",
      "v_lshlrev_b32 v8, 4, v0")
    poll(g, "p_fin",
         lambda: g(f"buffer_load_dwordx4 v[16:19], v8, {srd(SRD_WS)}, s66 offen sc1",
                   f"buffer_load_dwordx4 v[20:23], v8, {srd(SRD_WS)}, s66 offen offset:1024 sc1"),
         lambda: check_intag(g, range(16, 24), vTAU, 12))
    for e in range(4):
        g(f"v_add_f32 v{16+e}, v{16+e}, v{20+e}")
    swapreduce(g, range(16, 20), "v_add_f32", range(20, 24), "32")
    g("v_cvt_pk_bf16_f32 v20, v16, v17", "v_cvt_pk_bf16_f32 v21, v18, v19",
      "v_lshlrev_b32 v16, 16, v20", "v_and_b32 v17, 0xffff0000, v20", "v_lshlrev_b32 v18, 16, v21", "v_and_b32 v19, 0xffff0000, v21")
    for e in range(4):
        tagify(16 + e, 16 + e)
    g("v_lshrrev_b32 v8, 3, v0", "v_and_b32 v8, 3, v8", "v_lshlrev_b32 v8, 6, v8", "v_lshrrev_b32 v9, 2, v0", "v_and_b32 v9, 1, v9",
      "v_lshlrev_b32 v9, 11, v9", "v_add_u32 v8, v8, v9", "v_and_b32 v9, 3, v0", "v_lshlrev_b32 v9, 4, v9", "v_add_u32 v8, v8, v9",
      f"s_sub_u32 {sT0}, s64, 2", f"s_lshl_b32 {sT0}, {sT0}, 12", f"s_lshl_b32 {sT1}, {sX}, 8", f"s_add_u32 {sT0}, {sT0}, {sT1}",
      f"s_add_u32 {sT0}, {sT0}, {WS_MODF}", "s_mov_b32 exec_hi, 0",
      f"buffer_store_dwordx4 v[16:19], v8, {srd(SRD_WS)}, {sT0} offen sc1 ;@modf", "s_mov_b64 exec, -1", f"{Lnf}:")

    LT3P, LWOP, LT3, LLEAD = g.lab("t3prep"), g.lab("woprep"), g.lab("t3"), g.lab("lead")
    g("v_mov_b32 v8, 0", f"ds_read_b32 v8, v8 offset:{L_CNT + 20}", "s_waitcnt lgkmcnt(0)", "v_readfirstlane_b32 s71, v8")
    g(f"s_cmp_eq_u32 {sPHI}, 0xff", f"s_cselect_b32 s67, 0, {sPHI}")
    g(f"s_mul_i32 {sT0}, {sA}, {128*2752}", f"s_lshl_b32 {sT1}, s67, 6", f"s_add_u32 s64, {sT0}, {sT1}")
    make_srd(g, SRD_A, 16, "s64", 512 * 1376 * 2)
    g(f"s_lshl_b32 {sT0}, s67, 15", f"s_lshl_b32 {sT1}, {sA}, 8", f"s_add_u32 s64, {sT0}, {sT1}")
    make_srd(g, SRD_B, 18, "s64", 1376 * 512 * 2)
    g("v_lshrrev_b32 v205, 2, v0", "v_mul_u32_u24 v205, 2752, v205", "v_and_b32 v10, 3, v0", "v_lshlrev_b32 v10, 4, v10",
      "v_add_u32 v205, v205, v10", f"s_lshl_b32 s65, {sA}, 13", f"s_add_u32 s65, s65, {L_KB}", "s_add_u32 s66, s65, 32768",
      f"v_lshlrev_b32 v206, 10, v{vG}", f"v_lshlrev_b32 v11, 4, v{vI}", "v_add_u32 v206, v206, v11",
      "v_mov_b32 v199, 0", "v_mov_b32 v200, 0", "v_mov_b32 v213, 0", "s_mov_b32 s68, 0")
    lds_wait(g, L_CNT + 24, 4, 12)
    g(f"s_cmp_eq_u32 {sPHI}, 0xff", f"s_cbranch_scc1 {LWOP}")

    vB1, vB2 = 64, 96
    vTR1, vTR2 = 207, 208
    vX3, vGA3, vC3, vGB = 224, 228, 232, 236
    g("v_lshrrev_b32 v5, 5, v0", "v_and_b32 v8, 31, v0",
      f"s_lshl_b32 s68, {sA}, 9", "v_lshlrev_b32 v9, 11, v5", "v_lshlrev_b32 v10, 4, v8", "v_add_u32 v9, v9, v10", "v_add_u32 v9, s68, v9",
      f"s_mov_b32 {sT0}, {WS_MODF}", f"s_mov_b32 {sT1}, {WS_MODF + 4096}", f"s_mov_b32 {sT2}, {WS_MODF + 8192}")
    vXA, vFA = 202, 199
    g(f"v_mov_b32 v{vXA}, v9")
    g("v_lshrrev_b32 v7, 2, v0", "v_and_b32 v7, 1, v7", f"v_lshlrev_b32 v{vFA}, 11, v7", "v_and_b32 v7, 3, v0", "v_lshlrev_b32 v7, 4, v7",
      f"v_add_u32 v{vFA}, v{vFA}, v7", f"s_and_b32 {sT3}, {sPHI}, 31", f"s_lshl_b32 {sT3}, {sT3}, 6", f"v_add_u32 v{vFA}, {sT3}, v{vFA}",
      f"s_mov_b32 s69, {WS_MODF + 3*4096}")
    poll(g, "p_modf",
         lambda: g(f"buffer_load_dwordx4 v[12:15], v9, {srd(SRD_WS)}, {sT0} offen sc1", f"buffer_load_dwordx4 v[16:19], v9, {srd(SRD_WS)}, {sT1} offen sc1",
                   f"buffer_load_dwordx4 v[20:23], v9, {srd(SRD_WS)}, {sT2} offen sc1", f"buffer_load_dwordx4 {v(vGB,4)}, v{vFA}, {srd(SRD_WS)}, s69 offen sc1"),
         lambda: check_intag(g, list(range(12, 24)) + list(range(vGB, vGB + 4)), vTAU, 28))
    g("s_mov_b32 s72, s4", "s_mov_b32 s73, s5", "s_mov_b32 s74, 2048", "s_mov_b32 s75, 0x20000")
    g("v_lshrrev_b32 v10, 1, v9", "buffer_load_dwordx2 v[40:41], v10, s[72:75], 0 offen")
    for e in range(4):
        g(f"v_and_b32 v{vGA3+e}, v{vMSK}, v{12+e}", f"v_and_b32 v{16+e}, v{vMSK}, v{16+e}", f"v_and_b32 v{20+e}, v{vMSK}, v{20+e}",
          f"v_and_b32 v{vGB+e}, v{vMSK}, v{vGB+e}", f"v_add_f32 v{20+e}, 1.0, v{20+e}")
    vZA, vYA, vAA, vRA, vUA, vSA, vGW, vGR, vPA, vSW = 201, 200, 203, 204, 209, 210, 211, 212, 213, 214
    g(f"s_mul_i32 s68, {sA}, 1536", f"s_add_u32 s68, s68, {L_ACT3}", f"v_lshlrev_b32 v{vZA}, 8, v5", "v_lshlrev_b32 v10, 3, v8",
      f"v_add_u32 v{vZA}, v{vZA}, v10", f"v_add_u32 v{vZA}, s68, v{vZA}",
      "v_cvt_pk_bf16_f32 v42, v20, v21", "v_cvt_pk_bf16_f32 v43, v22, v23",
      "v_cvt_pk_bf16_f32 v44, v16, v17", "v_cvt_pk_bf16_f32 v45, v18, v19",
      f"v_lshlrev_b32 v{vC3}, 16, v42", f"v_and_b32 v{vC3+1}, 0xffff0000, v42", f"v_lshlrev_b32 v{vC3+2}, 16, v43", f"v_and_b32 v{vC3+3}, 0xffff0000, v43",
      f"ds_write_b64 v{vZA}, v[42:43] offset:512", f"ds_write_b64 v{vZA}, v[44:45] offset:1024",
      "s_waitcnt vmcnt(0)",
      f"v_lshlrev_b32 v{vX3}, 16, v40", f"v_and_b32 v{vX3+1}, 0xffff0000, v40", f"v_lshlrev_b32 v{vX3+2}, 16, v41", f"v_and_b32 v{vX3+3}, 0xffff0000, v41")
    tr_addr(g, vTR1, 12, vI, vG, 6, "s65")
    HALF = opt.get("w1_half", True) and "w12" not in SKIP
    vTR0 = 198
    if HALF:
        g(f"s_lshl_b32 s78, {sA}, 12", f"s_add_u32 s78, s78, {L_WMOD}")
        tr_addr(g, vTR0, 12, vI, vG, 6, "s78")
        for t in range(4):
            if t >= 2:
                g("s_waitcnt vmcnt(1)")
            g(f"s_mov_b32 {sT2}, {t*16*2752}", f"s_add_u32 {sT3}, s78, {t*1024}")
            dma(g, 205, SRD_A, sT2, sT3, "w12")
    tr_addr(g, vTR2, 12, vI, vG, 8, "s66")
    g(f"v_lshrrev_b32 v{vYA}, 2, v8", f"v_lshlrev_b32 v{vYA}, 7, v{vYA}", "v_and_b32 v12, 3, v8", "v_lshlrev_b32 v12, 4, v12",
      f"v_add_u32 v{vYA}, v{vYA}, v12", "v_lshlrev_b32 v12, 6, v5", f"v_add_u32 v{vYA}, v{vYA}, v12",
      f"s_lshl_b32 {sT0}, {sA}, 10", f"v_add_u32 v{vYA}, {sT0}, v{vYA}")
    g(f"v_cmp_gt_u32 vcc, 6, v{vI}", "s_nop 1", f"v_cndmask_b32 v{vAA}, 0, v{vI}, vcc", f"v_lshlrev_b32 v{vAA}, 8, v{vAA}",
      f"v_lshlrev_b32 v12, 4, v{vG}", f"v_add_u32 v{vAA}, v{vAA}, v12", f"v_add_u32 v{vAA}, s68, v{vAA}",
      f"s_lshl_b32 {sT0}, {sA}, 10", f"v_lshlrev_b32 v{vRA}, 4, v0", f"v_add_u32 v{vRA}, {sT0}, v{vRA}")
    g("v_lshrrev_b32 v10, 4, v8", "v_lshlrev_b32 v10, 9, v10", f"v_lshlrev_b32 v11, 4, v{vI}", "v_add_u32 v10, v10, v11",
      "v_lshlrev_b32 v11, 2, v5", f"v_add_u32 v{vUA}, v10, v11", f"v_lshlrev_b32 v{vSA}, 5, v5",
      f"s_lshl_b32 {sT0}, {sA}, 3", f"v_add_u32 v{vSW}, {sT0}, v{vSA}",
      f"s_lshl_b32 {sT0}, {sA}, 7", f"v_lshlrev_b32 v{vGW}, 1, v0", f"v_add_u32 v{vGW}, {sT0}, v{vGW}",
      f"v_and_b32 v14, 1, v{vI}", "v_lshlrev_b32 v14, 6, v14", f"v_lshlrev_b32 v15, 4, v{vG}", "v_add_u32 v14, v14, v15", f"v_add_u32 v{vGR}, {sT0}, v14",
      f"v_lshlrev_b32 v{vPA}, 6, v{vI}", f"v_lshlrev_b32 v9, 4, v{vG}", f"v_add_u32 v{vPA}, v{vPA}, v9",
      f"s_lshl_b32 s68, {sPHI}, 12", f"s_lshl_b32 {sT1}, {sA}, 10", f"s_add_u32 s68, s68, {sT1}", f"s_add_u32 s68, s68, {WS_PS}")

    g("; ---- wo stage: own head x columns 64j..")
    g(f"{LWOP}:")
    DEFER_WO = opt.get("defer_wo", True)
    vBW, vF, vWO, vWT, vOG, vYP, vOR, vOW = 128, 240, 215, 216, 217, 218, 219, 220
    g(f"s_lshl_b32 s64, {sH}, 17", f"s_lshl_b32 s77, {sA}, 15", "s_add_u32 s64, s64, s77", f"s_lshl_b32 s77, {sJ}, 7", "s_add_u32 s64, s64, s77")
    make_srd(g, 72, 12, "s64", 4096 * 512 * 2)
    g(f"v_lshrrev_b32 v{vWO}, 3, v0", f"v_lshlrev_b32 v{vWO}, 10, v{vWO}", "v_and_b32 v10, 7, v0", "v_lshlrev_b32 v10, 4, v10",
      f"v_add_u32 v{vWO}, v{vWO}, v10", f"s_lshl_b32 s77, {sA}, 12", f"s_add_u32 s77, s77, {L_WQ}")

    def wo_dma():
        if "wo" in SKIP:
            return
        for k in range(4):
            g(f"s_mov_b32 {sT2}, {k*8*1024}", f"s_add_u32 m0, s77, {k*1024}", "s_nop 0",
              f"buffer_load_dwordx4 v{vWO}, s[72:75], {sT2} offen nt lds")

    def w1_dma():
        for t in range(4 if HALF else 0, 8):
            g(f"s_mov_b32 {sT2}, {t*16*2752}", f"s_add_u32 {sT3}, s65, {t*1024}")
            dma(g, 205, SRD_A, sT2, sT3, "w12")

    W1_EARLY = opt.get("w1_early", True)

    def wo_frags(w1=False):
        if w1 and W1_EARLY and "w12" not in SKIP:
            l1, l2 = g.lab("now1"), g.lab("w1q")
            g(f"s_cmp_eq_u32 {sPHI}, 0xff", f"s_cbranch_scc1 {l1}")
            w1_dma()
            g(f"s_waitcnt vmcnt({4 if HALF else 8})", f"s_branch {l2}", f"{l1}:", "s_waitcnt vmcnt(0)", f"{l2}:")
        else:
            g("s_waitcnt vmcnt(0)")
        lds_signal(g, L_CNT + 12, 12)
        lds_wait(g, L_CNT + 12, 4, 12)
        for k in range(4):
            tr_read(g, vBW + 4 * k, vWT, k * 4096, 128)
        g("s_waitcnt lgkmcnt(0)")
    if not DEFER_WO:
        wo_dma()
    g(f"s_lshl_b32 {sT0}, {sH}, 10", f"s_add_u32 {sT0}, {sT0}, {WS_ML}",
      f"v_and_b32 v8, 1, v{vG}", "v_lshlrev_b32 v8, 9, v8", "v_and_b32 v9, 3, v0", "v_lshlrev_b32 v9, 7, v9", "v_add_u32 v8, v8, v9",
      f"s_mul_i32 {sT1}, {sTAU}, 0x00400401", f"v_mov_b32 v5, {sT1}")

    def chk_ml():
        g("v_xor_b32 v16, v14, v5", "v_sub_u32 v17, v15, v5", "v_lshrrev_b32 v18, 4, v17", "v_or_b32 v16, v16, v18", "v_cmp_ne_u32 vcc, 0, v16")
    poll(g, "p_ml", lambda: g(f"buffer_load_dwordx4 v[12:15], v8, {srd(SRD_WS)}, {sT0} offen sc1"), chk_ml)
    g("v_mov_b32 v16, v12", "s_nop 1",
      f"v_max_f32_dpp v16, v16, v16 quad_perm:[1,0,3,2] {DPPF}", "s_nop 1",
      f"v_max_f32_dpp v16, v16, v16 quad_perm:[2,3,0,1] {DPPF}",
      "v_sub_f32 v12, v12, v16", "v_exp_f32 v12, v12", "s_nop 0", "v_mul_f32 v13, v13, v12", "s_nop 1",
      f"v_add_f32_dpp v13, v13, v13 quad_perm:[1,0,3,2] {DPPF}", "s_nop 1",
      f"v_add_f32_dpp v13, v13, v13 quad_perm:[2,3,0,1] {DPPF}",
      "v_rcp_f32 v13, v13", "s_nop 0", "v_mul_f32 v12, v12, v13", "s_nop 1")
    for r in range(4):
        g(f"v_mov_b32_dpp v{vF+r}, v12 quad_perm:[{r},{r},{r},{r}] {DPPF}")
    tr_addr(g, vWT, 12, vI, vG, 7)
    g(f"s_lshl_b32 {sT0}, {sA}, 5", f"s_add_u32 {sT0}, {sT0}, {L_WQ}", f"v_add_u32 v{vWT}, {sT0}, v{vWT}")
    if not DEFER_WO:
        wo_frags()
    g(f"s_lshl_b32 s64, {sH}, 11", f"s_add_u32 s64, s64, {WS_OS}")
    if opt.get("o_coop", True):
        g(f"s_lshl_b32 {sT1}, {sA}, 6", f"s_add_u32 s64, s64, {sT1}")
    g(f"v_and_b32 v{vOG}, 7, v{vI}", f"v_lshlrev_b32 v{vOG}, 8, v{vOG}", f"v_lshlrev_b32 v7, 4, v{vG}", f"v_add_u32 v{vOG}, v{vOG}, v7",
      f"v_and_b32 v{vOR}, 7, v{vI}", f"v_lshlrev_b32 v{vOR}, 4, v{vOR}", f"v_lshlrev_b32 v9, 7, v{vG}", f"v_add_u32 v{vOR}, v{vOR}, v9",
      f"s_lshl_b32 {sT1}, {sA}, 9", f"v_add_u32 v{vOW}, {sT1}, v{vOR}",
      f"v_lshlrev_b32 v{vYP}, 6, v{vG}", f"v_lshlrev_b32 v9, 2, v{vI}", f"v_add_u32 v{vYP}, v{vYP}, v9",
      f"s_lshl_b32 s76, {sX}, 14", f"s_lshl_b32 {sT1}, {sJ}, 11", f"s_add_u32 s76, s76, {sT1}", f"s_add_u32 s76, s76, {WS_YP}",
      f"s_and_b32 {sT1}, {sR}, 3", f"s_lshl_b32 {sT1}, {sT1}, 9", f"s_add_u32 s76, s76, {sT1}", f"s_lshl_b32 {sT1}, {sA}, 7", f"s_add_u32 s76, s76, {sT1}")
    lds_wait(g, L_CNT + 28, opt.get("s3_cnt", 4), 12)
    if DEFER_WO:
        wo_dma()
        stamp(g, 5)
        wo_frags(True)
    stamp(g, 6)

    if opt.get("o_coop", True):
        g("s_mov_b32 exec_lo, 0x00ff00ff", "s_mov_b32 exec_hi, 0x00ff00ff")
        poll(g, "p_o", lambda: g(f"buffer_load_dwordx4 v[16:19], v{vOG}, {srd(SRD_WS)}, s64 offen sc1"),
             lambda: check_sentinel(g, range(16, 20), 12), sleep=opt.get("o_sleep", 0))
        g(f"ds_write_b128 v{vOW}, v[16:19] offset:{L_RED2}")
        lds_signal(g, L_CNT + 16, 12)
        lds_wait(g, L_CNT + 16, 4, 12)
        for k in range(4):
            g(f"ds_read_b128 {v(16+4*k,4)}, v{vOR} offset:{L_RED2 + k*512}")
        g("s_waitcnt lgkmcnt(0)")
    else:
        def isso():
            for k in range(4):
                g(f"buffer_load_dwordx4 {v(16+4*k,4)}, v{vOG}, {srd(SRD_WS)}, s64 offen offset:{k*64} sc1")
        poll(g, "p_o", isso, lambda: check_sentinel(g, range(16, 32), 12))
    stamp(g, 7)
    for k in range(4):
        mfma(g, 32, 16 + 4 * k, vBW + 4 * k, k == 0)
    g("s_mov_b32 exec_hi, 0", "s_nop 6",
      f"v_mul_f32 v32, v32, v{vF}", f"v_fmac_f32 v32, v33, v{vF+1}", f"v_fmac_f32 v32, v34, v{vF+2}", f"v_fmac_f32 v32, v35, v{vF+3}")
    tagify(32, 32)
    store_sel(g, "s71", f"buffer_store_dword v32, v{vYP}, {srd(SRD_WS)}, s76 offen @SC ;@yp")
    g("s_mov_b64 exec, -1")
    g(f"s_cmp_lg_u32 {sPHI}, 0xff", f"s_cbranch_scc1 {LT3}")
    g("; ---- leaders: sum of the four head partials of column block r")
    g(f"s_cmp_ge_u32 {sR}, 8", "s_cbranch_scc1 L_exit", f"s_cmp_lg_u32 {sA}, 0", "s_cbranch_scc1 L_exit")
    g(f"s_lshl_b32 s66, {sX}, 14", f"s_lshl_b32 {sT1}, {sR}, 11", f"s_add_u32 s66, s66, {sT1}", f"s_add_u32 s66, s66, {WS_YP}",
      f"s_lshl_b32 s67, {sX}, 12", f"s_lshl_b32 {sT1}, {sR}, 9", f"s_add_u32 s67, s67, {sT1}", f"s_add_u32 s67, s67, {WS_YS}",
      "v_lshlrev_b32 v8, 4, v0")
    poll(g, "p_yp", lambda: g(f"buffer_load_dwordx4 v[16:19], v8, {srd(SRD_WS)}, s66 offen sc1",
                              f"buffer_load_dwordx4 v[20:23], v8, {srd(SRD_WS)}, s66 offen offset:1024 sc1"),
         lambda: check_intag(g, range(16, 24), vTAU, 12))
    stamp(g, 9)
    g("v_pk_add_f32 v[16:17], v[16:17], v[20:21]", "v_pk_add_f32 v[18:19], v[18:19], v[22:23]")
    swapreduce(g, range(16, 20), "v_add_f32", range(20, 24), "32")
    for e in range(4):
        tagify(16 + e, 16 + e)
    g("s_mov_b32 exec_hi, 0", f"buffer_store_dwordx4 v[16:19], v8, {srd(SRD_WS)}, s67 offen sc1 ;@ypub")
    stamp(g, 8)
    end(g)

    g(f"{LT3}:")
    if not (W1_EARLY and DEFER_WO):
        w1_dma()
    for t in range(8):
        g(f"s_mov_b32 {sT2}, {t*4*1024}", f"s_add_u32 {sT3}, s66, {t*1024}")
        dma(g, 206, SRD_B, sT2, sT3, "w12")
    g("s_waitcnt vmcnt(8)" if "w12" not in SKIP else "s_waitcnt vmcnt(0)")
    for tau in range(2):
        for k in range(4):
            tr_read(g, vB1 + (tau * 4 + k) * 4, vTR0 if HALF and k < 2 else vTR1, k * 2048 + tau * 32, 64)
    if not opt.get("w2late", False):
        g("s_waitcnt vmcnt(0)")
        for t in range(8):
            tr_read(g, vB2 + 4 * t, vTR2, t * 32, 256)
    g("s_waitcnt lgkmcnt(0)")
    stamp(g, 10 if opt.get("fine") else 6)

    def pk(d, a_, b_):
        g(f"v_pk_add_f32 {v(d,2)}, {v(a_,2)}, {v(b_,2)}")

    def issy():
        for G_ in range(8):
            g(f"s_mov_b32 {sT1}, {WS_YS + G_*4096}", f"buffer_load_dwordx4 {v(16+4*G_,4)}, v{vYA}, {srd(SRD_WS)}, {sT1} offen sc1")
    if opt.get("split", True):
        poll2(g, "p_y", issy, 4, lambda: intag_part(g, range(16, 32), vTAU, 12, True), lambda: intag_part(g, range(32, 48), vTAU, 12, False))
    else:
        poll(g, "p_y", issy, lambda: check_intag(g, range(16, 48), vTAU, 12))
    stamp(g, 7)
    if opt.get("probe") == "ygot":
        g("s_memrealtime s[92:93]")
    lab = g.lab("noep")
    g(f"s_or_b32 {sT0}, {sPHI}, {sA}", f"s_cmp_lg_u32 {sT0}, 0", f"s_cbranch_scc1 {lab}", "s_add_u32 s30, s30, 1",
      "v_mov_b32 v12, 0", "v_mov_b32 v13, s30", "s_mov_b64 exec, 1", f"buffer_store_dword v13, v12, {srd(SRD_WS)}, 0 offen",
      "s_mov_b64 exec, -1", f"{lab}:")
    for e in (0, 2):
        pk(16 + e, 16 + e, 20 + e); pk(24 + e, 24 + e, 28 + e); pk(32 + e, 32 + e, 36 + e); pk(40 + e, 40 + e, 44 + e)
    for e in (0, 2):
        pk(16 + e, 16 + e, 24 + e); pk(32 + e, 32 + e, 40 + e)
    for e in (0, 2):
        pk(16 + e, 16 + e, 32 + e)
    for e in (0, 2):
        g(f"v_pk_fma_f32 {v(16+e,2)}, {v(16+e,2)}, {v(vGA3+e,2)}, {v(vX3+e,2)}")
    for e in (0, 2):
        g(f"v_pk_mul_f32 {v(24+e,2)}, {v(16+e,2)}, {v(vC3+e,2)}")
    g("v_cvt_pk_bf16_f32 v24, v24, v25", "v_cvt_pk_bf16_f32 v25, v26, v27", f"ds_write_b64 v{vZA}, v[24:25]")
    for k in range(4):
        g(f"ds_read_b128 {v(28+4*k,4)}, v{vAA} offset:{k*64}")
    g(f"ds_write_b128 v{vXA}, v[16:19] offset:{L_X1}",
      "v_pk_add_f32 v[20:21], v[16:17], v[18:19]", "v_mul_f32 v49, v16, v16", "v_add_f32 v48, v20, v21",
      "v_fmac_f32 v49, v17, v17", "v_fmac_f32 v49, v18, v18", "v_fmac_f32 v49, v19, v19")
    rowreduce(g, [48, 49], "v_add_f32")
    g("s_waitcnt lgkmcnt(1)")
    for k in range(4):
        for tau in range(2):
            mfma(g, 16 + 4 * tau, 28 + 4 * k, vB1 + (tau * 4 + k) * 4, k == 0)
    if opt.get("w2late", False):
        for t in range(8):
            tr_read(g, vB2 + 4 * t, vTR2, t * 32, 256)
    swapreduce(g, [48, 49], "v_add_f32", [50, 51], "16")
    g("s_mov_b32 exec_lo, 1", "s_mov_b32 exec_hi, 1", f"ds_write_b64 v{vSW}, v[48:49] offset:{L_STAT}",
      "s_mov_b32 exec_lo, -1", "s_mov_b32 exec_hi, 0",
      f"ds_write_b128 v{vRA}, v[16:19] offset:{L_RED3}", f"ds_write_b128 v{vRA}, v[20:23] offset:{L_RED3 + 512}",
      "s_mov_b64 exec, -1", "s_waitcnt lgkmcnt(0)", "s_barrier")
    if opt.get("fine"): stamp(g, 2)
    for w in range(4):
        g(f"ds_read_b32 v{12+w}, v{vUA} offset:{L_RED3 + w*1024}", f"ds_read_b32 v{16+w}, v{vUA} offset:{L_RED3 + w*1024 + 8}",
          f"ds_read_b32 v{20+w}, v{vUA} offset:{L_RED3 + w*1024 + 256}")
    g(f"ds_read_b128 v[24:27], v{vSA} offset:{L_STAT}", f"ds_read_b128 v[28:31], v{vSA} offset:{L_STAT + 16}", "s_waitcnt lgkmcnt(0)")
    pk(24, 24, 26); pk(28, 28, 30); pk(12, 12, 14); pk(16, 16, 18); pk(20, 20, 22); pk(24, 24, 28)
    g("v_add_f32 v12, v12, v13", "v_add_f32 v16, v16, v17", "v_add_f32 v20, v20, v21")
    g(f"v_mul_f32 v24, {hex(f2u(1/512))}, v24", f"v_mul_f32 v25, {hex(f2u(1/512))}, v25",
      "v_fma_f32 v25, -v24, v24, v25", f"v_add_f32 v25, {hex(f2u(1e-5))}, v25", "v_rsq_f32 v25, v25",
      "v_fma_f32 v12, -v24, v16, v12", "v_fma_f32 v12, v12, v25, v20")
    silu(g, [12], [13])
    g("v_cvt_pk_bf16_f32 v12, v12, v12", f"ds_write_b16 v{vGW}, v12 offset:{L_ACTG}",
      f"ds_read_b128 v[16:19], v{vGR} offset:{L_ACTG}", "s_waitcnt lgkmcnt(0)")
    if opt.get("fine"): stamp(g, 3)
    for t in range(8):
        mfma(g, 128 + 4 * t, vB2 + 4 * t, 16, True)
    if opt.get("ps1", False):
        g("s_mov_b32 s60, 0xcccccccc", "s_mov_b32 s61, 0xcccccccc", "s_mov_b32 s62, 0xf0f0f0f0", "s_mov_b32 s63, 0xf0f0f0f0",
          "s_mov_b32 s78, 0xff00ff00", "s_mov_b32 s79, 0xff00ff00")
        for tp in range(4):
            for e in range(4):
                g(f"v_cndmask_b32 v{128+8*tp+e}, v{128+8*tp+e}, v{132+8*tp+e}, s[60:61]")
        for tp in range(2):
            for e in range(4):
                g(f"v_cndmask_b32 v{128+16*tp+e}, v{128+16*tp+e}, v{136+16*tp+e}, s[62:63]")
        for e in range(4):
            g(f"v_cndmask_b32 v{128+e}, v{128+e}, v{144+e}, s[78:79]")
        for e in range(4):
            tagify(128 + e, 128 + e)
        g(f"buffer_store_dwordx4 v[128:131], v{vPA}, {srd(SRD_WS)}, s68 offen sc1 ;@pspub")
    else:
        g(*EX8)
        for t in range(8):
            if t == 7:
                g("s_nop 1")
            for e in range(4):
                tagify(128 + 4 * t + e, 128 + 4 * t + e)
            g(f"buffer_store_dwordx4 {v(128+4*t,4)}, v{vPA}, {srd(SRD_WS)}, s68 offen offset:{t*128} sc1 ;@pspub")
    g("s_mov_b64 exec, -1")
    stamp(g, 8)
    g(f"s_cmp_lg_u32 {sA}, 0", "s_cbranch_scc1 L_exit", f"s_cmp_ge_u32 {sPHI}, 32", "s_cbranch_scc1 L_exit")
    g("v_lshrrev_b32 v9, 3, v0", "v_lshlrev_b32 v8, 12, v9", "v_and_b32 v10, 7, v0", "v_lshlrev_b32 v10, 4, v10", "v_add_u32 v8, v8, v10",
      "v_cmp_gt_u32 vcc, 3, v9", f"s_lshl_b32 {sT0}, {sPHI}, 7", f"s_add_u32 {sT0}, {sT0}, {WS_PS}",
      "v_cndmask_b32 v11, v10, v8, vcc", "v_cndmask_b32 v12, 0, 1.0, vcc",
      f"ds_read_b128 v[44:47], v{vFA} offset:{L_X1}", f"v_lshrrev_b32 v48, 1, v{vFA}",
      "s_mov_b32 s72, s24", "s_mov_b32 s73, s25", "s_mov_b32 s74, 2048", "s_mov_b32 s75, 0x20000")

    def issp():
        for k in range(6):
            vv = 11 if k == 5 else 8
            g(f"s_add_u32 {sT1}, {sT0}, {k*8*4096}", f"buffer_load_dwordx4 {v(16+4*k,4)}, v{vv}, {srd(SRD_WS)}, {sT1} offen sc1")
    if opt.get("split", True):
        poll2(g, "p_ps", issp, 3, lambda: intag_part(g, range(16, 28), vTAU, 13, True), lambda: intag_part(g, range(28, 40), vTAU, 13, False))
    else:
        poll(g, "p_ps", issp, lambda: check_intag(g, range(16, 40), vTAU, 13))
    stamp(g, 9)
    for e in (0, 2):
        pk(16 + e, 16 + e, 20 + e); pk(24 + e, 24 + e, 28 + e)
    for e in range(4):
        g(f"v_fma_f32 v{32+e}, v{36+e}, v12, v{32+e}")
    for e in (0, 2):
        pk(16 + e, 16 + e, 24 + e)
    for e in (0, 2):
        pk(16 + e, 16 + e, 32 + e)
    g("s_nop 0")
    for e in range(4):
        g(f"v_add_f32_dpp v{16+e}, v{16+e}, v{16+e} row_ror:8 {DPPF}")
    swapreduce(g, range(16, 20), "v_add_f32", range(20, 24), "16")
    swapreduce(g, range(16, 20), "v_add_f32", range(20, 24), "32")
    g("s_waitcnt lgkmcnt(0)")
    for e in (0, 2):
        g(f"v_pk_fma_f32 {v(16+e,2)}, {v(16+e,2)}, {v(vGB+e,2)}, {v(44+e,2)}")
    g("v_cvt_pk_bf16_f32 v16, v16, v17", "v_cvt_pk_bf16_f32 v17, v18, v19",
      "s_mov_b64 exec, 0xff", "buffer_store_dwordx2 v[16:17], v48, s[72:75], 0 offen")
    stamp(g, 10)
    dbgmax(g, 4)
    if opt.get("probe"):
        lp = g.lab("probe")
        g(f"s_cmp_lg_u32 {sPHI}, 0", "s_cbranch_scc1 L_exit", "s_memrealtime s[94:95]", "s_waitcnt lgkmcnt(0)")
        if opt["probe"] == "total":
            g("s_mov_b32 s92, s94")
        if opt["probe"] == "zero":
            g("s_mov_b32 s92, s90")
        if opt["probe"] == "loc":
            g("s_mul_i32 s92, s71, 800", "s_add_u32 s92, s92, s90")
        g("s_sub_u32 s92, s92, s90", "s_min_u32 s92, s92, 10000", "s_add_u32 s92, s92, s94",
          f"{lp}:", "s_memrealtime s[96:97]", "s_waitcnt lgkmcnt(0)", "s_sub_u32 s96, s96, s92", "s_cmp_lt_i32 s96, 0", f"s_cbranch_scc1 {lp}")
    end(g)


DESC = """\
;
; One persistent launch, 256 workgroups (one per CU) of 8 waves.  id = x + 8*r; head h = 4x + (r&3), j = r>>2, batch b = j>>2,
; key split s = j&3 (1024 keys per workgroup).
;   waves 4-7  helpers: mod = silu(c) @ w_mod (K-quarter partials), h1 = LN(x)*(1+ca)+sa, q partials, q gather; later the wo stage
; Hand-offs through d_ws carry a per-launch tag (epoch word + 1) in the low 10 bits of every f32 word; the bf16 O slots use a
; all 32 workgroups of the group report the same XCC id and write-through stores otherwise, so any placement is correct.
"""


def generate(opt=None):
    global STAMPS, SKIP, POLL_LIMIT, DBGT, NL, LDS_SIZE
    opt = dict(opt or {})
    DBGT = opt.get("dbgt", False)
    POLL_LIMIT = opt.get("poll_limit", 400000)
    SKIP = set(opt.get("skip", ()))
    STAMPS = opt.get("stamps", False)
    NL = opt.get("NL", 24)
    LDS_SIZE = L_KB + 4 * NL * 1024
    g = G()
    hdr = open("cdna_kernels/" + NAME + ".s.ref").read().split("\n")
    for line in hdr:
        if line.startswith(";") and "@launch" not in line and "Override launch" not in line and "grid=ceil" not in line:
            g(line)
        elif not line.startswith(";"):
            break
    g(DESC.rstrip("\n"))
    g(f"; @launch grid=(256,1,1) block=(512,1,1) lds={LDS_SIZE}")
    g('.amdgcn_target "amdgcn-amd-amdhsa--gfx950"', ".text", f".globl {NAME}_kernel", ".p2align 8",
      f".type {NAME}_kernel,@function", f"{NAME}_kernel:")
    stamp(g, 0)
    gen_entry(g, opt)
    if STAMPS:
        for k in range(1, NSTAMP):
            g(f"s_mov_b32 s{80+2*k}, 0")
    dbgmax(g, 0, True)
    dbgmax(g, 1)
    if opt.get("st_ka"):
        stamp(g, 8)
    g("s_cmp_ge_u32 s3, 4", "s_cbranch_scc1 L_aux")
    gen_stream(g, opt)
    g("L_aux:")
    if 'aux' in SKIP:
        g("s_endpgm")
    gen_aux(g, opt)
    g("L_exit:")
    end(g)
    g("L_end:", "s_endpgm")
    g('.section .rodata,"a"', ".p2align 6", f".amdhsa_kernel {NAME}_kernel",
      "  .amdhsa_next_free_vgpr 256", "  .amdhsa_next_free_sgpr 102", "  .amdhsa_accum_offset 256",
      "  .amdhsa_group_segment_fixed_size 0", "  .amdhsa_kernarg_size 104", "  .amdhsa_user_sgpr_count 2",
      "  .amdhsa_user_sgpr_kernarg_segment_ptr 1", "  .amdhsa_system_sgpr_workgroup_id_x 1",
      "  .amdhsa_float_denorm_mode_32 3", ".end_amdhsa_kernel")
    txt = g.text()
    drop = set(opt.get("drop", ()))
    kept = []
    for line in txt.split("\n"):
        if ";@" in line:
            nm = line.split(";@")[1].strip()
            line = line.split(";@")[0].rstrip()
            if nm in drop:
                continue
        kept.append(line)
    return "\n".join(kept)


if __name__ == "__main__":
    out = sys.argv[1] if len(sys.argv) > 1 else "cdna_kernels/" + NAME + ".s"
    opt = eval(sys.argv[2]) if len(sys.argv) > 2 else {}
    open(out, "w").write(generate(opt))
    print("wrote", out)
```

```python
import struct
import sys

NAME = "adaLN_cond__gqa_block_cached__dense_activation_silu__decode"

WS_EPOCH = 0x0
WS_MODP = 0x1000
WS_MODF = 0x19000
WS_ML = 0x20000
WS_QP = 0x30000
WS_OS = 0x70000
WS_XL = 0x28000
WS_YS = 0x80000
WS_PS = 0x98000
WS_YP = 0xD0000
WS_STAMP = 0x100000
WS_SIZE = 0x120000

L_Q = 0x0000
L_MLW = 0x0100
L_CNT = 0x0180
L_RED = 0x0200
L_RED2 = 0x0A00
L_RED3 = 0x1200
L_STAT = 0x2200
L_ACT1 = 0x2300
L_ACT2 = 0x2500
L_ACTG = 0x2600
L_ACT3 = 0x2800
L_X1 = 0x4000
L_WMOD = 0x5000
L_WQ = 0x9000
L_KB = 0xD000
NL = 24
LDS_SIZE = L_KB + 4 * NL * 1024

sX, sR, sH, sJ, sB, sS = "s48", "s49", "s50", "s51", "s52", "s53"
sT0, sT1, sT2, sT3 = "s54", "s55", "s56", "s57"
sA = "s58"
sPHI = "s59"
sM1, sM0 = "s[60:61]", "s[62:63]"
sCNT = "s70"
sTAU = "s31"
SRD_A, SRD_B, SRD_WS = 32, 36, 40
POLL_LIMIT = 400000
TAGMASK = 0x3FF

LOG2E = 1.4426950408889634
CS = (128 ** -0.5) * LOG2E
STAMPS = False
NSTAMP = 11
SKIP = set()


def f2u(x):
    return struct.unpack("<I", struct.pack("<f", x))[0]


class G:
    def __init__(self):
        self.L = []
        self.n = 0

    def __call__(self, *txt):
        for t in txt:
            self.L.extend(t.split("\n"))

    def lab(self, base):
        self.n += 1
        return f"L_{base}_{self.n}"

    def text(self):
        return "\n".join(self.L) + "\n"


def v(a, n=1):
    return f"v{a}" if n == 1 else f"v[{a}:{a+n-1}]"


def srd(n):
    return f"s[{n}:{n+3}]"


def make_srd(g, d, plo, off, total):
    if isinstance(off, int):
        assert off == 0
        g(f"s_mov_b32 s{d}, s{plo}", f"s_mov_b32 s{d+1}, s{plo+1}", f"s_mov_b32 s{d+2}, {total}")
    else:
        g(f"s_add_u32 s{d}, s{plo}, {off}", f"s_addc_u32 s{d+1}, s{plo+1}, 0",
          f"s_sub_u32 s{d+2}, {total}, {off}")
    g(f"s_mov_b32 s{d+3}, 0x20000")


DPPF = "row_mask:0xf bank_mask:0xf"


def rowreduce(g, regs, op):
    for ctl in ("row_ror:8", "row_ror:4", "row_ror:2", "row_ror:1"):
        g("s_nop 1" if len(regs) < 3 else "s_nop 0")
        for r in regs:
            g(f"{op}_dpp v{r}, v{r}, v{r} {ctl} {DPPF}")


def swapreduce(g, regs, op, tmps, which):
    sw = f"v_permlane{which}_swap_b32"
    g("s_nop 0")
    for r, t in zip(regs, tmps):
        g(f"v_mov_b32 v{t}, v{r}")
    g("s_nop 1")
    for r, t in zip(regs, tmps):
        g(f"{sw} v{r}, v{t}")
    g("s_nop 1")
    for r, t in zip(regs, tmps):
        g(f"{op} v{r}, v{r}, v{t}")


def allreduce(g, regs, op, tmps):
    rowreduce(g, regs, op)
    swapreduce(g, regs, op, tmps, "16")
    swapreduce(g, regs, op, tmps, "32")


sDRY = "s71"


def nodry(g):
    lab = g.lab("nd")
    g(f"s_cmp_lg_u32 {sDRY}, 0", f"s_cbranch_scc1 {lab}")
    return lab


def poll(g, name, issue, check, pre=None, dry=False, sleep=0):
    g(f"s_mov_b32 {sCNT}, {sDRY if dry else 0}")
    stages = ([pre] if pre else []) + [(issue, check)]
    dn = g.lab(name + "_done")
    for iss, chk in stages:
        lp = g.lab(name)
        g(f"{lp}:")
        if sleep:
            g(f"s_sleep {sleep}")
        i0 = len(g.L)
        iss()
        for i in range(i0, len(g.L)):
            if g.L[i].startswith("buffer_load"):
                g.L[i] += f" ;@ld_{name}"
        g("s_waitcnt vmcnt(0)")
        chk()
        g(f"s_add_u32 {sCNT}, {sCNT}, 1", f"s_cmp_gt_u32 {sCNT}, {POLL_LIMIT}",
          f"s_cbranch_scc1 {dn}", f"s_cbranch_vccnz {lp}")
    g(f"{dn}:")


def intag_part(g, regs, vtau, tmp, first, last=None):
    regs = list(regs)
    last = (not first) if last is None else last
    for r in regs:
        g(f"v_xor_b32 v{r}, v{r}, v{vtau}")
    if first:
        g(f"v_or_b32 v{tmp}, v{regs[0]}, v{regs[1]}")
        regs = regs[2:]
    while len(regs) >= 2:
        g(f"v_or3_b32 v{tmp}, v{tmp}, v{regs[0]}, v{regs[1]}")
        regs = regs[2:]
    if regs:
        g(f"v_or_b32 v{tmp}, v{tmp}, v{regs[0]}")
    if last:
        g(f"v_and_b32 v{tmp}, {TAGMASK}, v{tmp}", f"v_cmp_ne_u32 vcc, 0, v{tmp}")


def poll2(g, name, issue, nlate, check1, check2):
    lp, dn = g.lab(name), g.lab(name + "_done")
    g(f"s_mov_b32 {sCNT}, 0", f"{lp}:")
    i0 = len(g.L)
    issue()
    for i in range(i0, len(g.L)):
        if g.L[i].startswith("buffer_load"):
            g.L[i] += f" ;@ld_{name}"
    g(f"s_waitcnt vmcnt({nlate})")
    check1()
    g("s_waitcnt vmcnt(0)")
    check2()
    g(f"s_add_u32 {sCNT}, {sCNT}, 1", f"s_cmp_gt_u32 {sCNT}, {POLL_LIMIT}", f"s_cbranch_scc1 {dn}", f"s_cbranch_vccnz {lp}", f"{dn}:")


def check_intag(g, regs, vtau, tmp):
    intag_part(g, regs, vtau, tmp, True, True)


def check_sentinel(g, regs, tmp):
    regs = list(regs)
    g(f"v_max_u32 v{tmp}, v{regs[0]}, v{regs[1]}")
    rest = regs[2:]
    while len(rest) >= 2:
        g(f"v_max3_u32 v{tmp}, v{tmp}, v{rest[0]}, v{rest[1]}")
        rest = rest[2:]
    if rest:
        g(f"v_max_u32 v{tmp}, v{tmp}, v{rest[0]}")
    g(f"v_cmp_eq_u32 vcc, -1, v{tmp}")


def silu(g, xs, ts):
    for x, t in zip(xs, ts):
        g(f"v_mul_f32 v{t}, {hex(f2u(-LOG2E))}, v{x}")
    for t in ts:
        g(f"v_exp_f32 v{t}, v{t}")
    g("s_nop 0")
    for t in ts:
        g(f"v_add_f32 v{t}, 1.0, v{t}")
    for t in ts:
        g(f"v_rcp_f32 v{t}, v{t}")
    g("s_nop 0")
    for x, t in zip(xs, ts):
        g(f"v_mul_f32 v{x}, v{x}, v{t}")


def dma(g, voff, srdn, soff, lds_addr, what="", imm=0):
    if what in SKIP:
        return
    g(f"s_mov_b32 m0, {lds_addr}", "s_nop 0")
    g(f"buffer_load_dwordx4 v{voff}, {srd(srdn)}, {soff} offen nt lds")


def lds_signal(g, off, vtmp):
    g("s_mov_b64 exec, 1", f"v_mov_b32 v{vtmp}, 0", f"v_mov_b32 v{vtmp+1}, 1", f"ds_add_u32 v{vtmp}, v{vtmp+1} offset:{off}", "s_mov_b64 exec, -1")


LW_SLEEP = 0


def lds_wait(g, off, target, vtmp, long=False):
    lp, dn = g.lab("lw"), g.lab("lwd")
    g(f"s_mov_b32 {sCNT}, 0", f"v_mov_b32 v{vtmp}, 0", f"{lp}:")
    if long and LW_SLEEP:
        g(f"s_sleep {LW_SLEEP}")
    g(f"ds_read_b32 v{vtmp+1}, v{vtmp} offset:{off}", "s_waitcnt lgkmcnt(0)",
      f"v_readfirstlane_b32 s47, v{vtmp+1}", f"s_add_u32 {sCNT}, {sCNT}, 1", f"s_cmp_gt_u32 {sCNT}, {POLL_LIMIT * 4 + 4}", f"s_cbranch_scc1 {dn}",
      f"s_cmp_lt_u32 s47, {target}", f"s_cbranch_scc1 {lp}", f"{dn}:")


def store_sel(g, sflag, *instrs):
    l1, l2 = g.lab("wt"), g.lab("wte")
    g(f"s_cmp_eq_u32 {sflag}, 0", f"s_cbranch_scc1 {l1}")
    for i in instrs:
        g(i.replace(" @SC", ""))
    g(f"s_branch {l2}", f"{l1}:")
    for i in instrs:
        g(i.replace(" @SC", " sc1"))
    g(f"{l2}:")


def stamp(g, k):
    if STAMPS:
        g(f"s_memrealtime s[{80+2*k}:{81+2*k}]")


DBGT = False


def dbgmax(g, slot, invert=False):
    if not DBGT:
        return
    lab = g.lab("dbg")
    if slot < 4:
        g("s_and_b32 s74, s2, 15", "s_or_b32 s74, s74, s3", "s_cmp_lg_u32 s74, 0", f"s_cbranch_scc1 {lab}")
    g("s_memrealtime s[74:75]", "s_waitcnt lgkmcnt(0)")
    if invert:
        g("s_not_b32 s74, s74")
    g("s_mov_b64 s[76:77], exec", "s_mov_b64 exec, 1", "v_mov_b32 v252, s74", f"v_mov_b32 v253, {slot*4 + 32}",
      "global_atomic_umax v253, v252, s[26:27]", "s_mov_b64 exec, s[76:77]", f"{lab}:")


def end(g):
    if STAMPS:
        g("s_mov_b64 exec, -1", "s_waitcnt lgkmcnt(0)")
        for k in range(NSTAMP):
            g(f"v_writelane_b32 v250, s{80+2*k}, {k}")
        g("s_lshl_b32 s72, s2, 3", "s_add_u32 s72, s72, s3", "s_lshl_b32 s72, s72, 6", f"s_add_u32 s72, s72, {WS_STAMP}",
          "s_mov_b32 s76, s28", "s_mov_b32 s77, s29", f"s_mov_b32 s78, {WS_SIZE}", "s_mov_b32 s79, 0x20000",
          "v_lshlrev_b32 v251, 2, v0", f"s_mov_b64 exec, {hex((1 << NSTAMP) - 1)}",
          "buffer_store_dword v250, v251, s[76:79], s72 offen")
    g("s_endpgm")


def tr_addr(g, dst, tmp, vI, vG, rowshift, base=None):
    g(f"v_lshlrev_b32 v{dst}, 3, v{vG}", f"v_lshrrev_b32 v{tmp}, 2, v{vI}", f"v_add_u32 v{dst}, v{dst}, v{tmp}",
      f"v_lshlrev_b32 v{dst}, {rowshift}, v{dst}", f"v_and_b32 v{tmp}, 3, v{vI}", f"v_lshlrev_b32 v{tmp}, 3, v{tmp}",
      f"v_add_u32 v{dst}, v{dst}, v{tmp}")
    if base is not None:
        g(f"v_add_u32 v{dst}, {base}, v{dst}")


def tr_read(g, reg, vaddr, off, rowbytes):
    g(f"ds_read_b64_tr_b16 {v(reg,2)}, v{vaddr} offset:{off}", f"ds_read_b64_tr_b16 {v(reg+2,2)}, v{vaddr} offset:{off + 4*rowbytes}")


def mfma(g, d, a, b, first):
    g(f"v_mfma_f32_16x16x32_bf16 {v(d,4)}, {v(a,4)}, {v(b,4)}, {'0' if first else v(d,4)}")


def backoff(g, n):
    while n > 0:
        g(f"s_sleep {min(n, 127)}")
        n -= min(n, 127)


def ids(g):
    g(f"s_and_b32 {sT0}, {sR}, 3", f"s_lshl_b32 {sH}, {sX}, 2", f"s_add_u32 {sH}, {sH}, {sT0}",
      f"s_lshr_b32 {sJ}, {sR}, 2", f"s_lshr_b32 {sB}, {sJ}, 2", f"s_and_b32 {sS}, {sJ}, 3")


def gen_entry(g, opt):
    if opt.get("probe"):
        g("s_memrealtime s[90:91]")
    g("s_cmp_ge_u32 s2, 0x100", "s_cbranch_scc1 L_end",
      "s_load_dwordx16 s[4:19], s[0:1], 0", "s_load_dwordx8 s[20:27], s[0:1], 64", "s_load_dwordx2 s[28:29], s[0:1], 96",
      "v_lshrrev_b32 v1, 6, v0", "v_and_b32 v0, 63, v0", f"s_and_b32 {sX}, s2, 7", "v_readfirstlane_b32 s3, v1", f"s_lshr_b32 {sR}, s2, 3")
    g(f"s_lshr_b32 s65, {sR}, 4", "s_lshl_b32 s65, s65, 3", f"s_add_u32 s65, s65, {sX}", "s_lshl_b32 s65, s65, 2",
      f"s_and_b32 {sT1}, {sR}, 3", f"s_add_u32 s65, s65, {sT1}", "s_lshl_b32 s65, s65, 2", f"s_bfe_u32 {sT1}, {sR}, 0x20002",
      f"s_add_u32 s65, s65, {sT1}", "s_lshl_b32 s65, s65, 18",
      f"s_lshl_b32 {sT1}, s3, 12", "v_lshlrev_b32 v46, 4, v0", f"s_mul_i32 s64, s3, {NL*1024}", f"v_add_u32 v1, {sT1}, v46",
      f"s_add_u32 s64, s64, {L_KB}", "s_waitcnt lgkmcnt(0)")


def gen_stream(g, opt):
    W = opt.get("W", 7)
    NS = 48
    vOFF, vQ, vM, vD = 1, 2, 6, 10
    vB = [14, 18]
    vS, vT, vX, vSL, vLDS = 22, 26, 42, 48, 46
    NREG_K = 64 - NL
    URG = opt.get("urgent_r", 8)
    WV = opt.get("WV", 6)
    W0 = opt.get("W0", W)
    I_WQ, I_LATE = opt.get("i_wq", 14), opt.get("i_late", 40)

    order = [("K", n) for n in range(NREG_K, 64)] + [("K", n) for n in range(NREG_K)] + [("V", n) for n in range(64)]

    def slot_of(kind, n):
        return vSL + 4 * ((n if kind == "K" else NREG_K + n) % NS)

    def wmod_dma():
        for k in range(4):
            g(f"s_mov_b32 s68, {k * 8 * 6144}", f"s_add_u32 m0, s71, {k*1024}", "s_nop 0")
            if 'p1' not in SKIP:
                g("buffer_load_dwordx4 v3, s[76:79], s68 offen nt lds")

    def wq_dma():
        for k in range(4):
            g(f"s_mov_b32 s68, {k * 4 * 8192}", f"s_add_u32 m0, s67, {k*1024}", "s_nop 0")
            if 'wq' not in SKIP:
                g("buffer_load_dwordx4 v2, s[72:75], s68 offen nt lds")

    g("; ---- stream waves: K backlog (LDS first, then register slots), weight blocks for the helpers")
    g(f"s_add_u32 s{SRD_A}, s6, s65", f"s_addc_u32 s{SRD_A+1}, s7, 0", f"s_mov_b32 s{SRD_A+2}, 0x40000", f"s_mov_b32 s{SRD_A+3}, 0x20000")
    FIRST = opt.get("wmod_first", False)

    def wmod_setup():
        ids(g)
        g("v_add_u32 v46, s64, v46")
        g(f"s_lshr_b32 s68, {sR}, 2", f"s_and_b32 s69, {sR}, 3", "s_lshl_b32 s69, s69, 2", "s_add_u32 s69, s69, s3",
          f"s_mul_i32 s69, s69, {32*6144}", "s_lshl_b32 s68, s68, 10", "s_add_u32 s69, s69, s68", f"s_lshl_b32 s68, {sX}, 7", "s_add_u32 s69, s69, s68",
          f"s_cmp_ge_u32 {sR}, 24", "s_cselect_b32 s69, 0, s69",
          "v_lshrrev_b32 v3, 3, v0", "v_mul_u32_u24 v3, 0x1800, v3", "v_and_b32 v4, 7, v0", "v_lshlrev_b32 v4, 4, v4", "v_add_u32 v3, v3, v4",
          "s_lshl_b32 s71, s3, 12", f"s_add_u32 s71, s71, {L_WMOD}")
        make_srd(g, 76, 22, "s69", 512 * 3072 * 2)
        Lnp = g.lab("nourg")
        g(f"s_cmp_ge_u32 {sR}, {URG}", f"s_cbranch_scc1 {Lnp}")
        wmod_dma()
        g(f"{Lnp}:")
    if FIRST:
        wmod_setup()

    if opt.get("rot") == 1:
        g(f"s_add_u32 s46, {sR}, {sX}", "s_mul_i32 s46, s46, 5")
    elif opt.get("rot") == 2:
        g(f"s_mul_i32 s46, {sX}, 2", f"s_lshr_b32 s45, {sR}, 4", "s_add_u32 s46, s46, s45")
    elif opt.get("rot") == 3:
        g(f"s_mov_b32 s46, {sR}")
    state = {"K": None, "V": None, "i": 0}
    if STAMPS:
        g("s_memtime s[98:99]")

    def issue_next():
        i = state["i"]
        kind, n = order[i]
        rho, t = n >> 2, n & 3
        sreg, sr = (sT2, SRD_A) if kind == "K" else (sT3, SRD_B)
        if i >= W0:
            g(f"s_waitcnt vmcnt({(WV if i >= NL + NS else W) - 1})")
        ROT = opt.get("rot")

        def set_soff(extra):
            if ROT:
                g(f"s_add_u32 {sreg}, s46, {rho}", f"s_and_b32 {sreg}, {sreg}, 15", f"s_lshl_b32 {sreg}, {sreg}, 14")
                if extra:
                    g(f"s_add_u32 {sreg}, {sreg}, {extra}")
            else:
                g(f"s_mov_b32 {sreg}, {rho * 16384 + extra}")
        if kind == "K" and n >= NREG_K:
            set_soff(t * 1024)
            g(f"s_add_u32 m0, s64, {(n - NREG_K) * 1024}")
            state[kind] = None
            g("s_nop 0", f"buffer_load_dwordx4 v{vOFF}, {srd(sr)}, {sreg} offen nt lds")
        else:
            if state[kind] != rho:
                set_soff(0)
                state[kind] = rho
            g(f"buffer_load_dwordx4 {v(slot_of(kind, n), 4)}, v{vOFF}, {srd(sr)}, {sreg} offen offset:{t*1024} nt")
        state["i"] = i + 1

    def issued_after(kind, n):
        return state["i"] - 1 - order.index((kind, n))

    NBACK = NL + NS
    for i in range(NBACK):
        issue_next()
        if i == W0 - 1:
            if not FIRST:
                wmod_setup()
            g(f"s_add_u32 s{SRD_B}, s8, s65", f"s_addc_u32 s{SRD_B+1}, s9, 0", f"s_mov_b32 s{SRD_B+2}, 0x40000", f"s_mov_b32 s{SRD_B+3}, 0x20000")
            g(f"s_lshl_b32 s66, {sJ}, 19", f"s_lshl_b32 s67, {sH}, 8", "s_add_u32 s66, s66, s67", "s_lshl_b32 s67, s3, 17", "s_add_u32 s66, s66, s67")
            make_srd(g, 72, 10, "s66", 512 * 4096 * 2)
            g("v_lshrrev_b32 v2, 4, v0", "v_lshlrev_b32 v2, 13, v2", "v_and_b32 v4, 15, v0", "v_lshlrev_b32 v4, 4, v4", "v_add_u32 v2, v2, v4",
              "s_lshl_b32 s67, s3, 12", f"s_add_u32 s67, s67, {L_WQ}")
            g("s_barrier")
        if i == W0 and opt.get("st_ka"):
            stamp(g, 5)
        if i == (W0 if FIRST else W0 - 1 + W):
            lab = g.lab("sigm")
            g(f"s_cmp_ge_u32 {sR}, {URG}", f"s_cbranch_scc1 {lab}")
            lds_signal(g, L_CNT + 4, 4)
            g(f"{lab}:")
        if i == I_WQ:
            wq_dma()
        if i == I_WQ + W:
            lds_signal(g, L_CNT + 8, 4)
        if opt.get("i_q", 48) and i == opt.get("i_q", 48):
            lds_signal(g, L_CNT + 32, 4)
        if i == I_LATE:
            lab = g.lab("late")
            g(f"s_cmp_lt_u32 {sR}, {URG}", f"s_cbranch_scc1 {lab}", f"s_cmp_ge_u32 {sR}, 24", f"s_cbranch_scc1 {lab}")
            wmod_dma()
            g(f"{lab}:")
        if i == I_LATE + W:
            lab = g.lab("sigl")
            g(f"s_cmp_lt_u32 {sR}, {URG}", f"s_cbranch_scc1 {lab}")
            lds_signal(g, L_CNT + 4, 4)
            g(f"{lab}:")
    g(f"v_and_b32 v{vX}, 15, v0", f"v_lshrrev_b32 v{vX+1}, 1, v{vX}", f"v_and_b32 v{vX+2}, 1, v{vX}",
      f"v_mov_b32 v{vX+3}, 0xffff", f"v_mov_b32 v{vT}, 0xffff0000",
      f"v_cmp_eq_u32 vcc, 1, v{vX+2}", "s_nop 1", f"v_cndmask_b32 v{vX+3}, v{vX+3}, v{vT}, vcc")
    for r in range(4):
        g(f"v_cmp_eq_u32 vcc, {r}, v{vX+1}", "s_nop 1", f"v_cndmask_b32 v{vM+r}, 0, v{vX+3}, vcc")
    g("s_mov_b32 s60, 0xcccccccc", "s_mov_b32 s61, 0xcccccccc", "s_mov_b32 s62, 0xaaaaaaaa", "s_mov_b32 s63, 0xaaaaaaaa")
    for r in range(4):
        g(f"v_mov_b32 v{vD+r}, 0")
    g(f"v_lshlrev_b32 v{vX}, 4, v{vX}")
    stamp(g, 1)
    g("s_barrier")
    stamp(g, 2)
    dbgmax(g, 2)
    g(f"ds_read_b128 {v(vQ,4)}, v{vX} offset:{L_Q}", "s_waitcnt lgkmcnt(0)")

    def kreg(n):
        if n < NREG_K:
            return slot_of("K", n)
        return vSL + 4 * (16 + (n & 15))

    def dots(ns):
        for r in range(4):
            for n in ns:
                t = vT + (n & 15)
                c = "0" if r == 0 else f"v{t}"
                g(f"v_dot2_f32_bf16 v{t}, v{kreg(n)+r}, v{vQ+r}, {c}")

    def tree(gam):
        g("s_nop 2")
        for n in range(8):
            g(f"v_add_f32_dpp v{vT+n}, v{vT+n}, v{vT+n} row_ror:8 row_mask:0xf bank_mask:0x3")
            g(f"v_add_f32_dpp v{vT+n}, v{vT+n+8}, v{vT+n+8} row_ror:8 row_mask:0xf bank_mask:0xc")
        for n in range(4):
            g(f"v_add_f32_dpp v{vT+n}, v{vT+n}, v{vT+n} row_shl:4 row_mask:0xf bank_mask:0x5")
            g(f"v_add_f32_dpp v{vT+n}, v{vT+n+4}, v{vT+n+4} row_shr:4 row_mask:0xf bank_mask:0xa")
        g("s_nop 0")
        for n in range(4):
            g(f"v_add_f32_dpp v{vT+n}, v{vT+n}, v{vT+n} quad_perm:[2,3,0,1] {DPPF}")
        g(f"v_cndmask_b32 v{vT}, v{vT}, v{vT+2}, {sM1}", f"v_cndmask_b32 v{vT+1}, v{vT+1}, v{vT+3}, {sM1}", "s_nop 1")
        for n in range(2):
            g(f"v_add_f32_dpp v{vT+n}, v{vT+n}, v{vT+n} quad_perm:[1,0,3,2] {DPPF}")
        g(f"v_cndmask_b32 v{vS+gam}, v{vT}, v{vT+1}, {sM0}")

    freed = 0

    def can_issue():
        i = state["i"]
        if i >= len(order):
            return False
        kind, n = order[i]
        return n < NS - NREG_K or (NREG_K + n) % NS < freed

    every = opt.get("burst_every", 2)
    qi = 0
    for gam in range(4):
        ns_all = list(range(16 * gam, 16 * gam + 16))
        for n in ns_all:
            if n >= NREG_K:
                g(f"ds_read_b128 {v(kreg(n),4)}, v{vLDS} offset:{(n - NREG_K) * 1024}")
        for q4 in range(4):
            ns = ns_all[4 * q4: 4 * q4 + 4]
            regn = [n for n in ns if n < NREG_K]
            if regn:
                g(f"s_waitcnt vmcnt({min(63, issued_after('K', regn[-1]))})")
            if any(n >= NREG_K for n in ns):
                g("s_waitcnt lgkmcnt(0)")
            if 'qk' not in SKIP:
                dots(ns)
            if regn:
                freed = min(regn[-1] + 1, 16)
            qi += 1
            if qi % every == 0 and can_issue():
                issue_next()
        if 'qk' not in SKIP:
            tree(gam)
    freed = NS
    stamp(g, 3)
    for _ in range(opt.get("sm_issue0", 0)):
        issue_next()
    g(f"v_max3_f32 v{vX}, v{vS}, v{vS+1}, v{vS+2}", f"v_max_f32 v{vX}, v{vX}, v{vS+3}")
    allreduce(g, [vX], "v_max_f32", [vX + 1])
    g(f"v_mul_f32 v{vX}, {hex(f2u(CS))}, v{vX}", f"s_mov_b32 {sT0}, {hex(f2u(CS))}")
    issue_next()
    for r in range(4):
        g(f"v_fma_f32 v{vS+r}, v{vS+r}, {sT0}, -v{vX}")
    for r in range(4):
        g(f"v_exp_f32 v{vS+r}, v{vS+r}")
    g("s_nop 0")
    g(f"v_add_f32 v{vX+1}, v{vS}, v{vS+1}", f"v_add_f32 v{vX+2}, v{vS+2}, v{vS+3}", f"v_add_f32 v{vX+1}, v{vX+1}, v{vX+2}")
    allreduce(g, [vX + 1], "v_add_f32", [vX + 2])
    g(f"s_lshl_b32 {sT0}, s3, 3", f"v_mov_b32 v{vX+2}, {sT0}", "s_mov_b64 exec, 1",
      f"ds_write_b64 v{vX+2}, {v(vX,2)} offset:{L_MLW}", "s_mov_b64 exec, -1", "s_waitcnt lgkmcnt(0)")
    issue_next()
    g("s_barrier")
    stamp(g, 4)
    g(f"v_mov_b32 v{vX+1}, 0", f"ds_read_b128 {v(vT,4)}, v{vX+1} offset:{L_MLW}",
      f"ds_read_b128 {v(vT+4,4)}, v{vX+1} offset:{L_MLW+16}", "s_waitcnt lgkmcnt(0)",
      f"v_max3_f32 v{vX+1}, v{vT}, v{vT+2}, v{vT+4}", f"v_max_f32 v{vX+1}, v{vX+1}, v{vT+6}",
      f"v_sub_f32 v{vX}, v{vX}, v{vX+1}", f"v_exp_f32 v{vX}, v{vX}", "s_nop 0")
    for r in range(4):
        g(f"v_mul_f32 v{vS+r}, v{vS+r}, v{vX}")
    for r in range(4):
        g(f"v_cvt_pk_bf16_f32 v{vS+r}, v{vS+r}, v{vS+r}")
    vRA, vOA, vOB = vT + 8, vT + 9, vT + 10
    g(f"v_lshrrev_b32 v{vRA}, 4, v0", f"v_lshlrev_b32 v{vRA}, 7, v{vRA}", f"v_and_b32 v{vX+1}, 15, v0",
      f"v_lshlrev_b32 v{vX+1}, 2, v{vX+1}", f"v_add_u32 v{vRA}, v{vRA}, v{vX+1}", f"s_lshl_b32 s66, s3, 9", f"v_add_u32 v{vRA}, s66, v{vRA}",
      f"v_lshlrev_b32 v{vOA}, 5, v0", f"v_lshlrev_b32 v{vOB}, 4, v0",
      f"s_lshl_b32 s66, {sH}, 3", f"s_add_u32 s66, s66, {sJ}", "s_lshl_b32 s66, s66, 8", f"s_add_u32 s66, s66, {WS_OS}",
      f"v_mov_b32 v{vX+1}, 0", f"ds_read_b32 v{vX+1}, v{vX+1} offset:{L_CNT + 20}", "s_waitcnt lgkmcnt(0)", f"v_readfirstlane_b32 s67, v{vX+1}")
    make_srd(g, SRD_WS, 28, 0, WS_SIZE)

    def pv(n):
        if 'pv' in SKIP:
            return
        B = vB[n & 1]
        for r in range(4):
            g(f"v_and_b32_dpp v{B+r}, v{vS+(n>>4)}, v{vM+r} row_newbcast:{n&15} {DPPF}")
        g("s_nop 1")
        mfma(g, vD, slot_of("V", n), B, False)

    nb2b = opt.get("b2b_at", 24)
    nb3 = opt.get("b3_at", 64 - WV)
    for n in range(64):
        pos = order.index(("V", n))
        while state["i"] < len(order) and state["i"] <= pos + WV - 1:
            issue_next()
        if n == nb2b:
            if not opt.get("st_ka"):
                stamp(g, 8)
            lds_signal(g, L_CNT + 24, vX + 1)
        if n == nb3:
            if not opt.get("st_ka"):
                stamp(g, 5)
            lds_signal(g, L_CNT + 28, vX + 1)
        g(f"s_waitcnt vmcnt({min(63, issued_after('V', n))})")
        pv(n)
        cu = opt.get("catchup", 5)
        if n % cu == cu - 1 and state["i"] < len(order) and state["i"] > pos + WV:
            issue_next()
    stamp(g, 6)
    dbgmax(g, 3)
    Lno = g.lab("notlast")
    g(f"v_mov_b32 v{vT}, 0", f"v_mov_b32 v{vT+1}, 1", "s_mov_b32 exec_lo, 0x00ff00ff", "s_mov_b32 exec_hi, 0x00ff00ff", "s_nop 4")
    for r in range(4):
        g(f"ds_write_b32 v{vRA}, v{vD+r} offset:{L_RED + r*32}")
    g("s_mov_b64 exec, 1", f"ds_add_rtn_u32 v{vT+1}, v{vT}, v{vT+1} offset:{L_CNT}", "s_waitcnt lgkmcnt(0)",
      f"v_readfirstlane_b32 {sT2}, v{vT+1}", "s_mov_b64 exec, 0xffff", f"s_cmp_lg_u32 {sT2}, 3", f"s_cbranch_scc1 {Lno}")
    R = vSL
    for w in range(4):
        g(f"ds_read_b128 {v(R+8*w,4)}, v{vOA} offset:{L_RED + w*512}", f"ds_read_b128 {v(R+4+8*w,4)}, v{vOA} offset:{L_RED + w*512 + 16}")
    g("s_waitcnt lgkmcnt(4)")
    for e in range(0, 8, 2):
        g(f"v_pk_add_f32 {v(R+e,2)}, {v(R+e,2)}, {v(R+8+e,2)}")
    g("s_waitcnt lgkmcnt(0)")
    for e in range(0, 8, 2):
        g(f"v_pk_add_f32 {v(R+16+e,2)}, {v(R+16+e,2)}, {v(R+24+e,2)}")
    for e in range(0, 8, 2):
        g(f"v_pk_add_f32 {v(R+e,2)}, {v(R+e,2)}, {v(R+16+e,2)}")
    for r in range(4):
        g(f"v_cvt_pk_bf16_f32 v{R+r}, v{R+2*r}, v{R+2*r+1}")
    store_sel(g, "s67", f"buffer_store_dwordx4 {v(R,4)}, v{vOB}, {srd(SRD_WS)}, s66 offen @SC ;@opub")
    stamp(g, 7)
    g(f"{Lno}:")
    if STAMPS:
        g("s_memtime s[100:101]")
    end(g)


def gen_aux(g, opt):
    vTAU, vI, vG, vMSK = 1, 2, 3, 4
    EX8 = ("s_mov_b32 exec_lo, 0x00030003", "s_mov_b32 exec_hi, 0x00030003")
    SPROT = False

    def tagify(dst, src, rnd=False):
        if rnd:
            g(f"v_add_u32 v{dst}, 0x200, v{src}")
            src = dst
        g(f"v_and_or_b32 v{dst}, v{src}, v{vMSK}, v{vTAU}")

    g(f"s_load_dword s30, s[28:29], {WS_EPOCH}")
    ids(g)
    g(f"s_sub_u32 {sA}, s3, 4")
    if opt.get("codepf", 0):
        Lnp = g.lab("nopf")
        g(f"s_cmp_lg_u32 {sA}, 3", f"s_cbranch_scc1 {Lnp}", f"s_cmp_ge_u32 {sR}, {opt['codepf']}", f"s_cbranch_scc1 {Lnp}")
        g("s_getpc_b64 s[64:65]", "L_pc:", "s_sub_u32 s64, s64, (L_pc - " + NAME + "_kernel)", "s_subb_u32 s65, s65, 0",
          "v_lshlrev_b32 v8, 7, v0", "s_mov_b32 s66, (L_end - " + NAME + "_kernel)")
        for k in range(3):
            g("v_min_u32 v9, s66, v8", f"global_load_dword v{12+k}, v9, s[64:65]", "v_add_u32 v8, 0x2000, v8")
        g(f"{Lnp}:")
    lab = g.lab("zc")
    g(f"s_cmp_lg_u32 {sA}, 2", f"s_cbranch_scc1 {lab}", "v_mov_b32 v8, 0", "v_mov_b32 v9, 0", "v_mov_b32 v10, 0", "v_mov_b32 v11, 0",
      "s_nop 0")
    g("s_mov_b64 exec, 1", f"ds_write_b128 v8, v[8:11] offset:{L_CNT}", f"ds_write_b128 v8, v[8:11] offset:{L_CNT + 16}",
      f"ds_write_b128 v8, v[8:11] offset:{L_CNT + 32}", "s_mov_b64 exec, -1", "s_waitcnt lgkmcnt(0)", f"{lab}:", "s_barrier")
    make_srd(g, SRD_WS, 28, 0, WS_SIZE)
    g(f"v_and_b32 v{vI}, 15, v0", f"v_lshrrev_b32 v{vG}, 4, v0", f"v_mov_b32 v{vMSK}, {hex(0xffffffff ^ TAGMASK)}")
    g(f"s_mul_i32 {sPHI}, {sX}, 6", f"s_add_u32 {sPHI}, {sPHI}, {sR}", f"s_sub_u32 {sPHI}, {sPHI}, 24",
      f"s_cmp_lt_u32 {sR}, 24", f"s_cselect_b32 {sPHI}, 0xff, {sPHI}",
      f"s_cmp_ge_u32 {sR}, 30", f"s_cselect_b32 {sPHI}, 0xff, {sPHI}",
      f"s_cmp_ge_u32 {sPHI}, 43", f"s_cselect_b32 {sPHI}, 0xff, {sPHI}")

    def tag_ready():
        g("s_waitcnt lgkmcnt(0)", f"s_add_u32 {sTAU}, s30, 1", f"s_and_b32 {sTAU}, {sTAU}, {TAGMASK}", f"v_mov_b32 v{vTAU}, {sTAU}")

    LA1, LA2, LA3, LB1 = g.lab("a1"), g.lab("a2"), g.lab("a3"), g.lab("aux_b1")
    g(f"s_cmp_eq_u32 {sA}, 1", f"s_cbranch_scc1 {LA1}", f"s_cmp_eq_u32 {sA}, 2", f"s_cbranch_scc1 {LA2}",
      f"s_cmp_eq_u32 {sA}, 3", f"s_cbranch_scc1 {LA3}")

    g(f"s_cmp_ge_u32 {sR}, 24", f"s_cbranch_scc1 {LA3}")
    g(f"s_lshr_b32 s64, {sR}, 2", f"s_and_b32 s65, {sR}, 3")
    make_srd(g, SRD_B, 20, 0, 2048)
    g(f"v_and_b32 v5, 1, v{vG}", "v_lshlrev_b32 v8, 10, v5", f"v_lshlrev_b32 v9, 4, v{vI}", "v_add_u32 v8, v8, v9",
      f"s_lshl_b32 {sT1}, s65, 8", f"buffer_load_dwordx4 v[12:15], v8, {srd(SRD_B)}, {sT1} offen")
    g("v_lshlrev_b32 v8, 8, v5", "v_add_u32 v8, v8, v9")
    g(f"v_and_b32 v10, 1, v{vI}", "v_lshlrev_b32 v10, 8, v10", f"v_lshlrev_b32 v11, 4, v{vG}", "v_add_u32 v10, v10, v11")
    tr_addr(g, 11, 16, vI, vG, 7)
    g("s_waitcnt vmcnt(0)")
    for r in range(4):
        g(f"v_lshlrev_b32 v{20+2*r}, 16, v{12+r}", f"v_and_b32 v{21+2*r}, 0xffff0000, v{12+r}")
    silu(g, range(20, 28), range(28, 36))
    for r in range(4):
        g(f"v_cvt_pk_bf16_f32 v{12+r}, v{20+2*r}, v{21+2*r}")
    g(f"ds_write_b128 v8, v[12:15] offset:{L_ACT1}")
    tag_ready()
    for k in range(4):
        g(f"ds_read_b128 {v(40+4*k,4)}, v10 offset:{L_ACT1 + k*64}")
    g("s_waitcnt lgkmcnt(0)")
    lds_wait(g, L_CNT + 4, 4, 12, True)
    for t in range(4):
        for k in range(4):
            tr_read(g, 64 + (t * 4 + k) * 4, 11, L_WMOD + k * 4096 + t * 32, 128)
        g("s_waitcnt lgkmcnt(0)")
        for k in range(4):
            mfma(g, 16 + 4 * t, 64 + (t * 4 + k) * 4, 40 + 4 * k, k == 0)
    g(f"s_lshl_b32 {sT0}, s64, 3", f"s_add_u32 {sT0}, {sT0}, {sX}", f"s_lshl_b32 s66, {sT0}, 11", f"s_add_u32 s66, s66, {WS_MODP}",
      f"s_lshl_b32 {sT1}, s65, 9", f"s_add_u32 {sT0}, s66, {sT1}",
      f"v_lshlrev_b32 v8, 6, v{vI}", f"v_lshlrev_b32 v9, 4, v{vG}", "v_add_u32 v8, v8, v9", "s_nop 4")
    for r in range(16):
        tagify(16 + r, 16 + r, True)
    g(*EX8)
    for t in range(4):
        g(f"buffer_store_dwordx4 {v(16+4*t,4)}, v8, {srd(SRD_WS)}, {sT0} offen offset:{t*128} sc1 ;@modp")
    g("s_mov_b64 exec, -1")
    stamp(g, 1)
    g(f"s_branch {LB1}")

    g(f"{LA1}:")
    make_srd(g, SRD_B, 4, 0, 2048)
    g("v_lshlrev_b32 v8, 4, v0")
    g(f"buffer_load_dwordx4 v[12:15], v8, {srd(SRD_B)}, 0 offen", f"buffer_load_dwordx4 v[16:19], v8, {srd(SRD_B)}, 0 offen offset:1024")
    g("v_lshrrev_b32 v5, 2, v0", "v_and_b32 v5, 1, v5",
      "v_lshrrev_b32 v6, 3, v0", "v_and_b32 v6, 3, v6", "v_lshlrev_b32 v6, 4, v6", "v_and_b32 v7, 3, v0", "v_lshlrev_b32 v7, 2, v7",
      "v_add_u32 v6, v6, v7",
      "v_lshlrev_b32 v7, 10, v5", "v_lshlrev_b32 v9, 1, v6", "v_add_u32 v9, v9, v7",
      f"s_lshl_b32 {sT1}, {sJ}, 7", f"buffer_load_dwordx2 v[20:21], v9, {srd(SRD_B)}, {sT1} offen")
    tr_addr(g, 11, 22, vI, vG, 8)
    g("s_waitcnt vmcnt(0)")
    for b in range(2):
        for r in range(4):
            g(f"v_lshlrev_b32 v{24+8*b+2*r}, 16, v{12+4*b+r}", f"v_and_b32 v{25+8*b+2*r}, 0xffff0000, v{12+4*b+r}")
    for b in range(2):
        base = 24 + 8 * b
        g(f"v_add_f32 v{40+b}, v{base}, v{base+1}")
        for e in range(2, 8):
            g(f"v_add_f32 v{40+b}, v{40+b}, v{base+e}")
    allreduce(g, [40, 41], "v_add_f32", [44, 45])
    g(f"v_mul_f32 v40, {hex(f2u(1/512))}, v40", f"v_mul_f32 v41, {hex(f2u(1/512))}, v41")
    for b in range(2):
        base = 24 + 8 * b
        for e in range(8):
            g(f"v_sub_f32 v{base+e}, v{base+e}, v{40+b}")
        g(f"v_mul_f32 v{42+b}, v{base}, v{base}")
        for e in range(1, 8):
            g(f"v_fmac_f32 v{42+b}, v{base+e}, v{base+e}")
    allreduce(g, [42, 43], "v_add_f32", [44, 45])
    for b in range(2):
        g(f"v_mov_b32 v44, {hex(f2u(1e-5))}", f"v_fmac_f32 v44, {hex(f2u(1/512))}, v{42+b}", f"v_rsq_f32 v{42+b}, v44", "s_nop 0")
    g("v_cmp_eq_u32 vcc, 1, v5", "s_nop 1", "v_cndmask_b32 v40, v40, v41, vcc", "v_cndmask_b32 v42, v42, v43, vcc",
      "v_lshlrev_b32 v24, 16, v20", "v_and_b32 v25, 0xffff0000, v20", "v_lshlrev_b32 v26, 16, v21", "v_and_b32 v27, 0xffff0000, v21")
    for e in range(4):
        g(f"v_sub_f32 v{24+e}, v{24+e}, v40", f"v_mul_f32 v{24+e}, v{24+e}, v42")
    tag_ready()
    lds_wait(g, L_CNT + 8, 4, 12, True)
    for t in range(8):
        for k in range(2):
            tr_read(g, 64 + (t * 2 + k) * 4, 11, L_WQ + k * 8192 + t * 32, 256)
        if t % 2 == 1:
            g("s_waitcnt lgkmcnt(0)")
    g(f"s_lshl_b32 {sT0}, {sJ}, 11", f"s_add_u32 {sT0}, {sT0}, {WS_MODP}", f"s_add_u32 {sT1}, {sT0}, {8*2048}", "v_lshlrev_b32 v9, 4, v0")
    backoff(g, opt.get("saca_sl", 0))
    g("v_and_b32 v10, 31, v0", "v_lshlrev_b32 v10, 7, v10", f"s_lshl_b32 {sT2}, {sX}, 12", f"s_add_u32 {sT2}, {sT2}, {WS_XL}",
      f"s_mul_i32 {sT3}, {sTAU}, 0x00400401", f"v_mov_b32 v7, {sT3}")

    def chk_saca():
        check_intag(g, range(28, 44), vTAU, 12)
        g("v_xor_b32 v13, v52, v7", "v_sub_u32 v56, v53, v7", "v_lshrrev_b32 v14, 4, v56", "v_or3_b32 v12, v12, v13, v14", "v_cmp_ne_u32 vcc, 0, v12")
    poll(g, "p_saca",
         lambda: g(f"buffer_load_dwordx4 v[28:31], v9, {srd(SRD_WS)}, {sT0} offen sc1",
                   f"buffer_load_dwordx4 v[32:35], v9, {srd(SRD_WS)}, {sT0} offen offset:1024 sc1",
                   f"buffer_load_dwordx4 v[36:39], v9, {srd(SRD_WS)}, {sT1} offen sc1",
                   f"buffer_load_dwordx4 v[40:43], v9, {srd(SRD_WS)}, {sT1} offen offset:1024 sc1",
                   f"buffer_load_dwordx4 v[52:55], v10, {srd(SRD_WS)}, {sT2} offen sc1"),
         chk_saca)
    stamp(g, 1)
    g("s_getreg_b32 s64, hwreg(HW_REG_XCC_ID, 0, 4)", "v_cmp_ne_u32 vcc, s64, v56", "s_nop 4", "s_cmp_eq_u64 vcc, 0", "s_cselect_b32 s69, 1, 0")
    if not opt.get("local", True):
        g("s_mov_b32 s69, 0")
    g("v_mov_b32 v12, 0", "v_mov_b32 v13, s69", f"ds_write_b32 v12, v13 offset:{L_CNT + 20}")
    for e in range(4):
        g(f"v_add_f32 v{28+e}, v{28+e}, v{32+e}", f"v_add_f32 v{36+e}, v{36+e}, v{40+e}")
    swapreduce(g, [28, 29, 30, 31, 36, 37, 38, 39], "v_add_f32", range(44, 52), "32")
    g("v_cvt_pk_bf16_f32 v44, v28, v29", "v_cvt_pk_bf16_f32 v45, v30, v31", "v_cvt_pk_bf16_f32 v46, v36, v37", "v_cvt_pk_bf16_f32 v47, v38, v39")
    for e in range(4):
        src_s, src_c = 44 + e // 2, 46 + e // 2
        if e % 2 == 0:
            g(f"v_lshlrev_b32 v{28+e}, 16, v{src_s}", f"v_lshlrev_b32 v{36+e}, 16, v{src_c}")
        else:
            g(f"v_and_b32 v{28+e}, 0xffff0000, v{src_s}", f"v_and_b32 v{36+e}, 0xffff0000, v{src_c}")
    for e in range(4):
        g(f"v_add_f32 v{36+e}, 1.0, v{36+e}", f"v_fma_f32 v{24+e}, v{24+e}, v{36+e}, v{28+e}")
    g("v_cvt_pk_bf16_f32 v24, v24, v25", "v_cvt_pk_bf16_f32 v25, v26, v27",
      "v_lshlrev_b32 v9, 7, v5", "v_lshlrev_b32 v10, 1, v6", "v_add_u32 v9, v9, v10", f"ds_write_b64 v9, v[24:25] offset:{L_ACT2}",
      f"v_and_b32 v10, 1, v{vI}", "v_lshlrev_b32 v10, 7, v10", f"v_lshlrev_b32 v12, 4, v{vG}", "v_add_u32 v10, v10, v12",
      "s_waitcnt lgkmcnt(0)",
      f"ds_read_b128 v[24:27], v10 offset:{L_ACT2}", f"ds_read_b128 v[28:31], v10 offset:{L_ACT2+64}", "s_waitcnt lgkmcnt(0)")
    for k in range(2):
        for t in range(8):
            mfma(g, 128 + 4 * t, 64 + (t * 2 + k) * 4, 24 + 4 * k, k == 0)
    g(f"s_lshl_b32 {sT0}, {sH}, 13", f"s_lshl_b32 {sT1}, {sJ}, 9", f"s_add_u32 s66, {sT0}, {WS_QP}", f"s_add_u32 {sT0}, s66, {sT1}",
      f"v_and_b32 v8, 1, v{vI}", "v_lshlrev_b32 v8, 12, v8", f"v_lshrrev_b32 v9, 1, v{vI}", "v_and_b32 v9, 1, v9", "v_cmp_eq_u32 vcc, 1, v9",
      "v_lshlrev_b32 v9, 6, v9", "v_add_u32 v8, v8, v9", f"v_lshlrev_b32 v9, 4, v{vG}", "v_add_u32 v8, v8, v9", "s_nop 1")
    for tp in range(4):
        for e in range(4):
            g(f"v_cndmask_b32 v{128+8*tp+e}, v{128+8*tp+e}, v{132+8*tp+e}, vcc")
        for e in range(4):
            tagify(128 + 8 * tp + e, 128 + 8 * tp + e, True)
    g("s_mov_b32 exec_lo, 0x000f000f", "s_mov_b32 exec_hi, 0x000f000f")
    store_sel(g, "s69", *[f"buffer_store_dwordx4 {v(128+8*tp,4)}, v8, {srd(SRD_WS)}, {sT0} offen offset:{tp*128} @SC ;@qp" for tp in range(4)])
    g("s_mov_b64 exec, -1")
    stamp(g, 2)
    backoff(g, opt.get("q_sl", 0))
    if opt.get("i_q", 48):
        lds_wait(g, L_CNT + 32, 4, 12, True)
    g("v_lshlrev_b32 v8, 4, v0", f"s_lshl_b32 {sT1}, {sB}, 12", f"s_add_u32 {sT0}, s66, {sT1}")

    def issq():
        for k in range(4):
            g(f"buffer_load_dwordx4 {v(16+4*k,4)}, v8, {srd(SRD_WS)}, {sT0} offen offset:{k*1024} sc1")
    poll(g, "p_q", issq, lambda: check_intag(g, range(16, 32), vTAU, 12))
    stamp(g, 3)
    for e in range(4):
        g(f"v_add_f32 v{16+e}, v{16+e}, v{20+e}", f"v_add_f32 v{24+e}, v{24+e}, v{28+e}", f"v_add_f32 v{16+e}, v{16+e}, v{24+e}")
    swapreduce(g, range(16, 20), "v_add_f32", range(20, 24), "32")
    g("v_cvt_pk_bf16_f32 v16, v16, v17", "v_cvt_pk_bf16_f32 v17, v18, v19",
      "v_and_b32 v9, 31, v0", "v_lshlrev_b32 v9, 3, v9", f"ds_write_b64 v9, v[16:17] offset:{L_Q}")
    g(f"s_branch {LB1}")

    g(f"{LA2}:")
    tag_ready()
    g(f"s_mul_i32 {sT1}, {sTAU}, 0x00400401", "s_getreg_b32 s64, hwreg(HW_REG_XCC_ID, 0, 4)", f"s_add_u32 s64, s64, {sT1}",
      f"v_mov_b32 v8, {sT1}", "v_mov_b32 v9, s64", f"v_mov_b32 v10, {sT1}", f"v_mov_b32 v11, {sT1}", "v_lshlrev_b32 v12, 4, v0",
      f"s_lshl_b32 {sT0}, {sX}, 5", f"s_add_u32 {sT0}, {sT0}, {sR}", f"s_lshl_b32 {sT0}, {sT0}, 7", f"s_add_u32 {sT0}, {sT0}, {WS_XL}",
      "s_mov_b64 exec, 0xff", f"buffer_store_dwordx4 v[8:11], v12, {srd(SRD_WS)}, {sT0} offen sc1 ;@xl", "s_mov_b64 exec, -1")
    g(f"s_branch {LB1}")

    g(f"{LA3}:")
    tag_ready()

    g(f"{LB1}:", "s_waitcnt lgkmcnt(0)")
    stamp(g, 4)
    g("s_barrier")
    if opt.get("probe") == "b1":
        g("s_memrealtime s[92:93]")
    LnoML = g.lab("noml")
    Lni = g.lab("noinit")
    g(f"s_cmp_lg_u32 {sA}, 2", f"s_cbranch_scc1 {Lni}", "v_mov_b32 v8, 0", f"ds_read_b32 v8, v8 offset:{L_CNT + 20}",
      "v_lshlrev_b32 v12, 4, v0", "s_waitcnt lgkmcnt(0)", "v_readfirstlane_b32 s69, v8",
      "v_mov_b32 v8, -1", "v_mov_b32 v9, -1", "v_mov_b32 v10, -1", "v_mov_b32 v11, -1",
      f"s_lshl_b32 {sT0}, {sH}, 3", f"s_add_u32 {sT0}, {sT0}, {sJ}", f"s_lshl_b32 {sT0}, {sT0}, 8", f"s_add_u32 {sT0}, {sT0}, {WS_OS}",
      "s_mov_b64 exec, 0xffff")
    store_sel(g, "s69", f"buffer_store_dwordx4 v[8:11], v12, {srd(SRD_WS)}, {sT0} offen @SC ;@inito")
    g("s_mov_b64 exec, -1", f"{Lni}:")
    g("s_barrier")
    g(f"s_cmp_lg_u32 {sA}, 2", f"s_cbranch_scc1 {LnoML}")
    g("v_mov_b32 v8, 0", f"ds_read_b128 v[12:15], v8 offset:{L_MLW}", f"ds_read_b128 v[16:19], v8 offset:{L_MLW+16}", "s_waitcnt lgkmcnt(0)",
      "v_max3_f32 v20, v12, v14, v16", "v_max_f32 v20, v20, v18")
    for m in (12, 14, 16, 18):
        g(f"v_sub_f32 v{m}, v{m}, v20", f"v_exp_f32 v{m}, v{m}")
    g("s_nop 0", "v_mul_f32 v21, v12, v13", "v_fmac_f32 v21, v14, v15", "v_fmac_f32 v21, v16, v17", "v_fmac_f32 v21, v18, v19",
      f"s_mul_i32 {sT1}, {sTAU}, 0x00400401", f"v_mov_b32 v22, {sT1}", "s_getreg_b32 s64, hwreg(HW_REG_XCC_ID, 0, 4)",
      f"s_add_u32 {sT1}, {sT1}, s64", f"v_mov_b32 v23, {sT1}",
      f"s_lshl_b32 {sT0}, {sH}, 3", f"s_add_u32 {sT0}, {sT0}, {sJ}", f"s_lshl_b32 {sT0}, {sT0}, 7", f"s_add_u32 {sT0}, {sT0}, {WS_ML}",
      "v_lshlrev_b32 v8, 4, v0", "s_waitcnt vmcnt(0)", "s_mov_b64 exec, 0xff")
    store_sel(g, "s69", f"buffer_store_dwordx4 v[20:23], v8, {srd(SRD_WS)}, {sT0} offen @SC ;@ml")
    g("s_mov_b64 exec, -1")
    g(f"{LnoML}:")

    Lnf = g.lab("nofin")
    g(f"s_cmp_lg_u32 {sA}, 0", f"s_cbranch_scc1 {Lnf}", f"s_sub_u32 {sT1}, {sR}, 8",
      f"s_and_b32 {sT0}, {sR}, 3", f"s_cmp_lg_u32 {sT0}, 0", f"s_cbranch_scc1 {Lnf}", f"s_cmp_ge_u32 {sT1}, 16", f"s_cbranch_scc1 {Lnf}",
      f"s_lshr_b32 s64, {sR}, 2", f"s_lshl_b32 {sT0}, s64, 3", f"s_add_u32 {sT0}, {sT0}, {sX}", f"s_lshl_b32 s66, {sT0}, 11", f"s_add_u32 s66, s66, {WS_MODP}",
      "v_lshlrev_b32 v8, 4, v0")
    poll(g, "p_fin",
         lambda: g(f"buffer_load_dwordx4 v[16:19], v8, {srd(SRD_WS)}, s66 offen sc1",
                   f"buffer_load_dwordx4 v[20:23], v8, {srd(SRD_WS)}, s66 offen offset:1024 sc1"),
         lambda: check_intag(g, range(16, 24), vTAU, 12))
    for e in range(4):
        g(f"v_add_f32 v{16+e}, v{16+e}, v{20+e}")
    swapreduce(g, range(16, 20), "v_add_f32", range(20, 24), "32")
    g("v_cvt_pk_bf16_f32 v20, v16, v17", "v_cvt_pk_bf16_f32 v21, v18, v19",
      "v_lshlrev_b32 v16, 16, v20", "v_and_b32 v17, 0xffff0000, v20", "v_lshlrev_b32 v18, 16, v21", "v_and_b32 v19, 0xffff0000, v21")
    for e in range(4):
        tagify(16 + e, 16 + e)
    g("v_lshrrev_b32 v8, 3, v0", "v_and_b32 v8, 3, v8", "v_lshlrev_b32 v8, 6, v8", "v_lshrrev_b32 v9, 2, v0", "v_and_b32 v9, 1, v9",
      "v_lshlrev_b32 v9, 11, v9", "v_add_u32 v8, v8, v9", "v_and_b32 v9, 3, v0", "v_lshlrev_b32 v9, 4, v9", "v_add_u32 v8, v8, v9",
      f"s_sub_u32 {sT0}, s64, 2", f"s_lshl_b32 {sT0}, {sT0}, 12", f"s_lshl_b32 {sT1}, {sX}, 8", f"s_add_u32 {sT0}, {sT0}, {sT1}",
      f"s_add_u32 {sT0}, {sT0}, {WS_MODF}", "s_mov_b32 exec_hi, 0",
      f"buffer_store_dwordx4 v[16:19], v8, {srd(SRD_WS)}, {sT0} offen sc1 ;@modf", "s_mov_b64 exec, -1", f"{Lnf}:")

    LT3P, LWOP, LT3, LLEAD = g.lab("t3prep"), g.lab("woprep"), g.lab("t3"), g.lab("lead")
    g("v_mov_b32 v8, 0", f"ds_read_b32 v8, v8 offset:{L_CNT + 20}", "s_waitcnt lgkmcnt(0)", "v_readfirstlane_b32 s71, v8")
    g(f"s_cmp_eq_u32 {sPHI}, 0xff", f"s_cselect_b32 s67, 0, {sPHI}")
    g(f"s_mul_i32 {sT0}, {sA}, {128*2752}", f"s_lshl_b32 {sT1}, s67, 6", f"s_add_u32 s64, {sT0}, {sT1}")
    make_srd(g, SRD_A, 16, "s64", 512 * 1376 * 2)
    g(f"s_lshl_b32 {sT0}, s67, 15", f"s_lshl_b32 {sT1}, {sA}, 8", f"s_add_u32 s64, {sT0}, {sT1}")
    make_srd(g, SRD_B, 18, "s64", 1376 * 512 * 2)
    g("v_lshrrev_b32 v205, 2, v0", "v_mul_u32_u24 v205, 2752, v205", "v_and_b32 v10, 3, v0", "v_lshlrev_b32 v10, 4, v10",
      "v_add_u32 v205, v205, v10", f"s_lshl_b32 s65, {sA}, 13", f"s_add_u32 s65, s65, {L_KB}", "s_add_u32 s66, s65, 32768",
      f"v_lshlrev_b32 v206, 10, v{vG}", f"v_lshlrev_b32 v11, 4, v{vI}", "v_add_u32 v206, v206, v11",
      "v_mov_b32 v199, 0", "v_mov_b32 v200, 0", "v_mov_b32 v213, 0", "s_mov_b32 s68, 0")
    lds_wait(g, L_CNT + 24, 4, 12, True)
    g(f"s_cmp_eq_u32 {sPHI}, 0xff", f"s_cbranch_scc1 {LWOP}")

    vB1, vB2 = 64, 96
    vTR1, vTR2 = 207, 208
    vX3, vGA3, vC3, vGB = 224, 228, 232, 236
    g("v_lshrrev_b32 v5, 5, v0", "v_and_b32 v8, 31, v0",
      f"s_lshl_b32 s68, {sA}, 9", "v_lshlrev_b32 v9, 11, v5", "v_lshlrev_b32 v10, 4, v8", "v_add_u32 v9, v9, v10", "v_add_u32 v9, s68, v9",
      f"s_mov_b32 {sT0}, {WS_MODF}", f"s_mov_b32 {sT1}, {WS_MODF + 4096}", f"s_mov_b32 {sT2}, {WS_MODF + 8192}")
    vXA, vFA = 202, 199
    g(f"v_mov_b32 v{vXA}, v9")
    g("v_lshrrev_b32 v7, 2, v0", "v_and_b32 v7, 1, v7", f"v_lshlrev_b32 v{vFA}, 11, v7", "v_and_b32 v7, 3, v0", "v_lshlrev_b32 v7, 4, v7",
      f"v_add_u32 v{vFA}, v{vFA}, v7", f"s_and_b32 {sT3}, {sPHI}, 31", f"s_lshl_b32 {sT3}, {sT3}, 6", f"v_add_u32 v{vFA}, {sT3}, v{vFA}",
      f"s_mov_b32 s69, {WS_MODF + 3*4096}")
    poll(g, "p_modf",
         lambda: g(f"buffer_load_dwordx4 v[12:15], v9, {srd(SRD_WS)}, {sT0} offen sc1", f"buffer_load_dwordx4 v[16:19], v9, {srd(SRD_WS)}, {sT1} offen sc1",
                   f"buffer_load_dwordx4 v[20:23], v9, {srd(SRD_WS)}, {sT2} offen sc1", f"buffer_load_dwordx4 {v(vGB,4)}, v{vFA}, {srd(SRD_WS)}, s69 offen sc1"),
         lambda: check_intag(g, list(range(12, 24)) + list(range(vGB, vGB + 4)), vTAU, 28))
    g("s_mov_b32 s72, s4", "s_mov_b32 s73, s5", "s_mov_b32 s74, 2048", "s_mov_b32 s75, 0x20000")
    g("v_lshrrev_b32 v10, 1, v9", "buffer_load_dwordx2 v[40:41], v10, s[72:75], 0 offen")
    for e in range(4):
        g(f"v_and_b32 v{vGA3+e}, v{vMSK}, v{12+e}", f"v_and_b32 v{16+e}, v{vMSK}, v{16+e}", f"v_and_b32 v{20+e}, v{vMSK}, v{20+e}",
          f"v_and_b32 v{vGB+e}, v{vMSK}, v{vGB+e}", f"v_add_f32 v{20+e}, 1.0, v{20+e}")
    vZA, vYA, vAA, vRA, vUA, vSA, vGW, vGR, vPA, vSW = 201, 200, 203, 204, 209, 210, 211, 212, 213, 214
    g(f"s_mul_i32 s68, {sA}, 1536", f"s_add_u32 s68, s68, {L_ACT3}", f"v_lshlrev_b32 v{vZA}, 8, v5", "v_lshlrev_b32 v10, 3, v8",
      f"v_add_u32 v{vZA}, v{vZA}, v10", f"v_add_u32 v{vZA}, s68, v{vZA}",
      "v_cvt_pk_bf16_f32 v42, v20, v21", "v_cvt_pk_bf16_f32 v43, v22, v23",
      "v_cvt_pk_bf16_f32 v44, v16, v17", "v_cvt_pk_bf16_f32 v45, v18, v19",
      f"v_lshlrev_b32 v{vC3}, 16, v42", f"v_and_b32 v{vC3+1}, 0xffff0000, v42", f"v_lshlrev_b32 v{vC3+2}, 16, v43", f"v_and_b32 v{vC3+3}, 0xffff0000, v43",
      f"ds_write_b64 v{vZA}, v[42:43] offset:512", f"ds_write_b64 v{vZA}, v[44:45] offset:1024",
      "s_waitcnt vmcnt(0)",
      f"v_lshlrev_b32 v{vX3}, 16, v40", f"v_and_b32 v{vX3+1}, 0xffff0000, v40", f"v_lshlrev_b32 v{vX3+2}, 16, v41", f"v_and_b32 v{vX3+3}, 0xffff0000, v41")
    tr_addr(g, vTR1, 12, vI, vG, 6, "s65")
    HALF = opt.get("w1_half", True) and "w12" not in SKIP
    vTR0 = 198
    if HALF:
        g(f"s_lshl_b32 s78, {sA}, 12", f"s_add_u32 s78, s78, {L_WMOD}")
        tr_addr(g, vTR0, 12, vI, vG, 6, "s78")
        for t in range(4):
            if t >= 2:
                g("s_waitcnt vmcnt(1)")
            g(f"s_mov_b32 {sT2}, {t*16*2752}", f"s_add_u32 {sT3}, s78, {t*1024}")
            dma(g, 205, SRD_A, sT2, sT3, "w12")
    tr_addr(g, vTR2, 12, vI, vG, 8, "s66")
    g(f"v_lshrrev_b32 v{vYA}, 2, v8", f"v_lshlrev_b32 v{vYA}, 7, v{vYA}", "v_and_b32 v12, 3, v8", "v_lshlrev_b32 v12, 4, v12",
      f"v_add_u32 v{vYA}, v{vYA}, v12", "v_lshlrev_b32 v12, 6, v5", f"v_add_u32 v{vYA}, v{vYA}, v12",
      f"s_lshl_b32 {sT0}, {sA}, 10", f"v_add_u32 v{vYA}, {sT0}, v{vYA}")
    g(f"v_cmp_gt_u32 vcc, 6, v{vI}", "s_nop 1", f"v_cndmask_b32 v{vAA}, 0, v{vI}, vcc", f"v_lshlrev_b32 v{vAA}, 8, v{vAA}",
      f"v_lshlrev_b32 v12, 4, v{vG}", f"v_add_u32 v{vAA}, v{vAA}, v12", f"v_add_u32 v{vAA}, s68, v{vAA}",
      f"s_lshl_b32 {sT0}, {sA}, 10", f"v_lshlrev_b32 v{vRA}, 4, v0", f"v_add_u32 v{vRA}, {sT0}, v{vRA}")
    g("v_lshrrev_b32 v10, 4, v8", "v_lshlrev_b32 v10, 9, v10", f"v_lshlrev_b32 v11, 4, v{vI}", "v_add_u32 v10, v10, v11",
      "v_lshlrev_b32 v11, 2, v5", f"v_add_u32 v{vUA}, v10, v11", f"v_lshlrev_b32 v{vSA}, 5, v5",
      f"s_lshl_b32 {sT0}, {sA}, 3", f"v_add_u32 v{vSW}, {sT0}, v{vSA}",
      f"s_lshl_b32 {sT0}, {sA}, 7", f"v_lshlrev_b32 v{vGW}, 1, v0", f"v_add_u32 v{vGW}, {sT0}, v{vGW}",
      f"v_and_b32 v14, 1, v{vI}", "v_lshlrev_b32 v14, 6, v14", f"v_lshlrev_b32 v15, 4, v{vG}", "v_add_u32 v14, v14, v15", f"v_add_u32 v{vGR}, {sT0}, v14",
      f"v_lshlrev_b32 v{vPA}, 6, v{vI}", f"v_lshlrev_b32 v9, 4, v{vG}", f"v_add_u32 v{vPA}, v{vPA}, v9",
      f"s_lshl_b32 s68, {sPHI}, 12", f"s_lshl_b32 {sT1}, {sA}, 10", f"s_add_u32 s68, s68, {sT1}", f"s_add_u32 s68, s68, {WS_PS}")

    g("; ---- wo stage: own head x columns 64j..")
    g(f"{LWOP}:")
    DEFER_WO = opt.get("defer_wo", True)
    vBW, vF, vWO, vWT, vOG, vYP, vOR, vOW = 128, 240, 215, 216, 217, 218, 219, 220
    g(f"s_lshl_b32 s64, {sH}, 17", f"s_lshl_b32 s77, {sA}, 15", "s_add_u32 s64, s64, s77", f"s_lshl_b32 s77, {sJ}, 7", "s_add_u32 s64, s64, s77")
    make_srd(g, 72, 12, "s64", 4096 * 512 * 2)
    g(f"v_lshrrev_b32 v{vWO}, 3, v0", f"v_lshlrev_b32 v{vWO}, 10, v{vWO}", "v_and_b32 v10, 7, v0", "v_lshlrev_b32 v10, 4, v10",
      f"v_add_u32 v{vWO}, v{vWO}, v10", f"s_lshl_b32 s77, {sA}, 12", f"s_add_u32 s77, s77, {L_WQ}")

    def wo_dma():
        if "wo" in SKIP:
            return
        for k in range(4):
            g(f"s_mov_b32 {sT2}, {k*8*1024}", f"s_add_u32 m0, s77, {k*1024}", "s_nop 0",
              f"buffer_load_dwordx4 v{vWO}, s[72:75], {sT2} offen nt lds")

    def w1_dma():
        for t in range(4 if HALF else 0, 8):
            g(f"s_mov_b32 {sT2}, {t*16*2752}", f"s_add_u32 {sT3}, s65, {t*1024}")
            dma(g, 205, SRD_A, sT2, sT3, "w12")

    W1_EARLY = opt.get("w1_early", True)

    def wo_frags(w1=False):
        if w1 and W1_EARLY and "w12" not in SKIP:
            l1, l2 = g.lab("now1"), g.lab("w1q")
            g(f"s_cmp_eq_u32 {sPHI}, 0xff", f"s_cbranch_scc1 {l1}")
            w1_dma()
            g(f"s_waitcnt vmcnt({4 if HALF else 8})", f"s_branch {l2}", f"{l1}:", "s_waitcnt vmcnt(0)", f"{l2}:")
        else:
            g("s_waitcnt vmcnt(0)")
        lds_signal(g, L_CNT + 12, 12)
        lds_wait(g, L_CNT + 12, 4, 12)
        for k in range(4):
            tr_read(g, vBW + 4 * k, vWT, k * 4096, 128)
        g("s_waitcnt lgkmcnt(0)")
    if not DEFER_WO:
        wo_dma()
    g(f"s_lshl_b32 {sT0}, {sH}, 10", f"s_add_u32 {sT0}, {sT0}, {WS_ML}",
      f"v_and_b32 v8, 1, v{vG}", "v_lshlrev_b32 v8, 9, v8", "v_and_b32 v9, 3, v0", "v_lshlrev_b32 v9, 7, v9", "v_add_u32 v8, v8, v9",
      f"s_mul_i32 {sT1}, {sTAU}, 0x00400401", f"v_mov_b32 v5, {sT1}")

    def chk_ml():
        g("v_xor_b32 v16, v14, v5", "v_sub_u32 v17, v15, v5", "v_lshrrev_b32 v18, 4, v17", "v_or_b32 v16, v16, v18", "v_cmp_ne_u32 vcc, 0, v16")
    poll(g, "p_ml", lambda: g(f"buffer_load_dwordx4 v[12:15], v8, {srd(SRD_WS)}, {sT0} offen sc1"), chk_ml)
    g("v_mov_b32 v16, v12", "s_nop 1",
      f"v_max_f32_dpp v16, v16, v16 quad_perm:[1,0,3,2] {DPPF}", "s_nop 1",
      f"v_max_f32_dpp v16, v16, v16 quad_perm:[2,3,0,1] {DPPF}",
      "v_sub_f32 v12, v12, v16", "v_exp_f32 v12, v12", "s_nop 0", "v_mul_f32 v13, v13, v12", "s_nop 1",
      f"v_add_f32_dpp v13, v13, v13 quad_perm:[1,0,3,2] {DPPF}", "s_nop 1",
      f"v_add_f32_dpp v13, v13, v13 quad_perm:[2,3,0,1] {DPPF}",
      "v_rcp_f32 v13, v13", "s_nop 0", "v_mul_f32 v12, v12, v13", "s_nop 1")
    for r in range(4):
        g(f"v_mov_b32_dpp v{vF+r}, v12 quad_perm:[{r},{r},{r},{r}] {DPPF}")
    tr_addr(g, vWT, 12, vI, vG, 7)
    g(f"s_lshl_b32 {sT0}, {sA}, 5", f"s_add_u32 {sT0}, {sT0}, {L_WQ}", f"v_add_u32 v{vWT}, {sT0}, v{vWT}")
    if not DEFER_WO:
        wo_frags()
    g(f"s_lshl_b32 s64, {sH}, 11", f"s_add_u32 s64, s64, {WS_OS}")
    if opt.get("o_coop", True):
        g(f"s_lshl_b32 {sT1}, {sA}, 6", f"s_add_u32 s64, s64, {sT1}")
    g(f"v_and_b32 v{vOG}, 7, v{vI}", f"v_lshlrev_b32 v{vOG}, 8, v{vOG}", f"v_lshlrev_b32 v7, 4, v{vG}", f"v_add_u32 v{vOG}, v{vOG}, v7",
      f"v_and_b32 v{vOR}, 7, v{vI}", f"v_lshlrev_b32 v{vOR}, 4, v{vOR}", f"v_lshlrev_b32 v9, 7, v{vG}", f"v_add_u32 v{vOR}, v{vOR}, v9",
      f"s_lshl_b32 {sT1}, {sA}, 9", f"v_add_u32 v{vOW}, {sT1}, v{vOR}",
      f"v_lshlrev_b32 v{vYP}, 6, v{vG}", f"v_lshlrev_b32 v9, 2, v{vI}", f"v_add_u32 v{vYP}, v{vYP}, v9",
      f"s_lshl_b32 s76, {sX}, 14", f"s_lshl_b32 {sT1}, {sJ}, 11", f"s_add_u32 s76, s76, {sT1}", f"s_add_u32 s76, s76, {WS_YP}",
      f"s_and_b32 {sT1}, {sR}, 3", f"s_lshl_b32 {sT1}, {sT1}, 9", f"s_add_u32 s76, s76, {sT1}", f"s_lshl_b32 {sT1}, {sA}, 7", f"s_add_u32 s76, s76, {sT1}")
    lds_wait(g, L_CNT + 28, opt.get("s3_cnt", 4), 12, opt.get("s3_long", True))
    if DEFER_WO:
        wo_dma()
        stamp(g, 5)
        wo_frags(True)
    stamp(g, 6)

    if opt.get("o_coop", True):
        g("s_mov_b32 exec_lo, 0x00ff00ff", "s_mov_b32 exec_hi, 0x00ff00ff")
        poll(g, "p_o", lambda: g(f"buffer_load_dwordx4 v[16:19], v{vOG}, {srd(SRD_WS)}, s64 offen sc1"),
             lambda: check_sentinel(g, range(16, 20), 12), sleep=opt.get("o_sleep", 0))
        g(f"ds_write_b128 v{vOW}, v[16:19] offset:{L_RED2}")
        lds_signal(g, L_CNT + 16, 12)
        lds_wait(g, L_CNT + 16, 4, 12)
        for k in range(4):
            g(f"ds_read_b128 {v(16+4*k,4)}, v{vOR} offset:{L_RED2 + k*512}")
        g("s_waitcnt lgkmcnt(0)")
    else:
        def isso():
            for k in range(4):
                g(f"buffer_load_dwordx4 {v(16+4*k,4)}, v{vOG}, {srd(SRD_WS)}, s64 offen offset:{k*64} sc1")
        poll(g, "p_o", isso, lambda: check_sentinel(g, range(16, 32), 12))
    stamp(g, 7)
    for k in range(4):
        mfma(g, 32, 16 + 4 * k, vBW + 4 * k, k == 0)
    g("s_mov_b32 exec_hi, 0", "s_nop 6",
      f"v_mul_f32 v32, v32, v{vF}", f"v_fmac_f32 v32, v33, v{vF+1}", f"v_fmac_f32 v32, v34, v{vF+2}", f"v_fmac_f32 v32, v35, v{vF+3}")
    tagify(32, 32)
    store_sel(g, "s71", f"buffer_store_dword v32, v{vYP}, {srd(SRD_WS)}, s76 offen @SC ;@yp")
    g("s_mov_b64 exec, -1")
    g(f"s_cmp_lg_u32 {sPHI}, 0xff", f"s_cbranch_scc1 {LT3}")
    g("; ---- leaders: sum of the four head partials of column block r")
    g(f"s_cmp_ge_u32 {sR}, 8", "s_cbranch_scc1 L_exit", f"s_cmp_lg_u32 {sA}, 0", "s_cbranch_scc1 L_exit")
    g(f"s_lshl_b32 s66, {sX}, 14", f"s_lshl_b32 {sT1}, {sR}, 11", f"s_add_u32 s66, s66, {sT1}", f"s_add_u32 s66, s66, {WS_YP}",
      f"s_lshl_b32 s67, {sX}, 12", f"s_lshl_b32 {sT1}, {sR}, 9", f"s_add_u32 s67, s67, {sT1}", f"s_add_u32 s67, s67, {WS_YS}",
      "v_lshlrev_b32 v8, 4, v0")
    poll(g, "p_yp", lambda: g(f"buffer_load_dwordx4 v[16:19], v8, {srd(SRD_WS)}, s66 offen sc1",
                              f"buffer_load_dwordx4 v[20:23], v8, {srd(SRD_WS)}, s66 offen offset:1024 sc1"),
         lambda: check_intag(g, range(16, 24), vTAU, 12))
    stamp(g, 9)
    g("v_pk_add_f32 v[16:17], v[16:17], v[20:21]", "v_pk_add_f32 v[18:19], v[18:19], v[22:23]")
    swapreduce(g, range(16, 20), "v_add_f32", range(20, 24), "32")
    for e in range(4):
        tagify(16 + e, 16 + e)
    g("s_mov_b32 exec_hi, 0", f"buffer_store_dwordx4 v[16:19], v8, {srd(SRD_WS)}, s67 offen sc1 ;@ypub")
    stamp(g, 8)
    end(g)

    g(f"{LT3}:")
    if not (W1_EARLY and DEFER_WO):
        w1_dma()
    for t in range(8):
        g(f"s_mov_b32 {sT2}, {t*4*1024}", f"s_add_u32 {sT3}, s66, {t*1024}")
        dma(g, 206, SRD_B, sT2, sT3, "w12")
    g("s_waitcnt vmcnt(8)" if "w12" not in SKIP else "s_waitcnt vmcnt(0)")
    for tau in range(2):
        for k in range(4):
            tr_read(g, vB1 + (tau * 4 + k) * 4, vTR0 if HALF and k < 2 else vTR1, k * 2048 + tau * 32, 64)
    if not opt.get("w2late", False):
        g("s_waitcnt vmcnt(0)")
        for t in range(8):
            tr_read(g, vB2 + 4 * t, vTR2, t * 32, 256)
    g("s_waitcnt lgkmcnt(0)")
    stamp(g, 10 if opt.get("fine") else 6)

    def pk(d, a_, b_):
        g(f"v_pk_add_f32 {v(d,2)}, {v(a_,2)}, {v(b_,2)}")

    def issy():
        for G_ in range(8):
            g(f"s_mov_b32 {sT1}, {WS_YS + G_*4096}", f"buffer_load_dwordx4 {v(16+4*G_,4)}, v{vYA}, {srd(SRD_WS)}, {sT1} offen sc1")
    if opt.get("split", True):
        poll2(g, "p_y", issy, 4, lambda: intag_part(g, range(16, 32), vTAU, 12, True), lambda: intag_part(g, range(32, 48), vTAU, 12, False))
    else:
        poll(g, "p_y", issy, lambda: check_intag(g, range(16, 48), vTAU, 12))
    stamp(g, 7)
    if opt.get("probe") == "ygot":
        g("s_memrealtime s[92:93]")
    lab = g.lab("noep")
    g(f"s_or_b32 {sT0}, {sPHI}, {sA}", f"s_cmp_lg_u32 {sT0}, 0", f"s_cbranch_scc1 {lab}", "s_add_u32 s30, s30, 1",
      "v_mov_b32 v12, 0", "v_mov_b32 v13, s30", "s_mov_b64 exec, 1", f"buffer_store_dword v13, v12, {srd(SRD_WS)}, 0 offen",
      "s_mov_b64 exec, -1", f"{lab}:")
    for e in (0, 2):
        pk(16 + e, 16 + e, 20 + e); pk(24 + e, 24 + e, 28 + e); pk(32 + e, 32 + e, 36 + e); pk(40 + e, 40 + e, 44 + e)
    for e in (0, 2):
        pk(16 + e, 16 + e, 24 + e); pk(32 + e, 32 + e, 40 + e)
    for e in (0, 2):
        pk(16 + e, 16 + e, 32 + e)
    for e in (0, 2):
        g(f"v_pk_fma_f32 {v(16+e,2)}, {v(16+e,2)}, {v(vGA3+e,2)}, {v(vX3+e,2)}")
    for e in (0, 2):
        g(f"v_pk_mul_f32 {v(24+e,2)}, {v(16+e,2)}, {v(vC3+e,2)}")
    g("v_cvt_pk_bf16_f32 v24, v24, v25", "v_cvt_pk_bf16_f32 v25, v26, v27", f"ds_write_b64 v{vZA}, v[24:25]")
    for k in range(4):
        g(f"ds_read_b128 {v(28+4*k,4)}, v{vAA} offset:{k*64}")
    g(f"ds_write_b128 v{vXA}, v[16:19] offset:{L_X1}",
      "v_pk_add_f32 v[20:21], v[16:17], v[18:19]", "v_mul_f32 v49, v16, v16", "v_add_f32 v48, v20, v21",
      "v_fmac_f32 v49, v17, v17", "v_fmac_f32 v49, v18, v18", "v_fmac_f32 v49, v19, v19")
    rowreduce(g, [48, 49], "v_add_f32")
    g("s_waitcnt lgkmcnt(1)")
    for k in range(4):
        for tau in range(2):
            mfma(g, 16 + 4 * tau, 28 + 4 * k, vB1 + (tau * 4 + k) * 4, k == 0)
    if opt.get("w2late", False):
        for t in range(8):
            tr_read(g, vB2 + 4 * t, vTR2, t * 32, 256)
    swapreduce(g, [48, 49], "v_add_f32", [50, 51], "16")
    g("s_mov_b32 exec_lo, 1", "s_mov_b32 exec_hi, 1", f"ds_write_b64 v{vSW}, v[48:49] offset:{L_STAT}",
      "s_mov_b32 exec_lo, -1", "s_mov_b32 exec_hi, 0",
      f"ds_write_b128 v{vRA}, v[16:19] offset:{L_RED3}", f"ds_write_b128 v{vRA}, v[20:23] offset:{L_RED3 + 512}",
      "s_mov_b64 exec, -1", "s_waitcnt lgkmcnt(0)", "s_barrier")
    if opt.get("fine"): stamp(g, 2)
    for w in range(4):
        g(f"ds_read_b32 v{12+w}, v{vUA} offset:{L_RED3 + w*1024}", f"ds_read_b32 v{16+w}, v{vUA} offset:{L_RED3 + w*1024 + 8}",
          f"ds_read_b32 v{20+w}, v{vUA} offset:{L_RED3 + w*1024 + 256}")
    g(f"ds_read_b128 v[24:27], v{vSA} offset:{L_STAT}", f"ds_read_b128 v[28:31], v{vSA} offset:{L_STAT + 16}", "s_waitcnt lgkmcnt(0)")
    pk(24, 24, 26); pk(28, 28, 30); pk(12, 12, 14); pk(16, 16, 18); pk(20, 20, 22); pk(24, 24, 28)
    g("v_add_f32 v12, v12, v13", "v_add_f32 v16, v16, v17", "v_add_f32 v20, v20, v21")
    g(f"v_mul_f32 v24, {hex(f2u(1/512))}, v24", f"v_mul_f32 v25, {hex(f2u(1/512))}, v25",
      "v_fma_f32 v25, -v24, v24, v25", f"v_add_f32 v25, {hex(f2u(1e-5))}, v25", "v_rsq_f32 v25, v25",
      "v_fma_f32 v12, -v24, v16, v12", "v_fma_f32 v12, v12, v25, v20")
    silu(g, [12], [13])
    g("v_cvt_pk_bf16_f32 v12, v12, v12", f"ds_write_b16 v{vGW}, v12 offset:{L_ACTG}",
      f"ds_read_b128 v[16:19], v{vGR} offset:{L_ACTG}", "s_waitcnt lgkmcnt(0)")
    if opt.get("fine"): stamp(g, 3)
    for t in range(8):
        mfma(g, 128 + 4 * t, vB2 + 4 * t, 16, True)
    if opt.get("ps1", False):
        g("s_mov_b32 s60, 0xcccccccc", "s_mov_b32 s61, 0xcccccccc", "s_mov_b32 s62, 0xf0f0f0f0", "s_mov_b32 s63, 0xf0f0f0f0",
          "s_mov_b32 s78, 0xff00ff00", "s_mov_b32 s79, 0xff00ff00")
        for tp in range(4):
            for e in range(4):
                g(f"v_cndmask_b32 v{128+8*tp+e}, v{128+8*tp+e}, v{132+8*tp+e}, s[60:61]")
        for tp in range(2):
            for e in range(4):
                g(f"v_cndmask_b32 v{128+16*tp+e}, v{128+16*tp+e}, v{136+16*tp+e}, s[62:63]")
        for e in range(4):
            g(f"v_cndmask_b32 v{128+e}, v{128+e}, v{144+e}, s[78:79]")
        for e in range(4):
            tagify(128 + e, 128 + e)
        g(f"buffer_store_dwordx4 v[128:131], v{vPA}, {srd(SRD_WS)}, s68 offen sc1 ;@pspub")
    else:
        g(*EX8)
        for t in range(8):
            if t == 7:
                g("s_nop 1")
            for e in range(4):
                tagify(128 + 4 * t + e, 128 + 4 * t + e)
            g(f"buffer_store_dwordx4 {v(128+4*t,4)}, v{vPA}, {srd(SRD_WS)}, s68 offen offset:{t*128} sc1 ;@pspub")
    g("s_mov_b64 exec, -1")
    stamp(g, 8)
    g(f"s_cmp_lg_u32 {sA}, 0", "s_cbranch_scc1 L_exit", f"s_cmp_ge_u32 {sPHI}, 32", "s_cbranch_scc1 L_exit")
    g("v_lshrrev_b32 v9, 3, v0", "v_lshlrev_b32 v8, 12, v9", "v_and_b32 v10, 7, v0", "v_lshlrev_b32 v10, 4, v10", "v_add_u32 v8, v8, v10",
      "v_cmp_gt_u32 vcc, 3, v9", f"s_lshl_b32 {sT0}, {sPHI}, 7", f"s_add_u32 {sT0}, {sT0}, {WS_PS}",
      "v_cndmask_b32 v11, v10, v8, vcc", "v_cndmask_b32 v12, 0, 1.0, vcc",
      f"ds_read_b128 v[44:47], v{vFA} offset:{L_X1}", f"v_lshrrev_b32 v48, 1, v{vFA}",
      "s_mov_b32 s72, s24", "s_mov_b32 s73, s25", "s_mov_b32 s74, 2048", "s_mov_b32 s75, 0x20000")

    def issp():
        for k in range(6):
            vv = 11 if k == 5 else 8
            g(f"s_add_u32 {sT1}, {sT0}, {k*8*4096}", f"buffer_load_dwordx4 {v(16+4*k,4)}, v{vv}, {srd(SRD_WS)}, {sT1} offen sc1")
    if opt.get("split", True):
        poll2(g, "p_ps", issp, 3, lambda: intag_part(g, range(16, 28), vTAU, 13, True), lambda: intag_part(g, range(28, 40), vTAU, 13, False))
    else:
        poll(g, "p_ps", issp, lambda: check_intag(g, range(16, 40), vTAU, 13))
    stamp(g, 9)
    for e in (0, 2):
        pk(16 + e, 16 + e, 20 + e); pk(24 + e, 24 + e, 28 + e)
    for e in range(4):
        g(f"v_fma_f32 v{32+e}, v{36+e}, v12, v{32+e}")
    for e in (0, 2):
        pk(16 + e, 16 + e, 24 + e)
    for e in (0, 2):
        pk(16 + e, 16 + e, 32 + e)
    g("s_nop 0")
    for e in range(4):
        g(f"v_add_f32_dpp v{16+e}, v{16+e}, v{16+e} row_ror:8 {DPPF}")
    swapreduce(g, range(16, 20), "v_add_f32", range(20, 24), "16")
    swapreduce(g, range(16, 20), "v_add_f32", range(20, 24), "32")
    g("s_waitcnt lgkmcnt(0)")
    for e in (0, 2):
        g(f"v_pk_fma_f32 {v(16+e,2)}, {v(16+e,2)}, {v(vGB+e,2)}, {v(44+e,2)}")
    g("v_cvt_pk_bf16_f32 v16, v16, v17", "v_cvt_pk_bf16_f32 v17, v18, v19",
      "s_mov_b64 exec, 0xff", "buffer_store_dwordx2 v[16:17], v48, s[72:75], 0 offen")
    stamp(g, 10)
    dbgmax(g, 4)
    if opt.get("probe"):
        lp = g.lab("probe")
        g(f"s_cmp_lg_u32 {sPHI}, 0", "s_cbranch_scc1 L_exit", "s_memrealtime s[94:95]", "s_waitcnt lgkmcnt(0)")
        if opt["probe"] == "total":
            g("s_mov_b32 s92, s94")
        if opt["probe"] == "zero":
            g("s_mov_b32 s92, s90")
        if opt["probe"] == "loc":
            g("s_mul_i32 s92, s71, 800", "s_add_u32 s92, s92, s90")
        g("s_sub_u32 s92, s92, s90", "s_min_u32 s92, s92, 10000", "s_add_u32 s92, s92, s94",
          f"{lp}:", "s_memrealtime s[96:97]", "s_waitcnt lgkmcnt(0)", "s_sub_u32 s96, s96, s92", "s_cmp_lt_i32 s96, 0", f"s_cbranch_scc1 {lp}")
    end(g)


DESC = """\
;
; One persistent launch, 256 workgroups (one per CU) of 8 waves.  id = x + 8*r; head h = 4x + (r&3), j = r>>2, batch b = j>>2,
; key split s = j&3 (1024 keys per workgroup).
;   waves 4-7  helpers: mod = silu(c) @ w_mod (K-quarter partials), h1 = LN(x)*(1+ca)+sa, q partials, q gather; later the wo stage
; Hand-offs through d_ws carry a per-launch tag (epoch word + 1) in the low 10 bits of every f32 word; the bf16 O slots use a
; all 32 workgroups of the group report the same XCC id and write-through stores otherwise, so any placement is correct.
"""


def generate(opt=None):
    global STAMPS, SKIP, POLL_LIMIT, DBGT, NL, LDS_SIZE, LW_SLEEP
    LW_SLEEP = (opt or {}).get("lw_sleep", 0)
    opt = dict(opt or {})
    DBGT = opt.get("dbgt", False)
    POLL_LIMIT = opt.get("poll_limit", 400000)
    SKIP = set(opt.get("skip", ()))
    STAMPS = opt.get("stamps", False)
    NL = opt.get("NL", 24)
    LDS_SIZE = L_KB + 4 * NL * 1024
    g = G()
    hdr = open("cdna_kernels/" + NAME + ".s.ref").read().split("\n")
    for line in hdr:
        if line.startswith(";") and "@launch" not in line and "Override launch" not in line and "grid=ceil" not in line:
            g(line)
        elif not line.startswith(";"):
            break
    g(DESC.rstrip("\n"))
    g(f"; @launch grid=(256,1,1) block=(512,1,1) lds={LDS_SIZE}")
    g('.amdgcn_target "amdgcn-amd-amdhsa--gfx950"', ".text", f".globl {NAME}_kernel", ".p2align 8",
      f".type {NAME}_kernel,@function", f"{NAME}_kernel:")
    stamp(g, 0)
    gen_entry(g, opt)
    if STAMPS:
        for k in range(1, NSTAMP):
            g(f"s_mov_b32 s{80+2*k}, 0")
    dbgmax(g, 0, True)
    dbgmax(g, 1)
    if opt.get("st_ka"):
        stamp(g, 8)
    g("s_cmp_ge_u32 s3, 4", "s_cbranch_scc1 L_aux")
    gen_stream(g, opt)
    g("L_aux:")
    if 'aux' in SKIP:
        g("s_endpgm")
    gen_aux(g, opt)
    g("L_exit:")
    end(g)
    g("L_end:", "s_endpgm")
    g('.section .rodata,"a"', ".p2align 6", f".amdhsa_kernel {NAME}_kernel",
      "  .amdhsa_next_free_vgpr 256", "  .amdhsa_next_free_sgpr 102", "  .amdhsa_accum_offset 256",
      "  .amdhsa_group_segment_fixed_size 0", "  .amdhsa_kernarg_size 104", "  .amdhsa_user_sgpr_count 2",
      "  .amdhsa_user_sgpr_kernarg_segment_ptr 1", "  .amdhsa_system_sgpr_workgroup_id_x 1",
      "  .amdhsa_float_denorm_mode_32 3", ".end_amdhsa_kernel")
    txt = g.text()
    drop = set(opt.get("drop", ()))
    kept = []
    for line in txt.split("\n"):
        if ";@" in line:
            nm = line.split(";@")[1].strip()
            line = line.split(";@")[0].rstrip()
            if nm in drop:
                continue
        kept.append(line)
    return "\n".join(kept)


if __name__ == "__main__":
    out = sys.argv[1] if len(sys.argv) > 1 else "cdna_kernels/" + NAME + ".s"
    opt = eval(sys.argv[2]) if len(sys.argv) > 2 else {}
    open(out, "w").write(generate(opt))
    print("wrote", out)
```
